```python
import torch

def _softmax(x, axis=-1):
    return torch.softmax(x, dim=axis)
def _gelu(x):
    return torch.nn.functional.gelu(x, approximate="tanh")
def _silu(x):
    return torch.nn.functional.silu(x)
def _sigmoid(x):
    return torch.sigmoid(x)
def _layernorm(x, axis=-1, eps=1e-5):
    m = x.mean(dim=axis, keepdim=True)
    v = x.var(dim=axis, keepdim=True, unbiased=False)
    return (x - m) / torch.sqrt(v + eps)
def _scatter_add(tgt, idx, src, axis=0):
    return tgt.clone().index_add_(axis, idx, src)
def _segment_sum(src, seg, n):
    out = torch.zeros((n,) + src.shape[1:], dtype=src.dtype)
    return out.index_add_(0, seg, src)
def _pad(x, pw):
    flat = tuple(v for pair in reversed(pw) for v in pair)
    return torch.nn.functional.pad(x, flat)

kernel_name = 'concat_heads__mha_block__mha_block__prompt'

def setup_inputs():

    _w = (lambda a: (lambda t: t.to(torch.bfloat16) if t.is_floating_point() else t)(torch.as_tensor(a)))
    def _A_setup():
        B, S, D, H = 1, 2048, 512, 32
        return {
            "x": _w((lambda *s: torch.randn(*s, dtype=torch.bfloat16) * 0.2)(B, S, D)),
            "wqkv": _w((lambda *s: torch.randn(*s, dtype=torch.bfloat16) * 0.2)(D, 3 * D)),
            "wo": _w((lambda *s: torch.randn(*s, dtype=torch.bfloat16) * 0.05)(D, D)),
        }
    _A_in = _A_setup()

    def _B_setup():
        B, S, D, H = 1, 2048, 512, 32
        return {
            "x": _w((lambda *s: torch.randn(*s, dtype=torch.bfloat16) * 0.2)(B, S, D)),
            "wqkv": _w((lambda *s: torch.randn(*s, dtype=torch.bfloat16) * 0.2)(D, 3 * D)),
            "wo": _w((lambda *s: torch.randn(*s, dtype=torch.bfloat16) * 0.05)(D, D)),
        }
    _B_in = _B_setup()

    return {
        "A_x": _A_in["x"],
        "A_wqkv": _A_in["wqkv"],
        "A_wo": _A_in["wo"],
        "B_x": _B_in["x"],
        "B_wqkv": _B_in["wqkv"],
        "B_wo": _B_in["wo"],
    }

def reference(A_x, A_wqkv, A_wo, B_x, B_wqkv, B_wo):
    def _A_ref(x, wqkv, wo):
        B, S, D = x.shape
        H = 32
        Dh = D // H
        qkv = (lambda x, *d: x.permute(*d))((x @ wqkv).reshape(B, S, 3, H, Dh), 2, 0, 3, 1, 4)
        q, k, v = qkv[0], qkv[1], qkv[2]
        scores = torch.einsum("bhqd,bhkd->bhqk", q, k) * (Dh ** -0.5)
        p = _softmax(scores, axis=-1)
        o = torch.einsum("bhqk,bhkd->bhqd", p, v)
        return (lambda x, *d: x.permute(*d))(o, 0, 2, 1, 3).reshape(B, S, D) @ wo

    def _B_ref(x, wqkv, wo):
        B, S, D = x.shape
        H = 32
        Dh = D // H
        qkv = (lambda x, *d: x.permute(*d))((x @ wqkv).reshape(B, S, 3, H, Dh), 2, 0, 3, 1, 4)
        q, k, v = qkv[0], qkv[1], qkv[2]
        scores = torch.einsum("bhqd,bhkd->bhqk", q, k) * (Dh ** -0.5)
        p = _softmax(scores, axis=-1)
        o = torch.einsum("bhqk,bhkd->bhqd", p, v)
        return (lambda x, *d: x.permute(*d))(o, 0, 2, 1, 3).reshape(B, S, D) @ wo

    a = _A_ref(A_x, A_wqkv, A_wo)
    b = _B_ref(B_x, B_wqkv, B_wo)
    return torch.concatenate([a, b], axis=-1)
```

```python
import sys, math, struct

NAME = "concat_heads__mha_block__mha_block__prompt"
QF_OFF = 0
KV_OFF = 4 << 20
OF_OFF = 12 << 20
WS_USED = 16 << 20
QSCALE = 0.25 * math.log2(math.e)
def f32bits(x): return struct.unpack("<I", struct.pack("<f", x))[0]

class Asm:
    def __init__(self): self.l = []
    def __call__(self, *lines):
        for x in lines:
            if isinstance(x, (list, tuple)): self(*x)
            else: self.l.append("    " + x if not x.endswith(":") else x)
    def c(self, s): self.l.append("    ; " + s)
    def text(self): return "\n".join(self.l)

def vr(b, n): return f"v[{b}:{b+n-1}]"
def mfma(d, a, b, c):
    cs = vr(c, 16) if isinstance(c, int) else c
    return f"v_mfma_f32_32x32x16_bf16 {vr(d,16)}, {vr(a,4)}, {vr(b,4)}, {cs}"
def smf(d, a, b, idx): return f"v_smfmac_f32_32x32x32_bf16 {vr(d,16)}, {vr(a,4)}, {vr(b,8)}, v{idx}"

def header(a, kname):
    a.l += [f".globl {kname}", ".p2align 8", f".type {kname},@function", f"{kname}:"]

def descriptor(kname, nv, ns):
    acc = (nv + 3) // 4 * 4
    return f""".section .rodata,"a"
.p2align 6
.amdhsa_kernel {kname}
  .amdhsa_next_free_vgpr {nv}
  .amdhsa_next_free_sgpr {ns}
  .amdhsa_accum_offset {acc}
  .amdhsa_group_segment_fixed_size 0
  .amdhsa_kernarg_size 72
  .amdhsa_user_sgpr_count 2
  .amdhsa_user_sgpr_kernarg_segment_ptr 1
  .amdhsa_system_sgpr_workgroup_id_x 1
.end_amdhsa_kernel
.text"""

def gen_k1(a):
    k = "qkv_kernel"
    header(a, k)
    a("s_cmp_ge_u32 s2, 256", "s_cbranch_scc1 K1_done")
    a("s_load_dwordx4 s[4:7], s[0:1], 0",
      "s_load_dwordx4 s[8:11], s[0:1], 24",
      "s_load_dwordx2 s[12:13], s[0:1], 64")
    a("s_and_b32 s14, s2, 7", "s_lshr_b32 s15, s2, 3",
      "s_lshr_b32 s16, s14, 2",
      "s_and_b32 s17, s14, 3", "s_lshl_b32 s17, s17, 1", "s_lshr_b32 s18, s15, 4", "s_add_u32 s17, s17, s18",
      "s_and_b32 s18, s15, 15")
    a("v_lshrrev_b32 v1, 6, v0", "v_and_b32 v0, 63, v0", "s_nop 0", "v_readfirstlane_b32 s19, v1")
    a("s_waitcnt lgkmcnt(0)")
    a("s_cmp_eq_u32 s16, 0", "s_cselect_b32 s4, s4, s8", "s_cselect_b32 s5, s5, s9", "s_cselect_b32 s6, s6, s10", "s_cselect_b32 s7, s7, s11")
    a("s_cmp_ge_u32 s19, 4", "s_cbranch_scc1 K1_loader")
    XA = [2, 3, 4, 5]; WA = [6, 7]
    ACC = 16
    FX = [112, 132]
    NV = 160
    a.c("tt = w&1, cb = w>>1")
    a("s_and_b32 s20, s19, 1", "s_lshr_b32 s21, s19, 1")
    a("v_and_b32 v8, 31, v0",
      "v_lshrrev_b32 v9, 5, v0",
      "v_bfe_u32 v10, v0, 1, 3",
      "v_xor_b32 v10, v10, v9",
      "v_lshlrev_b32 v10, 4, v10",
      "v_lshl_add_u32 v10, v8, 7, v10",
      "s_lshl_b32 s22, s20, 13", "s_add_u32 s22, s22, 98304",
      "v_add_u32 v2, s22, v10",
      "v_xor_b32 v3, 32, v2", "v_xor_b32 v4, 64, v2", "v_xor_b32 v5, 96, v2")
    a("v_bfe_u32 v10, v0, 2, 2",
      "v_lshl_add_u32 v11, v9, 3, v10",
      "v_lshlrev_b32 v11, 7, v11",
      "v_bfe_u32 v12, v0, 3, 1",
      "v_xor_b32 v12, s21, v12",
      "v_lshlrev_b32 v12, 6, v12",
      "v_add_u32 v11, v11, v12",
      "v_bfe_u32 v12, v0, 4, 1",
      "v_lshl_add_u32 v11, v12, 5, v11",
      "v_and_b32 v12, 3, v0",
      "v_lshl_add_u32 v6, v12, 3, v11",
      "v_add_u32 v7, 49152, v6")
    a("v_lshlrev_b32 v13, 4, v0")
    a("v_and_b32 v10, 0x33, v0", "v_bfe_u32 v11, v0, 2, 1", "v_lshl_add_u32 v10, v11, 3, v10",
      "v_bfe_u32 v11, v0, 3, 1", "v_lshl_add_u32 v10, v11, 2, v10", "v_lshlrev_b32 v14, 4, v10")
    a("v_and_b32 v10, 15, v0", "v_lshlrev_b32 v10, 4, v10",
      "v_lshl_add_u32 v10, v9, 8, v10",
      "v_bfe_u32 v11, v0, 4, 1", "v_lshlrev_b32 v11, 17, v11",
      "v_add_u32 v15, v10, v11")
    a("s_mov_b32 s24, s12", "s_and_b32 s25, s13, 0xffff", f"s_mov_b32 s26, {WS_USED}", "s_mov_b32 s27, 0x20000")
    a("s_lshl_b32 s28, s17, 2", "s_lshl_b32 s29, s21, 1", "s_add_u32 s28, s28, s29",
      "s_lshl_b32 s29, s18, 2", "s_lshl_b32 s30, s20, 1", "s_add_u32 s29, s29, s30",
      "s_lshl_b32 s30, s16, 21", "s_lshl_b32 s31, s28, 16", "s_add_u32 s30, s30, s31", "s_lshl_b32 s31, s29, 10", "s_add_u32 s30, s30, s31",
      "s_add_u32 s31, s30, 65536",
      "s_lshl_b32 s32, s16, 22", "s_lshl_b32 s33, s28, 17", "s_add_u32 s32, s32, s33", "s_lshl_b32 s33, s29, 11", "s_add_u32 s32, s32, s33",
      f"s_add_u32 s32, s32, {KV_OFF}", "s_add_u32 s33, s32, 131072",
      f"s_mov_b32 s34, {f32bits(QSCALE):#x}")
    def reads(c, s, buf):
        slot = c % 4
        out = []
        for tile in range(2):
            out.append(f"ds_read_b128 {vr(buf + tile*4, 4)}, v{XA[s]} offset:{slot*16384 + tile*4096}")
        for seg in range(3):
            for j in range(2):
                out.append(f"ds_read_b64_tr_b16 {vr(buf + 8 + seg*4 + j*2, 2)}, v{WA[slot//2]} offset:{(slot%2)*24576 + seg*8192 + s*2048 + j*512}")
        return out
    def mms(buf, first):
        out = []
        for tile in range(2):
            for seg in range(3):
                d = ACC + (tile*3 + seg)*16
                x = buf + tile*4; w = buf + 8 + seg*4
                cs = "0" if first else d
                out.append(mfma(d, w, x, cs) if seg < 2 else mfma(d, x, w, cs))
        return out
    step = 0
    a("s_barrier")
    a(reads(0, 0, FX[0]))
    for c in range(8):
        for s in range(4):
            cur = FX[step % 2]; nxt = FX[(step + 1) % 2]
            if s < 3:
                a(reads(c, s + 1, nxt)); a("s_waitcnt lgkmcnt(8)")
            elif c < 7:
                a("s_waitcnt lgkmcnt(0)", "s_barrier"); a(reads(c + 1, 0, nxt))
            else:
                a("s_waitcnt lgkmcnt(0)")
            a(mms(cur, step == 0))
            step += 1
    a("s_nop 15")
    T = 112
    u = 0
    for tile in range(2):
        for seg in range(3):
            d = ACC + (tile*3 + seg)*16
            if seg == 0:
                for r in range(16): a(f"v_mul_f32 v{d+r}, s34, v{d+r}")
            for hh in range(2):
                t = T + (u % 8)*4; u += 1
                for r in range(4): a(f"v_cvt_pk_bf16_f32 v{t+r}, v{d+hh*8+2*r}, v{d+hh*8+2*r+1}")
                if seg == 0:
                    a(f"buffer_store_dwordx4 {vr(t,4)}, v13, s[24:27], s{30+hh} offen offset:{tile*1024}")
                elif seg == 1:
                    a(f"buffer_store_dwordx4 {vr(t,4)}, v14, s[24:27], s{32+hh} offen offset:{tile*2048}")
                else:
                    a(f"buffer_store_dwordx4 {vr(t,4)}, v15, s[24:27], s32 offen offset:{tile*2048 + 1024 + hh*512}")
    a("s_endpgm")
    a("K1_loader:")
    a("s_sub_u32 s19, s19, 4")
    a("s_lshl_b32 s20, s18, 17", "s_add_u32 s24, s4, s20", "s_addc_u32 s25, s5, 0", "s_and_b32 s25, s25, 0xffff",
      "s_mov_b32 s26, 131072", "s_mov_b32 s27, 0x20000")
    a("s_lshl_b32 s20, s17, 7", "s_add_u32 s28, s6, s20", "s_addc_u32 s29, s7, 0", "s_and_b32 s29, s29, 0xffff",
      f"s_sub_u32 s30, {512*3072}, s20", "s_mov_b32 s31, 0x20000")
    a("s_and_b32 s20, s19, 1", "s_lshl_b32 s20, s20, 2",
      "v_lshrrev_b32 v2, 4, v0", "v_add_u32 v2, s20, v2", "v_and_b32 v3, 7, v0", "v_xor_b32 v2, v2, v3", "v_lshlrev_b32 v2, 4, v2",
      "v_lshrrev_b32 v4, 3, v0", "v_lshl_add_u32 v2, v4, 10, v2")
    a("v_bfe_u32 v5, v0, 4, 1", "v_lshlrev_b32 v5, 2, v5", "v_xor_b32 v5, v5, v3", "v_lshlrev_b32 v5, 4, v5",
      "v_mul_u32_u24 v4, 3072, v4", "v_add_u32 v3, v4, v5")
    a("s_lshl_b32 s32, s19, 13", "s_add_u32 s33, s32, 32768", "s_add_u32 s34, s32, 65536", "s_add_u32 s35, s32, 98304",
      "s_lshl_b32 s36, s19, 10", "s_mul_i32 s37, s19, 24576")
    def issue(c):
        slot = c % 4
        out = []
        for aa in range(2):
            out.append(f"s_add_u32 s38, s37, {c*196608 + aa*4*24576}")
            for seg in range(3):
                out += [f"s_add_u32 m0, s36, {slot*24576 + seg*8192 + aa*4096 - seg*1024}", "s_nop 0",
                        f"buffer_load_dwordx4 v3, s[28:31], s38 offen offset:{seg*1024} lds"]
        for aa in range(4):
            out += [f"s_add_u32 m0, s36, {98304 + slot*16384 + aa*4096 - c*128}", "s_nop 0",
                    f"buffer_load_dwordx4 v2, s[24:27], s{32+aa} offen offset:{c*128} lds"]
        return out
    for c in range(4): a(issue(c))
    waits = [30, 20, 20, 20, 20, 20, 10, 0]
    for c in range(8):
        a(f"s_waitcnt vmcnt({waits[c]})", "s_barrier")
        if 1 <= c <= 4: a(issue(c + 3))
    a("K1_done:", "s_endpgm")
    a.l.append(descriptor(k, NV, 48))

def gen_k2(a):
    k = "attn_kernel"
    header(a, k)
    O = 0; Q = 16; S = [20, 36, 52]; KB = [68, 72]; VB = [76, 84]; IDX = 92; KA = 93; VA = 94; LO = 95; T = 96; CM = 100
    NV = 116
    a("s_cmp_ge_u32 s2, 256", "s_cbranch_scc1 K2_done")
    a("s_load_dwordx2 s[12:13], s[0:1], 64")
    a("s_and_b32 s14, s2, 7", "s_lshr_b32 s15, s2, 3",
      "s_lshr_b32 s16, s14, 2",
      "s_and_b32 s17, s14, 3", "s_lshl_b32 s17, s17, 3", "s_lshr_b32 s18, s15, 2", "s_add_u32 s17, s17, s18",
      "s_and_b32 s18, s15, 3")
    a(f"v_lshrrev_b32 v1, 6, v0", f"v_and_b32 v0, 63, v0", "s_nop 0", "v_readfirstlane_b32 s19, v1",
      f"v_lshlrev_b32 v{LO}, 4, v0")
    a("s_lshl_b32 s20, s18, 4", "s_add_u32 s20, s20, s19")
    a("s_lshl_b32 s21, s16, 22", "s_lshl_b32 s22, s17, 17", "s_add_u32 s21, s21, s22", f"s_add_u32 s21, s21, {KV_OFF}")
    a("s_lshl_b32 s22, s16, 21", "s_lshl_b32 s23, s17, 16", "s_add_u32 s22, s22, s23", "s_lshl_b32 s23, s20, 10", "s_add_u32 s22, s22, s23")
    a("s_lshl_b32 s23, s16, 21", "s_lshl_b32 s28, s20, 15", "s_add_u32 s23, s23, s28", "s_lshl_b32 s28, s17, 10", "s_add_u32 s23, s23, s28",
      f"s_add_u32 s23, s23, {OF_OFF}")
    a("s_lshl_b32 s28, s19, 10")
    a("s_waitcnt lgkmcnt(0)")
    a("s_mov_b32 s24, s12", "s_and_b32 s25, s13, 0xffff", f"s_mov_b32 s26, {WS_USED}", "s_mov_b32 s27, 0x20000")
    a("s_add_u32 s8, s12, s21", "s_addc_u32 s9, s13, 0", "s_and_b32 s9, s9, 0xffff", "s_mov_b32 s10, 131072", "s_mov_b32 s11, 0x20000")
    a(f"buffer_load_dwordx4 {vr(Q,4)}, v{LO}, s[24:27], s22 offen")
    for aa in range(8):
        a(f"s_add_u32 m0, s28, {aa*16384}", "s_nop 0", f"buffer_load_dwordx4 v{LO}, s[8:11], m0 offen lds")
    a(f"v_mov_b32 v{IDX}, 0xdddddddd", f"v_mov_b32 v{KA}, v{LO}")
    a(f"v_and_b32 v1, 15, v0", f"v_lshlrev_b32 v1, 4, v1", f"v_lshrrev_b32 v2, 5, v0", f"v_lshl_add_u32 v1, v2, 8, v1", f"v_add_u32 v{VA}, 1024, v1")
    a("v_and_b32 v1, 27, v0", "v_cmp_eq_u32 vcc, 16, v1", "v_mov_b32 v2, 0x3f803f80", "s_nop 1", "v_cndmask_b32 v1, 0, v2, vcc")
    for r in range(16): a(f"v_mov_b32 v{VB[0]+r}, v1")
    for r in range(16): a(f"v_mov_b32 v{O+r}, 0")
    a("s_mov_b32 s30, 0xffff", "s_mov_b32 s31, 0xffff")
    def kread(kt): return [f"ds_read_b128 {vr(KB[kt%2],4)}, v{KA} offset:{(kt%32)*2048}"]
    def vread(kt):
        o = (kt % 32) * 2048
        return ["s_mov_b64 exec, s[30:31]",
                f"ds_read_b128 {vr(VB[kt%2],4)}, v{VA} offset:{o}",
                f"ds_read_b128 {vr(VB[kt%2]+4,4)}, v{VA} offset:{o+512}",
                "s_mov_b64 exec, -1"]
    def ex(base, lo, hi): return [f"v_exp_f32 v{base+i}, v{base+i}" for i in range(lo, hi)]
    a("s_setprio 3")
    a("s_waitcnt vmcnt(7)", "s_barrier")
    a(kread(0), vread(0), kread(1), "s_waitcnt lgkmcnt(1)")
    a(mfma(S[0], KB[0], Q, "0"), "s_nop 9")
    prio = {6: 2, 8: 3, 36: 2, 56: 1, 62: 0}
    NT = 64
    for u in range(NT):
        s = S[u % 3]
        if u in prio: a(f"s_setprio {prio[u]}")
        if u == 6:
            pass
        if u + 1 < NT:
            a("s_waitcnt lgkmcnt(0)")
            a(mfma(S[(u+1) % 3], KB[(u+1) % 2], Q, "0"))
            if u + 2 == 8:
                a("s_waitcnt vmcnt(0)", "s_barrier")
            if u + 2 == 32:
                a(f"v_add_u32 v{KA}, 0x10000, v{KA}")
            if u + 2 < NT: a(kread(u + 2))
        else:
            a("s_waitcnt lgkmcnt(0)", "s_nop 0")
        a(ex(s, 0, 2))
        if u > 0:
            a(smf(O, VB[(u-1) % 2] + 4, S[(u-1) % 3] + 8, IDX))
        if u + 1 == 32:
            a(f"v_add_u32 v{VA}, 0x10000, v{VA}")
        if u + 1 < NT: a(vread(u + 1))
        a(ex(s, 2, 10))
        a(smf(O, VB[u % 2], s, IDX))
        a(ex(s, 10, 16))
    a("s_nop 1", smf(O, VB[(NT-1) % 2] + 4, S[(NT-1) % 3] + 8, IDX), "s_nop 15")
    a.c("safety check of the zero stand-in: 2^-24 <= l <= 2^48 and finite O, else redo with the true row max")
    a(f"v_mov_b32 v{T}, 0x33800000", f"v_mov_b32 v{T+1}, 0x57800000",
      f"v_cmp_le_f32 s[32:33], v{T}, v{O+8}", f"v_cmp_ge_f32 s[34:35], v{T+1}, v{O+8}", "s_nop 1", "s_and_b64 s[32:33], s[32:33], s[34:35]")
    a(f"v_mov_b32 v{T}, 0x7f800000")
    a(f"v_max3_f32 v{T+1}, abs(v{O}), abs(v{O+1}), abs(v{O+2})", f"v_max3_f32 v{T+1}, abs(v{O+3}), abs(v{O+4}), v{T+1}",
      f"v_max3_f32 v{T+1}, abs(v{O+5}), abs(v{O+6}), v{T+1}", f"v_max_f32 v{T+1}, abs(v{O+7}), v{T+1}",
      f"v_cmp_gt_f32 s[34:35], v{T}, v{T+1}", "s_nop 1", "s_and_b64 s[32:33], s[32:33], s[34:35]",
      "s_cmp_eq_u64 s[32:33], -1", "s_cbranch_scc0 K2_fallback")
    a("K2_finish:")
    a(f"v_rcp_f32 v{T}, v{O+8}", "s_nop 0")
    for r in range(8): a(f"v_mul_f32 v{O+r}, v{O+r}, v{T}")
    for r in range(4): a(f"v_cvt_pk_bf16_f32 v{O+12+r}, v{O+2*r}, v{O+2*r+1}")
    a(f"buffer_store_dwordx4 {vr(O+12,4)}, v{LO}, s[24:27], s23 offen")
    a("K2_done:", "s_endpgm")
    a("K2_fallback:")
    M = T + 2
    a(f"v_mov_b32 v{KA}, v{LO}", f"v_mov_b32 v{M}, 0xff800000", "s_mov_b32 s29, 64")
    a("K2_fb1:")
    a(f"ds_read_b128 {vr(KB[0],4)}, v{KA}", f"v_add_u32 v{KA}, 2048, v{KA}", "s_waitcnt lgkmcnt(0)",
      mfma(S[0], KB[0], Q, "0"), "s_nop 15")
    for r in range(8): a(f"v_max3_f32 v{M}, v{S[0]+2*r}, v{S[0]+2*r+1}, v{M}")
    a("s_sub_u32 s29, s29, 1", "s_cmp_lg_u32 s29, 0", "s_cbranch_scc1 K2_fb1")
    a(f"v_mov_b32 v{T}, v{M}", "s_nop 1", f"v_permlane32_swap_b32 v{M}, v{T}", "s_nop 1", f"v_max_f32 v{M}, v{M}, v{T}", f"v_sub_f32 v{M}, 0, v{M}")
    for r in range(16): a(f"v_mov_b32 v{CM+r}, v{M}")
    for r in range(16): a(f"v_mov_b32 v{O+r}, 0")
    a(f"v_mov_b32 v{KA}, v{LO}", f"v_add_u32 v{VA}, 0xffff0000, v{VA}", "s_mov_b32 s29, 64")
    a("K2_fb2:")
    a(f"ds_read_b128 {vr(KB[0],4)}, v{KA}", "s_mov_b64 exec, s[30:31]",
      f"ds_read_b128 {vr(VB[0],4)}, v{VA}", f"ds_read_b128 {vr(VB[0]+4,4)}, v{VA} offset:512", "s_mov_b64 exec, -1",
      f"v_add_u32 v{KA}, 2048, v{KA}", f"v_add_u32 v{VA}, 2048, v{VA}", "s_waitcnt lgkmcnt(0)",
      mfma(S[0], KB[0], Q, CM), "s_nop 15")
    a(ex(S[0], 0, 16), "s_nop 1", smf(O, VB[0], S[0], IDX), smf(O, VB[0] + 4, S[0] + 8, IDX))
    a("s_sub_u32 s29, s29, 1", "s_cmp_lg_u32 s29, 0", "s_cbranch_scc1 K2_fb2")
    a("s_nop 15", "s_branch K2_finish")
    a.l.append(descriptor(k, NV, 48))

def gen_k3(a):
    k = "oproj_kernel"
    header(a, k)
    OFR = 64
    ACC = [8, 24]
    WB = [40, 48]
    NV = 192
    a("s_cmp_ge_u32 s2, 256", "s_cbranch_scc1 K3_done")
    a("s_load_dwordx2 s[4:5], s[0:1], 16", "s_load_dwordx2 s[6:7], s[0:1], 40", "s_load_dwordx2 s[8:9], s[0:1], 48", "s_load_dwordx2 s[12:13], s[0:1], 64")
    a("s_and_b32 s14, s2, 7", "s_lshr_b32 s15, s2, 3",
      "s_lshr_b32 s16, s14, 2",
      "s_and_b32 s17, s14, 3", "s_lshl_b32 s17, s17, 2", "s_lshr_b32 s18, s15, 3", "s_add_u32 s17, s17, s18",
      "s_and_b32 s18, s15, 7")
    a("v_lshrrev_b32 v1, 6, v0", "v_and_b32 v0, 63, v0", "s_nop 0", "v_readfirstlane_b32 s19, v1", "v_lshlrev_b32 v2, 4, v0")
    a("s_lshl_b32 s20, s17, 2", "s_add_u32 s20, s20, s19")
    a("v_bfe_u32 v3, v0, 4, 1", "v_lshlrev_b32 v3, 1, v3", "v_and_b32 v4, 7, v0", "v_xor_b32 v3, v3, v4", "v_lshlrev_b32 v3, 4, v3",
      "v_lshrrev_b32 v4, 3, v0", "v_lshl_add_u32 v3, v4, 10, v3")
    a("s_waitcnt lgkmcnt(0)")
    a("s_cmp_eq_u32 s16, 0", "s_cselect_b32 s4, s4, s6", "s_cselect_b32 s5, s5, s7")
    a("s_lshl_b32 s21, s18, 7", "s_add_u32 s24, s4, s21", "s_addc_u32 s25, s5, 0", "s_and_b32 s25, s25, 0xffff",
      f"s_sub_u32 s26, {512*1024}, s21", "s_mov_b32 s27, 0x20000")
    a("s_lshl_b32 s21, s16, 21", "s_lshl_b32 s22, s20, 15", "s_add_u32 s21, s21, s22", f"s_add_u32 s21, s21, {OF_OFF}",
      "s_add_u32 s28, s12, s21", "s_addc_u32 s29, s13, 0", "s_and_b32 s29, s29, 0xffff", "s_mov_b32 s30, 32768", "s_mov_b32 s31, 0x20000")
    a("s_lshl_b32 s21, s19, 10", "s_lshl_b32 s22, s19, 13")
    for st in range(4):
        for aa in range(4):
            t4 = st*4 + aa
            a(f"s_add_u32 m0, s21, {t4*4096}", f"s_add_u32 s23, s22, {t4*32768}", f"buffer_load_dwordx4 v3, s[24:27], s23 offen lds")
        for g in range(2):
            a(f"s_mov_b32 s23, {(st*8 + g*4)*1024}")
            for hh in range(4):
                hd = st*8 + g*4 + hh
                a(f"buffer_load_dwordx4 {vr(OFR + hd*4, 4)}, v2, s[28:31], s23 offen offset:{hh*1024}")
    a("v_lshrrev_b32 v4, 5, v0", "v_bfe_u32 v5, v0, 2, 2", "v_lshl_add_u32 v4, v4, 2, v5", "v_lshlrev_b32 v4, 7, v4",
      "v_and_b32 v5, 1, v0", "v_lshl_add_u32 v4, v5, 6, v4", "v_bfe_u32 v5, v0, 4, 1", "v_lshl_add_u32 v4, v5, 4, v4",
      "v_bfe_u32 v5, v0, 3, 1", "v_lshl_add_u32 v4, v5, 5, v4", "v_bfe_u32 v5, v0, 1, 1", "v_lshl_add_u32 v4, v5, 3, v4",
      "v_xor_b32 v5, 32, v4")
    a("s_mov_b32 s32, s8", "s_and_b32 s33, s9, 0xffff", f"s_mov_b32 s34, {2048*2048}", "s_mov_b32 s35, 0x20000",
      "s_lshl_b32 s36, s16, 10", "s_lshl_b32 s37, s18, 7", "s_add_u32 s36, s36, s37", "s_lshl_b32 s37, s20, 16", "s_add_u32 s36, s36, s37",
      "v_and_b32 v6, 31, v0", "v_lshlrev_b32 v6, 11, v6", "v_lshrrev_b32 v7, 5, v0", "v_lshl_add_u32 v6, v7, 6, v6")
    def reads(hd, buf):
        out = []
        for cb in range(2):
            for j in range(2):
                out.append(f"ds_read_b64_tr_b16 {vr(buf + cb*4 + j*2, 2)}, v{4+cb} offset:{hd*2048 + j*1024}")
        return out
    a("s_waitcnt vmcnt(36)", "s_barrier")
    a(reads(0, WB[0]))
    for hd in range(32):
        cur = WB[hd % 2]; nxt = WB[(hd+1) % 2]
        if hd < 31:
            if (hd + 1) % 8 == 0:
                a(f"s_waitcnt vmcnt({36 - 12*((hd+1)//8)})", "s_barrier")
            a(reads(hd + 1, nxt), "s_waitcnt lgkmcnt(4)")
        else:
            a("s_waitcnt lgkmcnt(0)")
        for cb in range(2):
            a(mfma(ACC[cb], cur + cb*4, OFR + hd*4, "0" if hd == 0 else ACC[cb]))
    a("s_nop 15")
    for cb in range(2):
        for q in range(2):
            t = 40 + (cb*2 + q)*4
            for r in range(4): a(f"v_cvt_pk_bf16_f32 v{t+r}, v{ACC[cb]+q*8+2*r}, v{ACC[cb]+q*8+2*r+1}")
            a(f"buffer_store_dwordx4 {vr(t,4)}, v6, s[32:35], s36 offen offset:{cb*32 + q*16}")
    a("K3_done:", "s_endpgm")
    a.l.append(descriptor(k, NV, 48))

def main():
    a = Asm()
    a.l += ["; MHA x2 (S=2048, D=512, H=32): qkv projection -> attention -> output projection",
            "; @launch kernel=qkv_kernel grid=(256,1,1) block=(512,1,1) lds=163840",
            "; @launch kernel=attn_kernel grid=(256,1,1) block=(1024,1,1) lds=131072",
            "; @launch kernel=oproj_kernel grid=(256,1,1) block=(256,1,1) lds=65536",
            '.amdgcn_target "amdgcn-amd-amdhsa--gfx950"', ".text"]
    gen_k1(a); gen_k2(a); gen_k3(a)
    print(a.text())
main()
```

```python
import sys, math, struct

NAME = "concat_heads__mha_block__mha_block__prompt"
OPT = set(sys.argv[1:])
TS = "ts" in OPT
WT = "sc0 sc1" if "sys" in OPT else "sc1"
KV_OFF = 0
OF_OFF = 8 << 20
FKV_OFF = 12 << 20
FO_OFF = (12 << 20) + 65536
XID_OFF = (12 << 20) + 131072
WS_USED = 13 << 20
QSCALE = 0.25 * math.log2(math.e)
SPIN_MAX = 1 << 18
def f32bits(x): return struct.unpack("<I", struct.pack("<f", x))[0]

class Asm:
    def __init__(self): self.l = []
    def __call__(self, *lines):
        for x in lines:
            if isinstance(x, (list, tuple)): self(*x)
            else: self.l.append("    " + x if not x.endswith(":") else x)
    def c(self, s): self.l.append("    ; " + s)
    def text(self): return "\n".join(self.l)

def vr(b, n): return f"v[{b}:{b+n-1}]"
def mfma(d, a, b, c):
    cs = vr(c, 16) if isinstance(c, int) else c
    return f"v_mfma_f32_32x32x16_bf16 {vr(d,16)}, {vr(a,4)}, {vr(b,4)}, {cs}"
def smf(d, a, b, idx): return f"v_smfmac_f32_32x32x32_bf16 {vr(d,16)}, {vr(a,4)}, {vr(b,8)}, v{idx}"

def stamp(a, j):
    if TS: a(f"s_memrealtime s[{64+2*j}:{65+2*j}]", "s_waitcnt lgkmcnt(0)")
def ts_init(a):
    if TS:
        for j in range(15): a(f"s_mov_b64 s[{64+2*j}:{65+2*j}], 0")
        a("s_mov_b32 s94, 0x5151", "s_mov_b32 s95, 0")
def ts_flush(a, kidx, wave, tag):
    if not TS: return
    a(f"s_cmp_lg_u32 s25, {wave}", f"s_cbranch_scc1 TS_skip_{tag}")
    a("s_mov_b64 exec, 1", f"s_lshl_b32 s96, s2, 7", f"s_add_u32 s96, s96, {(32<<20) + kidx*256*128}", "v_mov_b32 v1, s96")
    for j in range(16):
        a(f"v_mov_b32 v2, s{64+2*j}", f"v_mov_b32 v3, s{65+2*j}", f"global_store_dwordx2 v1, v[2:3], s[20:21] offset:{j*8}", "s_nop 1")
    a("s_waitcnt vmcnt(0)", "s_mov_b64 exec, -1", f"TS_skip_{tag}:")

XRING = 0
WRING = 98304
QX = 147456
TAGL = 155648
EREG = 131072

def spin(a, name, cond_lines, reload_lines):
    a(f"s_mov_b32 s63, {SPIN_MAX}", f"L_{name}_chk:", "s_waitcnt vmcnt(0)", cond_lines, f"s_cbranch_scc1 L_{name}_ok", "s_sleep 1",
      reload_lines, "s_sub_u32 s63, s63, 1", "s_cmp_lg_u32 s63, 0", f"s_cbranch_scc1 L_{name}_chk", "s_waitcnt vmcnt(0)", f"L_{name}_ok:")

def gen(a):
    k = NAME + "_kernel"
    a.l += [f".globl {k}", ".p2align 8", f".type {k},@function", f"{k}:"]
    a("s_cmp_ge_u32 s2, 256", "s_cbranch_scc1 L_done")
    a("s_load_dwordx16 s[4:19], s[0:1], 0", "s_load_dwordx2 s[20:21], s[0:1], 64")
    ts_init(a)
    if TS: a("s_memrealtime s[64:65]")
    a("s_memrealtime s[48:49]")
    a("s_and_b32 s52, s2, 7", "s_lshr_b32 s53, s2, 3",
      "s_lshr_b32 s22, s52, 2",
      "s_and_b32 s23, s53, 15",
      "s_and_b32 s24, s52, 3", "s_lshl_b32 s24, s24, 1", "s_lshr_b32 s53, s53, 4", "s_add_u32 s24, s24, s53")
    a("v_lshrrev_b32 v1, 6, v0", "v_and_b32 v0, 63, v0", "s_getreg_b32 s26, hwreg(HW_REG_XCC_ID)", "v_readfirstlane_b32 s25, v1")
    a("s_and_b32 s26, s26, 7", "s_lshl_b32 s62, s25, 10")
    a("s_waitcnt lgkmcnt(0)")
    a("s_cmp_eq_u32 s22, 0",
      "s_cselect_b32 s4, s4, s10", "s_cselect_b32 s5, s5, s11", "s_cselect_b32 s6, s6, s12", "s_cselect_b32 s7, s7, s13",
      "s_cselect_b32 s8, s8, s14", "s_cselect_b32 s9, s9, s15")
    a("s_lshl_b32 s52, s24, 18", "s_add_u32 s28, s4, s52", "s_addc_u32 s29, s5, 0", "s_and_b32 s29, s29, 0xffff",
      "s_mov_b32 s30, 262144", "s_mov_b32 s31, 0x20000")
    a("s_mov_b32 s32, s6", "s_and_b32 s33, s7, 0xffff", f"s_mov_b32 s34, {512*3072}", "s_mov_b32 s35, 0x20000")
    a("s_cmp_ge_u32 s25, 8", "s_cbranch_scc1 L_loader")

    O = 0; Q = 16; S = [20, 36]; KB = [52, 56]; VB = [100, 108]; IDX = 116; KA = [117, 118]; VA = [119, 120]; LO = 121; T = 122
    CM = 64

    def common_init(a):
        a("s_mov_b32 s36, s20", "s_and_b32 s37, s21, 0xffff", f"s_mov_b32 s38, {WS_USED}", "s_mov_b32 s39, 0x20000")
        a("s_and_b32 s52, s23, 7", "s_lshl_b32 s52, s52, 7", "s_add_u32 s40, s8, s52", "s_addc_u32 s41, s9, 0", "s_and_b32 s41, s41, 0xffff",
          f"s_sub_u32 s42, {512*1024}, s52", "s_mov_b32 s43, 0x20000")
        a("s_mov_b32 s44, s16", "s_and_b32 s45, s17, 0xffff", f"s_mov_b32 s46, {2048*2048}", "s_mov_b32 s47, 0x20000")
        a("s_mov_b32 s50, 0xffff", "s_mov_b32 s51, 0xffff", "s_mov_b32 s27, 0")
        a("s_lshl_b32 s54, s22, 4", "s_add_u32 s54, s54, s23", "s_lshl_b32 s54, s54, 18", "s_lshl_b32 s55, s24, 15", "s_add_u32 s55, s55, s54")
        a(f"v_lshlrev_b32 v{LO}, 4, v0",
          "s_lshr_b32 s56, s25, 3", "s_lshl_b32 s53, s56, 14",
          f"v_add_u32 v{KA[0]}, s53, v{LO}", f"v_add_u32 v{KA[1]}, 0x10000, v{KA[0]}",
          "v_and_b32 v13, 15, v0", "v_lshlrev_b32 v13, 4, v13", "v_lshrrev_b32 v14, 5, v0", "v_lshl_add_u32 v13, v14, 8, v13",
          "s_add_u32 s53, s53, 1024", f"v_add_u32 v{VA[0]}, s53, v13", f"v_add_u32 v{VA[1]}, 0x10000, v{VA[0]}",
          f"v_mov_b32 v{IDX}, 0xdddddddd")
        a("v_and_b32 v13, 27, v0", "v_cmp_eq_u32 vcc, 16, v13", "v_mov_b32 v14, 0x3f803f80",
          f"v_mov_b32 v{T}, {TAGL}", f"v_lshlrev_b32 v{T+4}, 3, v0", "v_cndmask_b32 v13, 0, v14, vcc")
        for r in range(16): a(f"v_mov_b32 v{VB[0]+r}, v13")
        a("s_and_b32 s53, s25, 7", "s_lshl_b32 s58, s24, 3", "s_add_u32 s58, s58, s53", "s_lshl_b32 s57, s22, 6", "s_add_u32 s58, s58, s57",
          "s_lshl_b32 s58, s58, 5", "s_lshl_b32 s53, s23, 1", "s_add_u32 s53, s53, s56", "s_add_u32 s58, s58, s53",
          "s_lshl_b32 s59, s58, 3", f"s_add_u32 s59, s59, {FO_OFF}", "s_lshl_b32 s58, s58, 10", f"s_add_u32 s58, s58, {OF_OFF}")
        a("s_lshr_b32 s60, s54, 9", f"s_add_u32 s60, s60, {FKV_OFF}", "s_lshl_b32 s61, s24, 6", "s_add_u32 s61, s61, s60",
          "s_lshl_b32 s53, s25, 3", "s_add_u32 s61, s61, s53")
        a("s_lshl_b32 s10, s22, 3", "s_add_u32 s10, s10, s24", "s_lshl_b32 s10, s10, 7", f"s_add_u32 s10, s10, {XID_OFF}")
        a("s_xor_b32 s53, s24, 1", "s_lshl_b32 s53, s53, 3", "s_mov_b64 s[14:15], 0xff", "s_lshl_b64 s[14:15], s[14:15], s53")
        a("s_lshl_b32 s52, s24, 3", "s_lshr_b32 s53, s23, 3", "s_lshl_b32 s53, s53, 2", "s_add_u32 s52, s52, s53", "s_add_u32 s52, s52, s25",
          "s_add_u32 s53, s57, s52",
          "s_lshl_b32 s11, s53, 8", f"s_add_u32 s11, s11, {FO_OFF}", "s_lshl_b32 s12, s53, 15", f"s_add_u32 s12, s12, {OF_OFF}",
          "s_lshl_b32 s13, s22, 10", "s_and_b32 s53, s23, 7", "s_lshl_b32 s53, s53, 7", "s_add_u32 s13, s13, s53",
          "s_lshl_b32 s53, s52, 16", "s_add_u32 s13, s13, s53")

    XA = [1, 2, 3, 4]; XB = [5, 6, 7, 8]; WA = 9; VK = 10; VV = 11; QA = 12
    ACC = 16
    FX = [64, 80]
    a("s_barrier")
    common_init(a)
    a("v_and_b32 v13, 31, v0", "v_lshrrev_b32 v14, 5, v0",
      "v_bfe_u32 v15, v0, 1, 3", "v_xor_b32 v15, v15, v14", "v_lshlrev_b32 v15, 4, v15", "v_lshl_add_u32 v15, v13, 7, v15",
      "s_lshl_b32 s52, s25, 12",
      f"v_add_u32 v{XA[0]}, s52, v15",
      f"v_xor_b32 v{XA[1]}, 32, v{XA[0]}", f"v_xor_b32 v{XA[2]}, 64, v{XA[0]}", f"v_xor_b32 v{XA[3]}, 96, v{XA[0]}")
    for s in range(4): a(f"v_add_u32 v{XB[s]}, 0x10000, v{XA[s]}")
    a("v_bfe_u32 v15, v0, 2, 2", "v_lshl_add_u32 v13, v14, 3, v15", "v_lshlrev_b32 v13, 6, v13",
      "v_bfe_u32 v15, v0, 4, 1", "v_lshl_add_u32 v13, v15, 5, v13", "v_and_b32 v15, 3, v0", "v_lshl_add_u32 v13, v15, 3, v13",
      f"v_add_u32 v{WA}, {WRING}, v13")
    a("s_lshl_b32 s52, s25, 11",
      "v_and_b32 v13, 0x33, v0", "v_bfe_u32 v15, v0, 2, 1", "v_lshl_add_u32 v13, v15, 3, v13",
      "v_bfe_u32 v15, v0, 3, 1", "v_lshl_add_u32 v13, v15, 2, v13", "v_lshlrev_b32 v13, 4, v13", f"v_add_u32 v{VK}, s52, v13",
      "v_and_b32 v13, 15, v0", "v_lshlrev_b32 v13, 4, v13", "v_lshl_add_u32 v13, v14, 8, v13",
      "v_bfe_u32 v15, v0, 4, 1", "v_lshl_add_u32 v13, v15, 14, v13", "s_add_u32 s52, s52, 1024", f"v_add_u32 v{VV}, s52, v13")
    a(f"s_add_u32 s52, s62, {QX}", f"v_add_u32 v{QA}, s52, v{LO}",
      f"s_mov_b32 s56, {f32bits(QSCALE):#x}", f"s_mov_b32 s57, {f32bits(QSCALE):#x}", "s_add_u32 s63, s55, 16384")
    def reads(c, s, buf):
        slot = c % 3
        l = [f"ds_read_b128 {vr(buf,4)}, v{XA[s]} offset:{slot*32768}" if slot < 2 else f"ds_read_b128 {vr(buf,4)}, v{XB[s]}"]
        for seg in range(3):
            for j in range(2):
                l.append(f"ds_read_b64_tr_b16 {vr(buf + 4 + seg*4 + j*2, 2)}, v{WA} offset:{slot*12288 + seg*4096 + s*1024 + j*256}")
        return l
    def mms(buf, first):
        out = []
        for seg in (1, 2, 0):
            d = ACC + seg*16
            x = buf; w = buf + 4 + seg*4
            cs = "0" if first else d
            out.append(mfma(d, w, x, cs) if seg < 2 else mfma(d, x, w, cs))
        return out
    stamp(a, 1)
    a("s_barrier")
    stamp(a, 2)
    step = 0
    a(reads(0, 0, FX[0]))
    for c in range(8):
        for s in range(4):
            cur = FX[step % 2]; nxt = FX[(step + 1) % 2]
            if s < 3:
                a(reads(c, s + 1, nxt)); a("s_waitcnt lgkmcnt(7)")
            elif c < 7:
                a("s_waitcnt lgkmcnt(0)", "s_barrier")
                if c == 3: stamp(a, 3)
                a(reads(c + 1, 0, nxt))
            else:
                a("s_waitcnt lgkmcnt(0)")
            a(mms(cur, step == 0))
            step += 1
    stamp(a, 4)
    a.c("P1 epilogue: K, V -> global (write-through) + LDS stage slot 0 ; Q -> regs / LDS")
    a("s_nop 9")
    PK = 64
    def pack(dst, src):
        return [f"v_cvt_pk_bf16_f32 v{dst+r}, v{src+2*r}, v{src+2*r+1}" for r in range(4)]
    for hh in range(2):
        t = PK + hh*4
        a(pack(t, ACC + 16 + hh*8))
        a(f"buffer_store_dwordx4 {vr(t,4)}, v{VK}, s[36:39], s{55 if hh == 0 else 63} offen {WT}")
        a(f"ds_write_b128 v{VK}, {vr(t,4)} offset:{hh*16384}")
    for jj in range(2):
        t = PK + 8 + jj*4
        a(pack(t, ACC + 32 + jj*8))
        a(f"buffer_store_dwordx4 {vr(t,4)}, v{VV}, s[36:39], s55 offen offset:{jj*512} {WT}")
        a(f"ds_write_b128 v{VV}, {vr(t,4)} offset:{jj*512}")
    for r in range(4, 8): a(f"v_pk_mul_f32 {vr(ACC+2*r,2)}, {vr(ACC+2*r,2)}, s[56:57]")
    a(pack(PK + 16, ACC + 8), f"ds_write_b128 v{QA}, {vr(PK+16,4)}")
    for r in range(4): a(f"v_pk_mul_f32 {vr(ACC+2*r,2)}, {vr(ACC+2*r,2)}, s[56:57]")
    a(pack(Q, ACC))
    a("s_branch L_p2_start")

    a("L_loader:")
    a("s_sub_u32 s52, s25, 8")
    a("s_and_b32 s53, s52, 1", "s_lshl_b32 s53, s53, 2",
      "v_lshrrev_b32 v2, 4, v0", "v_add_u32 v2, s53, v2", "v_and_b32 v3, 7, v0", "v_xor_b32 v2, v2, v3", "v_lshlrev_b32 v2, 4, v2",
      "v_lshrrev_b32 v4, 3, v0", "v_lshl_add_u32 v2, v4, 10, v2")
    a("v_lshrrev_b32 v4, 2, v0", "v_mul_u32_u24 v4, 3072, v4", "v_and_b32 v3, 3, v0", "v_lshl_add_u32 v3, v3, 4, v4",
      "s_lshl_b32 s53, s23, 6", "v_add_u32 v3, s53, v3")
    a("s_lshl_b32 s4, s52, 13", "s_add_u32 s5, s4, 65536", "s_add_u32 s6, s4, 131072", "s_add_u32 s7, s4, 196608",
      "s_lshl_b32 s0, s52, 10")
    a("s_and_b32 s53, s52, 3", "s_mul_i32 s1, s53, 49152", "s_lshr_b32 s53, s52, 2", "s_lshl_b32 s53, s53, 10", "s_add_u32 s1, s1, s53")
    a("s_cmp_ge_u32 s52, 4", "s_cbranch_scc1 L_loaderB")
    def issue(c, variantA):
        slot = c % 3
        out = []
        out += [f"s_add_u32 m0, s0, {WRING + slot*12288}", f"s_add_u32 s53, s1, {c*196608}",
                "buffer_load_dwordx4 v3, s[32:35], s53 offen lds"]
        if variantA:
            out += [f"s_add_u32 m0, s0, {WRING + slot*12288 + 8192 - 2048}", "s_nop 0",
                    "buffer_load_dwordx4 v3, s[32:35], s53 offen offset:2048 lds"]
        for aa in range(4):
            out += [f"s_add_u32 m0, s0, {XRING + slot*32768 + aa*8192}", f"s_add_u32 s53, s{4+aa}, {c*128}",
                    "buffer_load_dwordx4 v2, s[28:31], s53 offen lds"]
        return out
    for variantA in (True, False):
        n = 6 if variantA else 5
        if not variantA: a("L_loaderB:")
        if variantA: stamp(a, 1)
        a(issue(0, variantA), "s_barrier", issue(1, variantA), issue(2, variantA))
        if variantA: stamp(a, 2)
        if not variantA:
            a.c("workgroup 0 publishes the launch tag (low 4 bits: 8 | room for an XCC id)")
            a("s_cmp_lg_u32 s2, 0", "s_cbranch_scc1 L_notag", "s_cmp_lg_u32 s52, 7", "s_cbranch_scc1 L_notag")
            a("s_lshl_b64 s[48:49], s[48:49], 4", "s_or_b32 s48, s48, 8",
              "v_mov_b32 v8, 0", "v_mov_b32 v4, s48", "v_mov_b32 v5, s49", "s_mov_b64 exec, 1",
              f"global_store_dwordx2 v8, v[4:5], s[18:19] {WT}", "s_mov_b64 exec, -1")
            a("L_notag:")
        common_init(a)
        for c in range(8):
            wait = 2*n if c == 0 else (n if c < 7 else 0)
            if not variantA and c == 6: wait += 1
            if not variantA and c == 7:
                a.c("launch tag -> LDS")
                spin(a, "tag", ["v_cmp_ne_u64 vcc, 0, v[6:7]", "s_nop 1", "s_cmp_eq_u64 vcc, -1"],
                     ["global_load_dwordx2 v[6:7], v8, s[18:19] sc1"])
                a(f"ds_write_b64 v{T}, v[6:7]")
            else:
                a(f"s_waitcnt vmcnt({wait})")
            a("s_barrier")
            if variantA and c == 0: stamp(a, 3)
            if variantA and c == 7: stamp(a, 4)
            if 1 <= c <= 5: a(issue(c + 2, variantA))
            if not variantA and c == 5:
                a("v_mov_b32 v8, 0", "global_load_dwordx2 v[6:7], v8, s[18:19] sc1")
        if variantA: a("s_branch L_p2_start")

    a("L_p2_start:")
    for r in range(9): a(f"v_mov_b32 v{O+r}, 0")
    a("s_waitcnt lgkmcnt(0)")
    stamp(a, 5)
    a("s_barrier")
    stamp(a, 6)
    a(f"ds_read_b64 {vr(T+2,2)}, v{T}")
    a("s_cmp_lt_u32 s25, 8", "s_cbranch_scc1 L_haveq")
    a(f"s_add_u32 s53, s62, {QX - 8192}", f"v_add_u32 v{T}, s53, v{LO}", f"ds_read_b128 {vr(Q,4)}, v{T}")
    a("L_haveq:")
    def kread(u):
        s, t = divmod(u, 8); sl = s % 4
        return [f"ds_read_b128 {vr(KB[u%2],4)}, v{KA[sl//2]} offset:{(sl%2)*32768 + t*2048}"]
    def vread(u):
        s, t = divmod(u, 8); sl = s % 4
        o = (sl % 2)*32768 + t*2048
        return ["s_mov_b64 exec, s[50:51]",
                f"ds_read_b128 {vr(VB[u%2],4)}, v{VA[sl//2]} offset:{o}",
                f"ds_read_b128 {vr(VB[u%2]+4,4)}, v{VA[sl//2]} offset:{o+512}",
                "s_mov_b64 exec, -1"]
    def ex(base, lo, hi): return [f"v_exp_f32 v{base+i}, v{base+i}" for i in range(lo, hi)]
    def dma(s):
        sl = s % 4
        return [f"s_xor_b32 s53, s24, {s}", "s_lshl_b32 s53, s53, 15", "s_add_u32 s53, s53, s54", "s_add_u32 s53, s53, s62",
                f"s_add_u32 m0, s62, {sl*32768}", "s_add_u32 s63, s53, 16384",
                f"buffer_load_dwordx4 v{LO}, s[36:39], s53 offen sc1 lds",
                f"s_add_u32 m0, s62, {sl*32768 + 16384}", "s_nop 0",
                f"buffer_load_dwordx4 v{LO}, s[36:39], s63 offen sc1 lds"]
    kvpoll = [f"buffer_load_dwordx2 {vr(T,2)}, v{T+4}, s[36:39], s60 offen sc1"]
    a("s_setprio 3")
    a(kread(0), vread(0), kread(1), "s_waitcnt lgkmcnt(1)")
    a(f"v_readfirstlane_b32 s48, v{T+2}", f"v_readfirstlane_b32 s49, v{T+3}")
    a(mfma(S[0], KB[0], Q, "0"), "s_nop 11")
    NT = 64
    prio_at = {3: 2, 5: 1, 6: 0}
    PUB = 0 if "pub0" in OPT else 1
    for u in range(NT):
        st, t = divmod(u, 8)
        s = S[u % 2]
        if t in prio_at: a(f"s_setprio {prio_at[t]}")
        special7 = (u == 7)
        if special7:
            stamp(a, 8)
            a("s_waitcnt vmcnt(0) lgkmcnt(0)", "s_barrier", "s_setprio 3")
            stamp(a, 9)
            a(kread(8))
        else:
            a("s_waitcnt lgkmcnt(0)")
        a(ex(s, 0, 2))
        if u > 0: a(smf(O, VB[(u-1) % 2] + 4, S[(u-1) % 2] + 8, IDX))
        if u + 1 < NT: a(vread(u + 1))
        a(ex(s, 2, 5))
        if u + 1 < NT and not special7:
            a(mfma(S[(u+1) % 2], KB[(u+1) % 2], Q, "0"))
            if t == 6 and 1 <= st <= 6:
                a(f"s_waitcnt vmcnt({2 if st <= 5 else 0})", "s_barrier", "s_setprio 3")
                if st == 3: stamp(a, 10)
                if st <= 4: a(dma(st + 3))
                if st == 5:
                    a.c("Wo tile -> LDS (slot 0 and the spare region); XCC ids of the row block's workgroups")
                    a(f"v_lshrrev_b32 v{T}, 4, v{LO}", f"v_bfe_u32 v{T+1}, v{T}, 4, 1", f"v_lshlrev_b32 v{T+1}, 1, v{T+1}", f"v_and_b32 v{T+2}, 7, v{T}",
                      f"v_xor_b32 v{T+1}, v{T+1}, v{T+2}", f"v_lshlrev_b32 v{T+1}, 4, v{T+1}", f"v_lshrrev_b32 v{T}, 3, v{T}",
                      f"v_lshl_add_u32 v{T}, v{T}, 10, v{T+1}", "s_lshl_b32 s63, s25, 13")
                    for aa in range(4):
                        lds = aa*16384 if aa < 2 else EREG + (aa-2)*16384
                        a(f"s_add_u32 m0, s62, {lds}", f"s_add_u32 s53, s63, {aa*131072}", f"buffer_load_dwordx4 v{T}, s[40:43], s53 offen lds")
                    a(f"v_and_b32 v{T+5}, 0x78, v{T+4}", f"buffer_load_dwordx2 {vr(T+2,2)}, v{T+5}, s[36:39], s10 offen sc1")
                if st == 6:
                    a.c("local hand-off only when all 16 workgroups of this row block run on this XCC")
                    a("s_or_b32 s52, s48, s26", "s_mov_b32 s53, s49", f"v_cmp_eq_u64 vcc, s[52:53], {vr(T+2,2)}", "s_nop 1",
                      "s_cmp_eq_u64 vcc, -1", "s_cselect_b32 s27, 1, 0")
                    if "noloc" in OPT: a("s_mov_b32 s27, 0")
            if u + 2 < NT and u != 6: a(kread(u + 2))
        a(ex(s, 5, 10))
        a(smf(O, VB[u % 2], s, IDX))
        if special7:
            a("s_waitcnt lgkmcnt(2)", mfma(S[0], KB[0], Q, "0"), kread(9))
            a(ex(s, 10, 16), "s_nop 3")
        else:
            a(ex(s, 10, 16))
        if u == PUB:
            a.c("publish this wave's K/V tile; wave 8 publishes the workgroup's XCC id")
            a(f"v_mov_b32 v{T}, s48", f"v_mov_b32 v{T+1}, s49", f"v_mov_b32 v{T+2}, 0",
              "s_cmp_ge_u32 s25, 8", "s_cbranch_scc1 L_nopub", "s_waitcnt vmcnt(0)")
            stamp(a, 7)
            a("s_mov_b64 exec, 1", f"buffer_store_dwordx2 {vr(T,2)}, v{T+2}, s[36:39], s61 offen {WT}", "s_mov_b64 exec, -1", "s_branch L_pubdone")
            a("L_nopub:", "s_cmp_lg_u32 s25, 8", "s_cbranch_scc1 L_pubdone",
              f"v_or_b32 v{T}, s26, v{T}", "s_lshl_b32 s53, s23, 3", "s_add_u32 s53, s53, s10",
              "s_mov_b64 exec, 1", f"buffer_store_dwordx2 {vr(T,2)}, v{T+2}, s[36:39], s53 offen {WT}", "s_mov_b64 exec, -1", "L_pubdone:")
        if u == 3 or u == 8:
            a(kvpoll)
        if u == 5:
            spin(a, "kv1", [f"v_cmp_eq_u64 vcc, s[48:49], {vr(T,2)}", "s_nop 1", "s_and_b64 vcc, vcc, s[14:15]", "s_cmp_eq_u64 vcc, s[14:15]"], kvpoll)
            a(dma(1))
        if u == 10:
            spin(a, "kv2", [f"v_cmp_eq_u64 vcc, s[48:49], {vr(T,2)}", "s_nop 1", "s_cmp_eq_u64 vcc, -1"], kvpoll)
            a(dma(2), dma(3))
    a("s_nop 1", smf(O, VB[(NT-1) % 2] + 4, S[(NT-1) % 2] + 8, IDX), "s_nop 11")
    a.c("safety check of the zero stand-in: 2^-24 <= l <= 2^48 and finite O, else redo with the true row max")
    a(f"v_mov_b32 v{T}, 0x33800000", f"v_mov_b32 v{T+1}, 0x57800000", f"v_mov_b32 v{T+2}, 0x7f800000", "s_nop 0",
      f"v_cmp_le_f32 s[52:53], v{T}, v{O+8}", f"v_cmp_ge_f32 s[56:57], v{T+1}, v{O+8}",
      f"v_max3_f32 v{T+1}, abs(v{O}), abs(v{O+1}), abs(v{O+2})", f"v_max3_f32 v{T+1}, abs(v{O+3}), abs(v{O+4}), v{T+1}",
      f"v_max3_f32 v{T+1}, abs(v{O+5}), abs(v{O+6}), v{T+1}", f"v_max_f32 v{T+1}, abs(v{O+7}), v{T+1}",
      "s_and_b64 s[52:53], s[52:53], s[56:57]",
      f"v_cmp_gt_f32 vcc, v{T+2}, v{T+1}", "s_nop 1", "s_and_b64 s[52:53], s[52:53], vcc",
      "s_cmp_eq_u64 s[52:53], -1", "s_cbranch_scc0 L_fallback")
    a("L_finish:")
    a("s_setprio 3")
    stamp(a, 11)
    a(f"v_rcp_f32 v{T}, v{O+8}", "s_nop 0")
    for r in range(8): a(f"v_mul_f32 v{O+r}, v{O+r}, v{T}")
    for r in range(4): a(f"v_cvt_pk_bf16_f32 v{O+12+r}, v{O+2*r}, v{O+2*r+1}")
    a(f"v_mov_b32 v{T}, s48", f"v_mov_b32 v{T+1}, s49", f"v_mov_b32 v{T+2}, 0")
    a("s_cmp_eq_u32 s27, 1", "s_cbranch_scc1 L_ostore_local")
    a(f"buffer_store_dwordx4 {vr(O+12,4)}, v{LO}, s[36:39], s58 offen {WT}", "s_waitcnt vmcnt(0)",
      "s_mov_b64 exec, 1", f"buffer_store_dwordx2 {vr(T,2)}, v{T+2}, s[36:39], s59 offen {WT}", "s_mov_b64 exec, -1", "s_branch L_ostored")
    a("L_ostore_local:")
    a(f"buffer_store_dwordx4 {vr(O+12,4)}, v{LO}, s[36:39], s58 offen", "s_waitcnt vmcnt(0)",
      "s_mov_b64 exec, 1", f"buffer_store_dwordx2 {vr(T,2)}, v{T+2}, s[36:39], s59 offen", "s_mov_b64 exec, -1")
    a("L_ostored:")
    stamp(a, 12)
    ts_flush(a, 1, 8, "w8")
    ts_flush(a, 2, 15, "w15")
    a("s_cmp_ge_u32 s25, 4", "s_cbranch_scc1 L_done")

    ACC3 = [0, 16]; OFR = 32; WB = [96, 104]; A3 = [112, 113, 114, 115]; VO = 116; PA = 117; L = 118; PF = 122
    a(f"v_and_b32 v{PA}, 0xf8, v{T+4}")
    opoll = [f"buffer_load_dwordx2 {vr(PF,2)}, v{PA}, s[36:39], s11 offen sc1"]
    a(f"v_lshrrev_b32 v{L}, 4, v{LO}", "s_nop 0", opoll)
    a(f"v_lshrrev_b32 v4, 5, v{L}", f"v_bfe_u32 v5, v{L}, 2, 2", "v_lshl_add_u32 v4, v4, 2, v5", "v_lshlrev_b32 v4, 7, v4",
      f"v_and_b32 v5, 1, v{L}", "v_lshl_add_u32 v4, v5, 6, v4", f"v_bfe_u32 v5, v{L}, 4, 1", "v_lshl_add_u32 v4, v5, 4, v4",
      f"v_bfe_u32 v5, v{L}, 3, 1", "v_lshl_add_u32 v4, v5, 5, v4", f"v_bfe_u32 v5, v{L}, 1, 1", f"v_lshl_add_u32 v{A3[0]}, v5, 3, v4",
      f"v_xor_b32 v{A3[1]}, 32, v{A3[0]}", f"v_add_u32 v{A3[2]}, {EREG}, v{A3[0]}", f"v_add_u32 v{A3[3]}, {EREG}, v{A3[1]}")
    a(f"v_and_b32 v{VO}, 31, v{L}", f"v_lshlrev_b32 v{VO}, 11, v{VO}", f"v_lshrrev_b32 v5, 5, v{L}", f"v_lshl_add_u32 v{VO}, v5, 6, v{VO}")
    def reads3(hd, buf):
        out = []
        part = hd // 16
        for cb in range(2):
            for j in range(2):
                out.append(f"ds_read_b64_tr_b16 {vr(buf + cb*4 + j*2, 2)}, v{A3[part*2+cb]} offset:{(hd%16)*2048 + j*1024}")
        return out
    a(reads3(0, WB[0]))
    spin(a, "o", [f"v_cmp_eq_u64 vcc, s[48:49], {vr(PF,2)}", "s_nop 1", "s_cmp_eq_u64 vcc, -1"], opoll)
    stamp(a, 13)
    def oload(hd):
        pre = [f"s_add_u32 s53, s12, {(hd//4)*4096}"] if hd % 4 == 0 else []
        return pre + [f"buffer_load_dwordx4 {vr(OFR + (hd%16)*4, 4)}, v{LO}, s[36:39], s53 offen offset:{(hd%4)*1024} sc1"]
    for hd in range(16): a(oload(hd))
    for hd in range(32):
        cur = WB[hd % 2]; nxt = WB[(hd+1) % 2]
        if hd < 31: a(reads3(hd + 1, nxt))
        a(f"s_waitcnt vmcnt({15 if hd < 16 else 31 - hd}) lgkmcnt({4 if hd < 31 else 0})")
        for cb in range(2):
            a(mfma(ACC3[cb], cur + cb*4, OFR + (hd%16)*4, "0" if hd == 0 else ACC3[cb]))
        if hd + 16 < 32: a(oload(hd + 16))
    a("s_nop 15")
    for cb in range(2):
        for q in range(2):
            t = 32 + (cb*2 + q)*4
            for r in range(4): a(f"v_cvt_pk_bf16_f32 v{t+r}, v{ACC3[cb]+q*8+2*r}, v{ACC3[cb]+q*8+2*r+1}")
            a(f"buffer_store_dwordx4 {vr(t,4)}, v{VO}, s[44:47], s13 offen offset:{cb*32 + q*16}")
    if TS:
        a("s_waitcnt vmcnt(0)")
        stamp(a, 14)
        ts_flush(a, 0, 0, "w0")
    a("L_done:", "s_endpgm")

    a("L_fallback:")
    M = T + 2
    a("s_lshr_b32 s52, s25, 3", "s_lshl_b32 s52, s52, 14", "s_add_u32 s52, s52, s54",
      f"v_mov_b32 v{M}, 0xff800000", "s_mov_b32 s63, 0",
      f"v_sub_u32 v{T+3}, v{VA[0]}, v{KA[0]}", f"v_add_u32 v{T+3}, v{T+3}, v{LO}")
    def fb_addr():
        return ["s_lshr_b32 s53, s63, 3", "s_lshl_b32 s53, s53, 15", "s_and_b32 s56, s63, 7", "s_lshl_b32 s56, s56, 11",
                "s_add_u32 s53, s53, s56", "s_add_u32 s53, s53, s52"]
    a("L_fb1:", fb_addr(),
      f"buffer_load_dwordx4 {vr(KB[0],4)}, v{LO}, s[36:39], s53 offen sc1", "s_waitcnt vmcnt(0)",
      mfma(S[0], KB[0], Q, "0"), "s_nop 15")
    for r in range(8): a(f"v_max3_f32 v{M}, v{S[0]+2*r}, v{S[0]+2*r+1}, v{M}")
    a("s_add_u32 s63, s63, 1", "s_cmp_lg_u32 s63, 64", "s_cbranch_scc1 L_fb1")
    a(f"v_mov_b32 v{T}, v{M}", "s_nop 1", f"v_permlane32_swap_b32 v{M}, v{T}", "s_nop 1", f"v_max_f32 v{M}, v{M}, v{T}", f"v_sub_f32 v{M}, 0, v{M}")
    for r in range(16): a(f"v_mov_b32 v{CM+r}, v{M}")
    for r in range(16): a(f"v_mov_b32 v{O+r}, 0")
    a("s_mov_b32 s63, 0")
    a("L_fb2:", fb_addr(),
      f"buffer_load_dwordx4 {vr(KB[0],4)}, v{LO}, s[36:39], s53 offen sc1", "s_mov_b64 exec, s[50:51]",
      f"buffer_load_dwordx4 {vr(VB[0],4)}, v{T+3}, s[36:39], s53 offen sc1",
      f"buffer_load_dwordx4 {vr(VB[0]+4,4)}, v{T+3}, s[36:39], s53 offen offset:512 sc1", "s_mov_b64 exec, -1",
      "s_waitcnt vmcnt(0)", mfma(S[0], KB[0], Q, CM), "s_nop 15")
    a(ex(S[0], 0, 16), "s_nop 1", smf(O, VB[0], S[0], IDX), smf(O, VB[0] + 4, S[0] + 8, IDX))
    a("s_add_u32 s63, s63, 1", "s_cmp_lg_u32 s63, 64", "s_cbranch_scc1 L_fb2")
    a("s_nop 15", "s_branch L_finish")
    a.l.append(f""".section .rodata,"a"
.p2align 6
.amdhsa_kernel {k}
  .amdhsa_next_free_vgpr 128
  .amdhsa_next_free_sgpr {100 if TS else 64}
  .amdhsa_accum_offset 128
  .amdhsa_group_segment_fixed_size 0
  .amdhsa_kernarg_size 72
  .amdhsa_user_sgpr_count 2
  .amdhsa_user_sgpr_kernarg_segment_ptr 1
  .amdhsa_system_sgpr_workgroup_id_x 1
.end_amdhsa_kernel""")

a = Asm()
a.l += ["; MHA x2 (S=2048, D=512, H=32), one launch: qkv projection -> attention -> output projection",
        "; @launch grid=(256,1,1) block=(1024,1,1) lds=163840",
        '.amdgcn_target "amdgcn-amd-amdhsa--gfx950"', ".text"]
gen(a)
print(a.text())
```

```python
import sys, math, struct

NAME = "concat_heads__mha_block__mha_block__prompt"
OPT = set(sys.argv[1:])
NWS = 5 if "w5" in OPT else (4 if "w4" in OPT else 3)
TS = "ts" in OPT
WT = "sc0 sc1" if "sys" in OPT else "sc1"
KV_OFF = 0
OF_OFF = 8 << 20
FKV_OFF = 12 << 20
FO_OFF = (12 << 20) + 65536
XID_OFF = (12 << 20) + 131072
WS_USED = 13 << 20
QSCALE = 0.25 * math.log2(math.e)
SPIN_MAX = 1 << 18
def f32bits(x): return struct.unpack("<I", struct.pack("<f", x))[0]

class Asm:
    def __init__(self): self.l = []
    def __call__(self, *lines):
        for x in lines:
            if isinstance(x, (list, tuple)): self(*x)
            else: self.l.append("    " + x if not x.endswith(":") else x)
    def c(self, s): self.l.append("    ; " + s)
    def text(self): return "\n".join(self.l)

def vr(b, n): return f"v[{b}:{b+n-1}]"
def mfma(d, a, b, c):
    cs = vr(c, 16) if isinstance(c, int) else c
    return f"v_mfma_f32_32x32x16_bf16 {vr(d,16)}, {vr(a,4)}, {vr(b,4)}, {cs}"
def smf(d, a, b, idx): return f"v_smfmac_f32_32x32x32_bf16 {vr(d,16)}, {vr(a,4)}, {vr(b,8)}, v{idx}"

P1TS_DONE = False
def stamp(a, j):
    if "p1ts" in OPT and P1TS_DONE and j >= 7: return
    if TS: a(f"s_memrealtime s[{64+2*j}:{65+2*j}]", "s_waitcnt lgkmcnt(0)")
def ts_init(a):
    if TS:
        for j in range(15): a(f"s_mov_b64 s[{64+2*j}:{65+2*j}], 0")
        a("s_mov_b32 s94, 0x5151", "s_mov_b32 s95, 0")
def ts_flush(a, kidx, wave, tag):
    if not TS: return
    a(f"s_cmp_lg_u32 s25, {wave}", f"s_cbranch_scc1 TS_skip_{tag}")
    a("s_sleep 127", "s_sleep 127", "s_sleep 127")
    a("s_mov_b64 exec, 1", f"s_lshl_b32 s96, s2, 7", f"s_add_u32 s96, s96, {(32<<20) + kidx*256*128}", "v_mov_b32 v1, s96")
    for j in range(16):
        a(f"v_mov_b32 v2, s{64+2*j}", f"v_mov_b32 v3, s{65+2*j}", f"global_store_dwordx2 v1, v[2:3], s[20:21] offset:{j*8}", "s_nop 1")
    a("s_waitcnt vmcnt(0)", "s_mov_b64 exec, -1", f"TS_skip_{tag}:")

XRING = 0
WRING = 98304
QX = 65536
TAGL = 163832
EREG = 131072

def spin(a, name, cond_lines, reload_lines):
    a(f"s_mov_b32 s63, {SPIN_MAX}", f"L_{name}_chk:", "s_waitcnt vmcnt(0)", cond_lines, f"s_cbranch_scc1 L_{name}_ok", "s_sleep 1",
      reload_lines, "s_sub_u32 s63, s63, 1", "s_cmp_lg_u32 s63, 0", f"s_cbranch_scc1 L_{name}_chk", "s_waitcnt vmcnt(0)", f"L_{name}_ok:")

def gen(a):
    k = NAME + "_kernel"
    a.l += [f".globl {k}", ".p2align 8", f".type {k},@function", f"{k}:"]
    a("s_cmp_ge_u32 s2, 256", "s_cbranch_scc1 L_done")
    a("s_load_dwordx16 s[4:19], s[0:1], 0", "s_load_dwordx2 s[20:21], s[0:1], 64")
    ts_init(a)
    if TS: a("s_memrealtime s[64:65]")
    a("s_memrealtime s[48:49]")
    a("s_and_b32 s52, s2, 7", "s_lshr_b32 s53, s2, 3",
      "s_lshr_b32 s22, s52, 2",
      "s_and_b32 s23, s53, 15",
      "s_and_b32 s24, s52, 3", "s_lshl_b32 s24, s24, 1", "s_lshr_b32 s53, s53, 4", "s_add_u32 s24, s24, s53")
    a("v_lshrrev_b32 v1, 6, v0", "v_and_b32 v0, 63, v0", "s_getreg_b32 s26, hwreg(HW_REG_XCC_ID)", "v_readfirstlane_b32 s25, v1")
    a("s_and_b32 s26, s26, 7", "s_lshl_b32 s62, s25, 10")
    a("s_waitcnt lgkmcnt(0)")
    a("s_cmp_eq_u32 s22, 0",
      "s_cselect_b32 s4, s4, s10", "s_cselect_b32 s5, s5, s11", "s_cselect_b32 s6, s6, s12", "s_cselect_b32 s7, s7, s13",
      "s_cselect_b32 s8, s8, s14", "s_cselect_b32 s9, s9, s15")
    a("s_lshl_b32 s52, s24, 18", "s_add_u32 s28, s4, s52", "s_addc_u32 s29, s5, 0", "s_and_b32 s29, s29, 0xffff",
      "s_mov_b32 s30, 262144", "s_mov_b32 s31, 0x20000")
    a("s_mov_b32 s32, s6", "s_and_b32 s33, s7, 0xffff", f"s_mov_b32 s34, {512*3072}", "s_mov_b32 s35, 0x20000")
    a("s_cmp_ge_u32 s25, 8", "s_cbranch_scc1 L_loader")

    O = 0; Q = 16; S = [20, 36]; KB = [52, 56]; VB = [100, 108]; IDX = 116; KA = [117, 118]; VA = [119, 120]; LO = 121; T = 122
    CM = 64

    def common_init(a):
        a("s_mov_b32 s36, s20", "s_and_b32 s37, s21, 0xffff", f"s_mov_b32 s38, {WS_USED}", "s_mov_b32 s39, 0x20000")
        a("s_and_b32 s52, s23, 7", "s_lshl_b32 s52, s52, 7", "s_add_u32 s40, s8, s52", "s_addc_u32 s41, s9, 0", "s_and_b32 s41, s41, 0xffff",
          f"s_sub_u32 s42, {512*1024}, s52", "s_mov_b32 s43, 0x20000")
        a("s_mov_b32 s44, s16", "s_and_b32 s45, s17, 0xffff", f"s_mov_b32 s46, {2048*2048}", "s_mov_b32 s47, 0x20000")
        a("s_mov_b32 s50, 0xffff", "s_mov_b32 s51, 0xffff", "s_mov_b32 s27, 0")
        a("s_lshl_b32 s54, s22, 4", "s_add_u32 s54, s54, s23", "s_lshl_b32 s54, s54, 18", "s_lshl_b32 s55, s24, 15", "s_add_u32 s55, s55, s54")
        a(f"v_lshlrev_b32 v{LO}, 4, v0",
          "s_lshr_b32 s56, s25, 3", "s_lshl_b32 s53, s56, 14",
          f"v_add_u32 v{KA[0]}, s53, v{LO}", f"v_add_u32 v{KA[1]}, 0x10000, v{KA[0]}",
          "v_and_b32 v13, 15, v0", "v_lshlrev_b32 v13, 4, v13", "v_lshrrev_b32 v14, 5, v0", "v_lshl_add_u32 v13, v14, 8, v13",
          "s_add_u32 s53, s53, 1024", f"v_add_u32 v{VA[0]}, s53, v13", f"v_add_u32 v{VA[1]}, 0x10000, v{VA[0]}",
          f"v_mov_b32 v{IDX}, 0xdddddddd")
        a("v_and_b32 v13, 27, v0", "v_cmp_eq_u32 vcc, 16, v13", "v_mov_b32 v14, 0x3f803f80",
          f"v_mov_b32 v{T}, {TAGL}", f"v_lshlrev_b32 v{T+4}, 3, v0", "v_cndmask_b32 v13, 0, v14, vcc")
        for r in range(16): a(f"v_mov_b32 v{VB[0]+r}, v13")
        a("s_and_b32 s53, s25, 7", "s_lshl_b32 s58, s24, 3", "s_add_u32 s58, s58, s53", "s_lshl_b32 s57, s22, 6", "s_add_u32 s58, s58, s57",
          "s_lshl_b32 s58, s58, 5", "s_lshl_b32 s53, s23, 1", "s_add_u32 s53, s53, s56", "s_add_u32 s58, s58, s53",
          "s_lshl_b32 s59, s58, 3", f"s_add_u32 s59, s59, {FO_OFF}", "s_lshl_b32 s58, s58, 10", f"s_add_u32 s58, s58, {OF_OFF}")
        a("s_lshr_b32 s60, s54, 9", f"s_add_u32 s60, s60, {FKV_OFF}", "s_lshl_b32 s61, s24, 6", "s_add_u32 s61, s61, s60",
          "s_lshl_b32 s53, s25, 3", "s_add_u32 s61, s61, s53")
        a("s_lshl_b32 s10, s22, 3", "s_add_u32 s10, s10, s24", "s_lshl_b32 s10, s10, 7", f"s_add_u32 s10, s10, {XID_OFF}")
        a("s_xor_b32 s53, s24, 1", "s_lshl_b32 s53, s53, 3", "s_mov_b64 s[14:15], 0xff", "s_lshl_b64 s[14:15], s[14:15], s53")
        a("s_lshl_b32 s52, s24, 3", "s_lshr_b32 s53, s23, 3", "s_lshl_b32 s53, s53, 2", "s_add_u32 s52, s52, s53",
          "s_add_u32 s53, s57, s52", "s_lshl_b32 s11, s53, 8", f"s_add_u32 s11, s11, {FO_OFF}",
          "s_and_b32 s12, s25, 3", "s_add_u32 s52, s52, s12", "s_add_u32 s53, s53, s12", "s_lshl_b32 s12, s53, 15", f"s_add_u32 s12, s12, {OF_OFF}",
          "s_lshl_b32 s13, s22, 10", "s_and_b32 s53, s23, 7", "s_lshl_b32 s53, s53, 7", "s_add_u32 s13, s13, s53",
          "s_lshl_b32 s53, s52, 16", "s_add_u32 s13, s13, s53")

    XA = [1, 2, 3, 4]; XB = [5, 6, 7, 8]; WA = 9; VK = 10; VV = 11; QA = 12
    ACC = 16
    FX = [64, 80]
    def touches():
        if "tx" in OPT:
            a.c("HBM/L2 warm-up: waves 0,1 touch 8 KB each of this workgroup's share of the X block")
            a("s_cmp_ge_u32 s25, 2", "s_cbranch_scc1 L_tx_done",
              "s_lshl_b32 s52, s23, 14", "s_lshl_b32 s53, s25, 13", "s_add_u32 s52, s52, s53",
              "v_lshlrev_b32 v13, 7, v0", "buffer_load_dword v96, v13, s[28:31], s52 offen", "L_tx_done:")
        if "tw" in OPT:
            a.c("waves 2,3 touch 6 KB each of W (1/128 of the matrix per workgroup)")
            a("s_sub_u32 s52, s25, 2", "s_cmp_ge_u32 s52, 2", "s_cbranch_scc1 L_tw_done",
              "s_lshl_b32 s53, s24, 4", "s_add_u32 s53, s53, s23", "s_lshl_b32 s53, s53, 1", "s_add_u32 s52, s52, s53",
              "s_mul_i32 s52, s52, 6144", "v_cmp_gt_u32 vcc, 48, v0", "v_lshlrev_b32 v13, 7, v0", "s_and_saveexec_b64 s[56:57], vcc",
              "buffer_load_dword v96, v13, s[32:35], s52 offen", "s_mov_b64 exec, -1", "L_tw_done:")
        if "twf" in OPT:
            a.c("waves 2..7 touch 8 KB each of W (1/32 of the matrix per workgroup)")
            a("s_sub_u32 s52, s25, 2", "s_cmp_ge_u32 s52, 6", "s_cbranch_scc1 L_twf_done",
              "s_and_b32 s53, s24, 1", "s_lshl_b32 s53, s53, 4", "s_add_u32 s53, s53, s23", "s_mul_i32 s53, s53, 6", "s_add_u32 s52, s52, s53",
              "s_lshl_b32 s52, s52, 13", "v_lshlrev_b32 v13, 7, v0",
              "buffer_load_dword v96, v13, s[32:35], s52 offen", "L_twf_done:")
    def touchX(c0, nc, wave, tag):
        a(f"s_cmp_lg_u32 s25, {wave}", f"s_cbranch_scc1 L_{tag}_done")
        if nc == 2: a("v_lshrrev_b32 v13, 1, v0", "v_and_b32 v14, 1, v0")
        elif nc == 4: a("v_lshrrev_b32 v13, 2, v0", "v_and_b32 v14, 3, v0")
        else: a("v_mul_u32_u24 v13, 43, v0", "v_lshrrev_b32 v13, 7, v13", "v_mul_u32_u24 v14, 3, v13", "v_sub_u32 v14, v0, v14")
        a("v_lshlrev_b32 v13, 10, v13", "v_lshl_add_u32 v13, v14, 7, v13", "s_lshl_b32 s52, s23, 14", f"s_add_u32 s52, s52, {c0*128}",
          f"v_cmp_gt_u32 vcc, {16*nc}, v0", "s_nop 1", "s_and_saveexec_b64 s[56:57], vcc",
          "buffer_load_dword v96, v13, s[28:31], s52 offen", "s_mov_b64 exec, -1", f"L_{tag}_done:")
    def touchW(c0, nc, wave, tag):
        a(f"s_cmp_lg_u32 s25, {wave}", f"s_cbranch_scc1 L_{tag}_done",
          "s_lshl_b32 s52, s24, 4", "s_add_u32 s52, s52, s23", f"s_mul_i32 s52, s52, {nc*1536}", f"s_add_u32 s52, s52, {c0*196608}",
          f"v_cmp_gt_u32 vcc, {12*nc}, v0", "v_lshlrev_b32 v13, 7, v0", "s_nop 0", "s_and_saveexec_b64 s[56:57], vcc",
          "buffer_load_dword v96, v13, s[32:35], s52 offen", "s_mov_b64 exec, -1", f"L_{tag}_done:")
    if "tlb" in OPT:
        a.c("translation warm-up: wave 0 of workgroup i touches one of the pages the kernel will need")
        a("s_cmp_lg_u32 s25, 0", "s_cbranch_scc1 L_tlb_done",
          "s_and_b32 s52, s23, 7", "v_mov_b32 v13, 0",
          "s_cmp_eq_u32 s52, 0", "s_cbranch_scc1 L_tlb0", "s_cmp_eq_u32 s52, 1", "s_cbranch_scc1 L_tlb1",
          "s_cmp_eq_u32 s52, 2", "s_cbranch_scc1 L_tlb2", "s_cmp_eq_u32 s52, 3", "s_cbranch_scc1 L_tlb3",
          "s_cmp_eq_u32 s52, 4", "s_cbranch_scc1 L_tlb4")
        a("s_lshl_b32 s53, s22, 22", "s_lshr_b32 s56, s23, 3", "s_lshl_b32 s56, s56, 21", "s_add_u32 s53, s53, s56",
          "s_lshl_b32 s56, s22, 21", f"s_add_u32 s56, s56, {OF_OFF}",
          "s_cmp_eq_u32 s52, 6", "s_cselect_b32 s53, s56, s53", "s_cmp_eq_u32 s52, 7", f"s_cselect_b32 s53, {FKV_OFF}, s53",
          "v_mov_b32 v13, s53", "global_load_dword v96, v13, s[20:21]", "s_branch L_tlb_done")
        a("L_tlb0:", "buffer_load_dword v96, v13, s[28:31], 0 offen", "s_branch L_tlb_done")
        a("L_tlb1:", "buffer_load_dword v96, v13, s[32:35], 0 offen", "s_branch L_tlb_done")
        a("L_tlb2:", "global_load_dword v96, v13, s[8:9]", "s_branch L_tlb_done")
        a("L_tlb3:", "s_lshr_b32 s53, s24, 2", "s_lshl_b32 s53, s53, 21", "v_mov_b32 v13, s53", "global_load_dword v96, v13, s[16:17]", "s_branch L_tlb_done")
        a("L_tlb4:", "global_load_dword v96, v13, s[18:19] sc1", "L_tlb_done:")
    if "early" in OPT: touches()
    a("s_barrier")
    if "early" not in OPT and "late" not in OPT: touches()
    if "a3" in OPT:
        touchX(2, 3, 0, "xa3"); touchW(2, 3, 1, "wa3")
    if "wa3" in OPT: touchW(2, 3, 2, "wa3")
    if "wa2" in OPT: touchW(2, 2, 2, "wa2")
    common_init(a)
    a("v_and_b32 v13, 31, v0", "v_lshrrev_b32 v14, 5, v0",
      "v_bfe_u32 v15, v0, 1, 3", "v_xor_b32 v15, v15, v14", "v_lshlrev_b32 v15, 4, v15", "v_lshl_add_u32 v15, v13, 7, v15",
      "s_lshl_b32 s52, s25, 12",
      f"v_add_u32 v{XA[0]}, s52, v15",
      f"v_xor_b32 v{XA[1]}, 32, v{XA[0]}", f"v_xor_b32 v{XA[2]}, 64, v{XA[0]}", f"v_xor_b32 v{XA[3]}, 96, v{XA[0]}")
    for s in range(4): a(f"v_add_u32 v{XB[s]}, 0x10000, v{XA[s]}")
    a("v_bfe_u32 v15, v0, 2, 2", "v_lshl_add_u32 v13, v14, 3, v15", "v_lshlrev_b32 v13, 6, v13",
      "v_bfe_u32 v15, v0, 4, 1", "v_lshl_add_u32 v13, v15, 5, v13", "v_and_b32 v15, 3, v0", "v_lshl_add_u32 v13, v15, 3, v13",
      f"v_add_u32 v{WA}, {WRING}, v13")
    a("s_lshl_b32 s52, s25, 11",
      "v_and_b32 v13, 0x33, v0", "v_bfe_u32 v15, v0, 2, 1", "v_lshl_add_u32 v13, v15, 3, v13",
      "v_bfe_u32 v15, v0, 3, 1", "v_lshl_add_u32 v13, v15, 2, v13", "v_lshlrev_b32 v13, 4, v13", f"v_add_u32 v{VK}, s52, v13",
      "v_and_b32 v13, 15, v0", "v_lshlrev_b32 v13, 4, v13", "v_lshl_add_u32 v13, v14, 8, v13",
      "v_bfe_u32 v15, v0, 4, 1", "v_lshl_add_u32 v13, v15, 14, v13", "s_add_u32 s52, s52, 1024", f"v_add_u32 v{VV}, s52, v13")
    a(f"s_add_u32 s52, s62, {QX}", f"v_add_u32 v{QA}, s52, v{LO}",
      f"s_mov_b32 s56, {f32bits(QSCALE):#x}", f"s_mov_b32 s57, {f32bits(QSCALE):#x}", "s_add_u32 s63, s55, 16384")
    def reads(c, s, buf):
        slot = c % 3
        l = [f"ds_read_b128 {vr(buf,4)}, v{XA[s]} offset:{slot*32768}" if slot < 2 else f"ds_read_b128 {vr(buf,4)}, v{XB[s]}"]
        for seg in range(3):
            for j in range(2):
                l.append(f"ds_read_b64_tr_b16 {vr(buf + 4 + seg*4 + j*2, 2)}, v{WA} offset:{(c % NWS)*12288 + seg*4096 + s*1024 + j*256}")
        return l
    def mms(buf, first):
        out = []
        for seg in (1, 2, 0):
            d = ACC + seg*16
            x = buf; w = buf + 4 + seg*4
            cs = "0" if first else d
            out.append(mfma(d, w, x, cs) if seg < 2 else mfma(d, x, w, cs))
        return out
    if "late" in OPT: touches()
    if "xa" in OPT: touchX(3, 2, 0, "xa")
    if "wa" in OPT: touchW(3, 2, 1, "wa")
    if "wa5" in OPT: touchW(3, 5, 1, "wa5")
    if "xa4" in OPT: touchX(4, 4, 0, "xa4")
    a(f"s_mov_b32 s56, {f32bits(QSCALE):#x}", f"s_mov_b32 s57, {f32bits(QSCALE):#x}")
    stamp(a, 1)
    a("s_barrier")
    stamp(a, 2)
    if "xb" in OPT or "wb" in OPT or "wb4" in OPT:
        if "xb" in OPT: touchX(5, 3, 2, "xb")
        if "wb" in OPT: touchW(5, 3, 3, "wb")
        if "wb4" in OPT: touchW(4, 4, 3, "wb4")
        a(f"s_mov_b32 s56, {f32bits(QSCALE):#x}", f"s_mov_b32 s57, {f32bits(QSCALE):#x}")
    if "cyc" in OPT: a("s_memtime s[98:99]", "s_waitcnt lgkmcnt(0)")
    step = 0
    a(reads(0, 0, FX[0]))
    for c in range(8):
        for s in range(4):
            cur = FX[step % 2]; nxt = FX[(step + 1) % 2]
            if s < 3:
                a(reads(c, s + 1, nxt)); a("s_waitcnt lgkmcnt(7)")
            elif c < 7:
                a("s_waitcnt lgkmcnt(0)", "s_barrier")
                if c == 3 and "p1ts" not in OPT: stamp(a, 3)
                if "p1ts" in OPT: stamp(a, 7 + c)
                a(reads(c + 1, 0, nxt))
            else:
                a("s_waitcnt lgkmcnt(0)")
            a(mms(cur, step == 0))
            step += 1
    stamp(a, 4)
    if "cyc" in OPT: a("s_memtime s[96:97]", "s_waitcnt lgkmcnt(0)", "s_sub_u32 s96, s96, s98", "s_add_u32 s66, s68, s96", "s_addc_u32 s67, s69, 0")
    global P1TS_DONE
    P1TS_DONE = True
    a.c("P1 epilogue: K, V -> global (write-through) + LDS stage slot 0 ; Q -> regs / LDS")
    a("s_nop 9")
    PK = 64
    def pack(dst, src):
        return [f"v_cvt_pk_bf16_f32 v{dst+r}, v{src+2*r}, v{src+2*r+1}" for r in range(4)]
    for hh in range(2):
        t = PK + hh*4
        a(pack(t, ACC + 16 + hh*8))
        a(f"buffer_store_dwordx4 {vr(t,4)}, v{VK}, s[36:39], s{55 if hh == 0 else 63} offen {WT}")
        a(f"ds_write_b128 v{VK}, {vr(t,4)} offset:{hh*16384}")
    for jj in range(2):
        t = PK + 8 + jj*4
        a(pack(t, ACC + 32 + jj*8))
        a(f"buffer_store_dwordx4 {vr(t,4)}, v{VV}, s[36:39], s55 offen offset:{jj*512} {WT}")
        a(f"ds_write_b128 v{VV}, {vr(t,4)} offset:{jj*512}")
    for r in range(4, 8): a(f"v_pk_mul_f32 {vr(ACC+2*r,2)}, {vr(ACC+2*r,2)}, s[56:57]")
    a(pack(PK + 16, ACC + 8), f"ds_write_b128 v{QA}, {vr(PK+16,4)}")
    for r in range(4): a(f"v_pk_mul_f32 {vr(ACC+2*r,2)}, {vr(ACC+2*r,2)}, s[56:57]")
    a(pack(Q, ACC))
    a("s_branch L_p2_start")

    a("L_loader:")
    a("s_sub_u32 s52, s25, 8")
    a("s_and_b32 s53, s52, 1", "s_lshl_b32 s53, s53, 2",
      "v_lshrrev_b32 v2, 4, v0", "v_add_u32 v2, s53, v2", "v_and_b32 v3, 7, v0", "v_xor_b32 v2, v2, v3", "v_lshlrev_b32 v2, 4, v2",
      "v_lshrrev_b32 v4, 3, v0", "v_lshl_add_u32 v2, v4, 10, v2")
    a("v_lshrrev_b32 v4, 2, v0", "v_mul_u32_u24 v4, 3072, v4", "v_and_b32 v3, 3, v0", "v_lshl_add_u32 v3, v3, 4, v4",
      "s_lshl_b32 s53, s23, 6", "v_add_u32 v3, s53, v3")
    a("s_lshl_b32 s4, s52, 13", "s_add_u32 s5, s4, 65536", "s_add_u32 s6, s4, 131072", "s_add_u32 s7, s4, 196608",
      "s_lshl_b32 s0, s52, 10")
    a("s_and_b32 s53, s52, 3", "s_mul_i32 s1, s53, 49152", "s_lshr_b32 s53, s52, 2", "s_lshl_b32 s53, s53, 10", "s_add_u32 s1, s1, s53")
    a("s_cmp_ge_u32 s52, 4", "s_cbranch_scc1 L_loaderB")
    def issueW(c, variantA):
        slot = c % NWS
        out = [f"s_add_u32 m0, s0, {WRING + slot*12288}", f"s_add_u32 s53, s1, {c*196608}",
               "buffer_load_dwordx4 v3, s[32:35], s53 offen lds"]
        if variantA:
            out += [f"s_add_u32 m0, s0, {WRING + slot*12288 + 8192 - 2048}", "s_nop 0",
                    "buffer_load_dwordx4 v3, s[32:35], s53 offen offset:2048 lds"]
        return out
    def issueX(c):
        slot = c % 3
        out = []
        for aa in range(4):
            out += [f"s_add_u32 m0, s0, {XRING + slot*32768 + aa*8192}", f"s_add_u32 s53, s{4+aa}, {c*128}",
                    "buffer_load_dwordx4 v2, s[28:31], s53 offen lds"]
        return out
    for variantA in (True, False):
        ops = []
        def W(c):
            a(issueW(c, variantA)); ops.extend([c]*(2 if variantA else 1))
        def X(c):
            a(issueX(c)); ops.extend([c]*4)
        if not variantA: a("L_loaderB:")
        if variantA: stamp(a, 1)
        W(0); X(0); a("s_barrier"); W(1); X(1)
        if variantA: stamp(a, 2)
        if not variantA:
            a.c("workgroup 0 publishes the launch tag (low 4 bits: 8 | room for an XCC id)")
            a("s_cmp_lg_u32 s2, 0", "s_cbranch_scc1 L_notag", "s_cmp_lg_u32 s52, 7", "s_cbranch_scc1 L_notag")
            a("s_lshl_b64 s[48:49], s[48:49], 4", "s_or_b32 s48, s48, 8",
              "v_mov_b32 v8, 0", "v_mov_b32 v4, s48", "v_mov_b32 v5, s49", "s_mov_b64 exec, 1",
              f"global_store_dwordx2 v8, v[4:5], s[18:19] {WT}", "s_mov_b64 exec, -1")
            a("L_notag:")
        ROLL = "roll" in OPT and not variantA
        def TOUCH(c):
            a("s_mov_b64 exec, s[16:17]", "buffer_load_dword v10, v9, s[44:47], s3 offen", "s_mov_b64 exec, -1", "s_add_u32 s3, s3, s27")
            ops.append(99)
        if ROLL:
            a("s_mov_b32 s3, s52")
        common_init(a)
        if ROLL:
            a.c("rolling warm-up of later k-chunks: waves 12,13 take X lines, waves 14,15 W lines")
            R0 = int([o for o in OPT if o.startswith("r0=")][0][3:]) if any(o.startswith("r0=") for o in OPT) else 2
            a("s_cmp_lt_u32 s3, 6",
              "s_cselect_b32 s44, s28, s32", "s_cselect_b32 s45, s29, s33", "s_cselect_b32 s46, s30, s34",
              "s_cselect_b32 s16, 0xff, 63", "s_mov_b32 s17, 0", "s_mov_b32 s27, 196608", "s_cselect_b32 s27, 128, s27", "s_cselect_b32 s52, 10, 7",
              "v_lshlrev_b32 v9, s52, v0",
              "s_and_b32 s3, s3, 1", "s_lshl_b32 s52, s23, 1", "s_add_u32 s52, s52, s3", "s_lshl_b32 s53, s52, 13",
              "s_lshl_b32 s56, s24, 5", "s_add_u32 s52, s52, s56", "s_mul_i32 s52, s52, 768",
              "s_cmp_eq_u32 s27, 128", "s_cselect_b32 s3, s53, s52", f"s_mul_i32 s52, s27, {R0}", "s_add_u32 s3, s3, s52")
            nextT = R0
            RD = int([o for o in OPT if o.startswith("rd=")][0][3:]) if any(o.startswith("rd=") for o in OPT) else 4
            while nextT < RD: TOUCH(nextT); nextT += 1
        nextW = 2
        for c in range(8):
            last = max(i for i, x in enumerate(ops) if x <= c)
            wait = len(ops) - 1 - last
            if not variantA and c == 7:
                a.c("launch tag -> LDS")
                spin(a, "tag", ["v_cmp_ne_u64 vcc, 0, v[6:7]", "s_nop 1", "s_cmp_eq_u64 vcc, -1"],
                     ["global_load_dwordx2 v[6:7], v8, s[18:19] sc1"])
                a(f"ds_write_b64 v{T}, v[6:7]")
            else:
                a(f"s_waitcnt vmcnt({wait})")
            a("s_barrier")
            if variantA and c == 0: stamp(a, 3)
            if variantA and c == 7: stamp(a, 4)
            if nextW == c + 2 and nextW <= 7: W(nextW); nextW += 1
            if c + 2 <= 7: X(c + 2)
            while nextW <= min(7, c - 1 + NWS): W(nextW); nextW += 1
            if ROLL and nextT <= 7: TOUCH(nextT); nextT += 1
            if not variantA and c == 5:
                a("v_mov_b32 v8, 0", "global_load_dwordx2 v[6:7], v8, s[18:19] sc1"); ops.append(99)
        if variantA: a("s_branch L_p2_start")

    a("L_p2_start:")
    for r in range(16): a(f"v_mov_b32 v{O+r}, 0")
    a("s_waitcnt lgkmcnt(0)")
    stamp(a, 5)
    a("s_barrier")
    stamp(a, 6)
    a(f"ds_read_b64 {vr(T+2,2)}, v{T}")
    a("s_cmp_lt_u32 s25, 8", "s_cbranch_scc1 L_haveq")
    a(f"s_add_u32 s53, s62, {QX - 8192}", f"v_add_u32 v{T}, s53, v{LO}", f"ds_read_b128 {vr(Q,4)}, v{T}")
    a("L_haveq:")
    def kread(u):
        s, t = divmod(u, 8); sl = s % 4
        return [f"ds_read_b128 {vr(KB[u%2],4)}, v{KA[sl//2]} offset:{(sl%2)*32768 + t*2048}"]
    def vread(u):
        s, t = divmod(u, 8); sl = s % 4
        o = (sl % 2)*32768 + t*2048
        return ["s_mov_b64 exec, s[50:51]",
                f"ds_read_b128 {vr(VB[u%2],4)}, v{VA[sl//2]} offset:{o}",
                f"ds_read_b128 {vr(VB[u%2]+4,4)}, v{VA[sl//2]} offset:{o+512}",
                "s_mov_b64 exec, -1"]
    def ex(base, lo, hi): return [f"v_exp_f32 v{base+i}, v{base+i}" for i in range(lo, hi)]
    def dma(s):
        sl = s % 4
        return [f"s_xor_b32 s53, s24, {s}", "s_lshl_b32 s53, s53, 15", "s_add_u32 s53, s53, s54", "s_add_u32 s53, s53, s62",
                f"s_add_u32 m0, s62, {sl*32768}", "s_add_u32 s63, s53, 16384",
                f"buffer_load_dwordx4 v{LO}, s[36:39], s53 offen sc1 lds",
                f"s_add_u32 m0, s62, {sl*32768 + 16384}", "s_nop 0",
                f"buffer_load_dwordx4 v{LO}, s[36:39], s63 offen sc1 lds"]
    kvpoll = [f"buffer_load_dwordx2 {vr(T,2)}, v{T+4}, s[36:39], s60 offen sc1"]
    a("s_setprio 3")
    a(kread(0), vread(0), kread(1), "s_waitcnt lgkmcnt(1)")
    a(f"v_readfirstlane_b32 s48, v{T+2}", f"v_readfirstlane_b32 s49, v{T+3}")
    a(mfma(S[0], KB[0], Q, "0"), "s_nop 11")
    NT = 64
    prio_at = {3: 2, 5: 1, 6: 0}
    PUB = 0 if "pub0" in OPT else 1
    def prio2(lo, hi, tag):
        a("s_cmp_lt_u32 s25, 8", f"s_setprio {lo}", f"s_cbranch_scc1 L_{tag}", f"s_setprio {hi}", f"L_{tag}:")
    for u in range(NT):
        st, t = divmod(u, 8)
        s = S[u % 2]
        if t in prio_at and st < 7: a(f"s_setprio {prio_at[t]}")
        if st == 7 and t in (3, 6, 7): a(f"s_setprio { {3: 2, 6: 1, 7: 0}[t] }")
        special7 = (u == 7)
        if special7:
            stamp(a, 8)
            a("s_waitcnt vmcnt(0) lgkmcnt(0)", "s_barrier", "s_setprio 3")
            stamp(a, 9)
            a(kread(8))
        else:
            a("s_waitcnt lgkmcnt(0)")
        a(ex(s, 0, 2))
        if u > 0: a(smf(O, VB[(u-1) % 2] + 4, S[(u-1) % 2] + 8, IDX))
        if u + 1 < NT: a(vread(u + 1))
        a(ex(s, 2, 5))
        if u + 1 < NT and not special7:
            a(mfma(S[(u+1) % 2], KB[(u+1) % 2], Q, "0"))
            if t == 6 and 1 <= st <= 6:
                a(f"s_waitcnt vmcnt({2 if st <= 5 else 0})", "s_barrier", "s_setprio 3")
                if st == 3: stamp(a, 10)
                if st <= 4: a(dma(st + 3))
                if st == 5:
                    a.c("Wo tile -> LDS (slot 0 and the spare region); XCC ids of the row block's workgroups")
                    a(f"v_lshrrev_b32 v{T}, 4, v{LO}", f"v_bfe_u32 v{T+1}, v{T}, 4, 1", f"v_lshlrev_b32 v{T+1}, 1, v{T+1}", f"v_and_b32 v{T+2}, 7, v{T}",
                      f"v_xor_b32 v{T+1}, v{T+1}, v{T+2}", f"v_lshlrev_b32 v{T+1}, 4, v{T+1}", f"v_lshrrev_b32 v{T}, 3, v{T}",
                      f"v_lshl_add_u32 v{T}, v{T}, 10, v{T+1}", "s_lshl_b32 s63, s25, 13")
                    for aa in range(4):
                        lds = aa*16384 if aa < 2 else EREG + (aa-2)*16384
                        a(f"s_add_u32 m0, s62, {lds}", f"s_add_u32 s53, s63, {aa*131072}", f"buffer_load_dwordx4 v{T}, s[40:43], s53 offen lds")
                    a(f"v_and_b32 v{T+5}, 0x78, v{T+4}", f"buffer_load_dwordx2 {vr(T+2,2)}, v{T+5}, s[36:39], s10 offen sc1")
                    if "nopre" not in OPT:
                        a.c("bring the O and O-flag lines this wave will write into L2 (a store alone leaves them unreadable without a fill)")
                        a(f"v_mov_b32 v{T+1}, 0", f"buffer_load_dword v{T+1}, v{T+1}, s[36:39], s59 offen" + (" sc1" if "presc1" in OPT else ""))
                        a(f"buffer_load_dword v60, v{LO}, s[36:39], s58 offen")
                if st == 6:
                    a.c("local hand-off only when all 16 workgroups of this row block run on this XCC")
                    a("s_or_b32 s52, s48, s26", "s_mov_b32 s53, s49", f"v_cmp_eq_u64 vcc, s[52:53], {vr(T+2,2)}", "s_nop 1",
                      "s_cmp_eq_u64 vcc, -1", "s_cselect_b32 s27, 1, 0")
                    if "noloc" in OPT: a("s_mov_b32 s27, 0")

            if u + 2 < NT and u != 6: a(kread(u + 2))
        a(ex(s, 5, 10))
        a(smf(O, VB[u % 2], s, IDX))
        if special7:
            a("s_waitcnt lgkmcnt(2)", mfma(S[0], KB[0], Q, "0"), kread(9))
            a(ex(s, 10, 16), "s_nop 3")
        else:
            a(ex(s, 10, 16))
        if u == PUB:
            a.c("publish this wave's K/V tile; wave 8 publishes the workgroup's XCC id")
            a(f"v_mov_b32 v{T}, s48", f"v_mov_b32 v{T+1}, s49", f"v_mov_b32 v{T+2}, 0",
              "s_cmp_ge_u32 s25, 8", "s_cbranch_scc1 L_nopub", "s_waitcnt vmcnt(0)")
            stamp(a, 7)
            a("s_mov_b64 exec, 1", f"buffer_store_dwordx2 {vr(T,2)}, v{T+2}, s[36:39], s61 offen {WT}", "s_mov_b64 exec, -1", "s_branch L_pubdone")
            a("L_nopub:", "s_cmp_lg_u32 s25, 8", "s_cbranch_scc1 L_pubdone",
              f"v_or_b32 v{T}, s26, v{T}", "s_lshl_b32 s53, s23, 3", "s_add_u32 s53, s53, s10",
              "s_mov_b64 exec, 1", f"buffer_store_dwordx2 {vr(T,2)}, v{T+2}, s[36:39], s53 offen {WT}", "s_mov_b64 exec, -1", "L_pubdone:")
        if u == 3 or u == 8:
            a(kvpoll)
        if u == 5:
            spin(a, "kv1", [f"v_cmp_eq_u64 vcc, s[48:49], {vr(T,2)}", "s_nop 1", "s_and_b64 vcc, vcc, s[14:15]", "s_cmp_eq_u64 vcc, s[14:15]"], kvpoll)
            a(dma(1))
        if u == 10:
            spin(a, "kv2", [f"v_cmp_eq_u64 vcc, s[48:49], {vr(T,2)}", "s_nop 1", "s_cmp_eq_u64 vcc, -1"], kvpoll)
            a(dma(2), dma(3))
    a("s_nop 1", smf(O, VB[(NT-1) % 2] + 4, S[(NT-1) % 2] + 8, IDX), "s_nop 11")
    a.c("safety check of the zero stand-in: 2^-24 <= l <= 2^48 and finite O, else redo with the true row max")
    a(f"v_mov_b32 v{T}, 0x33800000", f"v_mov_b32 v{T+1}, 0x57800000", f"v_mov_b32 v{T+2}, 0x7f800000", "s_nop 0",
      f"v_cmp_le_f32 s[52:53], v{T}, v{O+8}", f"v_cmp_ge_f32 s[56:57], v{T+1}, v{O+8}",
      f"v_max3_f32 v{T+1}, abs(v{O}), abs(v{O+1}), abs(v{O+2})", f"v_max3_f32 v{T+1}, abs(v{O+3}), abs(v{O+4}), v{T+1}",
      f"v_max3_f32 v{T+1}, abs(v{O+5}), abs(v{O+6}), v{T+1}", f"v_max_f32 v{T+1}, abs(v{O+7}), v{T+1}",
      "s_and_b64 s[52:53], s[52:53], s[56:57]",
      f"v_cmp_gt_f32 vcc, v{T+2}, v{T+1}", "s_nop 1", "s_and_b64 s[52:53], s[52:53], vcc",
      "s_cmp_eq_u64 s[52:53], -1", "s_cbranch_scc0 L_fallback")
    a("L_finish:")
    a("s_setprio 3")
    stamp(a, 11)
    a(f"v_rcp_f32 v{T}, v{O+8}", "s_nop 0")
    for r in range(8): a(f"v_mul_f32 v{O+r}, v{O+r}, v{T}")
    for r in range(4): a(f"v_cvt_pk_bf16_f32 v{O+12+r}, v{O+2*r}, v{O+2*r+1}")
    a(f"v_mov_b32 v{T}, s48", f"v_mov_b32 v{T+1}, s49", f"v_mov_b32 v{T+2}, 0")
    a("s_cmp_eq_u32 s27, 1", "s_cbranch_scc1 L_ostore_local")
    a(f"buffer_store_dwordx4 {vr(O+12,4)}, v{LO}, s[36:39], s58 offen {WT}", "s_waitcnt vmcnt(0)",
      "s_mov_b64 exec, 1", f"buffer_store_dwordx2 {vr(T,2)}, v{T+2}, s[36:39], s59 offen {WT}", "s_mov_b64 exec, -1", "s_branch L_ostored")
    a("L_ostore_local:")
    a(f"buffer_store_dwordx4 {vr(O+12,4)}, v{LO}, s[36:39], s58 offen", "s_waitcnt vmcnt(0)",
      "s_mov_b64 exec, 1", f"buffer_store_dwordx2 {vr(T,2)}, v{T+2}, s[36:39], s59 offen", "s_mov_b64 exec, -1")
    a("L_ostored:")
    stamp(a, 12)
    a("s_barrier")
    if TS:
        a("s_cmp_lt_u32 s25, 8", "s_cbranch_scc1 L_ts_p3", "s_barrier", "s_barrier", "s_barrier")
        if "allw" in OPT:
            for w in range(8, 16): ts_flush(a, w, w, f"w{w}")
        else:
            ts_flush(a, 1, 8, "w8")
            ts_flush(a, 2, 15, "w15")
        a("s_endpgm", "L_ts_p3:")
    else:
        a("s_cmp_ge_u32 s25, 8", "s_cbranch_scc1 L_done")

    ACC3 = [0, 16]; OFR = 32; WB = [96, 104, 112]; A3 = [120, 122]; VO = 116; PA = 123; L = 118; PF = 124
    opoll = [f"buffer_load_dwordx4 {vr(PF,4)}, v{LO}, s[36:39], s11 offen sc1"]
    ocond = [f"v_cmp_eq_u64 vcc, s[48:49], {vr(PF,2)}", f"v_cmp_eq_u64 s[52:53], s[48:49], {vr(PF+2,2)}", "s_nop 1",
             "s_and_b64 vcc, vcc, s[52:53]", "s_cmp_eq_u64 vcc, -1"]
    a("s_cmp_lt_u32 s25, 4", "s_cbranch_scc1 L_p3c")
    a("s_and_b32 s56, s25, 3", "s_lshl_b32 s56, s56, 14", "s_add_u32 s56, s56, 32768")
    a("s_barrier")
    for i in range(16):
        a(f"s_add_u32 m0, s56, {i*1024}", f"s_add_u32 s53, s12, {(16+i)*1024}", f"buffer_load_dwordx4 v{LO}, s[36:39], s53 offen sc1 lds")
    a("s_waitcnt vmcnt(8)", "s_barrier", "s_waitcnt vmcnt(0)", "s_barrier")
    if "allw" in OPT:
        for w in range(4, 8): ts_flush(a, w, w, f"w{w}")
    a("s_endpgm")
    a("L_p3c:")
    a(opoll)
    a(f"v_lshrrev_b32 v6, 4, v{LO}")
    a(f"v_lshrrev_b32 v4, 5, v6", f"v_bfe_u32 v5, v6, 2, 2", "v_lshl_add_u32 v4, v4, 2, v5", "v_lshlrev_b32 v4, 7, v4",
      f"v_and_b32 v5, 1, v6", "v_lshl_add_u32 v4, v5, 6, v4", f"v_bfe_u32 v5, v6, 4, 1", "v_lshl_add_u32 v4, v5, 4, v4",
      f"v_bfe_u32 v5, v6, 3, 1", "v_lshl_add_u32 v4, v5, 5, v4", f"v_bfe_u32 v5, v6, 1, 1", f"v_lshl_add_u32 v{A3[0]}, v5, 3, v4",
      f"v_xor_b32 v{A3[1]}, 32, v{A3[0]}")
    a("s_lshl_b32 s56, s25, 14", "s_add_u32 s56, s56, 32768", f"v_add_u32 v{PA}, s56, v{LO}")
    def reads3(hd, buf):
        out = []
        if hd == 16: out += [f"v_add_u32 v{A3[0]}, {EREG}, v{A3[0]}", f"v_add_u32 v{A3[1]}, {EREG}, v{A3[1]}"]
        for cb in range(2):
            for j in range(2):
                out.append(f"ds_read_b64_tr_b16 {vr(buf + cb*4 + j*2, 2)}, v{A3[cb]} offset:{(hd%16)*2048 + j*1024}")
        return out
    a(reads3(0, WB[0]), reads3(1, WB[1]))
    spin(a, "o", ocond, opoll)
    stamp(a, 13)
    for i in range(16):
        if i % 4 == 0: a(f"s_add_u32 s53, s12, {i*1024}")
        a(f"buffer_load_dwordx4 {vr(OFR + i*4, 4)}, v{LO}, s[36:39], s53 offen offset:{(i%4)*1024} sc1")
    a("s_barrier")
    lq = ["W0"]*4 + ["W1"]*4
    def lwait(need):
        nonlocal lq
        idx = [i for i, x in enumerate(lq) if x in need]
        if not idx: return None
        keep = len(lq) - 1 - max(idx)
        lq = lq[len(lq) - keep:]
        return keep
    def oread(n):
        lq.append(f"O{n}")
        return f"ds_read_b128 {vr(OFR + (n-16)*4, 4)}, v{PA} offset:{(n-16)*1024}"
    for n in range(32):
        cur = WB[n % 3]
        if n in (16, 24):
            if "p3ts" in OPT and n == 16: stamp(a, 2); lq = []
            a("s_barrier")
            if "p3ts" in OPT and n == 24: stamp(a, 3); lq = []
            for i in range(2): a(oread(n + i))
        if n + 2 < 32:
            a(reads3(n + 2, WB[(n+2) % 3])); lq.extend([f"W{n+2}"]*4)
        if n >= 16 and (n % 8) + 2 < 8: a(oread(n + 2))
        assert len(lq) <= 15, lq
        kw = lwait({f"W{n}", f"O{n}"})
        w = []
        if n < 16: w.append(f"vmcnt({15 - n})")
        if kw is not None: w.append(f"lgkmcnt({kw})")
        if w: a("s_waitcnt " + " ".join(w))
        if "p3ts" in OPT and n in (0, 31): stamp(a, {0: 1, 31: 4}[n]); lq = []
        for cb in range(2):
            a(mfma(ACC3[cb], cur + cb*4, OFR + (n%16)*4, "0" if n == 0 else ACC3[cb]))
    a(f"v_lshrrev_b32 v{L}, 4, v{LO}")
    PA = 117
    a.c("transpose through LDS (slot 1 is free) so that every store writes whole 128-byte lines")
    TA_ = 119; TB_ = 120
    a(f"v_and_b32 v{TA_}, 31, v{L}", f"v_lshrrev_b32 v{PA}, 5, v{L}", f"v_lshlrev_b32 v{PA}, 2, v{PA}", f"v_and_b32 v{TB_}, 7, v{L}",
      f"v_xor_b32 v{PA}, v{PA}, v{TB_}", f"v_lshlrev_b32 v{PA}, 4, v{PA}", f"v_lshl_add_u32 v{TA_}, v{TA_}, 7, v{PA}",
      "s_mov_b32 s52, s56", f"v_add_u32 v{TA_}, s52, v{TA_}",
      f"v_lshrrev_b32 v{PA}, 3, v{L}", f"v_xor_b32 v{VO}, v{PA}, v{TB_}", f"v_lshlrev_b32 v{VO}, 4, v{VO}", f"v_lshl_add_u32 v{VO}, v{PA}, 7, v{VO}",
      f"v_add_u32 v{VO}, s52, v{VO}",
      f"v_lshlrev_b32 v{TB_}, 4, v{TB_}", f"v_lshl_add_u32 v{TB_}, v{PA}, 11, v{TB_}")
    for cb in range(2):
        for q in range(2):
            c = cb*2 + q
            t = 32 + c*4
            for r in range(4): a(f"v_cvt_pk_bf16_f32 v{t+r}, v{ACC3[cb]+q*8+2*r}, v{ACC3[cb]+q*8+2*r+1}")
            if c: a(f"v_xor_b32 v{PA}, {c*16}, v{TA_}")
            a(f"ds_write_b128 v{PA if c else TA_}, {vr(t,4)}")
    a("s_waitcnt lgkmcnt(0)")
    for i in range(4): a(f"ds_read_b128 {vr(48 + i*4, 4)}, v{VO} offset:{i*1024}")
    for i in range(4):
        a(f"s_add_u32 s53, s13, {i*16384}", f"s_waitcnt lgkmcnt({3-i})", f"buffer_store_dwordx4 {vr(48 + i*4, 4)}, v{TB_}, s[44:47], s53 offen")
    if TS:
        if "p3ts" in OPT: stamp(a, 5)
        a("s_waitcnt vmcnt(0)")
        stamp(a, 14)
        ts_flush(a, 0, 0, "w0")
        if "allw" in OPT:
            for w in range(1, 4): ts_flush(a, w, w, f"w{w}")
    a("L_done:", "s_endpgm")

    a("L_fallback:")
    M = T + 2
    a("s_lshr_b32 s52, s25, 3", "s_lshl_b32 s52, s52, 14", "s_add_u32 s52, s52, s54",
      f"v_mov_b32 v{M}, 0xff800000", "s_mov_b32 s63, 0",
      f"v_sub_u32 v{T+3}, v{VA[0]}, v{KA[0]}", f"v_add_u32 v{T+3}, v{T+3}, v{LO}")
    def fb_addr():
        return ["s_lshr_b32 s53, s63, 3", "s_lshl_b32 s53, s53, 15", "s_and_b32 s56, s63, 7", "s_lshl_b32 s56, s56, 11",
                "s_add_u32 s53, s53, s56", "s_add_u32 s53, s53, s52"]
    a("L_fb1:", fb_addr(),
      f"buffer_load_dwordx4 {vr(KB[0],4)}, v{LO}, s[36:39], s53 offen sc1", "s_waitcnt vmcnt(0)",
      mfma(S[0], KB[0], Q, "0"), "s_nop 15")
    for r in range(8): a(f"v_max3_f32 v{M}, v{S[0]+2*r}, v{S[0]+2*r+1}, v{M}")
    a("s_add_u32 s63, s63, 1", "s_cmp_lg_u32 s63, 64", "s_cbranch_scc1 L_fb1")
    a(f"v_mov_b32 v{T}, v{M}", "s_nop 1", f"v_permlane32_swap_b32 v{M}, v{T}", "s_nop 1", f"v_max_f32 v{M}, v{M}, v{T}", f"v_sub_f32 v{M}, 0, v{M}")
    for r in range(16): a(f"v_mov_b32 v{CM+r}, v{M}")
    for r in range(16): a(f"v_mov_b32 v{O+r}, 0")
    a("s_mov_b32 s63, 0")
    a("L_fb2:", fb_addr(),
      f"buffer_load_dwordx4 {vr(KB[0],4)}, v{LO}, s[36:39], s53 offen sc1", "s_mov_b64 exec, s[50:51]",
      f"buffer_load_dwordx4 {vr(VB[0],4)}, v{T+3}, s[36:39], s53 offen sc1",
      f"buffer_load_dwordx4 {vr(VB[0]+4,4)}, v{T+3}, s[36:39], s53 offen offset:512 sc1", "s_mov_b64 exec, -1",
      "s_waitcnt vmcnt(0)", mfma(S[0], KB[0], Q, CM), "s_nop 15")
    a(ex(S[0], 0, 16), "s_nop 1", smf(O, VB[0], S[0], IDX), smf(O, VB[0] + 4, S[0] + 8, IDX))
    a("s_add_u32 s63, s63, 1", "s_cmp_lg_u32 s63, 64", "s_cbranch_scc1 L_fb2")
    a("s_nop 15", "s_branch L_finish")
    a.l.append(f""".section .rodata,"a"
.p2align 6
.amdhsa_kernel {k}
  .amdhsa_next_free_vgpr 128
  .amdhsa_next_free_sgpr {102 if TS else 64}
  .amdhsa_accum_offset 128
  .amdhsa_group_segment_fixed_size 0
  .amdhsa_kernarg_size 72
  .amdhsa_user_sgpr_count 2
  .amdhsa_user_sgpr_kernarg_segment_ptr 1
  .amdhsa_system_sgpr_workgroup_id_x 1
.end_amdhsa_kernel""")

a = Asm()
a.l += ["; MHA x2 (S=2048, D=512, H=32), one launch: qkv projection -> attention -> output projection",
        "; @launch grid=(256,1,1) block=(1024,1,1) lds=163840",
        '.amdgcn_target "amdgcn-amd-amdhsa--gfx950"', ".text"]
gen(a)
print(a.text())
```

```python
import sys, math, struct

NAME = "concat_heads__mha_block__mha_block__prompt"
OPT = set(sys.argv[1:])
if not OPT & {"tx", "a3", "roll", "nopf"}: OPT |= {"tx", "late", "wa2", "wb4"}
NWS = 5 if "w5" in OPT else (4 if "w4" in OPT else 3)
TS = "ts" in OPT
WT = "sc0 sc1" if "sys" in OPT else "sc1"
KV_OFF = 0
OF_OFF = 8 << 20
FKV_OFF = 12 << 20
FO_OFF = (12 << 20) + 65536
XID_OFF = (12 << 20) + 131072
WS_USED = 13 << 20
QSCALE = 0.25 * math.log2(math.e)
SPIN_MAX = 1 << 18
def f32bits(x): return struct.unpack("<I", struct.pack("<f", x))[0]

class Asm:
    def __init__(self): self.l = []
    def __call__(self, *lines):
        for x in lines:
            if isinstance(x, (list, tuple)): self(*x)
            else: self.l.append("    " + x if not x.endswith(":") else x)
    def c(self, s): self.l.append("    ; " + s)
    def text(self): return "\n".join(self.l)

def vr(b, n): return f"v[{b}:{b+n-1}]"
def mfma(d, a, b, c):
    cs = vr(c, 16) if isinstance(c, int) else c
    return f"v_mfma_f32_32x32x16_bf16 {vr(d,16)}, {vr(a,4)}, {vr(b,4)}, {cs}"
def smf(d, a, b, idx): return f"v_smfmac_f32_32x32x32_bf16 {vr(d,16)}, {vr(a,4)}, {vr(b,8)}, v{idx}"

P1TS_DONE = False
def stamp(a, j):
    if "p1ts" in OPT and P1TS_DONE and j >= 7: return
    if TS: a(f"s_memrealtime s[{64+2*j}:{65+2*j}]", "s_waitcnt lgkmcnt(0)")
def ts_init(a):
    if TS:
        for j in range(15): a(f"s_mov_b64 s[{64+2*j}:{65+2*j}], 0")
        a("s_mov_b32 s94, 0x5151", "s_mov_b32 s95, 0")
def ts_flush(a, kidx, wave, tag):
    if not TS: return
    a(f"s_cmp_lg_u32 s25, {wave}", f"s_cbranch_scc1 TS_skip_{tag}")
    a("s_sleep 127", "s_sleep 127", "s_sleep 127")
    a("s_mov_b64 exec, 1", f"s_lshl_b32 s96, s2, 7", f"s_add_u32 s96, s96, {(32<<20) + kidx*256*128}", "v_mov_b32 v1, s96")
    for j in range(16):
        a(f"v_mov_b32 v2, s{64+2*j}", f"v_mov_b32 v3, s{65+2*j}", f"global_store_dwordx2 v1, v[2:3], s[20:21] offset:{j*8}", "s_nop 1")
    a("s_waitcnt vmcnt(0)", "s_mov_b64 exec, -1", f"TS_skip_{tag}:")

XRING = 0
WRING = 98304
QX = 65536
TAGL = 163832
EREG = 131072

def spin(a, name, cond_lines, reload_lines):
    a(f"s_mov_b32 s63, {SPIN_MAX}", f"L_{name}_chk:", "s_waitcnt vmcnt(0)", cond_lines, f"s_cbranch_scc1 L_{name}_ok", "s_sleep 1",
      reload_lines, "s_sub_u32 s63, s63, 1", "s_cmp_lg_u32 s63, 0", f"s_cbranch_scc1 L_{name}_chk", "s_waitcnt vmcnt(0)", f"L_{name}_ok:")

def gen(a):
    k = NAME + "_kernel"
    a.l += [f".globl {k}", ".p2align 8", f".type {k},@function", f"{k}:"]
    a("s_cmp_ge_u32 s2, 256", "s_cbranch_scc1 L_done")
    a("s_load_dwordx16 s[4:19], s[0:1], 0", "s_load_dwordx2 s[20:21], s[0:1], 64")
    ts_init(a)
    if TS: a("s_memrealtime s[64:65]")
    a("s_memrealtime s[48:49]")
    a("s_and_b32 s52, s2, 7", "s_lshr_b32 s53, s2, 3",
      "s_lshr_b32 s22, s52, 2",
      "s_and_b32 s23, s53, 15",
      "s_and_b32 s24, s52, 3", "s_lshl_b32 s24, s24, 1", "s_lshr_b32 s53, s53, 4", "s_add_u32 s24, s24, s53")
    a("v_lshrrev_b32 v1, 6, v0", "v_and_b32 v0, 63, v0", "s_getreg_b32 s26, hwreg(HW_REG_XCC_ID)", "v_readfirstlane_b32 s25, v1")
    a("s_and_b32 s26, s26, 7", "s_lshl_b32 s62, s25, 10")
    a("s_waitcnt lgkmcnt(0)")
    a("s_cmp_eq_u32 s22, 0",
      "s_cselect_b32 s4, s4, s10", "s_cselect_b32 s5, s5, s11", "s_cselect_b32 s6, s6, s12", "s_cselect_b32 s7, s7, s13",
      "s_cselect_b32 s8, s8, s14", "s_cselect_b32 s9, s9, s15")
    a("s_lshl_b32 s52, s24, 18", "s_add_u32 s28, s4, s52", "s_addc_u32 s29, s5, 0", "s_and_b32 s29, s29, 0xffff",
      "s_mov_b32 s30, 262144", "s_mov_b32 s31, 0x20000")
    a("s_mov_b32 s32, s6", "s_and_b32 s33, s7, 0xffff", f"s_mov_b32 s34, {512*3072}", "s_mov_b32 s35, 0x20000")
    a("s_cmp_ge_u32 s25, 8", "s_cbranch_scc1 L_loader")

    O = 0; Q = 16; S = [20, 36]; KB = [52, 56]; VB = [100, 108]; IDX = 116; KA = [117, 118, 98]; VA = [119, 120, 99]; LO = 121; T = 122
    CM = 64

    def common_init(a):
        a("s_mov_b32 s36, s20", "s_and_b32 s37, s21, 0xffff", f"s_mov_b32 s38, {WS_USED}", "s_mov_b32 s39, 0x20000")
        a("s_and_b32 s52, s23, 7", "s_lshl_b32 s52, s52, 7", "s_add_u32 s40, s8, s52", "s_addc_u32 s41, s9, 0", "s_and_b32 s41, s41, 0xffff",
          f"s_sub_u32 s42, {512*1024}, s52", "s_mov_b32 s43, 0x20000")
        a("s_mov_b32 s44, s16", "s_and_b32 s45, s17, 0xffff", f"s_mov_b32 s46, {2048*2048}", "s_mov_b32 s47, 0x20000")
        a("s_mov_b32 s50, 0xffff", "s_mov_b32 s51, 0xffff", "s_mov_b32 s27, 0")
        a("s_lshl_b32 s54, s22, 4", "s_add_u32 s54, s54, s23", "s_lshl_b32 s54, s54, 18", "s_lshl_b32 s55, s24, 15", "s_add_u32 s55, s55, s54")
        a(f"v_lshlrev_b32 v{LO}, 4, v0",
          "s_lshr_b32 s56, s25, 3", "s_lshl_b32 s53, s56, 14",
          f"v_add_u32 v{KA[0]}, s53, v{LO}", f"v_add_u32 v{KA[1]}, 0x10000, v{KA[0]}", f"v_add_u32 v{KA[2]}, 0x20000, v{KA[0]}",
          "v_and_b32 v13, 15, v0", "v_lshlrev_b32 v13, 4, v13", "v_lshrrev_b32 v14, 5, v0", "v_lshl_add_u32 v13, v14, 8, v13",
          "s_add_u32 s53, s53, 1024", f"v_add_u32 v{VA[0]}, s53, v13", f"v_add_u32 v{VA[1]}, 0x10000, v{VA[0]}", f"v_add_u32 v{VA[2]}, 0x20000, v{VA[0]}",
          f"v_mov_b32 v{IDX}, 0xdddddddd")
        a("v_and_b32 v13, 27, v0", "v_cmp_eq_u32 vcc, 16, v13", "v_mov_b32 v14, 0x3f803f80",
          f"v_mov_b32 v{T}, {TAGL}", f"v_lshlrev_b32 v{T+4}, 3, v0", "v_cndmask_b32 v13, 0, v14, vcc")
        for r in range(16): a(f"v_mov_b32 v{VB[0]+r}, v13")
        a("s_and_b32 s53, s25, 7", "s_lshl_b32 s58, s24, 3", "s_add_u32 s58, s58, s53", "s_lshl_b32 s57, s22, 6", "s_add_u32 s58, s58, s57",
          "s_lshl_b32 s58, s58, 5", "s_lshl_b32 s53, s23, 1", "s_add_u32 s53, s53, s56", "s_add_u32 s58, s58, s53",
          "s_lshl_b32 s59, s58, 3", f"s_add_u32 s59, s59, {FO_OFF}", "s_lshl_b32 s58, s58, 10", f"s_add_u32 s58, s58, {OF_OFF}")
        a("s_lshr_b32 s60, s54, 9", f"s_add_u32 s60, s60, {FKV_OFF}", "s_lshl_b32 s61, s24, 6", "s_add_u32 s61, s61, s60",
          "s_lshl_b32 s53, s25, 3", "s_add_u32 s61, s61, s53")
        a("s_lshl_b32 s10, s22, 3", "s_add_u32 s10, s10, s24", "s_lshl_b32 s10, s10, 7", f"s_add_u32 s10, s10, {XID_OFF}")
        a("s_xor_b32 s53, s24, 1", "s_lshl_b32 s53, s53, 3", "s_mov_b64 s[14:15], 0xff", "s_lshl_b64 s[14:15], s[14:15], s53")
        a("s_lshl_b32 s52, s24, 3", "s_lshr_b32 s53, s23, 3", "s_lshl_b32 s53, s53, 2", "s_add_u32 s52, s52, s53",
          "s_add_u32 s53, s57, s52", "s_lshl_b32 s11, s53, 8", f"s_add_u32 s11, s11, {FO_OFF}",
          "s_and_b32 s12, s25, 3", "s_add_u32 s52, s52, s12", "s_add_u32 s53, s53, s12", "s_lshl_b32 s12, s53, 15", f"s_add_u32 s12, s12, {OF_OFF}",
          "s_lshl_b32 s13, s22, 10", "s_and_b32 s53, s23, 7", "s_lshl_b32 s53, s53, 7", "s_add_u32 s13, s13, s53",
          "s_lshl_b32 s53, s52, 16", "s_add_u32 s13, s13, s53")

    XA = [1, 2, 3, 4]; XB = [5, 6, 7, 8]; WA = 9; VK = 10; VV = 11; QA = 12
    ACC = 16
    FX = [64, 80]
    def touches():
        if "tx" in OPT:
            a.c("HBM/L2 warm-up: waves 0,1 touch 8 KB each of this workgroup's share of the X block")
            a("s_cmp_ge_u32 s25, 2", "s_cbranch_scc1 L_tx_done",
              "s_lshl_b32 s52, s23, 14", "s_lshl_b32 s53, s25, 13", "s_add_u32 s52, s52, s53",
              "v_lshlrev_b32 v13, 7, v0", "buffer_load_dword v96, v13, s[28:31], s52 offen", "L_tx_done:")
        if "tw" in OPT:
            a.c("waves 2,3 touch 6 KB each of W (1/128 of the matrix per workgroup)")
            a("s_sub_u32 s52, s25, 2", "s_cmp_ge_u32 s52, 2", "s_cbranch_scc1 L_tw_done",
              "s_lshl_b32 s53, s24, 4", "s_add_u32 s53, s53, s23", "s_lshl_b32 s53, s53, 1", "s_add_u32 s52, s52, s53",
              "s_mul_i32 s52, s52, 6144", "v_cmp_gt_u32 vcc, 48, v0", "v_lshlrev_b32 v13, 7, v0", "s_and_saveexec_b64 s[56:57], vcc",
              "buffer_load_dword v96, v13, s[32:35], s52 offen", "s_mov_b64 exec, -1", "L_tw_done:")
        if "twf" in OPT:
            a.c("waves 2..7 touch 8 KB each of W (1/32 of the matrix per workgroup)")
            a("s_sub_u32 s52, s25, 2", "s_cmp_ge_u32 s52, 6", "s_cbranch_scc1 L_twf_done",
              "s_and_b32 s53, s24, 1", "s_lshl_b32 s53, s53, 4", "s_add_u32 s53, s53, s23", "s_mul_i32 s53, s53, 6", "s_add_u32 s52, s52, s53",
              "s_lshl_b32 s52, s52, 13", "v_lshlrev_b32 v13, 7, v0",
              "buffer_load_dword v96, v13, s[32:35], s52 offen", "L_twf_done:")
    def touchX(c0, nc, wave, tag):
        a(f"s_cmp_lg_u32 s25, {wave}", f"s_cbranch_scc1 L_{tag}_done")
        if nc == 2: a("v_lshrrev_b32 v13, 1, v0", "v_and_b32 v14, 1, v0")
        elif nc == 4: a("v_lshrrev_b32 v13, 2, v0", "v_and_b32 v14, 3, v0")
        else: a("v_mul_u32_u24 v13, 43, v0", "v_lshrrev_b32 v13, 7, v13", "v_mul_u32_u24 v14, 3, v13", "v_sub_u32 v14, v0, v14")
        a("v_lshlrev_b32 v13, 10, v13", "v_lshl_add_u32 v13, v14, 7, v13", "s_lshl_b32 s52, s23, 14", f"s_add_u32 s52, s52, {c0*128}",
          f"v_cmp_gt_u32 vcc, {16*nc}, v0", "s_nop 1", "s_and_saveexec_b64 s[56:57], vcc",
          "buffer_load_dword v96, v13, s[28:31], s52 offen", "s_mov_b64 exec, -1", f"L_{tag}_done:")
    def touchW(c0, nc, wave, tag):
        a(f"s_cmp_lg_u32 s25, {wave}", f"s_cbranch_scc1 L_{tag}_done",
          "s_lshl_b32 s52, s24, 4", "s_add_u32 s52, s52, s23", f"s_mul_i32 s52, s52, {nc*1536}", f"s_add_u32 s52, s52, {c0*196608}",
          f"v_cmp_gt_u32 vcc, {12*nc}, v0", "v_lshlrev_b32 v13, 7, v0", "s_nop 0", "s_and_saveexec_b64 s[56:57], vcc",
          "buffer_load_dword v96, v13, s[32:35], s52 offen", "s_mov_b64 exec, -1", f"L_{tag}_done:")
    if "tlb" in OPT:
        a.c("translation warm-up: wave 0 of workgroup i touches one of the pages the kernel will need")
        a("s_cmp_lg_u32 s25, 0", "s_cbranch_scc1 L_tlb_done",
          "s_and_b32 s52, s23, 7", "v_mov_b32 v13, 0",
          "s_cmp_eq_u32 s52, 0", "s_cbranch_scc1 L_tlb0", "s_cmp_eq_u32 s52, 1", "s_cbranch_scc1 L_tlb1",
          "s_cmp_eq_u32 s52, 2", "s_cbranch_scc1 L_tlb2", "s_cmp_eq_u32 s52, 3", "s_cbranch_scc1 L_tlb3",
          "s_cmp_eq_u32 s52, 4", "s_cbranch_scc1 L_tlb4")
        a("s_lshl_b32 s53, s22, 22", "s_lshr_b32 s56, s23, 3", "s_lshl_b32 s56, s56, 21", "s_add_u32 s53, s53, s56",
          "s_lshl_b32 s56, s22, 21", f"s_add_u32 s56, s56, {OF_OFF}",
          "s_cmp_eq_u32 s52, 6", "s_cselect_b32 s53, s56, s53", "s_cmp_eq_u32 s52, 7", f"s_cselect_b32 s53, {FKV_OFF}, s53",
          "v_mov_b32 v13, s53", "global_load_dword v96, v13, s[20:21]", "s_branch L_tlb_done")
        a("L_tlb0:", "buffer_load_dword v96, v13, s[28:31], 0 offen", "s_branch L_tlb_done")
        a("L_tlb1:", "buffer_load_dword v96, v13, s[32:35], 0 offen", "s_branch L_tlb_done")
        a("L_tlb2:", "global_load_dword v96, v13, s[8:9]", "s_branch L_tlb_done")
        a("L_tlb3:", "s_lshr_b32 s53, s24, 2", "s_lshl_b32 s53, s53, 21", "v_mov_b32 v13, s53", "global_load_dword v96, v13, s[16:17]", "s_branch L_tlb_done")
        a("L_tlb4:", "global_load_dword v96, v13, s[18:19] sc1", "L_tlb_done:")
    if "early" in OPT: touches()
    a("s_barrier")
    if "early" not in OPT and "late" not in OPT: touches()
    if "a3" in OPT:
        touchX(2, 3, 0, "xa3"); touchW(2, 3, 1, "wa3")
    if "wa3" in OPT: touchW(2, 3, 2, "wa3")
    if "wa2" in OPT: touchW(2, 2, 2, "wa2")
    common_init(a)
    a("v_and_b32 v13, 31, v0", "v_lshrrev_b32 v14, 5, v0",
      "v_bfe_u32 v15, v0, 1, 3", "v_xor_b32 v15, v15, v14", "v_lshlrev_b32 v15, 4, v15", "v_lshl_add_u32 v15, v13, 7, v15",
      "s_lshl_b32 s52, s25, 12",
      f"v_add_u32 v{XA[0]}, s52, v15",
      f"v_xor_b32 v{XA[1]}, 32, v{XA[0]}", f"v_xor_b32 v{XA[2]}, 64, v{XA[0]}", f"v_xor_b32 v{XA[3]}, 96, v{XA[0]}")
    for s in range(4): a(f"v_add_u32 v{XB[s]}, 0x10000, v{XA[s]}")
    a("v_bfe_u32 v15, v0, 2, 2", "v_lshl_add_u32 v13, v14, 3, v15", "v_lshlrev_b32 v13, 6, v13",
      "v_bfe_u32 v15, v0, 4, 1", "v_lshl_add_u32 v13, v15, 5, v13", "v_and_b32 v15, 3, v0", "v_lshl_add_u32 v13, v15, 3, v13",
      f"v_add_u32 v{WA}, {WRING}, v13")
    a("s_lshl_b32 s52, s25, 11",
      "v_and_b32 v13, 0x33, v0", "v_bfe_u32 v15, v0, 2, 1", "v_lshl_add_u32 v13, v15, 3, v13",
      "v_bfe_u32 v15, v0, 3, 1", "v_lshl_add_u32 v13, v15, 2, v13", "v_lshlrev_b32 v13, 4, v13", f"v_add_u32 v{VK}, s52, v13",
      "v_and_b32 v13, 15, v0", "v_lshlrev_b32 v13, 4, v13", "v_lshl_add_u32 v13, v14, 8, v13",
      "v_bfe_u32 v15, v0, 4, 1", "v_lshl_add_u32 v13, v15, 14, v13", "s_add_u32 s52, s52, 1024", f"v_add_u32 v{VV}, s52, v13")
    a(f"s_add_u32 s52, s62, {QX}", f"v_add_u32 v{QA}, s52, v{LO}",
      f"s_mov_b32 s56, {f32bits(QSCALE):#x}", f"s_mov_b32 s57, {f32bits(QSCALE):#x}", "s_add_u32 s63, s55, 16384")
    def reads(c, s, buf):
        slot = c % 3
        l = [f"ds_read_b128 {vr(buf,4)}, v{XA[s]} offset:{slot*32768}" if slot < 2 else f"ds_read_b128 {vr(buf,4)}, v{XB[s]}"]
        for seg in range(3):
            for j in range(2):
                l.append(f"ds_read_b64_tr_b16 {vr(buf + 4 + seg*4 + j*2, 2)}, v{WA} offset:{(c % NWS)*12288 + seg*4096 + s*1024 + j*256}")
        return l
    def mms(buf, first):
        out = []
        for seg in (1, 2, 0):
            d = ACC + seg*16
            x = buf; w = buf + 4 + seg*4
            cs = "0" if first else d
            out.append(mfma(d, w, x, cs) if seg < 2 else mfma(d, x, w, cs))
        return out
    if "late" in OPT: touches()
    if "xa" in OPT: touchX(3, 2, 0, "xa")
    if "wa" in OPT: touchW(3, 2, 1, "wa")
    if "wa5" in OPT: touchW(3, 5, 1, "wa5")
    if "xa4" in OPT: touchX(4, 4, 0, "xa4")
    a(f"s_mov_b32 s56, {f32bits(QSCALE):#x}", f"s_mov_b32 s57, {f32bits(QSCALE):#x}")
    stamp(a, 1)
    a("s_barrier")
    stamp(a, 2)
    if "xb" in OPT or "wb" in OPT or "wb4" in OPT:
        if "xb" in OPT: touchX(5, 3, 2, "xb")
        if "wb" in OPT: touchW(5, 3, 3, "wb")
        if "wb4" in OPT: touchW(4, 4, 3, "wb4")
        a(f"s_mov_b32 s56, {f32bits(QSCALE):#x}", f"s_mov_b32 s57, {f32bits(QSCALE):#x}")
    if "cyc" in OPT: a("s_memtime s[98:99]", "s_waitcnt lgkmcnt(0)")
    step = 0
    a(reads(0, 0, FX[0]))
    for c in range(8):
        for s in range(4):
            cur = FX[step % 2]; nxt = FX[(step + 1) % 2]
            if s < 3:
                a(reads(c, s + 1, nxt)); a("s_waitcnt lgkmcnt(7)")
            elif c < 7:
                a("s_waitcnt lgkmcnt(0)", "s_barrier")
                if c == 3 and "p1ts" not in OPT: stamp(a, 3)
                if "p1ts" in OPT: stamp(a, 7 + c)
                a(reads(c + 1, 0, nxt))
            else:
                a("s_waitcnt lgkmcnt(0)")
            a(mms(cur, step == 0))
            step += 1
    stamp(a, 4)
    if "cyc" in OPT: a("s_memtime s[96:97]", "s_waitcnt lgkmcnt(0)", "s_sub_u32 s96, s96, s98", "s_add_u32 s66, s68, s96", "s_addc_u32 s67, s69, 0")
    global P1TS_DONE
    P1TS_DONE = True
    a.c("P1 epilogue: K, V -> global (write-through) + LDS stage slot 0 ; Q -> regs / LDS")
    a("s_nop 9")
    PK = 64
    def pack(dst, src):
        return [f"v_cvt_pk_bf16_f32 v{dst+r}, v{src+2*r}, v{src+2*r+1}" for r in range(4)]
    for hh in range(2):
        t = PK + hh*4
        a(pack(t, ACC + 16 + hh*8))
        a(f"buffer_store_dwordx4 {vr(t,4)}, v{VK}, s[36:39], s{55 if hh == 0 else 63} offen {WT}")
        a(f"ds_write_b128 v{VK}, {vr(t,4)} offset:{hh*16384}")
    for jj in range(2):
        t = PK + 8 + jj*4
        a(pack(t, ACC + 32 + jj*8))
        a(f"buffer_store_dwordx4 {vr(t,4)}, v{VV}, s[36:39], s55 offen offset:{jj*512} {WT}")
        a(f"ds_write_b128 v{VV}, {vr(t,4)} offset:{jj*512}")
    for r in range(4, 8): a(f"v_pk_mul_f32 {vr(ACC+2*r,2)}, {vr(ACC+2*r,2)}, s[56:57]")
    a(pack(PK + 16, ACC + 8), f"ds_write_b128 v{QA}, {vr(PK+16,4)}")
    for r in range(4): a(f"v_pk_mul_f32 {vr(ACC+2*r,2)}, {vr(ACC+2*r,2)}, s[56:57]")
    a(pack(Q, ACC))
    a("s_branch L_p2_start")

    a("L_loader:")
    a("s_sub_u32 s52, s25, 8")
    a("s_and_b32 s53, s52, 1", "s_lshl_b32 s53, s53, 2",
      "v_lshrrev_b32 v2, 4, v0", "v_add_u32 v2, s53, v2", "v_and_b32 v3, 7, v0", "v_xor_b32 v2, v2, v3", "v_lshlrev_b32 v2, 4, v2",
      "v_lshrrev_b32 v4, 3, v0", "v_lshl_add_u32 v2, v4, 10, v2")
    a("v_lshrrev_b32 v4, 2, v0", "v_mul_u32_u24 v4, 3072, v4", "v_and_b32 v3, 3, v0", "v_lshl_add_u32 v3, v3, 4, v4",
      "s_lshl_b32 s53, s23, 6", "v_add_u32 v3, s53, v3")
    a("s_lshl_b32 s4, s52, 13", "s_add_u32 s5, s4, 65536", "s_add_u32 s6, s4, 131072", "s_add_u32 s7, s4, 196608",
      "s_lshl_b32 s0, s52, 10")
    a("s_and_b32 s53, s52, 3", "s_mul_i32 s1, s53, 49152", "s_lshr_b32 s53, s52, 2", "s_lshl_b32 s53, s53, 10", "s_add_u32 s1, s1, s53")
    a("s_cmp_ge_u32 s52, 4", "s_cbranch_scc1 L_loaderB")
    def issueW(c, variantA):
        slot = c % NWS
        out = [f"s_add_u32 m0, s0, {WRING + slot*12288}", f"s_add_u32 s53, s1, {c*196608}",
               "buffer_load_dwordx4 v3, s[32:35], s53 offen lds"]
        if variantA:
            out += [f"s_add_u32 m0, s0, {WRING + slot*12288 + 8192 - 2048}", "s_nop 0",
                    "buffer_load_dwordx4 v3, s[32:35], s53 offen offset:2048 lds"]
        return out
    def issueX(c):
        slot = c % 3
        out = []
        for aa in range(4):
            out += [f"s_add_u32 m0, s0, {XRING + slot*32768 + aa*8192}", f"s_add_u32 s53, s{4+aa}, {c*128}",
                    "buffer_load_dwordx4 v2, s[28:31], s53 offen lds"]
        return out
    for variantA in (True, False):
        ops = []
        def W(c):
            a(issueW(c, variantA)); ops.extend([c]*(2 if variantA else 1))
        def X(c):
            a(issueX(c)); ops.extend([c]*4)
        if not variantA: a("L_loaderB:")
        if variantA: stamp(a, 1)
        W(0); X(0); a("s_barrier"); W(1); X(1)
        if variantA: stamp(a, 2)
        if not variantA:
            a.c("workgroup 0 publishes the launch tag (low 4 bits: 8 | room for an XCC id)")
            a("s_cmp_lg_u32 s2, 0", "s_cbranch_scc1 L_notag", "s_cmp_lg_u32 s52, 7", "s_cbranch_scc1 L_notag")
            a("s_lshl_b64 s[48:49], s[48:49], 4", "s_or_b32 s48, s48, 8",
              "v_mov_b32 v8, 0", "v_mov_b32 v4, s48", "v_mov_b32 v5, s49", "s_mov_b64 exec, 1",
              f"global_store_dwordx2 v8, v[4:5], s[18:19] {WT}", "s_mov_b64 exec, -1")
            a("L_notag:")
        ROLL = "roll" in OPT and not variantA
        def TOUCH(c):
            a("s_mov_b64 exec, s[16:17]", "buffer_load_dword v10, v9, s[44:47], s3 offen", "s_mov_b64 exec, -1", "s_add_u32 s3, s3, s27")
            ops.append(99)
        if ROLL:
            a("s_mov_b32 s3, s52")
        common_init(a)
        if ROLL:
            a.c("rolling warm-up of later k-chunks: waves 12,13 take X lines, waves 14,15 W lines")
            R0 = int([o for o in OPT if o.startswith("r0=")][0][3:]) if any(o.startswith("r0=") for o in OPT) else 2
            a("s_cmp_lt_u32 s3, 6",
              "s_cselect_b32 s44, s28, s32", "s_cselect_b32 s45, s29, s33", "s_cselect_b32 s46, s30, s34",
              "s_cselect_b32 s16, 0xff, 63", "s_mov_b32 s17, 0", "s_mov_b32 s27, 196608", "s_cselect_b32 s27, 128, s27", "s_cselect_b32 s52, 10, 7",
              "v_lshlrev_b32 v9, s52, v0",
              "s_and_b32 s3, s3, 1", "s_lshl_b32 s52, s23, 1", "s_add_u32 s52, s52, s3", "s_lshl_b32 s53, s52, 13",
              "s_lshl_b32 s56, s24, 5", "s_add_u32 s52, s52, s56", "s_mul_i32 s52, s52, 768",
              "s_cmp_eq_u32 s27, 128", "s_cselect_b32 s3, s53, s52", f"s_mul_i32 s52, s27, {R0}", "s_add_u32 s3, s3, s52")
            nextT = R0
            RD = int([o for o in OPT if o.startswith("rd=")][0][3:]) if any(o.startswith("rd=") for o in OPT) else 4
            while nextT < RD: TOUCH(nextT); nextT += 1
        nextW = 2
        for c in range(8):
            last = max(i for i, x in enumerate(ops) if x <= c)
            wait = len(ops) - 1 - last
            if not variantA and c == 7:
                a.c("launch tag -> LDS")
                spin(a, "tag", ["v_cmp_ne_u64 vcc, 0, v[6:7]", "s_nop 1", "s_cmp_eq_u64 vcc, -1"],
                     ["global_load_dwordx2 v[6:7], v8, s[18:19] sc1"])
                a(f"ds_write_b64 v{T}, v[6:7]")
            else:
                a(f"s_waitcnt vmcnt({wait})")
            a("s_barrier")
            if variantA and c == 0: stamp(a, 3)
            if variantA and c == 7: stamp(a, 4)
            if nextW == c + 2 and nextW <= 7: W(nextW); nextW += 1
            if c + 2 <= 7: X(c + 2)
            while nextW <= min(7, c - 1 + NWS): W(nextW); nextW += 1
            if ROLL and nextT <= 7: TOUCH(nextT); nextT += 1
            if not variantA and c == 5:
                a("v_mov_b32 v8, 0", "global_load_dwordx2 v[6:7], v8, s[18:19] sc1"); ops.append(99)
        if variantA: a("s_branch L_p2_start")

    a("L_p2_start:")
    for r in range(16): a(f"v_mov_b32 v{O+r}, 0")
    a("s_waitcnt lgkmcnt(0)")
    stamp(a, 5)
    a("s_barrier")
    stamp(a, 6)
    a(f"ds_read_b64 {vr(T+2,2)}, v{T}")
    a("s_cmp_lt_u32 s25, 8", "s_cbranch_scc1 L_haveq")
    a(f"s_add_u32 s53, s62, {QX - 8192}", f"v_add_u32 v{T}, s53, v{LO}", f"ds_read_b128 {vr(Q,4)}, v{T}")
    a("L_haveq:")
    def kread(u):
        s, t = divmod(u, 8); sl = s % 5
        return [f"ds_read_b128 {vr(KB[u%2],4)}, v{KA[sl//2]} offset:{(sl%2)*32768 + t*2048}"]
    def vread(u):
        s, t = divmod(u, 8); sl = s % 5
        o = (sl % 2)*32768 + t*2048
        return ["s_mov_b64 exec, s[50:51]",
                f"ds_read_b128 {vr(VB[u%2],4)}, v{VA[sl//2]} offset:{o}",
                f"ds_read_b128 {vr(VB[u%2]+4,4)}, v{VA[sl//2]} offset:{o+512}",
                "s_mov_b64 exec, -1"]
    def ex(base, lo, hi): return [f"v_exp_f32 v{base+i}, v{base+i}" for i in range(lo, hi)]
    def dma(s):
        sl = s % 5
        return [f"s_xor_b32 s53, s24, {s}", "s_lshl_b32 s53, s53, 15", "s_add_u32 s53, s53, s54", "s_add_u32 s53, s53, s62",
                f"s_add_u32 m0, s62, {sl*32768}", "s_add_u32 s63, s53, 16384",
                f"buffer_load_dwordx4 v{LO}, s[36:39], s53 offen sc1 lds",
                f"s_add_u32 m0, s62, {sl*32768 + 16384}", "s_nop 0",
                f"buffer_load_dwordx4 v{LO}, s[36:39], s63 offen sc1 lds"]
    kvpoll = [f"buffer_load_dwordx2 {vr(T,2)}, v{T+4}, s[36:39], s60 offen sc1"]
    a("s_setprio 3")
    a(kread(0), vread(0), kread(1), "s_waitcnt lgkmcnt(1)")
    a(f"v_readfirstlane_b32 s48, v{T+2}", f"v_readfirstlane_b32 s49, v{T+3}")
    a(mfma(S[0], KB[0], Q, "0"), "s_nop 11")
    NT = 64
    PUB = 0 if "pub0" in OPT else 1
    WO = 98304
    BAR = {14: 0, 30: 0, 46: 0}
    prio_at = {3: 2, 5: 1, 6: 0, 11: 2, 13: 1, 14: 0}
    pz = [int(x) for x in ([o for o in OPT if o.startswith("pz=")] or ["pz=8,3,1"])[0][3:].split(",")]
    for b in (30, 46, 63):
        prio_at[b + 1 - pz[0]] = 2; prio_at[b + 1 - pz[1]] = 1; prio_at[b + 1 - pz[2]] = 0
    DD = int(([o for o in OPT if o.startswith("dd=")] or ["dd=2"])[0][3:])
    for u in range(NT):
        st, t = divmod(u, 8)
        s = S[u % 2]
        if u in prio_at: a(f"s_setprio {prio_at[u]}")
        special7 = (u == 7)
        if special7:
            stamp(a, 8)
            a("s_waitcnt vmcnt(0) lgkmcnt(0)", "s_barrier", "s_setprio 3")
            stamp(a, 9)
            if "cyc2" in OPT: a("s_memtime s[98:99]", "s_waitcnt lgkmcnt(0)")
            a(kread(8))
        else:
            a("s_waitcnt lgkmcnt(0)")
        a(ex(s, 0, 2))
        if u > 0: a(smf(O, VB[(u-1) % 2] + 4, S[(u-1) % 2] + 8, IDX))
        if u + 1 < NT: a(vread(u + 1))
        a(ex(s, 2, 5))
        if u + 1 < NT and not special7:
            a(mfma(S[(u+1) % 2], KB[(u+1) % 2], Q, "0"))
            if u in BAR:
                a(f"s_waitcnt vmcnt({BAR[u]})", "s_barrier", "s_setprio 3")
                if u == 30 and "cyc2" not in OPT: stamp(a, 10)
            if u + 2 < NT and u != 6: a(kread(u + 2))
        a(ex(s, 5, 10))
        a(smf(O, VB[u % 2], s, IDX))
        if special7:
            a("s_waitcnt lgkmcnt(2)", mfma(S[0], KB[0], Q, "0"), kread(9))
            a(ex(s, 10, 16), "s_nop 3")
        else:
            a(ex(s, 10, 16))
        if u == PUB:
            a.c("publish this wave's K/V tile; wave 8 publishes the workgroup's XCC id")
            a(f"v_mov_b32 v{T}, s48", f"v_mov_b32 v{T+1}, s49", f"v_mov_b32 v{T+2}, 0",
              "s_cmp_ge_u32 s25, 8", "s_cbranch_scc1 L_nopub", "s_waitcnt vmcnt(0)")
            stamp(a, 7)
            a("s_mov_b64 exec, 1", f"buffer_store_dwordx2 {vr(T,2)}, v{T+2}, s[36:39], s61 offen {WT}", "s_mov_b64 exec, -1", "s_branch L_pubdone")
            a("L_nopub:", "s_cmp_lg_u32 s25, 8", "s_cbranch_scc1 L_pubdone",
              f"v_or_b32 v{T}, s26, v{T}", "s_lshl_b32 s53, s23, 3", "s_add_u32 s53, s53, s10",
              "s_mov_b64 exec, 1", f"buffer_store_dwordx2 {vr(T,2)}, v{T+2}, s[36:39], s53 offen {WT}", "s_mov_b64 exec, -1", "L_pubdone:")
        if u == 3 or u == 8:
            a(kvpoll)
        if u == 5:
            spin(a, "kv1", [f"v_cmp_eq_u64 vcc, s[48:49], {vr(T,2)}", "s_nop 1", "s_and_b64 vcc, vcc, s[14:15]", "s_cmp_eq_u64 vcc, s[14:15]"], kvpoll)
            a(dma(1))
        if u == 10:
            spin(a, "kv2", [f"v_cmp_eq_u64 vcc, s[48:49], {vr(T,2)}", "s_nop 1", "s_cmp_eq_u64 vcc, -1"], kvpoll)
            a(dma(2), dma(3))
        if u == 14 + DD: a(dma(4))
        if u == 15 + DD: a(dma(5))
        if u == 30 + DD: a(dma(6))
        if u == 31 + DD: a(dma(7))
        if u == 46 + DD:
            a.c("Wo tile -> LDS (slots 3, 4)")
            a(f"v_lshrrev_b32 v{T}, 4, v{LO}", f"v_bfe_u32 v{T+1}, v{T}, 4, 1", f"v_lshlrev_b32 v{T+1}, 1, v{T+1}", f"v_and_b32 v{T+2}, 7, v{T}",
              f"v_xor_b32 v{T+1}, v{T+1}, v{T+2}", f"v_lshlrev_b32 v{T+1}, 4, v{T+1}", f"v_lshrrev_b32 v{T}, 3, v{T}",
              f"v_lshl_add_u32 v{T}, v{T}, 10, v{T+1}", "s_lshl_b32 s63, s25, 13")
            for aa in range(2):
                a(f"s_add_u32 m0, s62, {WO + aa*16384}", f"s_add_u32 s53, s63, {aa*131072}", f"buffer_load_dwordx4 v{T}, s[40:43], s53 offen lds")
        if u == 47 + DD:
            for aa in range(2, 4):
                a(f"s_add_u32 m0, s62, {WO + aa*16384}", f"s_add_u32 s53, s63, {aa*131072}", f"buffer_load_dwordx4 v{T}, s[40:43], s53 offen lds")
        if u == 48 + DD:
            a.c("XCC ids of the row block's workgroups; bring the O and O-flag lines this wave will write into L2")
            a(f"v_and_b32 v{T+5}, 0x78, v{T+4}", f"buffer_load_dwordx2 {vr(T+2,2)}, v{T+5}, s[36:39], s10 offen sc1",
              f"v_mov_b32 v{T+1}, 0", f"buffer_load_dword v{T+1}, v{T+1}, s[36:39], s59 offen",
              f"buffer_load_dword v60, v{LO}, s[36:39], s58 offen")
        if u == 58:
            a.c("local hand-off only when all 16 workgroups of this row block run on this XCC")
            a("s_waitcnt vmcnt(0)", "s_or_b32 s52, s48, s26", "s_mov_b32 s53, s49", f"v_cmp_eq_u64 vcc, s[52:53], {vr(T+2,2)}", "s_nop 1",
              "s_cmp_eq_u64 vcc, -1", "s_cselect_b32 s27, 1, 0")
            if "noloc" in OPT: a("s_mov_b32 s27, 0")
    a("s_nop 1", smf(O, VB[(NT-1) % 2] + 4, S[(NT-1) % 2] + 8, IDX), "s_nop 11")
    a.c("safety check of the zero stand-in: 2^-24 <= l <= 2^48 and finite O, else redo with the true row max")
    a(f"v_mov_b32 v{T}, 0x33800000", f"v_mov_b32 v{T+1}, 0x57800000", f"v_mov_b32 v{T+2}, 0x7f800000", "s_nop 0",
      f"v_cmp_le_f32 s[52:53], v{T}, v{O+8}", f"v_cmp_ge_f32 s[56:57], v{T+1}, v{O+8}",
      f"v_max3_f32 v{T+1}, abs(v{O}), abs(v{O+1}), abs(v{O+2})", f"v_max3_f32 v{T+1}, abs(v{O+3}), abs(v{O+4}), v{T+1}",
      f"v_max3_f32 v{T+1}, abs(v{O+5}), abs(v{O+6}), v{T+1}", f"v_max_f32 v{T+1}, abs(v{O+7}), v{T+1}",
      "s_and_b64 s[52:53], s[52:53], s[56:57]",
      f"v_cmp_gt_f32 vcc, v{T+2}, v{T+1}", "s_nop 1", "s_and_b64 s[52:53], s[52:53], vcc",
      "s_cmp_eq_u64 s[52:53], -1", "s_cbranch_scc0 L_fallback")
    a("L_finish:")
    a("s_setprio 3")
    stamp(a, 11)
    if "cyc2" in OPT: a("s_memtime s[96:97]", "s_waitcnt lgkmcnt(0)", "s_sub_u32 s96, s96, s98", "s_add_u32 s66, s82, s96", "s_addc_u32 s67, s83, 0")
    a(f"v_rcp_f32 v{T}, v{O+8}", "s_nop 0")
    for r in range(8): a(f"v_mul_f32 v{O+r}, v{O+r}, v{T}")
    for r in range(4): a(f"v_cvt_pk_bf16_f32 v{O+12+r}, v{O+2*r}, v{O+2*r+1}")
    a(f"v_mov_b32 v{T}, s48", f"v_mov_b32 v{T+1}, s49", f"v_mov_b32 v{T+2}, 0")
    a("s_cmp_eq_u32 s27, 1", "s_cbranch_scc1 L_ostore_local")
    a(f"buffer_store_dwordx4 {vr(O+12,4)}, v{LO}, s[36:39], s58 offen {WT}", "s_waitcnt vmcnt(0)",
      "s_mov_b64 exec, 1", f"buffer_store_dwordx2 {vr(T,2)}, v{T+2}, s[36:39], s59 offen {WT}", "s_mov_b64 exec, -1", "s_branch L_ostored")
    a("L_ostore_local:")
    a(f"buffer_store_dwordx4 {vr(O+12,4)}, v{LO}, s[36:39], s58 offen", "s_waitcnt vmcnt(0)",
      "s_mov_b64 exec, 1", f"buffer_store_dwordx2 {vr(T,2)}, v{T+2}, s[36:39], s59 offen", "s_mov_b64 exec, -1")
    a("L_ostored:")
    stamp(a, 12)
    a("s_barrier")
    if TS:
        a("s_cmp_lt_u32 s25, 8", "s_cbranch_scc1 L_ts_p3", "s_barrier", "s_barrier", "s_barrier")
        if "allw" in OPT:
            for w in range(8, 16): ts_flush(a, w, w, f"w{w}")
        else:
            ts_flush(a, 1, 8, "w8")
            ts_flush(a, 2, 15, "w15")
        a("s_endpgm", "L_ts_p3:")
    else:
        a("s_cmp_ge_u32 s25, 8", "s_cbranch_scc1 L_done")

    ACC3 = [0, 16]; OFR = 32; WB = [96, 104, 112]; A3 = [120, 122]; VO = 116; PA = 123; L = 118; PF = 124
    opoll = [f"buffer_load_dwordx4 {vr(PF,4)}, v{LO}, s[36:39], s11 offen sc1"]
    ocond = [f"v_cmp_eq_u64 vcc, s[48:49], {vr(PF,2)}", f"v_cmp_eq_u64 s[52:53], s[48:49], {vr(PF+2,2)}", "s_nop 1",
             "s_and_b64 vcc, vcc, s[52:53]", "s_cmp_eq_u64 vcc, -1"]
    a("s_cmp_lt_u32 s25, 4", "s_cbranch_scc1 L_p3c")
    a("s_and_b32 s56, s25, 3", "s_lshl_b32 s56, s56, 14")
    a("s_barrier")
    for i in range(16):
        a(f"s_add_u32 m0, s56, {i*1024}", f"s_add_u32 s53, s12, {(16+i)*1024}", f"buffer_load_dwordx4 v{LO}, s[36:39], s53 offen sc1 lds")
    a("s_waitcnt vmcnt(8)", "s_barrier", "s_waitcnt vmcnt(0)", "s_barrier")
    if "allw" in OPT:
        for w in range(4, 8): ts_flush(a, w, w, f"w{w}")
    a("s_endpgm")
    a("L_p3c:")
    a(opoll)
    a(f"v_lshrrev_b32 v6, 4, v{LO}")
    a(f"v_lshrrev_b32 v4, 5, v6", f"v_bfe_u32 v5, v6, 2, 2", "v_lshl_add_u32 v4, v4, 2, v5", "v_lshlrev_b32 v4, 7, v4",
      f"v_and_b32 v5, 1, v6", "v_lshl_add_u32 v4, v5, 6, v4", f"v_bfe_u32 v5, v6, 4, 1", "v_lshl_add_u32 v4, v5, 4, v4",
      f"v_bfe_u32 v5, v6, 3, 1", "v_lshl_add_u32 v4, v5, 5, v4", f"v_bfe_u32 v5, v6, 1, 1", f"v_lshl_add_u32 v4, v5, 3, v4",
      f"v_add_u32 v{A3[0]}, {WO}, v4", f"v_xor_b32 v{A3[1]}, 32, v{A3[0]}")
    a("s_lshl_b32 s56, s25, 14", f"v_add_u32 v{PA}, s56, v{LO}")
    def reads3(hd, buf):
        out = []
        for cb in range(2):
            for j in range(2):
                out.append(f"ds_read_b64_tr_b16 {vr(buf + cb*4 + j*2, 2)}, v{A3[cb]} offset:{hd*2048 + j*1024}")
        return out
    a(reads3(0, WB[0]), reads3(1, WB[1]))
    spin(a, "o", ocond, opoll)
    stamp(a, 13)
    for i in range(16):
        if i % 4 == 0: a(f"s_add_u32 s53, s12, {i*1024}")
        a(f"buffer_load_dwordx4 {vr(OFR + i*4, 4)}, v{LO}, s[36:39], s53 offen offset:{(i%4)*1024} sc1")
    a("s_barrier")
    lq = ["W0"]*4 + ["W1"]*4
    def lwait(need):
        nonlocal lq
        idx = [i for i, x in enumerate(lq) if x in need]
        if not idx: return None
        keep = len(lq) - 1 - max(idx)
        lq = lq[len(lq) - keep:]
        return keep
    def oread(n):
        lq.append(f"O{n}")
        return f"ds_read_b128 {vr(OFR + (n-16)*4, 4)}, v{PA} offset:{(n-16)*1024}"
    for n in range(32):
        cur = WB[n % 3]
        if n in (16, 24):
            if "p3ts" in OPT and n == 16: stamp(a, 2); lq = []
            a("s_barrier")
            if "p3ts" in OPT and n == 24: stamp(a, 3); lq = []
            for i in range(2): a(oread(n + i))
        if n + 2 < 32:
            a(reads3(n + 2, WB[(n+2) % 3])); lq.extend([f"W{n+2}"]*4)
        if n >= 16 and (n % 8) + 2 < 8: a(oread(n + 2))
        assert len(lq) <= 15, lq
        kw = lwait({f"W{n}", f"O{n}"})
        w = []
        if n < 16: w.append(f"vmcnt({15 - n})")
        if kw is not None: w.append(f"lgkmcnt({kw})")
        if w: a("s_waitcnt " + " ".join(w))
        if "p3ts" in OPT and n in (0, 31): stamp(a, {0: 1, 31: 4}[n]); lq = []
        for cb in range(2):
            a(mfma(ACC3[cb], cur + cb*4, OFR + (n%16)*4, "0" if n == 0 else ACC3[cb]))
    a(f"v_lshrrev_b32 v{L}, 4, v{LO}")
    PA = 117
    a.c("transpose through LDS (slot 1 is free) so that every store writes whole 128-byte lines")
    TA_ = 119; TB_ = 120
    a(f"v_and_b32 v{TA_}, 31, v{L}", f"v_lshrrev_b32 v{PA}, 5, v{L}", f"v_lshlrev_b32 v{PA}, 2, v{PA}", f"v_and_b32 v{TB_}, 7, v{L}",
      f"v_xor_b32 v{PA}, v{PA}, v{TB_}", f"v_lshlrev_b32 v{PA}, 4, v{PA}", f"v_lshl_add_u32 v{TA_}, v{TA_}, 7, v{PA}",
      "s_mov_b32 s52, s56", f"v_add_u32 v{TA_}, s52, v{TA_}",
      f"v_lshrrev_b32 v{PA}, 3, v{L}", f"v_xor_b32 v{VO}, v{PA}, v{TB_}", f"v_lshlrev_b32 v{VO}, 4, v{VO}", f"v_lshl_add_u32 v{VO}, v{PA}, 7, v{VO}",
      f"v_add_u32 v{VO}, s52, v{VO}",
      f"v_lshlrev_b32 v{TB_}, 4, v{TB_}", f"v_lshl_add_u32 v{TB_}, v{PA}, 11, v{TB_}")
    for cb in range(2):
        for q in range(2):
            c = cb*2 + q
            t = 32 + c*4
            for r in range(4): a(f"v_cvt_pk_bf16_f32 v{t+r}, v{ACC3[cb]+q*8+2*r}, v{ACC3[cb]+q*8+2*r+1}")
            if c: a(f"v_xor_b32 v{PA}, {c*16}, v{TA_}")
            a(f"ds_write_b128 v{PA if c else TA_}, {vr(t,4)}")
    a("s_waitcnt lgkmcnt(0)")
    for i in range(4): a(f"ds_read_b128 {vr(48 + i*4, 4)}, v{VO} offset:{i*1024}")
    for i in range(4):
        a(f"s_add_u32 s53, s13, {i*16384}", f"s_waitcnt lgkmcnt({3-i})", f"buffer_store_dwordx4 {vr(48 + i*4, 4)}, v{TB_}, s[44:47], s53 offen")
    if TS:
        if "p3ts" in OPT: stamp(a, 5)
        a("s_waitcnt vmcnt(0)")
        stamp(a, 14)
        ts_flush(a, 0, 0, "w0")
        if "allw" in OPT:
            for w in range(1, 4): ts_flush(a, w, w, f"w{w}")
    a("L_done:", "s_endpgm")

    a("L_fallback:")
    M = T + 2
    a("s_lshr_b32 s52, s25, 3", "s_lshl_b32 s52, s52, 14", "s_add_u32 s52, s52, s54",
      f"v_mov_b32 v{M}, 0xff800000", "s_mov_b32 s63, 0",
      f"v_sub_u32 v{T+3}, v{VA[0]}, v{KA[0]}", f"v_add_u32 v{T+3}, v{T+3}, v{LO}")
    def fb_addr():
        return ["s_lshr_b32 s53, s63, 3", "s_lshl_b32 s53, s53, 15", "s_and_b32 s56, s63, 7", "s_lshl_b32 s56, s56, 11",
                "s_add_u32 s53, s53, s56", "s_add_u32 s53, s53, s52"]
    a("L_fb1:", fb_addr(),
      f"buffer_load_dwordx4 {vr(KB[0],4)}, v{LO}, s[36:39], s53 offen sc1", "s_waitcnt vmcnt(0)",
      mfma(S[0], KB[0], Q, "0"), "s_nop 15")
    for r in range(8): a(f"v_max3_f32 v{M}, v{S[0]+2*r}, v{S[0]+2*r+1}, v{M}")
    a("s_add_u32 s63, s63, 1", "s_cmp_lg_u32 s63, 64", "s_cbranch_scc1 L_fb1")
    a(f"v_mov_b32 v{T}, v{M}", "s_nop 1", f"v_permlane32_swap_b32 v{M}, v{T}", "s_nop 1", f"v_max_f32 v{M}, v{M}, v{T}", f"v_sub_f32 v{M}, 0, v{M}")
    for r in range(16): a(f"v_mov_b32 v{CM+r}, v{M}")
    for r in range(16): a(f"v_mov_b32 v{O+r}, 0")
    a("s_mov_b32 s63, 0")
    a("L_fb2:", fb_addr(),
      f"buffer_load_dwordx4 {vr(KB[0],4)}, v{LO}, s[36:39], s53 offen sc1", "s_mov_b64 exec, s[50:51]",
      f"buffer_load_dwordx4 {vr(VB[0],4)}, v{T+3}, s[36:39], s53 offen sc1",
      f"buffer_load_dwordx4 {vr(VB[0]+4,4)}, v{T+3}, s[36:39], s53 offen offset:512 sc1", "s_mov_b64 exec, -1",
      "s_waitcnt vmcnt(0)", mfma(S[0], KB[0], Q, CM), "s_nop 15")
    a(ex(S[0], 0, 16), "s_nop 1", smf(O, VB[0], S[0], IDX), smf(O, VB[0] + 4, S[0] + 8, IDX))
    a("s_add_u32 s63, s63, 1", "s_cmp_lg_u32 s63, 64", "s_cbranch_scc1 L_fb2")
    a("s_nop 15", "s_branch L_finish")
    a.l.append(f""".section .rodata,"a"
.p2align 6
.amdhsa_kernel {k}
  .amdhsa_next_free_vgpr 128
  .amdhsa_next_free_sgpr {102 if TS else 64}
  .amdhsa_accum_offset 128
  .amdhsa_group_segment_fixed_size 0
  .amdhsa_kernarg_size 72
  .amdhsa_user_sgpr_count 2
  .amdhsa_user_sgpr_kernarg_segment_ptr 1
  .amdhsa_system_sgpr_workgroup_id_x 1
.end_amdhsa_kernel""")

a = Asm()
a.l += ["; MHA x2 (S=2048, D=512, H=32), one launch: qkv projection -> attention -> output projection",
        "; @launch grid=(256,1,1) block=(1024,1,1) lds=163840",
        '.amdgcn_target "amdgcn-amd-amdhsa--gfx950"', ".text"]
gen(a)
print(a.text())
```

```python
import sys, math, struct

NAME = "concat_heads__mha_block__mha_block__prompt"
OPT = set(sys.argv[1:]) | {"pub0", "stmid"}
if not OPT & {"tx", "a3", "roll", "nopf"}: OPT |= {"tx", "late", "wa2", "wb4"}
NWS = 5 if "w5" in OPT else (4 if "w4" in OPT else 3)
TS = "ts" in OPT
WT = "sc0 sc1" if "sys" in OPT else "sc1"
KV_OFF = 0
OF_OFF = 8 << 20
FKV_OFF = 12 << 20
FO_OFF = (12 << 20) + 65536
XID_OFF = (12 << 20) + 131072
WS_USED = 13 << 20
QSCALE = 0.25 * math.log2(math.e)
SPIN_MAX = 1 << 18
def f32bits(x): return struct.unpack("<I", struct.pack("<f", x))[0]

class Asm:
    def __init__(self): self.l = []
    def __call__(self, *lines):
        for x in lines:
            if isinstance(x, (list, tuple)): self(*x)
            else: self.l.append("    " + x if not x.endswith(":") else x)
    def c(self, s): self.l.append("    ; " + s)
    def text(self): return "\n".join(self.l)

def vr(b, n): return f"v[{b}:{b+n-1}]"
def mfma(d, a, b, c):
    cs = vr(c, 16) if isinstance(c, int) else c
    return f"v_mfma_f32_32x32x16_bf16 {vr(d,16)}, {vr(a,4)}, {vr(b,4)}, {cs}"
def smf(d, a, b, idx): return f"v_smfmac_f32_32x32x32_bf16 {vr(d,16)}, {vr(a,4)}, {vr(b,8)}, v{idx}"

P1TS_DONE = False
def stamp(a, j):
    if "p1ts" in OPT and P1TS_DONE and j >= 7: return
    if TS: a(f"s_memrealtime s[{64+2*j}:{65+2*j}]", "s_waitcnt lgkmcnt(0)")
def ts_init(a):
    if TS:
        for j in range(15): a(f"s_mov_b64 s[{64+2*j}:{65+2*j}], 0")
        a("s_mov_b32 s94, 0x5151", "s_mov_b32 s95, 0")
def ts_flush(a, kidx, wave, tag):
    if not TS: return
    a(f"s_cmp_lg_u32 s25, {wave}", f"s_cbranch_scc1 TS_skip_{tag}")
    a("s_sleep 127", "s_sleep 127", "s_sleep 127")
    a("s_mov_b64 exec, 1", f"s_lshl_b32 s96, s2, 7", f"s_add_u32 s96, s96, {(32<<20) + kidx*256*128}", "v_mov_b32 v1, s96")
    for j in range(16):
        a(f"v_mov_b32 v2, s{64+2*j}", f"v_mov_b32 v3, s{65+2*j}", f"global_store_dwordx2 v1, v[2:3], s[20:21] offset:{j*8}", "s_nop 1")
    a("s_waitcnt vmcnt(0)", "s_mov_b64 exec, -1", f"TS_skip_{tag}:")

XRING = 0
WRING = 98304
QX = 65536
TAGL = 163832
EREG = 131072

def spin(a, name, cond_lines, reload_lines):
    a(f"s_mov_b32 s63, {SPIN_MAX}", f"L_{name}_chk:", "s_waitcnt vmcnt(0)", cond_lines, f"s_cbranch_scc1 L_{name}_ok", "s_sleep 1",
      reload_lines, "s_sub_u32 s63, s63, 1", "s_cmp_lg_u32 s63, 0", f"s_cbranch_scc1 L_{name}_chk", "s_waitcnt vmcnt(0)", f"L_{name}_ok:")

def gen(a):
    k = NAME + "_kernel"
    a.l += [f".globl {k}", ".p2align 8", f".type {k},@function", f"{k}:"]
    a("s_cmp_ge_u32 s2, 256", "s_cbranch_scc1 L_done")
    a("s_load_dwordx16 s[4:19], s[0:1], 0", "s_load_dwordx2 s[20:21], s[0:1], 64")
    ts_init(a)
    if TS: a("s_memrealtime s[64:65]")
    a("s_memrealtime s[48:49]")
    a("s_and_b32 s52, s2, 7", "s_lshr_b32 s53, s2, 3",
      "s_lshr_b32 s22, s52, 2",
      "s_and_b32 s23, s53, 15",
      "s_and_b32 s24, s52, 3", "s_lshl_b32 s24, s24, 1", "s_lshr_b32 s53, s53, 4", "s_add_u32 s24, s24, s53")
    a("v_lshrrev_b32 v1, 6, v0", "v_and_b32 v0, 63, v0", "s_getreg_b32 s26, hwreg(HW_REG_XCC_ID)", "v_readfirstlane_b32 s25, v1")
    a("s_and_b32 s26, s26, 7", "s_lshl_b32 s62, s25, 10")
    a("s_waitcnt lgkmcnt(0)")
    a("s_cmp_eq_u32 s22, 0",
      "s_cselect_b32 s4, s4, s10", "s_cselect_b32 s5, s5, s11", "s_cselect_b32 s6, s6, s12", "s_cselect_b32 s7, s7, s13",
      "s_cselect_b32 s8, s8, s14", "s_cselect_b32 s9, s9, s15")
    a("s_lshl_b32 s52, s24, 18", "s_add_u32 s28, s4, s52", "s_addc_u32 s29, s5, 0", "s_and_b32 s29, s29, 0xffff",
      "s_mov_b32 s30, 262144", "s_mov_b32 s31, 0x20000")
    a("s_mov_b32 s32, s6", "s_and_b32 s33, s7, 0xffff", f"s_mov_b32 s34, {512*3072}", "s_mov_b32 s35, 0x20000")
    a("s_cmp_ge_u32 s25, 8", "s_cbranch_scc1 L_loader")

    O = 0; Q = 16; S = [20, 36]; KB = [52, 56]; VB = [100, 108]; IDX = 116; KA = [117, 118, 98]; VA = [119, 120, 99]; LO = 121; T = 122
    CM = 64

    def common_init(a):
        a("s_mov_b32 s36, s20", "s_and_b32 s37, s21, 0xffff", f"s_mov_b32 s38, {WS_USED}", "s_mov_b32 s39, 0x20000")
        a("s_and_b32 s52, s23, 7", "s_lshl_b32 s52, s52, 7", "s_add_u32 s40, s8, s52", "s_addc_u32 s41, s9, 0", "s_and_b32 s41, s41, 0xffff",
          f"s_sub_u32 s42, {512*1024}, s52", "s_mov_b32 s43, 0x20000")
        a("s_mov_b32 s44, s16", "s_and_b32 s45, s17, 0xffff", f"s_mov_b32 s46, {2048*2048}", "s_mov_b32 s47, 0x20000")
        a("s_mov_b32 s50, 0xffff", "s_mov_b32 s51, 0xffff", "s_mov_b32 s27, 0")
        a("s_lshl_b32 s54, s22, 4", "s_add_u32 s54, s54, s23", "s_lshl_b32 s54, s54, 18", "s_lshl_b32 s55, s24, 15", "s_add_u32 s55, s55, s54")
        a(f"v_lshlrev_b32 v{LO}, 4, v0",
          "s_lshr_b32 s56, s25, 3", "s_lshl_b32 s53, s56, 14",
          f"v_add_u32 v{KA[0]}, s53, v{LO}", f"v_add_u32 v{KA[1]}, 0x10000, v{KA[0]}", f"v_add_u32 v{KA[2]}, 0x20000, v{KA[0]}",
          "v_and_b32 v13, 15, v0", "v_lshlrev_b32 v13, 4, v13", "v_lshrrev_b32 v14, 5, v0", "v_lshl_add_u32 v13, v14, 8, v13",
          "s_add_u32 s53, s53, 1024", f"v_add_u32 v{VA[0]}, s53, v13", f"v_add_u32 v{VA[1]}, 0x10000, v{VA[0]}", f"v_add_u32 v{VA[2]}, 0x20000, v{VA[0]}",
          f"v_mov_b32 v{IDX}, 0xdddddddd")
        a("v_and_b32 v13, 27, v0", "v_cmp_eq_u32 vcc, 16, v13", "v_mov_b32 v14, 0x3f803f80",
          f"v_mov_b32 v{T}, {TAGL}", f"v_lshlrev_b32 v{T+4}, 3, v0", "v_cndmask_b32 v13, 0, v14, vcc")
        for r in range(16): a(f"v_mov_b32 v{VB[0]+r}, v13")
        a("s_and_b32 s53, s25, 7", "s_lshl_b32 s58, s24, 3", "s_add_u32 s58, s58, s53", "s_lshl_b32 s57, s22, 6", "s_add_u32 s58, s58, s57",
          "s_lshl_b32 s58, s58, 5", "s_lshl_b32 s53, s23, 1", "s_add_u32 s53, s53, s56", "s_add_u32 s58, s58, s53",
          "s_lshl_b32 s59, s58, 3", f"s_add_u32 s59, s59, {FO_OFF}", "s_lshl_b32 s58, s58, 10", f"s_add_u32 s58, s58, {OF_OFF}")
        a("s_lshr_b32 s60, s54, 9", f"s_add_u32 s60, s60, {FKV_OFF}", "s_lshl_b32 s61, s24, 6", "s_add_u32 s61, s61, s60",
          "s_lshl_b32 s53, s25, 3", "s_add_u32 s61, s61, s53")
        a("s_lshl_b32 s10, s22, 3", "s_add_u32 s10, s10, s24", "s_lshl_b32 s10, s10, 7", f"s_add_u32 s10, s10, {XID_OFF}")
        a("s_xor_b32 s53, s24, 1", "s_lshl_b32 s53, s53, 3", "s_mov_b64 s[14:15], 0xff", "s_lshl_b64 s[14:15], s[14:15], s53")
        a("s_lshl_b32 s52, s24, 3", "s_lshr_b32 s53, s23, 3", "s_lshl_b32 s53, s53, 2", "s_add_u32 s52, s52, s53",
          "s_add_u32 s53, s57, s52", "s_lshl_b32 s11, s53, 8", f"s_add_u32 s11, s11, {FO_OFF}",
          "s_and_b32 s12, s25, 3", "s_add_u32 s52, s52, s12", "s_add_u32 s53, s53, s12", "s_lshl_b32 s12, s53, 15", f"s_add_u32 s12, s12, {OF_OFF}",
          "s_lshl_b32 s13, s22, 10", "s_and_b32 s53, s23, 7", "s_lshl_b32 s53, s53, 7", "s_add_u32 s13, s13, s53",
          "s_lshl_b32 s53, s52, 16", "s_add_u32 s13, s13, s53")

    XA = [1, 2]; XB = [3, 4]; WA = [5, 6]; VK = 96; VV = 97; QA = 123
    ACC = 16
    FXR = [64, 68]; FW = 72
    def touches():
        if "tx" in OPT:
            a.c("HBM/L2 warm-up: waves 0,1 touch 8 KB each of this workgroup's share of the X block")
            a("s_cmp_ge_u32 s25, 2", "s_cbranch_scc1 L_tx_done",
              "s_lshl_b32 s52, s23, 14", "s_lshl_b32 s53, s25, 13", "s_add_u32 s52, s52, s53",
              "v_lshlrev_b32 v13, 7, v0", "buffer_load_dword v125, v13, s[28:31], s52 offen", "L_tx_done:")
        if "tw" in OPT:
            a.c("waves 2,3 touch 6 KB each of W (1/128 of the matrix per workgroup)")
            a("s_sub_u32 s52, s25, 2", "s_cmp_ge_u32 s52, 2", "s_cbranch_scc1 L_tw_done",
              "s_lshl_b32 s53, s24, 4", "s_add_u32 s53, s53, s23", "s_lshl_b32 s53, s53, 1", "s_add_u32 s52, s52, s53",
              "s_mul_i32 s52, s52, 6144", "v_cmp_gt_u32 vcc, 48, v0", "v_lshlrev_b32 v13, 7, v0", "s_and_saveexec_b64 s[56:57], vcc",
              "buffer_load_dword v125, v13, s[32:35], s52 offen", "s_mov_b64 exec, -1", "L_tw_done:")
        if "twf" in OPT:
            a.c("waves 2..7 touch 8 KB each of W (1/32 of the matrix per workgroup)")
            a("s_sub_u32 s52, s25, 2", "s_cmp_ge_u32 s52, 6", "s_cbranch_scc1 L_twf_done",
              "s_and_b32 s53, s24, 1", "s_lshl_b32 s53, s53, 4", "s_add_u32 s53, s53, s23", "s_mul_i32 s53, s53, 6", "s_add_u32 s52, s52, s53",
              "s_lshl_b32 s52, s52, 13", "v_lshlrev_b32 v13, 7, v0",
              "buffer_load_dword v125, v13, s[32:35], s52 offen", "L_twf_done:")
    def touchX(c0, nc, wave, tag):
        a(f"s_cmp_lg_u32 s25, {wave}", f"s_cbranch_scc1 L_{tag}_done")
        if nc == 2: a("v_lshrrev_b32 v13, 1, v0", "v_and_b32 v14, 1, v0")
        elif nc == 4: a("v_lshrrev_b32 v13, 2, v0", "v_and_b32 v14, 3, v0")
        else: a("v_mul_u32_u24 v13, 43, v0", "v_lshrrev_b32 v13, 7, v13", "v_mul_u32_u24 v14, 3, v13", "v_sub_u32 v14, v0, v14")
        a("v_lshlrev_b32 v13, 10, v13", "v_lshl_add_u32 v13, v14, 7, v13", "s_lshl_b32 s52, s23, 14", f"s_add_u32 s52, s52, {c0*128}",
          f"v_cmp_gt_u32 vcc, {16*nc}, v0", "s_nop 1", "s_and_saveexec_b64 s[56:57], vcc",
          "buffer_load_dword v125, v13, s[28:31], s52 offen", "s_mov_b64 exec, -1", f"L_{tag}_done:")
    def touchW(c0, nc, wave, tag):
        a(f"s_cmp_lg_u32 s25, {wave}", f"s_cbranch_scc1 L_{tag}_done",
          "s_lshl_b32 s52, s24, 4", "s_add_u32 s52, s52, s23", f"s_mul_i32 s52, s52, {nc*1536}", f"s_add_u32 s52, s52, {c0*196608}",
          f"v_cmp_gt_u32 vcc, {12*nc}, v0", "v_lshlrev_b32 v13, 7, v0", "s_nop 0", "s_and_saveexec_b64 s[56:57], vcc",
          "buffer_load_dword v125, v13, s[32:35], s52 offen", "s_mov_b64 exec, -1", f"L_{tag}_done:")
    if "tlb" in OPT:
        a.c("translation warm-up: wave 0 of workgroup i touches one of the pages the kernel will need")
        a("s_cmp_lg_u32 s25, 0", "s_cbranch_scc1 L_tlb_done",
          "s_and_b32 s52, s23, 7", "v_mov_b32 v13, 0",
          "s_cmp_eq_u32 s52, 0", "s_cbranch_scc1 L_tlb0", "s_cmp_eq_u32 s52, 1", "s_cbranch_scc1 L_tlb1",
          "s_cmp_eq_u32 s52, 2", "s_cbranch_scc1 L_tlb2", "s_cmp_eq_u32 s52, 3", "s_cbranch_scc1 L_tlb3",
          "s_cmp_eq_u32 s52, 4", "s_cbranch_scc1 L_tlb4")
        a("s_lshl_b32 s53, s22, 22", "s_lshr_b32 s56, s23, 3", "s_lshl_b32 s56, s56, 21", "s_add_u32 s53, s53, s56",
          "s_lshl_b32 s56, s22, 21", f"s_add_u32 s56, s56, {OF_OFF}",
          "s_cmp_eq_u32 s52, 6", "s_cselect_b32 s53, s56, s53", "s_cmp_eq_u32 s52, 7", f"s_cselect_b32 s53, {FKV_OFF}, s53",
          "v_mov_b32 v13, s53", "global_load_dword v125, v13, s[20:21]", "s_branch L_tlb_done")
        a("L_tlb0:", "buffer_load_dword v125, v13, s[28:31], 0 offen", "s_branch L_tlb_done")
        a("L_tlb1:", "buffer_load_dword v125, v13, s[32:35], 0 offen", "s_branch L_tlb_done")
        a("L_tlb2:", "global_load_dword v125, v13, s[8:9]", "s_branch L_tlb_done")
        a("L_tlb3:", "s_lshr_b32 s53, s24, 2", "s_lshl_b32 s53, s53, 21", "v_mov_b32 v13, s53", "global_load_dword v125, v13, s[16:17]", "s_branch L_tlb_done")
        a("L_tlb4:", "global_load_dword v125, v13, s[18:19] sc1", "L_tlb_done:")
    if "cpf" in OPT:
        a.c("pull the kernel's code into L2 (waves 4..7, 64 lines each)")
        a("s_sub_u32 s52, s25, 4", "s_cmp_ge_u32 s52, 4", "s_cbranch_scc1 L_cpf_done",
          "s_getpc_b64 s[56:57]", "L_cpf_pc:", "s_lshl_b32 s52, s52, 13", "v_lshlrev_b32 v13, 7, v0", "v_add_u32 v13, s52, v13",
          "v_cmp_gt_u32 vcc, L_code_end-L_cpf_pc, v13", "s_nop 1", "s_and_saveexec_b64 s[52:53], vcc", "s_cbranch_execz L_cpf_skip",
          "global_load_dword v125, v13, s[56:57]", "L_cpf_skip:", "s_mov_b64 exec, -1", "L_cpf_done:")
    if "early" in OPT: touches()
    a("s_barrier")
    if "early" not in OPT and "late" not in OPT: touches()
    if "a3" in OPT:
        touchX(2, 3, 0, "xa3"); touchW(2, 3, 1, "wa3")
    if "wa3" in OPT: touchW(2, 3, 2, "wa3")
    if "wa2" in OPT: touchW(2, 2, 2, "wa2")
    common_init(a)
    a("v_and_b32 v13, 15, v0", "v_lshrrev_b32 v14, 4, v0",
      "v_bfe_u32 v15, v0, 1, 3", "v_xor_b32 v15, v15, v14", "v_lshlrev_b32 v15, 4, v15", "v_lshl_add_u32 v15, v13, 7, v15",
      "s_lshl_b32 s52, s25, 12",
      f"v_add_u32 v{XA[0]}, s52, v15", f"v_xor_b32 v{XA[1]}, 64, v{XA[0]}",
      f"v_add_u32 v{XB[0]}, 0x10000, v{XA[0]}", f"v_add_u32 v{XB[1]}, 0x10000, v{XA[1]}")
    a("v_bfe_u32 v15, v0, 2, 2", "v_lshl_add_u32 v13, v14, 3, v15", "v_lshlrev_b32 v13, 6, v13",
      "v_bfe_u32 v15, v0, 4, 1", "v_lshl_add_u32 v13, v15, 5, v13", "v_and_b32 v15, 3, v0", "v_lshl_add_u32 v13, v15, 3, v13",
      f"v_add_u32 v{WA[0]}, {WRING}, v13", f"v_xor_b32 v{WA[1]}, 32, v{WA[0]}")
    a("s_lshl_b32 s52, s25, 11", f"v_add_u32 v{VK}, s52, v{LO}",
      "v_and_b32 v13, 15, v0", "v_lshlrev_b32 v13, 4, v13", "v_lshrrev_b32 v14, 5, v0", "v_lshl_add_u32 v13, v14, 8, v13",
      "v_bfe_u32 v15, v0, 4, 1", "v_lshl_add_u32 v13, v15, 14, v13", "s_add_u32 s52, s52, 1024", f"v_add_u32 v{VV}, s52, v13")
    a(f"s_add_u32 s52, s62, {QX}", f"v_add_u32 v{QA}, s52, v{LO}", "s_add_u32 s63, s55, 16384")
    lq1 = []
    def xread(n, th):
        c, s2 = divmod(n, 2); slot = c % 3
        lq1.append(f"X{th}")
        if slot < 2: return f"ds_read_b128 {vr(FXR[th],4)}, v{XA[s2]} offset:{slot*32768 + th*2048}"
        return f"ds_read_b128 {vr(FXR[th],4)}, v{XB[s2]} offset:{th*2048}"
    def wread(n, b):
        c, s2 = divmod(n, 2); seg, hd = divmod(b, 2)
        lq1.extend([f"W{b}"]*2)
        return [f"ds_read_b64_tr_b16 {vr(FW + b*4 + j*2, 2)}, v{WA[hd]} offset:{(c % NWS)*12288 + seg*4096 + s2*2048 + j*256}" for j in range(2)]
    def lw1(need):
        idx = [i for i, x in enumerate(lq1) if x in need]
        if not idx: return []
        keep = len(lq1) - 1 - max(idx)
        del lq1[:len(lq1) - keep]
        return [f"s_waitcnt lgkmcnt({keep})"]
    def m16(th, b, first):
        d = ACC + (b*2 + th)*4
        cs = "0" if first else vr(d, 4)
        x = vr(FXR[th], 4); w = vr(FW + b*4, 4)
        return f"v_mfma_f32_16x16x32_bf16 {vr(d,4)}, " + (f"{w}, {x}" if b < 4 else f"{x}, {w}") + f", {cs}"
    if "nokvpre" not in OPT:
        a.c("an early poll of a line that is still only in HBM is slow: fetch the group's K/V flag lines now")
        a("s_cmp_lg_u32 s25, 5", "s_cbranch_scc1 L_kvpre_done", f"buffer_load_dword v125, v{T+4}, s[36:39], s60 offen sc1", "L_kvpre_done:")
    if "late" in OPT: touches()
    if "xa" in OPT: touchX(3, 2, 0, "xa")
    if "wa" in OPT: touchW(3, 2, 1, "wa")
    if "wa5" in OPT: touchW(3, 5, 1, "wa5")
    if "xa4" in OPT: touchX(4, 4, 0, "xa4")
    a(f"s_mov_b32 s56, {f32bits(QSCALE):#x}", f"s_mov_b32 s57, {f32bits(QSCALE):#x}")
    stamp(a, 1)
    a("s_barrier")
    stamp(a, 2)
    if "xb" in OPT or "wb" in OPT or "wb4" in OPT:
        if "xb" in OPT: touchX(5, 3, 2, "xb")
        if "wb" in OPT: touchW(5, 3, 3, "wb")
        if "wb4" in OPT: touchW(4, 4, 3, "wb4")
        a(f"s_mov_b32 s56, {f32bits(QSCALE):#x}", f"s_mov_b32 s57, {f32bits(QSCALE):#x}")
    if "cyc" in OPT: a("s_memtime s[98:99]", "s_waitcnt lgkmcnt(0)")
    BO = [2, 3, 4, 5, 0, 1]
    a(xread(0, 0))
    for b in BO: a(wread(0, b))
    a(xread(0, 1))
    for n in range(16):
        c, s2 = divmod(n, 2)
        for b in BO:
            a(lw1({"X0", f"W{b}"}), m16(0, b, n == 0))
        if n < 15:
            if s2 == 1:
                a("s_waitcnt lgkmcnt(0)", "s_barrier"); lq1.clear()
                if c == 3 and "p1ts" not in OPT: stamp(a, 3)
                if "p1ts" in OPT: stamp(a, 7 + c)
            a(xread(n + 1, 0))
        for i, b in enumerate(BO):
            a(lw1({"X1"}), m16(1, b, n == 0))
            if n < 15: a(wread(n + 1, b))
            elif i < 4:
                for r in range(4): a(f"v_mov_b32 v{O + i*4 + r}, 0")
        if n < 15: a(xread(n + 1, 1))
        assert len(lq1) <= 15
    stamp(a, 4)
    global P1TS_DONE
    P1TS_DONE = True
    a.c("P1 epilogue: K, V -> LDS stage slot 0 (and, after the barrier, global) ; Q -> regs / LDS")
    PK = 64
    def pack2(dst, src): return [f"v_cvt_pk_bf16_f32 v{dst+r}, v{src+2*r}, v{src+2*r+1}" for r in range(2)]
    def acc(th, b): return ACC + (b*2 + th)*4
    def swaps(t): return [f"v_permlane16_swap_b32 v{t}, v{t+2}", f"v_permlane16_swap_b32 v{t+1}, v{t+3}"]
    GST = [f"buffer_store_dwordx4 {vr(PK,4)}, v{VK}, s[36:39], s55 offen {WT}",
      f"buffer_store_dwordx4 {vr(PK+4,4)}, v{VK}, s[36:39], s63 offen {WT}",
      f"buffer_store_dwordx4 {vr(PK+8,4)}, v{VV}, s[36:39], s55 offen {WT}",
      f"buffer_store_dwordx4 {vr(PK+12,4)}, v{VV}, s[36:39], s55 offen offset:512 {WT}"]
    a("s_nop 2")
    a(pack2(PK, acc(0, 2)), pack2(PK + 2, acc(1, 2)), pack2(PK + 4, acc(0, 3)), pack2(PK + 6, acc(1, 3)))
    a(swaps(PK), f"ds_write_b128 v{VK}, {vr(PK,4)}")
    if "stearly" in OPT: a(GST[0])
    a(pack2(PK + 8, acc(0, 4)), pack2(PK + 10, acc(0, 5)))
    a(swaps(PK + 4), f"ds_write_b128 v{VK}, {vr(PK+4,4)} offset:16384")
    if "stearly" in OPT: a(GST[1])
    a(pack2(PK + 12, acc(1, 4)), pack2(PK + 14, acc(1, 5)))
    a(swaps(PK + 8), f"ds_write_b128 v{VV}, {vr(PK+8,4)}")
    if "stearly" in OPT: a(GST[2])
    for r in range(4): a(f"v_pk_mul_f32 {vr(acc(0,1)+2*r,2)}, {vr(acc(0,1)+2*r,2)}, s[56:57]")
    a(swaps(PK + 12), f"ds_write_b128 v{VV}, {vr(PK+12,4)} offset:512")
    if "stearly" in OPT: a(GST[3])
    a(pack2(PK + 16, acc(0, 1)), pack2(PK + 18, acc(1, 1)))
    for r in range(4): a(f"v_pk_mul_f32 {vr(acc(0,0)+2*r,2)}, {vr(acc(0,0)+2*r,2)}, s[56:57]")
    a(swaps(PK + 16), f"ds_write_b128 v{QA}, {vr(PK+16,4)}")
    a(pack2(Q, acc(0, 0)), pack2(Q + 2, acc(1, 0)), "s_nop 1", swaps(Q))
    gst = [f"buffer_store_dwordx4 {vr(PK,4)}, v{VK}, s[36:39], s55 offen {WT}",
      f"buffer_store_dwordx4 {vr(PK+4,4)}, v{VK}, s[36:39], s63 offen {WT}",
      f"buffer_store_dwordx4 {vr(PK+8,4)}, v{VV}, s[36:39], s55 offen {WT}",
      f"buffer_store_dwordx4 {vr(PK+12,4)}, v{VV}, s[36:39], s55 offen offset:512 {WT}"]
    if "stmid" in OPT: a(gst)
    a("s_waitcnt lgkmcnt(0)")
    stamp(a, 5)
    a("s_barrier")
    stamp(a, 6)
    if "stmid" not in OPT and "stearly" not in OPT: a(gst)
    a("s_branch L_haveq")

    a("L_loader:")
    a("s_sub_u32 s52, s25, 8")
    a("s_and_b32 s53, s52, 1", "s_lshl_b32 s53, s53, 2",
      "v_lshrrev_b32 v2, 4, v0", "v_add_u32 v2, s53, v2", "v_and_b32 v3, 7, v0", "v_xor_b32 v2, v2, v3", "v_lshlrev_b32 v2, 4, v2",
      "v_lshrrev_b32 v4, 3, v0", "v_lshl_add_u32 v2, v4, 10, v2")
    a("v_lshrrev_b32 v4, 2, v0", "v_mul_u32_u24 v4, 3072, v4", "v_and_b32 v3, 3, v0",
      "v_lshrrev_b32 v5, 5, v0", "v_lshlrev_b32 v5, 1, v5", "v_xor_b32 v3, v3, v5", "v_lshl_add_u32 v3, v3, 4, v4",
      "s_lshl_b32 s53, s23, 6", "v_add_u32 v3, s53, v3")
    a("s_lshl_b32 s4, s52, 13", "s_add_u32 s5, s4, 65536", "s_add_u32 s6, s4, 131072", "s_add_u32 s7, s4, 196608",
      "s_lshl_b32 s0, s52, 10")
    a("s_and_b32 s53, s52, 3", "s_mul_i32 s1, s53, 49152", "s_lshr_b32 s53, s52, 2", "s_lshl_b32 s53, s53, 10", "s_add_u32 s1, s1, s53")
    a("s_cmp_ge_u32 s52, 4", "s_cbranch_scc1 L_loaderB")
    def issueW(c, variantA):
        slot = c % NWS
        out = [f"s_add_u32 m0, s0, {WRING + slot*12288}", f"s_add_u32 s53, s1, {c*196608}",
               "buffer_load_dwordx4 v3, s[32:35], s53 offen lds"]
        if variantA:
            out += [f"s_add_u32 m0, s0, {WRING + slot*12288 + 8192 - 2048}", "s_nop 0",
                    "buffer_load_dwordx4 v3, s[32:35], s53 offen offset:2048 lds"]
        return out
    def issueX(c):
        slot = c % 3
        out = []
        for aa in range(4):
            out += [f"s_add_u32 m0, s0, {XRING + slot*32768 + aa*8192}", f"s_add_u32 s53, s{4+aa}, {c*128}",
                    "buffer_load_dwordx4 v2, s[28:31], s53 offen lds"]
        return out
    for variantA in (True, False):
        ops = []
        def W(c):
            a(issueW(c, variantA)); ops.extend([c]*(2 if variantA else 1))
        def X(c):
            a(issueX(c)); ops.extend([c]*4)
        if not variantA: a("L_loaderB:")
        if variantA: stamp(a, 1)
        W(0); X(0); a("s_barrier"); W(1); X(1)
        if variantA: stamp(a, 2)
        if not variantA:
            a.c("workgroup 0 publishes the launch tag (low 4 bits: 8 | room for an XCC id)")
            a("s_cmp_lg_u32 s2, 0", "s_cbranch_scc1 L_notag", "s_cmp_lg_u32 s52, 7", "s_cbranch_scc1 L_notag")
            a("s_lshl_b64 s[48:49], s[48:49], 4", "s_or_b32 s48, s48, 8",
              "v_mov_b32 v8, 0", "v_mov_b32 v4, s48", "v_mov_b32 v5, s49", "s_mov_b64 exec, 1",
              f"global_store_dwordx2 v8, v[4:5], s[18:19] {WT}", "s_mov_b64 exec, -1")
            a("L_notag:")
        ROLL = "roll" in OPT and not variantA
        def TOUCH(c):
            a("s_mov_b64 exec, s[16:17]", "buffer_load_dword v10, v9, s[44:47], s3 offen", "s_mov_b64 exec, -1", "s_add_u32 s3, s3, s27")
            ops.append(99)
        if ROLL:
            a("s_mov_b32 s3, s52")
        common_init(a)
        if ROLL:
            a.c("rolling warm-up of later k-chunks: waves 12,13 take X lines, waves 14,15 W lines")
            R0 = int([o for o in OPT if o.startswith("r0=")][0][3:]) if any(o.startswith("r0=") for o in OPT) else 2
            a("s_cmp_lt_u32 s3, 6",
              "s_cselect_b32 s44, s28, s32", "s_cselect_b32 s45, s29, s33", "s_cselect_b32 s46, s30, s34",
              "s_cselect_b32 s16, 0xff, 63", "s_mov_b32 s17, 0", "s_mov_b32 s27, 196608", "s_cselect_b32 s27, 128, s27", "s_cselect_b32 s52, 10, 7",
              "v_lshlrev_b32 v9, s52, v0",
              "s_and_b32 s3, s3, 1", "s_lshl_b32 s52, s23, 1", "s_add_u32 s52, s52, s3", "s_lshl_b32 s53, s52, 13",
              "s_lshl_b32 s56, s24, 5", "s_add_u32 s52, s52, s56", "s_mul_i32 s52, s52, 768",
              "s_cmp_eq_u32 s27, 128", "s_cselect_b32 s3, s53, s52", f"s_mul_i32 s52, s27, {R0}", "s_add_u32 s3, s3, s52")
            nextT = R0
            RD = int([o for o in OPT if o.startswith("rd=")][0][3:]) if any(o.startswith("rd=") for o in OPT) else 4
            while nextT < RD: TOUCH(nextT); nextT += 1
        nextW = 2
        for c in range(8):
            last = max(i for i, x in enumerate(ops) if x <= c)
            wait = len(ops) - 1 - last
            if not variantA and c == 7:
                a.c("launch tag -> LDS")
                spin(a, "tag", ["v_cmp_ne_u64 vcc, 0, v[6:7]", "s_nop 1", "s_cmp_eq_u64 vcc, -1"],
                     ["global_load_dwordx2 v[6:7], v8, s[18:19] sc1"])
                a(f"ds_write_b64 v{T}, v[6:7]")
            else:
                a(f"s_waitcnt vmcnt({wait})")
            a("s_barrier")
            if variantA and c == 0: stamp(a, 3)
            if variantA and c == 7: stamp(a, 4)
            if nextW == c + 2 and nextW <= 7: W(nextW); nextW += 1
            if c + 2 <= 7: X(c + 2)
            while nextW <= min(7, c - 1 + NWS): W(nextW); nextW += 1
            if ROLL and nextT <= 7: TOUCH(nextT); nextT += 1
            if not variantA and c == 5:
                a("v_mov_b32 v8, 0", "global_load_dwordx2 v[6:7], v8, s[18:19] sc1"); ops.append(99)
        if variantA: a("s_branch L_p2_start")

    a("L_p2_start:")
    for r in range(16): a(f"v_mov_b32 v{O+r}, 0")
    a(f"s_add_u32 s53, s62, {QX - 8192}", f"v_add_u32 v{T+1}, s53, v{LO}")
    a("s_waitcnt lgkmcnt(0)")
    stamp(a, 5)
    a("s_barrier")
    stamp(a, 6)
    a(f"ds_read_b128 {vr(Q,4)}, v{T+1}")
    a("L_haveq:")
    def kread(u):
        s, t = divmod(u, 8); sl = s % 5
        return [f"ds_read_b128 {vr(KB[u%2],4)}, v{KA[sl//2]} offset:{(sl%2)*32768 + t*2048}"]
    def vread(u):
        s, t = divmod(u, 8); sl = s % 5
        o = (sl % 2)*32768 + t*2048
        return ["s_mov_b64 exec, s[50:51]",
                f"ds_read_b128 {vr(VB[u%2],4)}, v{VA[sl//2]} offset:{o}",
                f"ds_read_b128 {vr(VB[u%2]+4,4)}, v{VA[sl//2]} offset:{o+512}",
                "s_mov_b64 exec, -1"]
    def ex(base, lo, hi): return [f"v_exp_f32 v{base+i}, v{base+i}" for i in range(lo, hi)]
    def dma(s):
        sl = s % 5
        return [f"s_xor_b32 s53, s24, {s}", "s_lshl_b32 s53, s53, 15", "s_add_u32 s53, s53, s54", "s_add_u32 s53, s53, s62",
                f"s_add_u32 m0, s62, {sl*32768}", "s_add_u32 s63, s53, 16384",
                f"buffer_load_dwordx4 v{LO}, s[36:39], s53 offen sc1 lds",
                f"s_add_u32 m0, s62, {sl*32768 + 16384}", "s_nop 0",
                f"buffer_load_dwordx4 v{LO}, s[36:39], s63 offen sc1 lds"]
    kvpoll = [f"buffer_load_dwordx2 {vr(T,2)}, v{T+4}, s[36:39], s60 offen sc1"]
    a("s_setprio 3")
    a(kread(0), kread(1), vread(0), f"ds_read_b64 {vr(T+2,2)}, v{T}", "s_waitcnt lgkmcnt(4)")
    a(mfma(S[0], KB[0], Q, "0"), "s_waitcnt lgkmcnt(0)")
    a(f"v_readfirstlane_b32 s48, v{T+2}", f"v_readfirstlane_b32 s49, v{T+3}", "s_nop 7")
    NT = 64
    PUB = 0 if "pub0" in OPT else 1
    WO = 98304
    BAR = {14: 0, 30: 0, 46: 0}
    prio_at = {3: 2, 5: 1, 6: 0, 11: 2, 13: 1, 14: 0}
    pz = [int(x) for x in ([o for o in OPT if o.startswith("pz=")] or ["pz=8,3,1"])[0][3:].split(",")]
    for b in (30, 46, 63):
        prio_at[b + 1 - pz[0]] = 2; prio_at[b + 1 - pz[1]] = 1; prio_at[b + 1 - pz[2]] = 0
    DD = int(([o for o in OPT if o.startswith("dd=")] or ["dd=2"])[0][3:])
    for u in range(NT):
        st, t = divmod(u, 8)
        s = S[u % 2]
        if u in prio_at: a(f"s_setprio {prio_at[u]}")
        special7 = (u == 7)
        if special7:
            stamp(a, 8)
            a("s_waitcnt vmcnt(0) lgkmcnt(0)", "s_barrier", "s_setprio 3")
            stamp(a, 9)
            if "cyc2" in OPT: a("s_memtime s[98:99]", "s_waitcnt lgkmcnt(0)")
            a(kread(8))
        else:
            a("s_waitcnt lgkmcnt(0)")
        a(ex(s, 0, 2))
        if u > 0: a(smf(O, VB[(u-1) % 2] + 4, S[(u-1) % 2] + 8, IDX))
        if u + 1 < NT: a(vread(u + 1))
        a(ex(s, 2, 5))
        if u + 1 < NT and not special7:
            a(mfma(S[(u+1) % 2], KB[(u+1) % 2], Q, "0"))
            if u in BAR:
                a(f"s_waitcnt vmcnt({BAR[u]})", "s_barrier", "s_setprio 3")
                if u == 30 and "cyc2" not in OPT: stamp(a, 10)
            if u + 2 < NT and u != 6: a(kread(u + 2))
        a(ex(s, 5, 10))
        a(smf(O, VB[u % 2], s, IDX))
        if special7:
            a("s_waitcnt lgkmcnt(2)", mfma(S[0], KB[0], Q, "0"), kread(9))
            a(ex(s, 10, 16), "s_nop 3")
        else:
            a(ex(s, 10, 16))
        if u == PUB:
            a.c("publish this wave's K/V tile; wave 8 publishes the workgroup's XCC id")
            a(f"v_mov_b32 v{T}, s48", f"v_mov_b32 v{T+1}, s49", f"v_mov_b32 v{T+2}, 0",
              "s_cmp_ge_u32 s25, 8", "s_cbranch_scc1 L_nopub", "s_waitcnt vmcnt(0)")
            stamp(a, 7)
            a("s_mov_b64 exec, 1", f"buffer_store_dwordx2 {vr(T,2)}, v{T+2}, s[36:39], s61 offen {WT}", "s_mov_b64 exec, -1", "s_branch L_pubdone")
            a("L_nopub:", "s_cmp_lg_u32 s25, 8", "s_cbranch_scc1 L_pubdone",
              f"v_or_b32 v{T}, s26, v{T}", "s_lshl_b32 s53, s23, 3", "s_add_u32 s53, s53, s10",
              "s_mov_b64 exec, 1", f"buffer_store_dwordx2 {vr(T,2)}, v{T+2}, s[36:39], s53 offen {WT}", "s_mov_b64 exec, -1", "L_pubdone:")
        PA_, PC_ = [int(x) for x in ([o for o in OPT if o.startswith("pp=")] or ["pp=3,5"])[0][3:].split(",")]
        if u == PA_ or u == 8:
            a(kvpoll)
        if u == PC_:
            spin(a, "kv1", [f"v_cmp_eq_u64 vcc, s[48:49], {vr(T,2)}", "s_nop 1", "s_and_b64 vcc, vcc, s[14:15]", "s_cmp_eq_u64 vcc, s[14:15]"], kvpoll)
            a(dma(1))
        if u == 10:
            spin(a, "kv2", [f"v_cmp_eq_u64 vcc, s[48:49], {vr(T,2)}", "s_nop 1", "s_cmp_eq_u64 vcc, -1"], kvpoll)
            a(dma(2), dma(3))
        if u == 14 + DD: a(dma(4))
        if u == 15 + DD: a(dma(5))
        if u == 30 + DD: a(dma(6))
        if u == 31 + DD: a(dma(7))
        if u == 46 + DD:
            a.c("Wo tile -> LDS (slots 3, 4)")
            a(f"v_lshrrev_b32 v{T}, 4, v{LO}", f"v_bfe_u32 v{T+1}, v{T}, 4, 1", f"v_lshlrev_b32 v{T+1}, 1, v{T+1}", f"v_and_b32 v{T+2}, 7, v{T}",
              f"v_xor_b32 v{T+1}, v{T+1}, v{T+2}", f"v_lshlrev_b32 v{T+1}, 4, v{T+1}", f"v_lshrrev_b32 v{T}, 3, v{T}",
              f"v_lshl_add_u32 v{T}, v{T}, 10, v{T+1}", "s_lshl_b32 s63, s25, 13")
            for aa in range(2):
                a(f"s_add_u32 m0, s62, {WO + aa*16384}", f"s_add_u32 s53, s63, {aa*131072}", f"buffer_load_dwordx4 v{T}, s[40:43], s53 offen lds")
        if u == 47 + DD:
            for aa in range(2, 4):
                a(f"s_add_u32 m0, s62, {WO + aa*16384}", f"s_add_u32 s53, s63, {aa*131072}", f"buffer_load_dwordx4 v{T}, s[40:43], s53 offen lds")
        if u == 48 + DD:
            a.c("XCC ids of the row block's workgroups; bring the O and O-flag lines this wave will write into L2")
            a(f"v_and_b32 v{T+5}, 0x78, v{T+4}", f"buffer_load_dwordx2 {vr(T+2,2)}, v{T+5}, s[36:39], s10 offen sc1",
              f"v_mov_b32 v{T+1}, 0", f"buffer_load_dword v{T+1}, v{T+1}, s[36:39], s59 offen",
              f"buffer_load_dword v60, v{LO}, s[36:39], s58 offen")
        if u == 58:
            a.c("local hand-off only when all 16 workgroups of this row block run on this XCC")
            a("s_waitcnt vmcnt(0)", "s_or_b32 s52, s48, s26", "s_mov_b32 s53, s49", f"v_cmp_eq_u64 vcc, s[52:53], {vr(T+2,2)}", "s_nop 1",
              "s_cmp_eq_u64 vcc, -1", "s_cselect_b32 s27, 1, 0")
            if "noloc" in OPT: a("s_mov_b32 s27, 0")
    a("s_nop 1", smf(O, VB[(NT-1) % 2] + 4, S[(NT-1) % 2] + 8, IDX), "s_nop 11")
    a.c("safety check of the zero stand-in: 2^-24 <= l <= 2^48 and finite O, else redo with the true row max")
    a(f"v_mov_b32 v{T}, 0x33800000", f"v_mov_b32 v{T+1}, 0x57800000", f"v_mov_b32 v{T+2}, 0x7f800000", "s_nop 0",
      f"v_cmp_le_f32 s[52:53], v{T}, v{O+8}", f"v_cmp_ge_f32 s[56:57], v{T+1}, v{O+8}",
      f"v_max3_f32 v{T+1}, abs(v{O}), abs(v{O+1}), abs(v{O+2})", f"v_max3_f32 v{T+1}, abs(v{O+3}), abs(v{O+4}), v{T+1}",
      f"v_max3_f32 v{T+1}, abs(v{O+5}), abs(v{O+6}), v{T+1}", f"v_max_f32 v{T+1}, abs(v{O+7}), v{T+1}",
      "s_and_b64 s[52:53], s[52:53], s[56:57]",
      f"v_cmp_gt_f32 vcc, v{T+2}, v{T+1}", "s_nop 1", "s_and_b64 s[52:53], s[52:53], vcc",
      "s_cmp_eq_u64 s[52:53], -1", "s_cbranch_scc0 L_fallback")
    a("L_finish:")
    a("s_setprio 3")
    stamp(a, 11)
    if "cyc2" in OPT: a("s_memtime s[96:97]", "s_waitcnt lgkmcnt(0)", "s_sub_u32 s96, s96, s98", "s_add_u32 s66, s82, s96", "s_addc_u32 s67, s83, 0")
    a(f"v_rcp_f32 v{T}, v{O+8}", "s_nop 0")
    for r in range(8): a(f"v_mul_f32 v{O+r}, v{O+r}, v{T}")
    for r in range(4): a(f"v_cvt_pk_bf16_f32 v{O+12+r}, v{O+2*r}, v{O+2*r+1}")
    a(f"v_mov_b32 v{T}, s48", f"v_mov_b32 v{T+1}, s49", f"v_mov_b32 v{T+2}, 0")
    a("s_cmp_eq_u32 s27, 1", "s_cbranch_scc1 L_ostore_local")
    a(f"buffer_store_dwordx4 {vr(O+12,4)}, v{LO}, s[36:39], s58 offen {WT}", "s_waitcnt vmcnt(0)",
      "s_mov_b64 exec, 1", f"buffer_store_dwordx2 {vr(T,2)}, v{T+2}, s[36:39], s59 offen {WT}", "s_mov_b64 exec, -1", "s_branch L_ostored")
    a("L_ostore_local:")
    a(f"buffer_store_dwordx4 {vr(O+12,4)}, v{LO}, s[36:39], s58 offen", "s_waitcnt vmcnt(0)",
      "s_mov_b64 exec, 1", f"buffer_store_dwordx2 {vr(T,2)}, v{T+2}, s[36:39], s59 offen", "s_mov_b64 exec, -1")
    a("L_ostored:")
    stamp(a, 12)
    a("s_barrier")
    if TS:
        a("s_cmp_lt_u32 s25, 8", "s_cbranch_scc1 L_ts_p3", "s_barrier", "s_barrier", "s_barrier")
        if "allw" in OPT:
            for w in range(8, 16): ts_flush(a, w, w, f"w{w}")
        else:
            ts_flush(a, 1, 8, "w8")
            ts_flush(a, 2, 15, "w15")
        a("s_endpgm", "L_ts_p3:")
    else:
        a("s_cmp_ge_u32 s25, 8", "s_cbranch_scc1 L_done")

    ACC3 = [0, 16]; OFR = 32; WB = [96, 104, 112]; A3 = [120, 122]; VO = 116; PA = 123; L = 118; PF = 124
    opoll = [f"buffer_load_dwordx4 {vr(PF,4)}, v{LO}, s[36:39], s11 offen sc1"]
    ocond = [f"v_cmp_eq_u64 vcc, s[48:49], {vr(PF,2)}", f"v_cmp_eq_u64 s[52:53], s[48:49], {vr(PF+2,2)}", "s_nop 1",
             "s_and_b64 vcc, vcc, s[52:53]", "s_cmp_eq_u64 vcc, -1"]
    a("s_cmp_lt_u32 s25, 4", "s_cbranch_scc1 L_p3c")
    a("s_and_b32 s56, s25, 3", "s_lshl_b32 s56, s56, 14")
    a("s_barrier")
    for i in range(16):
        a(f"s_add_u32 m0, s56, {i*1024}", f"s_add_u32 s53, s12, {(16+i)*1024}", f"buffer_load_dwordx4 v{LO}, s[36:39], s53 offen sc1 lds")
    a("s_waitcnt vmcnt(8)", "s_barrier", "s_waitcnt vmcnt(0)", "s_barrier")
    if "wb2" in OPT:
        a("s_cmp_lg_u32 s25, 4", "s_cbranch_scc1 L_nowb", "buffer_wbl2 sc1", "L_nowb:")
    if "allw" in OPT:
        for w in range(4, 8): ts_flush(a, w, w, f"w{w}")
    a("s_endpgm")
    a("L_p3c:")
    a(opoll)
    a(f"v_lshrrev_b32 v6, 4, v{LO}")
    a(f"v_lshrrev_b32 v4, 5, v6", f"v_bfe_u32 v5, v6, 2, 2", "v_lshl_add_u32 v4, v4, 2, v5", "v_lshlrev_b32 v4, 7, v4",
      f"v_and_b32 v5, 1, v6", "v_lshl_add_u32 v4, v5, 6, v4", f"v_bfe_u32 v5, v6, 4, 1", "v_lshl_add_u32 v4, v5, 4, v4",
      f"v_bfe_u32 v5, v6, 3, 1", "v_lshl_add_u32 v4, v5, 5, v4", f"v_bfe_u32 v5, v6, 1, 1", f"v_lshl_add_u32 v4, v5, 3, v4",
      f"v_add_u32 v{A3[0]}, {WO}, v4", f"v_xor_b32 v{A3[1]}, 32, v{A3[0]}")
    a("s_lshl_b32 s56, s25, 14", f"v_add_u32 v{PA}, s56, v{LO}")
    def reads3(hd, buf):
        out = []
        for cb in range(2):
            for j in range(2):
                out.append(f"ds_read_b64_tr_b16 {vr(buf + cb*4 + j*2, 2)}, v{A3[cb]} offset:{hd*2048 + j*1024}")
        return out
    a(reads3(0, WB[0]), reads3(1, WB[1]))
    spin(a, "o", ocond, opoll)
    stamp(a, 13)
    for i in range(16):
        if i % 4 == 0: a(f"s_add_u32 s53, s12, {i*1024}")
        a(f"buffer_load_dwordx4 {vr(OFR + i*4, 4)}, v{LO}, s[36:39], s53 offen offset:{(i%4)*1024} sc1")
    a("s_barrier")
    lq = ["W0"]*4 + ["W1"]*4
    def lwait(need):
        nonlocal lq
        idx = [i for i, x in enumerate(lq) if x in need]
        if not idx: return None
        keep = len(lq) - 1 - max(idx)
        lq = lq[len(lq) - keep:]
        return keep
    def oread(n):
        lq.append(f"O{n}")
        return f"ds_read_b128 {vr(OFR + (n-16)*4, 4)}, v{PA} offset:{(n-16)*1024}"
    for n in range(32):
        cur = WB[n % 3]
        if n in (16, 24):
            if "p3ts" in OPT and n == 16: stamp(a, 2); lq = []
            a("s_barrier")
            if "p3ts" in OPT and n == 24: stamp(a, 3); lq = []
            for i in range(2): a(oread(n + i))
        if n + 2 < 32:
            a(reads3(n + 2, WB[(n+2) % 3])); lq.extend([f"W{n+2}"]*4)
        if n >= 16 and (n % 8) + 2 < 8: a(oread(n + 2))
        assert len(lq) <= 15, lq
        kw = lwait({f"W{n}", f"O{n}"})
        w = []
        if n < 16: w.append(f"vmcnt({15 - n})")
        if kw is not None: w.append(f"lgkmcnt({kw})")
        if w: a("s_waitcnt " + " ".join(w))
        if "p3ts" in OPT and n in (0, 31): stamp(a, {0: 1, 31: 4}[n]); lq = []
        for cb in range(2):
            a(mfma(ACC3[cb], cur + cb*4, OFR + (n%16)*4, "0" if n == 0 else ACC3[cb]))
    a(f"v_lshrrev_b32 v{L}, 4, v{LO}")
    PA = 117
    a.c("transpose through LDS (slot 1 is free) so that every store writes whole 128-byte lines")
    TA_ = 119; TB_ = 120
    a(f"v_and_b32 v{TA_}, 31, v{L}", f"v_lshrrev_b32 v{PA}, 5, v{L}", f"v_lshlrev_b32 v{PA}, 2, v{PA}", f"v_and_b32 v{TB_}, 7, v{L}",
      f"v_xor_b32 v{PA}, v{PA}, v{TB_}", f"v_lshlrev_b32 v{PA}, 4, v{PA}", f"v_lshl_add_u32 v{TA_}, v{TA_}, 7, v{PA}",
      "s_mov_b32 s52, s56", f"v_add_u32 v{TA_}, s52, v{TA_}",
      f"v_lshrrev_b32 v{PA}, 3, v{L}", f"v_xor_b32 v{VO}, v{PA}, v{TB_}", f"v_lshlrev_b32 v{VO}, 4, v{VO}", f"v_lshl_add_u32 v{VO}, v{PA}, 7, v{VO}",
      f"v_add_u32 v{VO}, s52, v{VO}",
      f"v_lshlrev_b32 v{TB_}, 4, v{TB_}", f"v_lshl_add_u32 v{TB_}, v{PA}, 11, v{TB_}")
    for cb in range(2):
        for q in range(2):
            c = cb*2 + q
            t = 32 + c*4
            for r in range(4): a(f"v_cvt_pk_bf16_f32 v{t+r}, v{ACC3[cb]+q*8+2*r}, v{ACC3[cb]+q*8+2*r+1}")
            if c: a(f"v_xor_b32 v{PA}, {c*16}, v{TA_}")
            a(f"ds_write_b128 v{PA if c else TA_}, {vr(t,4)}")
    a("s_waitcnt lgkmcnt(0)")
    for i in range(4): a(f"ds_read_b128 {vr(48 + i*4, 4)}, v{VO} offset:{i*1024}")
    for i in range(4):
        a(f"s_add_u32 s53, s13, {i*16384}", f"s_waitcnt lgkmcnt({3-i})", f"buffer_store_dwordx4 {vr(48 + i*4, 4)}, v{TB_}, s[44:47], s53 offen" + (" sc1" if "osc1" in OPT else " nt" if "ont" in OPT else " sc0 sc1" if "osys" in OPT else ""))
    if TS:
        if "p3ts" in OPT: stamp(a, 5)
        a("s_waitcnt vmcnt(0)")
        stamp(a, 14)
        ts_flush(a, 0, 0, "w0")
        if "allw" in OPT:
            for w in range(1, 4): ts_flush(a, w, w, f"w{w}")
    a("L_done:", "s_endpgm")

    a("L_fallback:")
    M = T + 2
    a("s_lshr_b32 s52, s25, 3", "s_lshl_b32 s52, s52, 14", "s_add_u32 s52, s52, s54",
      f"v_mov_b32 v{M}, 0xff800000", "s_mov_b32 s63, 0",
      f"v_sub_u32 v{T+3}, v{VA[0]}, v{KA[0]}", f"v_add_u32 v{T+3}, v{T+3}, v{LO}")
    def fb_addr():
        return ["s_lshr_b32 s53, s63, 3", "s_lshl_b32 s53, s53, 15", "s_and_b32 s56, s63, 7", "s_lshl_b32 s56, s56, 11",
                "s_add_u32 s53, s53, s56", "s_add_u32 s53, s53, s52"]
    a("L_fb1:", fb_addr(),
      f"buffer_load_dwordx4 {vr(KB[0],4)}, v{LO}, s[36:39], s53 offen sc1", "s_waitcnt vmcnt(0)",
      mfma(S[0], KB[0], Q, "0"), "s_nop 15")
    for r in range(8): a(f"v_max3_f32 v{M}, v{S[0]+2*r}, v{S[0]+2*r+1}, v{M}")
    a("s_add_u32 s63, s63, 1", "s_cmp_lg_u32 s63, 64", "s_cbranch_scc1 L_fb1")
    a(f"v_mov_b32 v{T}, v{M}", "s_nop 1", f"v_permlane32_swap_b32 v{M}, v{T}", "s_nop 1", f"v_max_f32 v{M}, v{M}, v{T}", f"v_sub_f32 v{M}, 0, v{M}")
    for r in range(16): a(f"v_mov_b32 v{CM+r}, v{M}")
    for r in range(16): a(f"v_mov_b32 v{O+r}, 0")
    a("s_mov_b32 s63, 0")
    a("L_fb2:", fb_addr(),
      f"buffer_load_dwordx4 {vr(KB[0],4)}, v{LO}, s[36:39], s53 offen sc1", "s_mov_b64 exec, s[50:51]",
      f"buffer_load_dwordx4 {vr(VB[0],4)}, v{T+3}, s[36:39], s53 offen sc1",
      f"buffer_load_dwordx4 {vr(VB[0]+4,4)}, v{T+3}, s[36:39], s53 offen offset:512 sc1", "s_mov_b64 exec, -1",
      "s_waitcnt vmcnt(0)", mfma(S[0], KB[0], Q, CM), "s_nop 15")
    a(ex(S[0], 0, 16), "s_nop 1", smf(O, VB[0], S[0], IDX), smf(O, VB[0] + 4, S[0] + 8, IDX))
    a("s_add_u32 s63, s63, 1", "s_cmp_lg_u32 s63, 64", "s_cbranch_scc1 L_fb2")
    a("s_nop 15", "s_branch L_finish", "L_code_end:")
    a.l.append(f""".section .rodata,"a"
.p2align 6
.amdhsa_kernel {k}
  .amdhsa_next_free_vgpr 128
  .amdhsa_next_free_sgpr {102 if TS else 64}
  .amdhsa_accum_offset 128
  .amdhsa_group_segment_fixed_size 0
  .amdhsa_kernarg_size 72
  .amdhsa_user_sgpr_count 2
  .amdhsa_user_sgpr_kernarg_segment_ptr 1
  .amdhsa_system_sgpr_workgroup_id_x 1
.end_amdhsa_kernel""")

a = Asm()
a.l += ["; MHA x2 (S=2048, D=512, H=32), one launch: qkv projection -> attention -> output projection",
        "; @launch grid=(256,1,1) block=(1024,1,1) lds=163840",
        '.amdgcn_target "amdgcn-amd-amdhsa--gfx950"', ".text"]
gen(a)
print(a.text())
```

```python
import sys, math, struct

NAME = "concat_heads__mha_block__mha_block__prompt"
OPT = set(sys.argv[1:]) | {"pub0", "stmid", "tx67", "b0late"}
if not OPT & {"tx", "a3", "nopf"}: OPT |= {"tx", "late", "wa2", "wb4"}
NWS = 5 if "w5" in OPT else (4 if "w4" in OPT else 3)
TS = "ts" in OPT
WT = "sc0 sc1" if "sys" in OPT else "sc1"
XNT = " nt" if "xnt" in OPT else ""
WNT = " nt" if "wnt" in OPT else ""
KV_OFF = 0
OF_OFF = 8 << 20
FKV_OFF = 12 << 20
FO_OFF = (12 << 20) + 65536
XID_OFF = (12 << 20) + 131072
WS_USED = 13 << 20
QSCALE = 0.25 * math.log2(math.e)
SPIN_MAX = 1 << 18
def f32bits(x): return struct.unpack("<I", struct.pack("<f", x))[0]

class Asm:
    def __init__(self): self.l = []
    def __call__(self, *lines):
        for x in lines:
            if isinstance(x, (list, tuple)): self(*x)
            else: self.l.append("    " + x if not x.endswith(":") else x)
    def c(self, s): self.l.append("    ; " + s)
    def text(self): return "\n".join(self.l)

def vr(b, n): return f"v[{b}:{b+n-1}]"
def mfma(d, a, b, c):
    cs = vr(c, 16) if isinstance(c, int) else c
    return f"v_mfma_f32_32x32x16_bf16 {vr(d,16)}, {vr(a,4)}, {vr(b,4)}, {cs}"
def smf(d, a, b, idx): return f"v_smfmac_f32_32x32x32_bf16 {vr(d,16)}, {vr(a,4)}, {vr(b,8)}, v{idx}"

P1TS_DONE = False
def stamp(a, j):
    if "p1ts" in OPT and P1TS_DONE and j >= 7: return
    if "cyc3" in OPT: return
    if TS: a(f"s_memrealtime s[{64+2*j}:{65+2*j}]", "s_waitcnt lgkmcnt(0)")
def cstamp(a, j):
    if "cyc3" in OPT:
        if j == 0: a("s_memtime s[98:99]", "s_waitcnt lgkmcnt(0)")
        else: a("s_memtime s[96:97]", "s_waitcnt lgkmcnt(0)", "s_sub_u32 s96, s96, s98", f"s_add_u32 s{64+2*j}, s64, s96", f"s_addc_u32 s{65+2*j}, s65, 0")
def ts_init(a):
    if TS:
        for j in range(15): a(f"s_mov_b64 s[{64+2*j}:{65+2*j}], 0")
        a("s_mov_b32 s94, 0x5151", "s_mov_b32 s95, 0")
def ts_flush(a, kidx, wave, tag):
    if not TS: return
    a(f"s_cmp_lg_u32 s25, {wave}", f"s_cbranch_scc1 TS_skip_{tag}")
    a("s_sleep 127", "s_sleep 127", "s_sleep 127")
    a("s_mov_b64 exec, 1", f"s_lshl_b32 s96, s2, 7", f"s_add_u32 s96, s96, {(32<<20) + kidx*256*128}", "v_mov_b32 v1, s96")
    for j in range(16):
        a(f"v_mov_b32 v2, s{64+2*j}", f"v_mov_b32 v3, s{65+2*j}", f"global_store_dwordx2 v1, v[2:3], s[20:21] offset:{j*8}", "s_nop 1")
    a("s_waitcnt vmcnt(0)", "s_mov_b64 exec, -1", f"TS_skip_{tag}:")

XRING = 0
WRING = 98304
QX = 65536
TAGL = 163832
EREG = 131072

def spin(a, name, cond_lines, reload_lines):
    a(f"s_mov_b32 s63, {SPIN_MAX}", f"L_{name}_chk:", "s_waitcnt vmcnt(0)", cond_lines, f"s_cbranch_scc1 L_{name}_ok", "s_sleep 1",
      reload_lines, "s_sub_u32 s63, s63, 1", "s_cmp_lg_u32 s63, 0", f"s_cbranch_scc1 L_{name}_chk", "s_waitcnt vmcnt(0)", f"L_{name}_ok:")

def gen(a):
    k = NAME + "_kernel"
    a.l += [f".globl {k}", ".p2align 8", f".type {k},@function", f"{k}:"]
    a("s_cmp_ge_u32 s2, 256", "s_cbranch_scc1 L_done")
    a("s_load_dwordx16 s[4:19], s[0:1], 0", "s_load_dwordx2 s[20:21], s[0:1], 64")
    ts_init(a)
    if TS: a("s_memrealtime s[64:65]")
    a("s_memrealtime s[48:49]")
    a("s_and_b32 s52, s2, 7", "s_lshr_b32 s53, s2, 3",
      "s_lshr_b32 s22, s52, 2",
      "s_and_b32 s23, s53, 15",
      "s_and_b32 s24, s52, 3", "s_lshl_b32 s24, s24, 1", "s_lshr_b32 s53, s53, 4", "s_add_u32 s24, s24, s53")
    a("v_lshrrev_b32 v1, 6, v0", "v_and_b32 v0, 63, v0", "s_getreg_b32 s26, hwreg(HW_REG_XCC_ID)", "v_readfirstlane_b32 s25, v1")
    a("s_and_b32 s26, s26, 7", "s_lshl_b32 s62, s25, 10")
    a("s_waitcnt lgkmcnt(0)")
    a("s_cmp_eq_u32 s22, 0",
      "s_cselect_b32 s4, s4, s10", "s_cselect_b32 s5, s5, s11", "s_cselect_b32 s6, s6, s12", "s_cselect_b32 s7, s7, s13",
      "s_cselect_b32 s8, s8, s14", "s_cselect_b32 s9, s9, s15")
    a("s_lshl_b32 s52, s24, 18", "s_add_u32 s28, s4, s52", "s_addc_u32 s29, s5, 0", "s_and_b32 s29, s29, 0xffff",
      "s_mov_b32 s30, 262144", "s_mov_b32 s31, 0x20000")
    a("s_mov_b32 s32, s6", "s_and_b32 s33, s7, 0xffff", f"s_mov_b32 s34, {512*3072}", "s_mov_b32 s35, 0x20000")
    a("s_cmp_ge_u32 s25, 8", "s_cbranch_scc1 L_loader")

    O = 0; Q = 16; S = [20, 36]; KB = [52, 56]; VB = [100, 108]; IDX = 116; KA = [117, 118, 98]; VA = [119, 120, 99]; LO = 121; T = 122
    CM = 80
    WOA = 61; CK = 62

    def common_init(a):
        a("s_mov_b32 s36, s20", "s_and_b32 s37, s21, 0xffff", f"s_mov_b32 s38, {WS_USED}", "s_mov_b32 s39, 0x20000")
        a("s_and_b32 s52, s23, 7", "s_lshl_b32 s52, s52, 7", "s_add_u32 s40, s8, s52", "s_addc_u32 s41, s9, 0", "s_and_b32 s41, s41, 0xffff",
          f"s_sub_u32 s42, {512*1024}, s52", "s_mov_b32 s43, 0x20000")
        a("s_mov_b32 s44, s16", "s_and_b32 s45, s17, 0xffff", f"s_mov_b32 s46, {2048*2048}", "s_mov_b32 s47, 0x20000")
        a("s_mov_b32 s50, 0xffff", "s_mov_b32 s51, 0xffff", "s_mov_b32 s27, 0")
        a("s_lshl_b32 s54, s22, 4", "s_add_u32 s54, s54, s23", "s_lshl_b32 s54, s54, 18", "s_lshl_b32 s55, s24, 15", "s_add_u32 s55, s55, s54")
        a(f"v_lshlrev_b32 v{LO}, 4, v0",
          "s_lshr_b32 s56, s25, 3", "s_lshl_b32 s53, s56, 14",
          f"v_add_u32 v{KA[0]}, s53, v{LO}", f"v_add_u32 v{KA[1]}, 0x10000, v{KA[0]}", f"v_add_u32 v{KA[2]}, 0x20000, v{KA[0]}",
          "v_and_b32 v13, 15, v0", "v_lshlrev_b32 v13, 4, v13", "v_lshrrev_b32 v14, 5, v0", "v_lshl_add_u32 v13, v14, 8, v13",
          "s_add_u32 s53, s53, 1024", f"v_add_u32 v{VA[0]}, s53, v13", f"v_add_u32 v{VA[1]}, 0x10000, v{VA[0]}", f"v_add_u32 v{VA[2]}, 0x20000, v{VA[0]}",
          f"v_mov_b32 v{IDX}, 0xdddddddd")
        a("v_and_b32 v13, 27, v0", "v_cmp_eq_u32 vcc, 16, v13", "v_mov_b32 v14, 0x3f803f80",
          f"v_mov_b32 v{T}, {TAGL}", f"v_lshlrev_b32 v{T+4}, 3, v0", "v_cndmask_b32 v13, 0, v14, vcc")
        for r in range(16): a(f"v_mov_b32 v{VB[0]+r}, v13")
        a("s_and_b32 s53, s25, 7", "s_lshl_b32 s58, s24, 3", "s_add_u32 s58, s58, s53", "s_lshl_b32 s57, s22, 6", "s_add_u32 s58, s58, s57",
          "s_lshl_b32 s58, s58, 5", "s_lshl_b32 s53, s23, 1", "s_add_u32 s53, s53, s56", "s_add_u32 s58, s58, s53",
          "s_lshl_b32 s59, s58, 3", f"s_add_u32 s59, s59, {FO_OFF}", "s_lshl_b32 s58, s58, 10", f"s_add_u32 s58, s58, {OF_OFF}")
        a("s_lshr_b32 s60, s54, 9", f"s_add_u32 s60, s60, {FKV_OFF}", "s_lshl_b32 s61, s24, 6", "s_add_u32 s61, s61, s60",
          "s_lshl_b32 s53, s25, 3", "s_add_u32 s61, s61, s53")
        a("s_lshl_b32 s10, s22, 3", "s_add_u32 s10, s10, s24", "s_lshl_b32 s10, s10, 7", f"s_add_u32 s10, s10, {XID_OFF}")
        a("s_xor_b32 s53, s24, 1", "s_lshl_b32 s53, s53, 3", "s_mov_b64 s[14:15], 0xff", "s_lshl_b64 s[14:15], s[14:15], s53")
        a("s_lshl_b32 s52, s24, 3", "s_lshr_b32 s53, s23, 3", "s_lshl_b32 s53, s53, 2", "s_add_u32 s52, s52, s53",
          "s_add_u32 s53, s57, s52", "s_lshl_b32 s11, s53, 8", f"s_add_u32 s11, s11, {FO_OFF}",
          "s_and_b32 s12, s25, 3", "s_add_u32 s52, s52, s12", "s_add_u32 s53, s53, s12", "s_lshl_b32 s12, s53, 15", f"s_add_u32 s12, s12, {OF_OFF}",
          "s_lshl_b32 s13, s22, 10", "s_and_b32 s53, s23, 7", "s_lshl_b32 s53, s53, 7", "s_add_u32 s13, s13, s53",
          "s_lshl_b32 s53, s52, 16", "s_add_u32 s13, s13, s53")

    XA = [1, 2]; XB = [3, 4]; WA = [5, 6]; VK = 96; VV = 97; QA = 123
    ACC = 16
    FXR = [64, 68]; FW = 72
    def touches():
        if "tx" in OPT:
            a.c("HBM/L2 warm-up: waves 0,1 touch 8 KB each of this workgroup's share of the X block")
            if "tx67" in OPT:
                a("s_and_b32 s53, s25, 6", "s_mov_b32 s52, s23", "s_cmp_eq_u32 s53, 0", "s_cbranch_scc1 L_tx_own",
                  "s_cmp_lg_u32 s53, 6", "s_cbranch_scc1 L_tx_done", "s_sub_u32 s52, s23, 2", "s_lshr_b32 s53, s52, 1", "s_cmp_lg_u32 s53, 3", "s_cbranch_scc1 L_tx_done",
                  "s_branch L_tx_go", "L_tx_own:", "s_lshr_b32 s53, s52, 1", "s_cmp_eq_u32 s53, 3", "s_cbranch_scc1 L_tx_done", "L_tx_go:",
                  "s_lshl_b32 s52, s52, 14", "s_and_b32 s53, s25, 1", "s_lshl_b32 s53, s53, 13", "s_add_u32 s52, s52, s53",
                  "v_lshlrev_b32 v13, 7, v0", "buffer_load_dword v125, v13, s[28:31], s52 offen" + XNT, "L_tx_done:")
            else:
                a("s_cmp_ge_u32 s25, 2", "s_cbranch_scc1 L_tx_done",
                  "s_lshl_b32 s52, s23, 14", "s_lshl_b32 s53, s25, 13", "s_add_u32 s52, s52, s53",
                  "v_lshlrev_b32 v13, 7, v0", "buffer_load_dword v125, v13, s[28:31], s52 offen" + XNT, "L_tx_done:")
        if "tw" in OPT:
            a.c("waves 2,3 touch 6 KB each of W (1/128 of the matrix per workgroup)")
            a("s_sub_u32 s52, s25, 2", "s_cmp_ge_u32 s52, 2", "s_cbranch_scc1 L_tw_done",
              "s_lshl_b32 s53, s24, 4", "s_add_u32 s53, s53, s23", "s_lshl_b32 s53, s53, 1", "s_add_u32 s52, s52, s53",
              "s_mul_i32 s52, s52, 6144", "v_cmp_gt_u32 vcc, 48, v0", "v_lshlrev_b32 v13, 7, v0", "s_and_saveexec_b64 s[56:57], vcc",
              "buffer_load_dword v125, v13, s[32:35], s52 offen", "s_mov_b64 exec, -1", "L_tw_done:")
        if "twf" in OPT:
            a.c("waves 2..7 touch 8 KB each of W (1/32 of the matrix per workgroup)")
            a("s_sub_u32 s52, s25, 2", "s_cmp_ge_u32 s52, 6", "s_cbranch_scc1 L_twf_done",
              "s_and_b32 s53, s24, 1", "s_lshl_b32 s53, s53, 4", "s_add_u32 s53, s53, s23", "s_mul_i32 s53, s53, 6", "s_add_u32 s52, s52, s53",
              "s_lshl_b32 s52, s52, 13", "v_lshlrev_b32 v13, 7, v0",
              "buffer_load_dword v125, v13, s[32:35], s52 offen", "L_twf_done:")
    def touchX(c0, nc, wave, tag):
        a(f"s_cmp_lg_u32 s25, {wave}", f"s_cbranch_scc1 L_{tag}_done")
        if nc == 2: a("v_lshrrev_b32 v13, 1, v0", "v_and_b32 v14, 1, v0")
        elif nc == 4: a("v_lshrrev_b32 v13, 2, v0", "v_and_b32 v14, 3, v0")
        else: a("v_mul_u32_u24 v13, 43, v0", "v_lshrrev_b32 v13, 7, v13", "v_mul_u32_u24 v14, 3, v13", "v_sub_u32 v14, v0, v14")
        a("v_lshlrev_b32 v13, 10, v13", "v_lshl_add_u32 v13, v14, 7, v13", "s_lshl_b32 s52, s23, 14", f"s_add_u32 s52, s52, {c0*128}",
          f"v_cmp_gt_u32 vcc, {16*nc}, v0", "s_nop 1", "s_and_saveexec_b64 s[56:57], vcc",
          "buffer_load_dword v125, v13, s[28:31], s52 offen" + XNT, "s_mov_b64 exec, -1", f"L_{tag}_done:")
    def touchW(c0, nc, wave, tag):
        a(f"s_cmp_lg_u32 s25, {wave}", f"s_cbranch_scc1 L_{tag}_done",
          "s_lshl_b32 s52, s24, 4", "s_add_u32 s52, s52, s23", f"s_mul_i32 s52, s52, {nc*1536}", f"s_add_u32 s52, s52, {c0*196608}",
          f"v_cmp_gt_u32 vcc, {12*nc}, v0", "v_lshlrev_b32 v13, 7, v0", "s_nop 0", "s_and_saveexec_b64 s[56:57], vcc",
          "buffer_load_dword v125, v13, s[32:35], s52 offen" + WNT, "s_mov_b64 exec, -1", f"L_{tag}_done:")
    if "tlb" in OPT:
        a.c("translation warm-up: wave 0 of workgroup i touches one of the pages the kernel will need")
        a("s_cmp_lg_u32 s25, 0", "s_cbranch_scc1 L_tlb_done",
          "s_and_b32 s52, s23, 7", "v_mov_b32 v13, 0",
          "s_cmp_eq_u32 s52, 0", "s_cbranch_scc1 L_tlb0", "s_cmp_eq_u32 s52, 1", "s_cbranch_scc1 L_tlb1",
          "s_cmp_eq_u32 s52, 2", "s_cbranch_scc1 L_tlb2", "s_cmp_eq_u32 s52, 3", "s_cbranch_scc1 L_tlb3",
          "s_cmp_eq_u32 s52, 4", "s_cbranch_scc1 L_tlb4")
        a("s_lshl_b32 s53, s22, 22", "s_lshr_b32 s56, s23, 3", "s_lshl_b32 s56, s56, 21", "s_add_u32 s53, s53, s56",
          "s_lshl_b32 s56, s22, 21", f"s_add_u32 s56, s56, {OF_OFF}",
          "s_cmp_eq_u32 s52, 6", "s_cselect_b32 s53, s56, s53", "s_cmp_eq_u32 s52, 7", f"s_cselect_b32 s53, {FKV_OFF}, s53",
          "v_mov_b32 v13, s53", "global_load_dword v125, v13, s[20:21]", "s_branch L_tlb_done")
        a("L_tlb0:", "buffer_load_dword v125, v13, s[28:31], 0 offen", "s_branch L_tlb_done")
        a("L_tlb1:", "buffer_load_dword v125, v13, s[32:35], 0 offen", "s_branch L_tlb_done")
        a("L_tlb2:", "global_load_dword v125, v13, s[8:9]", "s_branch L_tlb_done")
        a("L_tlb3:", "s_lshr_b32 s53, s24, 2", "s_lshl_b32 s53, s53, 21", "v_mov_b32 v13, s53", "global_load_dword v125, v13, s[16:17]", "s_branch L_tlb_done")
        a("L_tlb4:", "global_load_dword v125, v13, s[18:19] sc1", "L_tlb_done:")
    if "cpf" in OPT:
        a.c("pull the kernel's code into L2 (waves 4..7, 64 lines each)")
        a("s_sub_u32 s52, s25, 4", "s_cmp_ge_u32 s52, 4", "s_cbranch_scc1 L_cpf_done",
          "s_getpc_b64 s[56:57]", "L_cpf_pc:", "s_lshl_b32 s52, s52, 13", "v_lshlrev_b32 v13, 7, v0", "v_add_u32 v13, s52, v13",
          "v_cmp_gt_u32 vcc, L_code_end-L_cpf_pc, v13", "s_nop 1", "s_and_saveexec_b64 s[52:53], vcc", "s_cbranch_execz L_cpf_skip",
          "global_load_dword v125, v13, s[56:57]", "L_cpf_skip:", "s_mov_b64 exec, -1", "L_cpf_done:")
    if "early" in OPT: touches()
    a("s_barrier")
    if "early" not in OPT and "late" not in OPT: touches()
    if "a3" in OPT:
        touchX(2, 3, 0, "xa3"); touchW(2, 3, 1, "wa3")
    if "wa3" in OPT: touchW(2, 3, 2, "wa3")
    if "wa2" in OPT: touchW(2, 2, 2, "wa2")
    if "wa13" in OPT: touchW(1, 3, 2, "wa13")
    common_init(a)
    a("v_and_b32 v13, 15, v0", "v_lshrrev_b32 v14, 4, v0",
      "v_bfe_u32 v15, v0, 1, 3", "v_xor_b32 v15, v15, v14", "v_lshlrev_b32 v15, 4, v15", "v_lshl_add_u32 v15, v13, 7, v15",
      "s_lshl_b32 s52, s25, 12",
      f"v_add_u32 v{XA[0]}, s52, v15", f"v_xor_b32 v{XA[1]}, 64, v{XA[0]}",
      f"v_add_u32 v{XB[0]}, 0x10000, v{XA[0]}", f"v_add_u32 v{XB[1]}, 0x10000, v{XA[1]}")
    a("v_bfe_u32 v15, v0, 2, 2", "v_lshl_add_u32 v13, v14, 3, v15", "v_lshlrev_b32 v13, 6, v13",
      "v_bfe_u32 v15, v0, 4, 1", "v_lshl_add_u32 v13, v15, 5, v13", "v_and_b32 v15, 3, v0", "v_lshl_add_u32 v13, v15, 3, v13",
      f"v_add_u32 v{WA[0]}, {WRING}, v13", f"v_xor_b32 v{WA[1]}, 32, v{WA[0]}")
    a("s_lshl_b32 s52, s25, 11", f"v_add_u32 v{VK}, s52, v{LO}",
      "v_and_b32 v13, 15, v0", "v_lshlrev_b32 v13, 4, v13", "v_lshrrev_b32 v14, 5, v0", "v_lshl_add_u32 v13, v14, 8, v13",
      "v_bfe_u32 v15, v0, 4, 1", "v_lshl_add_u32 v13, v15, 14, v13", "s_add_u32 s52, s52, 1024", f"v_add_u32 v{VV}, s52, v13")
    a(f"s_add_u32 s52, s62, {QX}", f"v_add_u32 v{QA}, s52, v{LO}", "s_add_u32 s63, s55, 16384")
    lq1 = []
    def xread(n, th):
        c, s2 = divmod(n, 2); slot = c % 3
        lq1.append(f"X{th}")
        if slot < 2: return f"ds_read_b128 {vr(FXR[th],4)}, v{XA[s2]} offset:{slot*32768 + th*2048}"
        return f"ds_read_b128 {vr(FXR[th],4)}, v{XB[s2]} offset:{th*2048}"
    def wread(n, b):
        c, s2 = divmod(n, 2); seg, hd = divmod(b, 2)
        lq1.extend([f"W{b}"]*2)
        return [f"ds_read_b64_tr_b16 {vr(FW + b*4 + j*2, 2)}, v{WA[hd]} offset:{(c % NWS)*12288 + seg*4096 + s2*2048 + j*256}" for j in range(2)]
    def lw1(need):
        idx = [i for i, x in enumerate(lq1) if x in need]
        if not idx: return []
        keep = len(lq1) - 1 - max(idx)
        del lq1[:len(lq1) - keep]
        return [f"s_waitcnt lgkmcnt({keep})"]
    def m16(th, b, first):
        d = ACC + (b*2 + th)*4
        cs = "0" if first else vr(d, 4)
        x = vr(FXR[th], 4); w = vr(FW + b*4, 4)
        return f"v_mfma_f32_16x16x32_bf16 {vr(d,4)}, " + (f"{w}, {x}" if b < 4 else f"{x}, {w}") + f", {cs}"
    if "nokvpre" not in OPT:
        a.c("an early poll of a line that is still only in HBM is slow: fetch the group's K/V flag lines now")
        a("s_cmp_lg_u32 s25, 5", "s_cbranch_scc1 L_kvpre_done", f"buffer_load_dword v125, v{T+4}, s[36:39], s60 offen sc1", "L_kvpre_done:")
    C3 = [o for o in OPT if o.startswith("c3=")]
    if C3:
        cls = int(C3[0][3:])
        a("s_cmp_lg_u32 s25, 6", "s_cbranch_scc1 L_c3_done",
          "s_and_b32 s52, s24, 1", "s_lshl_b32 s52, s52, 4", "s_add_u32 s52, s52, s23", "s_mul_i32 s52, s52, 36864",
          f"s_add_u32 s52, s52, {384*1024 + cls*128}", "v_cmp_gt_u32 vcc, 36, v0", "v_lshlrev_b32 v13, 10, v0", "s_nop 0",
          "s_and_saveexec_b64 s[56:57], vcc", "buffer_load_dword v125, v13, s[32:35], s52 offen", "s_mov_b64 exec, -1", "L_c3_done:")
    if "late" in OPT: touches()
    if "xa" in OPT: touchX(3, 2, 0, "xa")
    if "wa" in OPT: touchW(3, 2, 1, "wa")
    if "wa5" in OPT: touchW(3, 5, 1, "wa5")
    if "xa4" in OPT: touchX(4, 4, 0, "xa4")
    a(f"s_mov_b32 s56, {f32bits(QSCALE):#x}", f"s_mov_b32 s57, {f32bits(QSCALE):#x}")
    stamp(a, 1)
    a("s_barrier")
    stamp(a, 2)
    if "xb" in OPT or "wb" in OPT or "wb4" in OPT:
        if "xb" in OPT: touchX(5, 3, 2, "xb")
        if "wb" in OPT: touchW(5, 3, 3, "wb")
        if "wb4" in OPT: touchW(4, 4, 3, "wb4")
        a(f"s_mov_b32 s56, {f32bits(QSCALE):#x}", f"s_mov_b32 s57, {f32bits(QSCALE):#x}")
    if "cyc" in OPT: a("s_memtime s[98:99]", "s_waitcnt lgkmcnt(0)")
    BO = [2, 3, 4, 5, 0, 1]
    a(xread(0, 0))
    for b in BO: a(wread(0, b))
    a(xread(0, 1))
    for n in range(16):
        c, s2 = divmod(n, 2)
        for b in BO:
            a(lw1({"X0", f"W{b}"}), m16(0, b, n == 0))
        if n < 15:
            if s2 == 1:
                a("s_waitcnt lgkmcnt(0)", "s_barrier"); lq1.clear()
                if c == 3 and "p1ts" not in OPT: stamp(a, 3)
                if "p1ts" in OPT: stamp(a, 7 + c)
            a(xread(n + 1, 0))
        for i, b in enumerate(BO):
            a(lw1({"X1"}), m16(1, b, n == 0))
            if n < 15: a(wread(n + 1, b))
            elif i < 4:
                for r in range(4): a(f"v_mov_b32 v{O + i*4 + r}, 0")
        if n < 15: a(xread(n + 1, 1))
        assert len(lq1) <= 15
    stamp(a, 4)
    global P1TS_DONE
    P1TS_DONE = True
    a.c("P1 epilogue: K, V -> LDS stage slot 0 (and, after the barrier, global) ; Q -> regs / LDS")
    PK = 64
    def pack2(dst, src): return [f"v_cvt_pk_bf16_f32 v{dst+r}, v{src+2*r}, v{src+2*r+1}" for r in range(2)]
    def acc(th, b): return ACC + (b*2 + th)*4
    def swaps(t): return [f"v_permlane16_swap_b32 v{t}, v{t+2}", f"v_permlane16_swap_b32 v{t+1}, v{t+3}"]
    GST = [f"buffer_store_dwordx4 {vr(PK,4)}, v{VK}, s[36:39], s55 offen {WT}",
      f"buffer_store_dwordx4 {vr(PK+4,4)}, v{VK}, s[36:39], s63 offen {WT}",
      f"buffer_store_dwordx4 {vr(PK+8,4)}, v{VV}, s[36:39], s55 offen {WT}",
      f"buffer_store_dwordx4 {vr(PK+12,4)}, v{VV}, s[36:39], s55 offen offset:512 {WT}"]
    a("s_nop 2")
    a(pack2(PK, acc(0, 2)), pack2(PK + 2, acc(1, 2)), pack2(PK + 4, acc(0, 3)), pack2(PK + 6, acc(1, 3)))
    a(swaps(PK), f"ds_write_b128 v{VK}, {vr(PK,4)}")
    if "stearly" in OPT: a(GST[0])
    a(pack2(PK + 8, acc(0, 4)), pack2(PK + 10, acc(0, 5)))
    a(swaps(PK + 4), f"ds_write_b128 v{VK}, {vr(PK+4,4)} offset:16384")
    if "stearly" in OPT: a(GST[1])
    a(pack2(PK + 12, acc(1, 4)), pack2(PK + 14, acc(1, 5)))
    a(swaps(PK + 8), f"ds_write_b128 v{VV}, {vr(PK+8,4)}")
    if "stearly" in OPT: a(GST[2])
    for r in range(4): a(f"v_pk_mul_f32 {vr(acc(0,1)+2*r,2)}, {vr(acc(0,1)+2*r,2)}, s[56:57]")
    a(swaps(PK + 12), f"ds_write_b128 v{VV}, {vr(PK+12,4)} offset:512")
    if "stearly" in OPT: a(GST[3])
    a(pack2(PK + 16, acc(0, 1)), pack2(PK + 18, acc(1, 1)))
    for r in range(4): a(f"v_pk_mul_f32 {vr(acc(0,0)+2*r,2)}, {vr(acc(0,0)+2*r,2)}, s[56:57]")
    a(swaps(PK + 16), f"ds_write_b128 v{QA}, {vr(PK+16,4)}")
    a(pack2(Q, acc(0, 0)), pack2(Q + 2, acc(1, 0)), "s_nop 1", swaps(Q))
    gst = [f"buffer_store_dwordx4 {vr(PK,4)}, v{VK}, s[36:39], s55 offen {WT}",
      f"buffer_store_dwordx4 {vr(PK+4,4)}, v{VK}, s[36:39], s63 offen {WT}",
      f"buffer_store_dwordx4 {vr(PK+8,4)}, v{VV}, s[36:39], s55 offen {WT}",
      f"buffer_store_dwordx4 {vr(PK+12,4)}, v{VV}, s[36:39], s55 offen offset:512 {WT}"]
    if "stmid" in OPT: a(gst)
    a("s_waitcnt lgkmcnt(0)")
    stamp(a, 5)
    a("s_barrier")
    stamp(a, 6)
    if "stmid" not in OPT and "stearly" not in OPT: a(gst)
    a("s_branch L_haveq")

    a("L_loader:")
    a("s_sub_u32 s52, s25, 8")
    a("s_and_b32 s53, s52, 1", "s_lshl_b32 s53, s53, 2",
      "v_lshrrev_b32 v2, 4, v0", "v_add_u32 v2, s53, v2", "v_and_b32 v3, 7, v0", "v_xor_b32 v2, v2, v3", "v_lshlrev_b32 v2, 4, v2",
      "v_lshrrev_b32 v4, 3, v0", "v_lshl_add_u32 v2, v4, 10, v2")
    a("v_lshrrev_b32 v4, 2, v0", "v_mul_u32_u24 v4, 3072, v4", "v_and_b32 v3, 3, v0",
      "v_lshrrev_b32 v5, 5, v0", "v_lshlrev_b32 v5, 1, v5", "v_xor_b32 v3, v3, v5", "v_lshl_add_u32 v3, v3, 4, v4",
      "s_lshl_b32 s53, s23, 6", "v_add_u32 v3, s53, v3")
    a("s_lshl_b32 s4, s52, 13", "s_add_u32 s5, s4, 65536", "s_add_u32 s6, s4, 131072", "s_add_u32 s7, s4, 196608",
      "s_lshl_b32 s0, s52, 10")
    a("s_and_b32 s53, s52, 3", "s_mul_i32 s1, s53, 49152", "s_lshr_b32 s53, s52, 2", "s_lshl_b32 s53, s53, 10", "s_add_u32 s1, s1, s53")
    a("s_and_b32 s3, s24, 6")
    a("s_cmp_ge_u32 s52, 4", "s_cbranch_scc1 L_loaderB")
    ROT = "rot" in OPT
    def issueW(c, variantA):
        slot = c % NWS
        if ROT: pre = [f"s_add_u32 s53, s24, {c}" if "rotj" in OPT else f"s_add_u32 s53, s3, {c}", "s_and_b32 s53, s53, 7", "s_lshl_b32 s57, s53, 7", "s_mul_i32 s53, s53, 196608", "s_add_u32 s53, s53, s1",
                       f"s_add_u32 m0, s0, {WRING + slot*12288}", "s_nop 0"]
        else: pre = [f"s_add_u32 m0, s0, {WRING + slot*12288}", f"s_add_u32 s53, s1, {c*196608}"]
        out = pre + [
               "buffer_load_dwordx4 v3, s[32:35], s53 offen" + WNT + " lds"]
        if variantA:
            out += [f"s_add_u32 m0, s0, {WRING + slot*12288 + 8192 - 2048}", "s_nop 0",
                    "buffer_load_dwordx4 v3, s[32:35], s53 offen offset:2048" + WNT + " lds"]
        return out
    def issueX(c):
        slot = c % 3
        out = []
        for aa in range(4):
            out += [f"s_add_u32 m0, s0, {XRING + slot*32768 + aa*8192}", (f"s_add_u32 s53, s{4+aa}, s57" if ROT else f"s_add_u32 s53, s{4+aa}, {c*128}"),
                    "buffer_load_dwordx4 v2, s[28:31], s53 offen" + XNT + " lds"]
        return out
    for variantA in (True, False):
        ops = []
        def W(c):
            a(issueW(c, variantA)); ops.extend([c]*(2 if variantA else 1))
        def X(c):
            a(issueX(c)); ops.extend([c]*4)
        if not variantA: a("L_loaderB:")
        if variantA: stamp(a, 1)
        W(0); X(0); a("s_barrier")
        if "b0f" not in OPT: W(1); X(1)
        if variantA: stamp(a, 2)
        if not variantA:
            a.c("workgroup 0 publishes the launch tag (low 4 bits: 8 | room for an XCC id)")
            a("s_cmp_lg_u32 s2, 0", "s_cbranch_scc1 L_notag", "s_cmp_lg_u32 s52, 7", "s_cbranch_scc1 L_notag")
            a("s_lshl_b64 s[48:49], s[48:49], 4", "s_or_b32 s48, s48, 8",
              "v_mov_b32 v8, 0", "v_mov_b32 v4, s48", "v_mov_b32 v5, s49", "s_mov_b64 exec, 1",
              f"global_store_dwordx2 v8, v[4:5], s[18:19] {WT}", "s_mov_b64 exec, -1")
            a("L_notag:")
        ROLL = "roll" in OPT and not variantA
        def TOUCH(c):
            a("s_mov_b64 exec, s[16:17]", "buffer_load_dword v10, v9, s[44:47], s3 offen", "s_mov_b64 exec, -1", "s_add_u32 s3, s3, s27")
            ops.append(99)
        if ROLL:
            a("s_mov_b32 s3, s52")
        common_init(a)
        if ROLL:
            R0 = int([o for o in OPT if o.startswith("r0=")][0][3:]) if any(o.startswith("r0=") for o in OPT) else 2
            a.c("rolling L2 warm-up of later W chunks, spread over the XCD's workgroups")
            a("s_mov_b32 s44, s32", "s_mov_b32 s45, s33", "s_mov_b32 s46, s34", "s_mov_b32 s17, 0", "s_mov_b32 s27, 196608",
              "s_and_b32 s52, s24, 1", "s_lshl_b32 s52, s52, 4", "s_add_u32 s52, s52, s23", "s_and_b32 s3, s3, 3")
            if "roll3" in OPT:
                a("s_mov_b32 s16, 3", "v_lshlrev_b32 v9, 10, v0", "s_min_u32 s3, s3, 2", "s_lshl_b32 s3, s3, 11", "s_mul_i32 s52, s52, 6144",
                  "s_add_u32 s3, s3, s52", f"s_add_u32 s3, s3, {R0*196608 + 384}")
            else:
                a("s_mov_b32 s16, 0xfff", "v_lshlrev_b32 v9, 7, v0", "s_mul_i32 s3, s3, 1536", "s_mul_i32 s52, s52, 6144",
                  "s_add_u32 s3, s3, s52", f"s_add_u32 s3, s3, {R0*196608}")
            nextT = R0
            RD = int([o for o in OPT if o.startswith("rd=")][0][3:]) if any(o.startswith("rd=") for o in OPT) else 4
            while nextT < RD: TOUCH(nextT); nextT += 1
        nextW = 2
        for c in range(8):
            last = max(i for i, x in enumerate(ops) if x <= c)
            wait = len(ops) - 1 - last
            if not variantA and c == 7:
                a.c("launch tag -> LDS")
                spin(a, "tag", ["v_cmp_ne_u64 vcc, 0, v[6:7]", "s_nop 1", "s_cmp_eq_u64 vcc, -1"],
                     ["global_load_dwordx2 v[6:7], v8, s[18:19] sc1"])
                a(f"ds_write_b64 v{T}, v[6:7]")
            else:
                a(f"s_waitcnt vmcnt({wait})")
            a("s_barrier")
            if variantA and c == 0: stamp(a, 3)
            if variantA and c == 7: stamp(a, 4)
            if "b0f" in OPT and c == 0: W(1); X(1)
            if nextW == c + 2 and nextW <= 7: W(nextW); nextW += 1
            if c + 2 <= 7: X(c + 2)
            while nextW <= min(7, c - 1 + NWS): W(nextW); nextW += 1
            if ROLL and nextT <= 7: TOUCH(nextT); nextT += 1
            if not variantA and c == 5:
                a("v_mov_b32 v8, 0", "global_load_dwordx2 v[6:7], v8, s[18:19] sc1"); ops.append(99)
        if variantA: a("s_branch L_p2_start")

    a("L_p2_start:")
    for r in range(16): a(f"v_mov_b32 v{O+r}, 0")
    a(f"s_add_u32 s53, s62, {QX - 8192}", f"v_add_u32 v{T+1}, s53, v{LO}")
    a("s_waitcnt lgkmcnt(0)")
    stamp(a, 5)
    a("s_barrier")
    stamp(a, 6)
    a(f"ds_read_b128 {vr(Q,4)}, v{T+1}")
    a("L_haveq:")
    cstamp(a, 0)
    def kread(u):
        s, t = divmod(u, 8); sl = s % 5
        return [f"ds_read_b128 {vr(KB[u%2],4)}, v{KA[sl//2]} offset:{(sl%2)*32768 + t*2048}"]
    def vread(u):
        s, t = divmod(u, 8); sl = s % 5
        o = (sl % 2)*32768 + t*2048
        return ["s_mov_b64 exec, s[50:51]",
                f"ds_read_b128 {vr(VB[u%2],4)}, v{VA[sl//2]} offset:{o}",
                f"ds_read_b128 {vr(VB[u%2]+4,4)}, v{VA[sl//2]} offset:{o+512}",
                "s_mov_b64 exec, -1"]
    def ex(base, lo, hi): return [f"v_exp_f32 v{base+i}, v{base+i}" for i in range(lo, hi)]
    def dma(s):
        sl = s % 5
        return [f"s_xor_b32 s53, s24, {s}", "s_lshl_b32 s53, s53, 15", "s_add_u32 s53, s53, s54", "s_add_u32 s53, s53, s62",
                f"s_add_u32 m0, s62, {sl*32768}", "s_add_u32 s63, s53, 16384",
                f"buffer_load_dwordx4 v{LO}, s[36:39], s53 offen sc1 lds",
                f"s_add_u32 m0, s62, {sl*32768 + 16384}", "s_nop 0",
                f"buffer_load_dwordx4 v{LO}, s[36:39], s63 offen sc1 lds"]
    kvpoll = [f"buffer_load_dwordx2 {vr(T,2)}, v{T+4}, s[36:39], s60 offen sc1"]
    a("s_setprio 3")
    a(kread(0), kread(1), vread(0), f"ds_read_b64 {vr(T+2,2)}, v{T}", "s_waitcnt lgkmcnt(4)")
    a(mfma(S[0], KB[0], Q, "0"))
    a.c("later-needed lane constants, computed in the shadow of the first MFMA")
    a(f"v_lshrrev_b32 v{WOA}, 4, v{LO}", f"v_bfe_u32 v{CK}, v{WOA}, 4, 1", f"v_lshlrev_b32 v{CK}, 1, v{CK}", f"v_and_b32 v{CK+1}, 7, v{WOA}",
      f"v_xor_b32 v{CK}, v{CK}, v{CK+1}", f"v_lshlrev_b32 v{CK}, 4, v{CK}", f"v_lshrrev_b32 v{WOA}, 3, v{WOA}",
      f"v_lshl_add_u32 v{WOA}, v{WOA}, 10, v{CK}", f"v_and_b32 v{T+5}, 0x78, v{T+4}",
      f"v_mov_b32 v{CK}, 0x33800000", f"v_mov_b32 v{CK+1}, 0x57800000", f"v_mov_b32 v60, 0")
    a("s_waitcnt lgkmcnt(0)")
    a(f"v_readfirstlane_b32 s48, v{T+2}", f"v_readfirstlane_b32 s49, v{T+3}")
    a("s_nop 0")
    NT = 64
    PUB = 0 if "pub0" in OPT else 1
    WO = 98304
    BAR = {14: 0, 30: 0, 46: 0}
    prio_at = {3: 2, 5: 1, 6: 0, 11: 2, 13: 1, 14: 0}
    if "b0late" in OPT: prio_at = {4: 2, 6: 1, 7: 0, 11: 2, 13: 1, 14: 0}
    for o in OPT:
        if o.startswith("pr="): prio_at = {int(x.split(":")[0]): int(x.split(":")[1]) for x in o[3:].split(",")}
    pz = [int(x) for x in ([o for o in OPT if o.startswith("pz=")] or ["pz=8,3,1"])[0][3:].split(",")]
    for b in (30, 46, 63):
        prio_at[b + 1 - pz[0]] = 2; prio_at[b + 1 - pz[1]] = 1; prio_at[b + 1 - pz[2]] = 0
    if "nobar" in OPT:
        BAR = {14: 0}
        prio_at = {3: 2, 5: 1, 6: 0, 11: 2, 13: 1, 14: 0, 26: 2, 42: 1, 62: 0}
    DD = int(([o for o in OPT if o.startswith("dd=")] or ["dd=2"])[0][3:])
    for u in range(NT):
        st, t = divmod(u, 8)
        s = S[u % 2]
        if u in prio_at: a(f"s_setprio {prio_at[u]}")
        special7 = (u == 7) and "b0late" not in OPT
        late7 = (u == 7) and "b0late" in OPT
        if special7:
            stamp(a, 8)
            a("s_waitcnt vmcnt(0) lgkmcnt(0)", "s_barrier", "s_setprio 3")
            stamp(a, 9)
            if "cyc2" in OPT: a("s_memtime s[98:99]", "s_waitcnt lgkmcnt(0)")
            cstamp(a, 1)
            a(kread(8))
        else:
            a("s_waitcnt lgkmcnt(0)")
        a(ex(s, 0, 2))
        if u > 0: a(smf(O, VB[(u-1) % 2] + 4, S[(u-1) % 2] + 8, IDX))
        if u + 1 < NT and not late7: a(vread(u + 1))
        a(ex(s, 2, 5))
        if u + 1 < NT and not special7 and not late7:
            a(mfma(S[(u+1) % 2], KB[(u+1) % 2], Q, "0"))
            if u in BAR:
                a(f"s_waitcnt vmcnt({BAR[u]})", "s_barrier", "s_setprio 3")
                if u == 30 and "cyc2" not in OPT: stamp(a, 10)
                cstamp(a, {14: 2, 30: 3, 46: 4}[u])
            if u + 2 < NT and u != 6: a(kread(u + 2))
        a(ex(s, 5, 10))
        a(smf(O, VB[u % 2], s, IDX))
        if special7:
            a("s_waitcnt lgkmcnt(2)", mfma(S[0], KB[0], Q, "0"), kread(9))
            a(ex(s, 10, 16), "s_nop 3")
        elif late7:
            KEEP = int(([o for o in OPT if o.startswith("keep=")] or ["keep=0"])[0][5:])
            a(ex(s, 10, 16 - KEEP))
            stamp(a, 8)
            a("s_waitcnt vmcnt(0)", "s_barrier", "s_setprio 3")
            stamp(a, 9)
            cstamp(a, 1)
            a(kread(8), kread(9), vread(8), ex(s, 16 - KEEP, 16), "s_waitcnt lgkmcnt(3)", mfma(S[0], KB[0], Q, "0"), "s_nop 10")
        else:
            a(ex(s, 10, 16))
        if u == PUB:
            a.c("publish this wave's K/V tile; wave 8 publishes the workgroup's XCC id")
            a(f"v_mov_b32 v{T}, s48", f"v_mov_b32 v{T+1}, s49",
              "s_cmp_ge_u32 s25, 8", "s_cbranch_scc1 L_nopub", "s_waitcnt vmcnt(0)")
            stamp(a, 7)
            a("s_mov_b64 exec, 1", f"buffer_store_dwordx2 {vr(T,2)}, v60, s[36:39], s61 offen {WT}", "s_mov_b64 exec, -1", "s_branch L_pubdone")
            a("L_nopub:", "s_cmp_lg_u32 s25, 8", "s_cbranch_scc1 L_pubdone",
              f"v_or_b32 v{T}, s26, v{T}", "s_lshl_b32 s53, s23, 3", "s_add_u32 s53, s53, s10",
              "s_mov_b64 exec, 1", f"buffer_store_dwordx2 {vr(T,2)}, v60, s[36:39], s53 offen {WT}", "s_mov_b64 exec, -1", "L_pubdone:")
        PA_, PC_ = [int(x) for x in ([o for o in OPT if o.startswith("pp=")] or ["pp=4,5"])[0][3:].split(",")]
        NL = int(([o for o in OPT if o.startswith("nl=")] or ["nl=4"])[0][3:])
        if u == 8: a(kvpoll)
        if u == PA_:
            if NL < 16: a(f"s_cmp_ge_u32 s25, {NL}", "s_cbranch_scc1 L_nopoll1")
            a(kvpoll)
            if NL < 16: a("L_nopoll1:")
        if u == PC_:
            if NL < 16: a(f"s_cmp_ge_u32 s25, {NL}", "s_cbranch_scc1 L_nodma1")
            spin(a, "kv1", [f"v_cmp_eq_u64 vcc, s[48:49], {vr(T,2)}", "s_nop 1", "s_and_b64 vcc, vcc, s[14:15]", "s_cmp_eq_u64 vcc, s[14:15]"], kvpoll)
            a("s_xor_b32 s53, s24, 1", "s_lshl_b32 s53, s53, 15", "s_add_u32 s53, s53, s54", "s_add_u32 s53, s53, s62")
            for i in range(32 // NL):
                a(f"s_add_u32 m0, s62, {32768 + i*NL*1024}", f"s_add_u32 s63, s53, {i*NL*1024}", f"buffer_load_dwordx4 v{LO}, s[36:39], s63 offen sc1 lds")
            if NL < 16: a("L_nodma1:")
        if u == 10:
            spin(a, "kv2", [f"v_cmp_eq_u64 vcc, s[48:49], {vr(T,2)}", "s_nop 1", "s_cmp_eq_u64 vcc, -1"], kvpoll)
            a(dma(2), dma(3))
        if u == 14 + DD: a(dma(4))
        if u == 15 + DD: a(dma(5))
        if u == 30 + DD: a(dma(6))
        if u == 31 + DD: a(dma(7))
        if u == 46 + DD:
            a.c("Wo tile -> LDS (slots 3, 4)")
            a("s_lshl_b32 s63, s25, 13")
            for aa in range(2):
                a(f"s_add_u32 m0, s62, {WO + aa*16384}", f"s_add_u32 s53, s63, {aa*131072}", f"buffer_load_dwordx4 v{WOA}, s[40:43], s53 offen lds")
        if u == 47 + DD:
            for aa in range(2, 4):
                a(f"s_add_u32 m0, s62, {WO + aa*16384}", f"s_add_u32 s53, s63, {aa*131072}", f"buffer_load_dwordx4 v{WOA}, s[40:43], s53 offen lds")
        if u == 48 + DD:
            a.c("XCC ids of the row block's workgroups; bring the O and O-flag lines this wave will write into L2")
            a(f"buffer_load_dwordx2 {vr(T+2,2)}, v{T+5}, s[36:39], s10 offen sc1",
              f"buffer_load_dword v{T+1}, v60, s[36:39], s59 offen",
              f"buffer_load_dword v{T}, v{LO}, s[36:39], s58 offen")
        if u == 58:
            a.c("local hand-off only when all 16 workgroups of this row block run on this XCC")
            a("s_waitcnt vmcnt(0)", "s_or_b32 s52, s48, s26", "s_mov_b32 s53, s49", f"v_cmp_eq_u64 vcc, s[52:53], {vr(T+2,2)}", "s_nop 1",
              "s_cmp_eq_u64 vcc, -1", "s_cselect_b32 s27, 1, 0")
            if "noloc" in OPT: a("s_mov_b32 s27, 0")
    a("s_nop 1", smf(O, VB[(NT-1) % 2] + 4, S[(NT-1) % 2] + 8, IDX), "s_setprio 3",
      f"v_mov_b32 v{T}, s48", f"v_mov_b32 v{T+1}, s49", f"v_mov_b32 v{T+3}, 0x7f800000", "s_nop 7")
    a.c("safety check of the zero stand-in: 2^-24 <= l <= 2^48 and finite O, else redo with the true row max")
    a(f"v_cmp_le_f32 s[52:53], v{CK}, v{O+8}", f"v_cmp_ge_f32 s[56:57], v{CK+1}, v{O+8}",
      f"v_max3_f32 v{CK}, abs(v{O}), abs(v{O+1}), abs(v{O+2})", f"v_max3_f32 v{CK}, abs(v{O+3}), abs(v{O+4}), v{CK}",
      f"v_max3_f32 v{CK}, abs(v{O+5}), abs(v{O+6}), v{CK}", f"v_max_f32 v{CK}, abs(v{O+7}), v{CK}",
      "s_and_b64 s[52:53], s[52:53], s[56:57]",
      f"v_cmp_gt_f32 vcc, v{T+3}, v{CK}", f"v_rcp_f32 v{T+2}, v{O+8}", "s_and_b64 s[52:53], s[52:53], vcc",
      "s_cmp_eq_u64 s[52:53], -1", "s_cbranch_scc0 L_fallback")
    a("L_finish:")
    stamp(a, 11)
    cstamp(a, 5)
    if "cyc2" in OPT: a("s_memtime s[96:97]", "s_waitcnt lgkmcnt(0)", "s_sub_u32 s96, s96, s98", "s_add_u32 s66, s82, s96", "s_addc_u32 s67, s83, 0")
    for r in range(4): a(f"v_pk_mul_f32 {vr(O+2*r,2)}, {vr(O+2*r,2)}, {vr(T+2,2)} op_sel_hi:[1,0]")
    for r in range(4): a(f"v_cvt_pk_bf16_f32 v{O+12+r}, v{O+2*r}, v{O+2*r+1}")
    a("s_cmp_eq_u32 s27, 1", "s_cbranch_scc1 L_ostore_local")
    a(f"buffer_store_dwordx4 {vr(O+12,4)}, v{LO}, s[36:39], s58 offen {WT}", "s_waitcnt vmcnt(0)",
      "s_mov_b64 exec, 1", f"buffer_store_dwordx2 {vr(T,2)}, v60, s[36:39], s59 offen {WT}", "s_mov_b64 exec, -1", "s_branch L_ostored")
    a("L_ostore_local:")
    a(f"buffer_store_dwordx4 {vr(O+12,4)}, v{LO}, s[36:39], s58 offen", "s_waitcnt vmcnt(0)",
      "s_mov_b64 exec, 1", f"buffer_store_dwordx2 {vr(T,2)}, v60, s[36:39], s59 offen", "s_mov_b64 exec, -1")
    a("L_ostored:")
    stamp(a, 12)
    a("s_barrier")
    if TS:
        a("s_cmp_lt_u32 s25, 8", "s_cbranch_scc1 L_ts_p3", "s_barrier", "s_barrier", "s_barrier")
        if "allw" in OPT:
            for w in range(8, 16): ts_flush(a, w, w, f"w{w}")
        else:
            ts_flush(a, 1, 8, "w8")
            ts_flush(a, 2, 15, "w15")
        a("s_endpgm", "L_ts_p3:")
    else:
        a("s_cmp_ge_u32 s25, 8", "s_cbranch_scc1 L_done")

    ACC3 = [0, 16]; OFR = 32; WB = [96, 104, 112]; A3 = [120, 122]; VO = 116; PA = 123; L = 118; PF = 124
    opoll = [f"buffer_load_dwordx4 {vr(PF,4)}, v{LO}, s[36:39], s11 offen sc1"]
    ocond = [f"v_cmp_eq_u64 vcc, s[48:49], {vr(PF,2)}", f"v_cmp_eq_u64 s[52:53], s[48:49], {vr(PF+2,2)}", "s_nop 1",
             "s_and_b64 vcc, vcc, s[52:53]", "s_cmp_eq_u64 vcc, -1"]
    a("s_cmp_lt_u32 s25, 4", "s_cbranch_scc1 L_p3c")
    a("s_and_b32 s56, s25, 3", "s_lshl_b32 s56, s56, 14")
    a("s_barrier")
    for i in range(16):
        a(f"s_add_u32 m0, s56, {i*1024}", f"s_add_u32 s53, s12, {(16+i)*1024}", f"buffer_load_dwordx4 v{LO}, s[36:39], s53 offen sc1 lds")
    a("s_waitcnt vmcnt(8)", "s_barrier", "s_waitcnt vmcnt(0)", "s_barrier")
    if "wb2" in OPT:
        a("s_cmp_lg_u32 s25, 4", "s_cbranch_scc1 L_nowb", "buffer_wbl2 sc1", "L_nowb:")
    if "allw" in OPT:
        for w in range(4, 8): ts_flush(a, w, w, f"w{w}")
    a("s_endpgm")
    a("L_p3c:")
    a(opoll)
    a(f"v_lshrrev_b32 v6, 4, v{LO}")
    a(f"v_lshrrev_b32 v4, 5, v6", f"v_bfe_u32 v5, v6, 2, 2", "v_lshl_add_u32 v4, v4, 2, v5", "v_lshlrev_b32 v4, 7, v4",
      f"v_and_b32 v5, 1, v6", "v_lshl_add_u32 v4, v5, 6, v4", f"v_bfe_u32 v5, v6, 4, 1", "v_lshl_add_u32 v4, v5, 4, v4",
      f"v_bfe_u32 v5, v6, 3, 1", "v_lshl_add_u32 v4, v5, 5, v4", f"v_bfe_u32 v5, v6, 1, 1", f"v_lshl_add_u32 v4, v5, 3, v4",
      f"v_add_u32 v{A3[0]}, {WO}, v4", f"v_xor_b32 v{A3[1]}, 32, v{A3[0]}")
    a("s_lshl_b32 s56, s25, 14", f"v_add_u32 v{PA}, s56, v{LO}")
    def reads3(hd, buf):
        out = []
        for cb in range(2):
            for j in range(2):
                out.append(f"ds_read_b64_tr_b16 {vr(buf + cb*4 + j*2, 2)}, v{A3[cb]} offset:{hd*2048 + j*1024}")
        return out
    a(reads3(0, WB[0]), reads3(1, WB[1]))
    spin(a, "o", ocond, opoll)
    stamp(a, 13)
    for i in range(16):
        if i % 4 == 0: a(f"s_add_u32 s53, s12, {i*1024}")
        a(f"buffer_load_dwordx4 {vr(OFR + i*4, 4)}, v{LO}, s[36:39], s53 offen offset:{(i%4)*1024} sc1")
    a("s_barrier")
    lq = ["W0"]*4 + ["W1"]*4
    def lwait(need):
        nonlocal lq
        idx = [i for i, x in enumerate(lq) if x in need]
        if not idx: return None
        keep = len(lq) - 1 - max(idx)
        lq = lq[len(lq) - keep:]
        return keep
    def oread(n):
        lq.append(f"O{n}")
        return f"ds_read_b128 {vr(OFR + (n-16)*4, 4)}, v{PA} offset:{(n-16)*1024}"
    for n in range(32):
        cur = WB[n % 3]
        if n in (16, 24):
            if "p3ts" in OPT and n == 16: stamp(a, 2); lq = []
            a("s_barrier")
            if "p3ts" in OPT and n == 24: stamp(a, 3); lq = []
            for i in range(2): a(oread(n + i))
        if n + 2 < 32:
            a(reads3(n + 2, WB[(n+2) % 3])); lq.extend([f"W{n+2}"]*4)
        if n >= 16 and (n % 8) + 2 < 8: a(oread(n + 2))
        assert len(lq) <= 15, lq
        kw = lwait({f"W{n}", f"O{n}"})
        w = []
        if n < 16: w.append(f"vmcnt({15 - n})")
        if kw is not None: w.append(f"lgkmcnt({kw})")
        if w: a("s_waitcnt " + " ".join(w))
        if "p3ts" in OPT and n in (0, 31): stamp(a, {0: 1, 31: 4}[n]); lq = []
        for cb in range(2):
            a(mfma(ACC3[cb], cur + cb*4, OFR + (n%16)*4, "0" if n == 0 else ACC3[cb]))
    a(f"v_lshrrev_b32 v{L}, 4, v{LO}")
    PA = 117
    a.c("transpose through LDS (slot 1 is free) so that every store writes whole 128-byte lines")
    TA_ = 119; TB_ = 120
    a(f"v_and_b32 v{TA_}, 31, v{L}", f"v_lshrrev_b32 v{PA}, 5, v{L}", f"v_lshlrev_b32 v{PA}, 2, v{PA}", f"v_and_b32 v{TB_}, 7, v{L}",
      f"v_xor_b32 v{PA}, v{PA}, v{TB_}", f"v_lshlrev_b32 v{PA}, 4, v{PA}", f"v_lshl_add_u32 v{TA_}, v{TA_}, 7, v{PA}",
      "s_mov_b32 s52, s56", f"v_add_u32 v{TA_}, s52, v{TA_}",
      f"v_lshrrev_b32 v{PA}, 3, v{L}", f"v_xor_b32 v{VO}, v{PA}, v{TB_}", f"v_lshlrev_b32 v{VO}, 4, v{VO}", f"v_lshl_add_u32 v{VO}, v{PA}, 7, v{VO}",
      f"v_add_u32 v{VO}, s52, v{VO}",
      f"v_lshlrev_b32 v{TB_}, 4, v{TB_}", f"v_lshl_add_u32 v{TB_}, v{PA}, 11, v{TB_}")
    for cb in range(2):
        for q in range(2):
            c = cb*2 + q
            t = 32 + c*4
            for r in range(4): a(f"v_cvt_pk_bf16_f32 v{t+r}, v{ACC3[cb]+q*8+2*r}, v{ACC3[cb]+q*8+2*r+1}")
            if c: a(f"v_xor_b32 v{PA}, {c*16}, v{TA_}")
            a(f"ds_write_b128 v{PA if c else TA_}, {vr(t,4)}")
    a("s_waitcnt lgkmcnt(0)")
    for i in range(4): a(f"ds_read_b128 {vr(48 + i*4, 4)}, v{VO} offset:{i*1024}")
    for i in range(4):
        a(f"s_add_u32 s53, s13, {i*16384}", f"s_waitcnt lgkmcnt({3-i})", f"buffer_store_dwordx4 {vr(48 + i*4, 4)}, v{TB_}, s[44:47], s53 offen" + (" sc1" if "osc1" in OPT else " nt" if "ont" in OPT else " sc0 sc1" if "osys" in OPT else ""))
    if TS:
        if "p3ts" in OPT: stamp(a, 5)
        a("s_waitcnt vmcnt(0)")
        stamp(a, 14)
        ts_flush(a, 0, 0, "w0")
        if "allw" in OPT:
            for w in range(1, 4): ts_flush(a, w, w, f"w{w}")
    a("L_done:", "s_endpgm")

    a("L_fallback:")
    M = T + 2
    a("s_lshr_b32 s52, s25, 3", "s_lshl_b32 s52, s52, 14", "s_add_u32 s52, s52, s54",
      f"v_mov_b32 v{M}, 0xff800000", "s_mov_b32 s63, 0",
      f"v_sub_u32 v{T+3}, v{VA[0]}, v{KA[0]}", f"v_add_u32 v{T+3}, v{T+3}, v{LO}")
    def fb_addr():
        return ["s_lshr_b32 s53, s63, 3", "s_lshl_b32 s53, s53, 15", "s_and_b32 s56, s63, 7", "s_lshl_b32 s56, s56, 11",
                "s_add_u32 s53, s53, s56", "s_add_u32 s53, s53, s52"]
    a("L_fb1:", fb_addr(),
      f"buffer_load_dwordx4 {vr(KB[0],4)}, v{LO}, s[36:39], s53 offen sc1", "s_waitcnt vmcnt(0)",
      mfma(S[0], KB[0], Q, "0"), "s_nop 15")
    for r in range(8): a(f"v_max3_f32 v{M}, v{S[0]+2*r}, v{S[0]+2*r+1}, v{M}")
    a("s_add_u32 s63, s63, 1", "s_cmp_lg_u32 s63, 64", "s_cbranch_scc1 L_fb1")
    a(f"v_mov_b32 v{T}, v{M}", "s_nop 1", f"v_permlane32_swap_b32 v{M}, v{T}", "s_nop 1", f"v_max_f32 v{M}, v{M}, v{T}", f"v_sub_f32 v{M}, 0, v{M}")
    for r in range(16): a(f"v_mov_b32 v{CM+r}, v{M}")
    for r in range(16): a(f"v_mov_b32 v{O+r}, 0")
    a("s_mov_b32 s63, 0")
    a("L_fb2:", fb_addr(),
      f"buffer_load_dwordx4 {vr(KB[0],4)}, v{LO}, s[36:39], s53 offen sc1", "s_mov_b64 exec, s[50:51]",
      f"buffer_load_dwordx4 {vr(VB[0],4)}, v{T+3}, s[36:39], s53 offen sc1",
      f"buffer_load_dwordx4 {vr(VB[0]+4,4)}, v{T+3}, s[36:39], s53 offen offset:512 sc1", "s_mov_b64 exec, -1",
      "s_waitcnt vmcnt(0)", mfma(S[0], KB[0], Q, CM), "s_nop 15")
    a(ex(S[0], 0, 16), "s_nop 1", smf(O, VB[0], S[0], IDX), smf(O, VB[0] + 4, S[0] + 8, IDX))
    a("s_add_u32 s63, s63, 1", "s_cmp_lg_u32 s63, 64", "s_cbranch_scc1 L_fb2")
    a("s_nop 15", f"v_rcp_f32 v{T+2}, v{O+8}", f"v_mov_b32 v{T}, s48", f"v_mov_b32 v{T+1}, s49", "s_branch L_finish", "L_code_end:")
    a.l.append(f""".section .rodata,"a"
.p2align 6
.amdhsa_kernel {k}
  .amdhsa_next_free_vgpr 128
  .amdhsa_next_free_sgpr {102 if TS else 64}
  .amdhsa_accum_offset 128
  .amdhsa_group_segment_fixed_size 0
  .amdhsa_kernarg_size 72
  .amdhsa_user_sgpr_count 2
  .amdhsa_user_sgpr_kernarg_segment_ptr 1
  .amdhsa_system_sgpr_workgroup_id_x 1
.end_amdhsa_kernel""")

a = Asm()
a.l += ["; MHA x2 (S=2048, D=512, H=32), one launch: qkv projection -> attention -> output projection",
        "; @launch grid=(256,1,1) block=(1024,1,1) lds=163840",
        '.amdgcn_target "amdgcn-amd-amdhsa--gfx950"', ".text"]
gen(a)
print(a.text())
```

```python
import sys, math, struct

NAME = "concat_heads__mha_block__mha_block__prompt"
OPT = set(sys.argv[1:]) | {"pub0", "stmid", "tx67", "b0late", "c3=3"}
if not OPT & {"tx", "a3", "nopf"}: OPT |= {"tx", "late", "wa2", "wb4"}
NWS = 5 if "w5" in OPT else (4 if "w4" in OPT else 3)
TS = "ts" in OPT
WT = "sc0 sc1" if "sys" in OPT else "sc1"
XNT = " nt" if "xnt" in OPT else ""
WNT = " nt" if "wnt" in OPT else ""
KV_OFF = 0
OF_OFF = 8 << 20
FKV_OFF = 12 << 20
FO_OFF = (12 << 20) + 65536
XID_OFF = (12 << 20) + 131072
WS_USED = 13 << 20
QSCALE = 0.25 * math.log2(math.e)
SPIN_MAX = 1 << 18
def f32bits(x): return struct.unpack("<I", struct.pack("<f", x))[0]

class Asm:
    def __init__(self): self.l = []
    def __call__(self, *lines):
        for x in lines:
            if isinstance(x, (list, tuple)): self(*x)
            else: self.l.append("    " + x if not x.endswith(":") else x)
    def c(self, s): self.l.append("    ; " + s)
    def text(self): return "\n".join(self.l)

def vr(b, n): return f"v[{b}:{b+n-1}]"
def mfma(d, a, b, c):
    cs = vr(c, 16) if isinstance(c, int) else c
    return f"v_mfma_f32_32x32x16_bf16 {vr(d,16)}, {vr(a,4)}, {vr(b,4)}, {cs}"
def smf(d, a, b, idx): return f"v_smfmac_f32_32x32x32_bf16 {vr(d,16)}, {vr(a,4)}, {vr(b,8)}, v{idx}"

P1TS_DONE = False
def stamp(a, j):
    if "p1ts" in OPT and P1TS_DONE and j >= 7: return
    if "cyc3" in OPT: return
    if TS: a(f"s_memrealtime s[{64+2*j}:{65+2*j}]", "s_waitcnt lgkmcnt(0)")
def cstamp(a, j):
    if "cyc3" in OPT:
        if j == 0: a("s_memtime s[98:99]", "s_waitcnt lgkmcnt(0)")
        else: a("s_memtime s[96:97]", "s_waitcnt lgkmcnt(0)", "s_sub_u32 s96, s96, s98", f"s_add_u32 s{64+2*j}, s64, s96", f"s_addc_u32 s{65+2*j}, s65, 0")
def ts_init(a):
    if TS:
        for j in range(15): a(f"s_mov_b64 s[{64+2*j}:{65+2*j}], 0")
        a("s_mov_b32 s94, 0x5151", "s_mov_b32 s95, 0")
def ts_flush(a, kidx, wave, tag):
    if not TS: return
    a(f"s_cmp_lg_u32 s25, {wave}", f"s_cbranch_scc1 TS_skip_{tag}")
    a("s_sleep 127", "s_sleep 127", "s_sleep 127")
    a("s_mov_b64 exec, 1", f"s_lshl_b32 s96, s2, 7", f"s_add_u32 s96, s96, {(32<<20) + kidx*256*128}", "v_mov_b32 v1, s96")
    for j in range(16):
        a(f"v_mov_b32 v2, s{64+2*j}", f"v_mov_b32 v3, s{65+2*j}", f"global_store_dwordx2 v1, v[2:3], s[20:21] offset:{j*8}", "s_nop 1")
    a("s_waitcnt vmcnt(0)", "s_mov_b64 exec, -1", f"TS_skip_{tag}:")

XRING = 0
WRING = 98304
QX = 65536
TAGL = 163832
EREG = 131072

def spin(a, name, cond_lines, reload_lines):
    a(f"s_mov_b32 s63, {SPIN_MAX}", f"L_{name}_chk:", "s_waitcnt vmcnt(0)", cond_lines, f"s_cbranch_scc1 L_{name}_ok", "s_sleep 1",
      reload_lines, "s_sub_u32 s63, s63, 1", "s_cmp_lg_u32 s63, 0", f"s_cbranch_scc1 L_{name}_chk", "s_waitcnt vmcnt(0)", f"L_{name}_ok:")

def gen(a):
    k = NAME + "_kernel"
    a.l += [f".globl {k}", ".p2align 8", f".type {k},@function", f"{k}:"]
    a("s_cmp_ge_u32 s2, 256", "s_cbranch_scc1 L_done")
    a("s_load_dwordx16 s[4:19], s[0:1], 0", "s_load_dwordx2 s[20:21], s[0:1], 64")
    ts_init(a)
    if TS: a("s_memrealtime s[64:65]")
    a("s_memrealtime s[48:49]")
    a("s_and_b32 s52, s2, 7", "s_lshr_b32 s53, s2, 3",
      "s_lshr_b32 s22, s52, 2",
      "s_and_b32 s23, s53, 15",
      "s_and_b32 s24, s52, 3", "s_lshl_b32 s24, s24, 1", "s_lshr_b32 s53, s53, 4", "s_add_u32 s24, s24, s53")
    a("v_lshrrev_b32 v1, 6, v0", "v_and_b32 v0, 63, v0", "s_getreg_b32 s26, hwreg(HW_REG_XCC_ID)", "v_readfirstlane_b32 s25, v1")
    a("s_and_b32 s26, s26, 7", "s_lshl_b32 s62, s25, 10")
    a("s_waitcnt lgkmcnt(0)")
    WSB = int(([o for o in OPT if o.startswith("wsb=")] or ["wsb=0"])[0][4:]) << 20
    if WSB: a(f"s_add_u32 s20, s20, {WSB}", "s_addc_u32 s21, s21, 0")
    a("s_cmp_eq_u32 s22, 0",
      "s_cselect_b32 s4, s4, s10", "s_cselect_b32 s5, s5, s11", "s_cselect_b32 s6, s6, s12", "s_cselect_b32 s7, s7, s13",
      "s_cselect_b32 s8, s8, s14", "s_cselect_b32 s9, s9, s15")
    a("s_lshl_b32 s52, s24, 18", "s_add_u32 s28, s4, s52", "s_addc_u32 s29, s5, 0", "s_and_b32 s29, s29, 0xffff",
      "s_mov_b32 s30, 262144", "s_mov_b32 s31, 0x20000")
    a("s_mov_b32 s32, s6", "s_and_b32 s33, s7, 0xffff", f"s_mov_b32 s34, {512*3072}", "s_mov_b32 s35, 0x20000")
    a("s_cmp_ge_u32 s25, 8", "s_cbranch_scc1 L_loader")

    O = 0; Q = 16; S = [20, 36]; KB = [52, 56]; VB = [100, 108]; IDX = 116; KA = [117, 118, 98]; VA = [119, 120, 99]; LO = 121; T = 122
    CM = 80
    WOA = 61; CK = 62

    def common_init(a):
        a("s_mov_b32 s36, s20", "s_and_b32 s37, s21, 0xffff", f"s_mov_b32 s38, {WS_USED}", "s_mov_b32 s39, 0x20000")
        a("s_and_b32 s52, s23, 7", "s_lshl_b32 s52, s52, 7", "s_add_u32 s40, s8, s52", "s_addc_u32 s41, s9, 0", "s_and_b32 s41, s41, 0xffff",
          f"s_sub_u32 s42, {512*1024}, s52", "s_mov_b32 s43, 0x20000")
        a("s_mov_b32 s44, s16", "s_and_b32 s45, s17, 0xffff", f"s_mov_b32 s46, {2048*2048}", "s_mov_b32 s47, 0x20000")
        a("s_mov_b32 s50, 0xffff", "s_mov_b32 s51, 0xffff", "s_mov_b32 s27, 0")
        a("s_lshl_b32 s54, s22, 4", "s_add_u32 s54, s54, s23", "s_lshl_b32 s54, s54, 18", "s_lshl_b32 s55, s24, 15", "s_add_u32 s55, s55, s54")
        a(f"v_lshlrev_b32 v{LO}, 4, v0",
          "s_lshr_b32 s56, s25, 3", "s_lshl_b32 s53, s56, 14",
          f"v_add_u32 v{KA[0]}, s53, v{LO}", f"v_add_u32 v{KA[1]}, 0x10000, v{KA[0]}", f"v_add_u32 v{KA[2]}, 0x20000, v{KA[0]}",
          "v_and_b32 v13, 15, v0", "v_lshlrev_b32 v13, 4, v13", "v_lshrrev_b32 v14, 5, v0", "v_lshl_add_u32 v13, v14, 8, v13",
          "s_add_u32 s53, s53, 1024", f"v_add_u32 v{VA[0]}, s53, v13", f"v_add_u32 v{VA[1]}, 0x10000, v{VA[0]}", f"v_add_u32 v{VA[2]}, 0x20000, v{VA[0]}",
          f"v_mov_b32 v{IDX}, 0xdddddddd")
        a("v_and_b32 v13, 27, v0", "v_cmp_eq_u32 vcc, 16, v13", "v_mov_b32 v14, 0x3f803f80",
          f"v_mov_b32 v{T}, {TAGL}", f"v_lshlrev_b32 v{T+4}, 3, v0", "v_cndmask_b32 v13, 0, v14, vcc")
        for r in range(16): a(f"v_mov_b32 v{VB[0]+r}, v13")
        a("s_and_b32 s53, s25, 7", "s_lshl_b32 s58, s24, 3", "s_add_u32 s58, s58, s53", "s_lshl_b32 s57, s22, 6", "s_add_u32 s58, s58, s57",
          "s_lshl_b32 s58, s58, 5", "s_lshl_b32 s53, s23, 1", "s_add_u32 s53, s53, s56", "s_add_u32 s58, s58, s53",
          "s_lshl_b32 s59, s58, 3", f"s_add_u32 s59, s59, {FO_OFF}", "s_lshl_b32 s58, s58, 10", f"s_add_u32 s58, s58, {OF_OFF}")
        a("s_lshr_b32 s60, s54, 9", f"s_add_u32 s60, s60, {FKV_OFF}", "s_lshl_b32 s61, s24, 6", "s_add_u32 s61, s61, s60",
          "s_lshl_b32 s53, s25, 3", "s_add_u32 s61, s61, s53")
        a("s_lshl_b32 s10, s22, 3", "s_add_u32 s10, s10, s24", "s_lshl_b32 s10, s10, 7", f"s_add_u32 s10, s10, {XID_OFF}")
        a("s_xor_b32 s53, s24, 1", "s_lshl_b32 s53, s53, 3", "s_mov_b64 s[14:15], 0xff", "s_lshl_b64 s[14:15], s[14:15], s53")
        a("s_lshl_b32 s52, s24, 3", "s_lshr_b32 s53, s23, 3", "s_lshl_b32 s53, s53, 2", "s_add_u32 s52, s52, s53",
          "s_add_u32 s53, s57, s52", "s_lshl_b32 s11, s53, 8", f"s_add_u32 s11, s11, {FO_OFF}",
          "s_and_b32 s12, s25, 3", "s_add_u32 s52, s52, s12", "s_add_u32 s53, s53, s12", "s_lshl_b32 s12, s53, 15", f"s_add_u32 s12, s12, {OF_OFF}",
          "s_lshl_b32 s13, s22, 10", "s_and_b32 s53, s23, 7", "s_lshl_b32 s53, s53, 7", "s_add_u32 s13, s13, s53",
          "s_lshl_b32 s53, s52, 16", "s_add_u32 s13, s13, s53")

    XA = [1, 2]; XB = [3, 4]; WA = [5, 6]; VK = 96; VV = 97; QA = 123
    ACC = 16
    FXR = [64, 68]; FW = 72
    def touches():
        if "tx" in OPT:
            a.c("HBM/L2 warm-up: waves 0,1 touch 8 KB each of this workgroup's share of the X block")
            if "tx67" in OPT:
                a("s_and_b32 s53, s25, 6", "s_mov_b32 s52, s23", "s_cmp_eq_u32 s53, 0", "s_cbranch_scc1 L_tx_own",
                  "s_cmp_lg_u32 s53, 6", "s_cbranch_scc1 L_tx_done", "s_sub_u32 s52, s23, 2", "s_lshr_b32 s53, s52, 1", "s_cmp_lg_u32 s53, 3", "s_cbranch_scc1 L_tx_done",
                  "s_branch L_tx_go", "L_tx_own:", "s_lshr_b32 s53, s52, 1", "s_cmp_eq_u32 s53, 3", "s_cbranch_scc1 L_tx_done", "L_tx_go:",
                  "s_lshl_b32 s52, s52, 14", "s_and_b32 s53, s25, 1", "s_lshl_b32 s53, s53, 13", "s_add_u32 s52, s52, s53",
                  "v_lshlrev_b32 v13, 7, v0", "buffer_load_dword v125, v13, s[28:31], s52 offen" + XNT, "L_tx_done:")
            else:
                a("s_cmp_ge_u32 s25, 2", "s_cbranch_scc1 L_tx_done",
                  "s_lshl_b32 s52, s23, 14", "s_lshl_b32 s53, s25, 13", "s_add_u32 s52, s52, s53",
                  "v_lshlrev_b32 v13, 7, v0", "buffer_load_dword v125, v13, s[28:31], s52 offen" + XNT, "L_tx_done:")
        if "tw" in OPT:
            a.c("waves 2,3 touch 6 KB each of W (1/128 of the matrix per workgroup)")
            a("s_sub_u32 s52, s25, 2", "s_cmp_ge_u32 s52, 2", "s_cbranch_scc1 L_tw_done",
              "s_lshl_b32 s53, s24, 4", "s_add_u32 s53, s53, s23", "s_lshl_b32 s53, s53, 1", "s_add_u32 s52, s52, s53",
              "s_mul_i32 s52, s52, 6144", "v_cmp_gt_u32 vcc, 48, v0", "v_lshlrev_b32 v13, 7, v0", "s_and_saveexec_b64 s[56:57], vcc",
              "buffer_load_dword v125, v13, s[32:35], s52 offen", "s_mov_b64 exec, -1", "L_tw_done:")
        if "twf" in OPT:
            a.c("waves 2..7 touch 8 KB each of W (1/32 of the matrix per workgroup)")
            a("s_sub_u32 s52, s25, 2", "s_cmp_ge_u32 s52, 6", "s_cbranch_scc1 L_twf_done",
              "s_and_b32 s53, s24, 1", "s_lshl_b32 s53, s53, 4", "s_add_u32 s53, s53, s23", "s_mul_i32 s53, s53, 6", "s_add_u32 s52, s52, s53",
              "s_lshl_b32 s52, s52, 13", "v_lshlrev_b32 v13, 7, v0",
              "buffer_load_dword v125, v13, s[32:35], s52 offen", "L_twf_done:")
    def touchX(c0, nc, wave, tag):
        a(f"s_cmp_lg_u32 s25, {wave}", f"s_cbranch_scc1 L_{tag}_done")
        if nc == 2: a("v_lshrrev_b32 v13, 1, v0", "v_and_b32 v14, 1, v0")
        elif nc == 4: a("v_lshrrev_b32 v13, 2, v0", "v_and_b32 v14, 3, v0")
        else: a("v_mul_u32_u24 v13, 43, v0", "v_lshrrev_b32 v13, 7, v13", "v_mul_u32_u24 v14, 3, v13", "v_sub_u32 v14, v0, v14")
        a("v_lshlrev_b32 v13, 10, v13", "v_lshl_add_u32 v13, v14, 7, v13", "s_lshl_b32 s52, s23, 14", f"s_add_u32 s52, s52, {c0*128}",
          f"v_cmp_gt_u32 vcc, {16*nc}, v0", "s_nop 1", "s_and_saveexec_b64 s[56:57], vcc",
          "buffer_load_dword v125, v13, s[28:31], s52 offen" + XNT, "s_mov_b64 exec, -1", f"L_{tag}_done:")
    def touchW(c0, nc, wave, tag):
        a(f"s_cmp_lg_u32 s25, {wave}", f"s_cbranch_scc1 L_{tag}_done",
          "s_lshl_b32 s52, s24, 4", "s_add_u32 s52, s52, s23", f"s_mul_i32 s52, s52, {nc*1536}", f"s_add_u32 s52, s52, {c0*196608}",
          f"v_cmp_gt_u32 vcc, {12*nc}, v0", "v_lshlrev_b32 v13, 7, v0", "s_nop 0", "s_and_saveexec_b64 s[56:57], vcc",
          "buffer_load_dword v125, v13, s[32:35], s52 offen" + WNT, "s_mov_b64 exec, -1", f"L_{tag}_done:")
    if "tlb" in OPT:
        a.c("translation warm-up: wave 0 of workgroup i touches one of the pages the kernel will need")
        a("s_cmp_lg_u32 s25, 0", "s_cbranch_scc1 L_tlb_done",
          "s_and_b32 s52, s23, 7", "v_mov_b32 v13, 0",
          "s_cmp_eq_u32 s52, 0", "s_cbranch_scc1 L_tlb0", "s_cmp_eq_u32 s52, 1", "s_cbranch_scc1 L_tlb1",
          "s_cmp_eq_u32 s52, 2", "s_cbranch_scc1 L_tlb2", "s_cmp_eq_u32 s52, 3", "s_cbranch_scc1 L_tlb3",
          "s_cmp_eq_u32 s52, 4", "s_cbranch_scc1 L_tlb4")
        a("s_lshl_b32 s53, s22, 22", "s_lshr_b32 s56, s23, 3", "s_lshl_b32 s56, s56, 21", "s_add_u32 s53, s53, s56",
          "s_lshl_b32 s56, s22, 21", f"s_add_u32 s56, s56, {OF_OFF}",
          "s_cmp_eq_u32 s52, 6", "s_cselect_b32 s53, s56, s53", "s_cmp_eq_u32 s52, 7", f"s_cselect_b32 s53, {FKV_OFF}, s53",
          "v_mov_b32 v13, s53", "global_load_dword v125, v13, s[20:21]", "s_branch L_tlb_done")
        a("L_tlb0:", "buffer_load_dword v125, v13, s[28:31], 0 offen", "s_branch L_tlb_done")
        a("L_tlb1:", "buffer_load_dword v125, v13, s[32:35], 0 offen", "s_branch L_tlb_done")
        a("L_tlb2:", "global_load_dword v125, v13, s[8:9]", "s_branch L_tlb_done")
        a("L_tlb3:", "s_lshr_b32 s53, s24, 2", "s_lshl_b32 s53, s53, 21", "v_mov_b32 v13, s53", "global_load_dword v125, v13, s[16:17]", "s_branch L_tlb_done")
        a("L_tlb4:", "global_load_dword v125, v13, s[18:19] sc1", "L_tlb_done:")
    if "cpf" in OPT:
        a.c("pull the kernel's code into L2 (waves 4..7, 64 lines each)")
        a("s_sub_u32 s52, s25, 4", "s_cmp_ge_u32 s52, 4", "s_cbranch_scc1 L_cpf_done",
          "s_getpc_b64 s[56:57]", "L_cpf_pc:", "s_lshl_b32 s52, s52, 13", "v_lshlrev_b32 v13, 7, v0", "v_add_u32 v13, s52, v13",
          "v_cmp_gt_u32 vcc, L_code_end-L_cpf_pc, v13", "s_nop 1", "s_and_saveexec_b64 s[52:53], vcc", "s_cbranch_execz L_cpf_skip",
          "global_load_dword v125, v13, s[56:57]", "L_cpf_skip:", "s_mov_b64 exec, -1", "L_cpf_done:")
    if "early" in OPT: touches()
    a("s_barrier")
    if "early" not in OPT and "late" not in OPT: touches()
    if "a3" in OPT:
        touchX(2, 3, 0, "xa3"); touchW(2, 3, 1, "wa3")
    if "wa3" in OPT: touchW(2, 3, 2, "wa3")
    if "wa2" in OPT: touchW(2, 2, 2, "wa2")
    if "wa13" in OPT: touchW(1, 3, 2, "wa13")
    common_init(a)
    a("v_and_b32 v13, 15, v0", "v_lshrrev_b32 v14, 4, v0",
      "v_bfe_u32 v15, v0, 1, 3", "v_xor_b32 v15, v15, v14", "v_lshlrev_b32 v15, 4, v15", "v_lshl_add_u32 v15, v13, 7, v15",
      "s_lshl_b32 s52, s25, 12",
      f"v_add_u32 v{XA[0]}, s52, v15", f"v_xor_b32 v{XA[1]}, 64, v{XA[0]}",
      f"v_add_u32 v{XB[0]}, 0x10000, v{XA[0]}", f"v_add_u32 v{XB[1]}, 0x10000, v{XA[1]}")
    a("v_bfe_u32 v15, v0, 2, 2", "v_lshl_add_u32 v13, v14, 3, v15", "v_lshlrev_b32 v13, 6, v13",
      "v_bfe_u32 v15, v0, 4, 1", "v_lshl_add_u32 v13, v15, 5, v13", "v_and_b32 v15, 3, v0", "v_lshl_add_u32 v13, v15, 3, v13",
      f"v_add_u32 v{WA[0]}, {WRING}, v13", f"v_xor_b32 v{WA[1]}, 32, v{WA[0]}")
    a("s_lshl_b32 s52, s25, 11", f"v_add_u32 v{VK}, s52, v{LO}",
      "v_and_b32 v13, 15, v0", "v_lshlrev_b32 v13, 4, v13", "v_lshrrev_b32 v14, 5, v0", "v_lshl_add_u32 v13, v14, 8, v13",
      "v_bfe_u32 v15, v0, 4, 1", "v_lshl_add_u32 v13, v15, 14, v13", "s_add_u32 s52, s52, 1024", f"v_add_u32 v{VV}, s52, v13")
    a(f"s_add_u32 s52, s62, {QX}", f"v_add_u32 v{QA}, s52, v{LO}", "s_add_u32 s63, s55, 16384")
    lq1 = []
    def xread(n, th):
        c, s2 = divmod(n, 2); slot = c % 3
        lq1.append(f"X{th}")
        if slot < 2: return f"ds_read_b128 {vr(FXR[th],4)}, v{XA[s2]} offset:{slot*32768 + th*2048}"
        return f"ds_read_b128 {vr(FXR[th],4)}, v{XB[s2]} offset:{th*2048}"
    def wread(n, b):
        c, s2 = divmod(n, 2); seg, hd = divmod(b, 2)
        lq1.extend([f"W{b}"]*2)
        return [f"ds_read_b64_tr_b16 {vr(FW + b*4 + j*2, 2)}, v{WA[hd]} offset:{(c % NWS)*12288 + seg*4096 + s2*2048 + j*256}" for j in range(2)]
    def lw1(need):
        idx = [i for i, x in enumerate(lq1) if x in need]
        if not idx: return []
        keep = len(lq1) - 1 - max(idx)
        del lq1[:len(lq1) - keep]
        return [f"s_waitcnt lgkmcnt({keep})"]
    def m16(th, b, first):
        d = ACC + (b*2 + th)*4
        cs = "0" if first else vr(d, 4)
        x = vr(FXR[th], 4); w = vr(FW + b*4, 4)
        return f"v_mfma_f32_16x16x32_bf16 {vr(d,4)}, " + (f"{w}, {x}" if b < 4 else f"{x}, {w}") + f", {cs}"
    if "nokvpre" not in OPT:
        a.c("an early poll of a line that is still only in HBM is slow: fetch the group's K/V flag lines now")
        a("s_cmp_lg_u32 s25, 5", "s_cbranch_scc1 L_kvpre_done", f"buffer_load_dword v125, v{T+4}, s[36:39], s60 offen sc1", "L_kvpre_done:")
    if "tkv" in OPT:
        a.c("first touch of the K/V block's pages ahead of the stores")
        a("s_cmp_lg_u32 s25, 7", "s_cbranch_scc1 L_tkv_done", "v_lshlrev_b32 v13, 12, v0", "s_mov_b64 exec, 0xff",
          "buffer_load_dword v125, v13, s[36:39], s55 offen", "s_mov_b64 exec, -1", "L_tkv_done:")
    C3 = [o for o in OPT if o.startswith("c3=")]
    if C3:
        cls = int(C3[0][3:])
        a("s_cmp_lg_u32 s25, 6", "s_cbranch_scc1 L_c3_done",
          "s_and_b32 s52, s24, 1", "s_lshl_b32 s52, s52, 4", "s_add_u32 s52, s52, s23", "s_mul_i32 s52, s52, 36864",
          f"s_add_u32 s52, s52, {384*1024 + cls*128}", "v_cmp_gt_u32 vcc, 36, v0", "v_lshlrev_b32 v13, 10, v0", "s_nop 0",
          "s_and_saveexec_b64 s[56:57], vcc", "buffer_load_dword v125, v13, s[32:35], s52 offen", "s_mov_b64 exec, -1", "L_c3_done:")
    if "late" in OPT: touches()
    if "xa" in OPT: touchX(3, 2, 0, "xa")
    if "wa" in OPT: touchW(3, 2, 1, "wa")
    if "wa5" in OPT: touchW(3, 5, 1, "wa5")
    if "xa4" in OPT: touchX(4, 4, 0, "xa4")
    a(f"s_mov_b32 s56, {f32bits(QSCALE):#x}", f"s_mov_b32 s57, {f32bits(QSCALE):#x}")
    stamp(a, 1)
    a("s_barrier")
    stamp(a, 2)
    if "xb" in OPT or "wb" in OPT or "wb4" in OPT:
        if "xb" in OPT: touchX(5, 3, 2, "xb")
        if "wb" in OPT: touchW(5, 3, 3, "wb")
        if "wb4" in OPT: touchW(4, 4, 3, "wb4")
        a(f"s_mov_b32 s56, {f32bits(QSCALE):#x}", f"s_mov_b32 s57, {f32bits(QSCALE):#x}")
    if "cyc" in OPT: a("s_memtime s[98:99]", "s_waitcnt lgkmcnt(0)")
    BO = [2, 3, 4, 5, 0, 1]
    a(xread(0, 0))
    for b in BO: a(wread(0, b))
    a(xread(0, 1))
    for n in range(16):
        c, s2 = divmod(n, 2)
        for b in BO:
            a(lw1({"X0", f"W{b}"}), m16(0, b, n == 0))
        if n < 15:
            if s2 == 1:
                a("s_waitcnt lgkmcnt(0)", "s_barrier"); lq1.clear()
                if c == 3 and "p1ts" not in OPT: stamp(a, 3)
                if "p1ts" in OPT: stamp(a, 7 + c)
            a(xread(n + 1, 0))
        for i, b in enumerate(BO):
            a(lw1({"X1"}), m16(1, b, n == 0))
            if n < 15: a(wread(n + 1, b))
            elif i < 4:
                for r in range(4): a(f"v_mov_b32 v{O + i*4 + r}, 0")
        if n < 15: a(xread(n + 1, 1))
        assert len(lq1) <= 15
    stamp(a, 4)
    global P1TS_DONE
    P1TS_DONE = True
    a.c("P1 epilogue: K, V -> LDS stage slot 0 (and, after the barrier, global) ; Q -> regs / LDS")
    PK = 64
    def pack2(dst, src): return [f"v_cvt_pk_bf16_f32 v{dst+r}, v{src+2*r}, v{src+2*r+1}" for r in range(2)]
    def acc(th, b): return ACC + (b*2 + th)*4
    def swaps(t): return [f"v_permlane16_swap_b32 v{t}, v{t+2}", f"v_permlane16_swap_b32 v{t+1}, v{t+3}"]
    GST = [f"buffer_store_dwordx4 {vr(PK,4)}, v{VK}, s[36:39], s55 offen {WT}",
      f"buffer_store_dwordx4 {vr(PK+4,4)}, v{VK}, s[36:39], s63 offen {WT}",
      f"buffer_store_dwordx4 {vr(PK+8,4)}, v{VV}, s[36:39], s55 offen {WT}",
      f"buffer_store_dwordx4 {vr(PK+12,4)}, v{VV}, s[36:39], s55 offen offset:512 {WT}"]
    a("s_nop 2")
    a(pack2(PK, acc(0, 2)), pack2(PK + 2, acc(1, 2)), pack2(PK + 4, acc(0, 3)), pack2(PK + 6, acc(1, 3)))
    a(swaps(PK), f"ds_write_b128 v{VK}, {vr(PK,4)}")
    if "stearly" in OPT: a(GST[0])
    a(pack2(PK + 8, acc(0, 4)), pack2(PK + 10, acc(0, 5)))
    a(swaps(PK + 4), f"ds_write_b128 v{VK}, {vr(PK+4,4)} offset:16384")
    if "stearly" in OPT: a(GST[1])
    a(pack2(PK + 12, acc(1, 4)), pack2(PK + 14, acc(1, 5)))
    a(swaps(PK + 8), f"ds_write_b128 v{VV}, {vr(PK+8,4)}")
    if "stearly" in OPT: a(GST[2])
    for r in range(4): a(f"v_pk_mul_f32 {vr(acc(0,1)+2*r,2)}, {vr(acc(0,1)+2*r,2)}, s[56:57]")
    a(swaps(PK + 12), f"ds_write_b128 v{VV}, {vr(PK+12,4)} offset:512")
    if "stearly" in OPT: a(GST[3])
    a(pack2(PK + 16, acc(0, 1)), pack2(PK + 18, acc(1, 1)))
    for r in range(4): a(f"v_pk_mul_f32 {vr(acc(0,0)+2*r,2)}, {vr(acc(0,0)+2*r,2)}, s[56:57]")
    a(swaps(PK + 16), f"ds_write_b128 v{QA}, {vr(PK+16,4)}")
    a(pack2(Q, acc(0, 0)), pack2(Q + 2, acc(1, 0)), "s_nop 1", swaps(Q))
    gst = [f"buffer_store_dwordx4 {vr(PK,4)}, v{VK}, s[36:39], s55 offen {WT}",
      f"buffer_store_dwordx4 {vr(PK+4,4)}, v{VK}, s[36:39], s63 offen {WT}",
      f"buffer_store_dwordx4 {vr(PK+8,4)}, v{VV}, s[36:39], s55 offen {WT}",
      f"buffer_store_dwordx4 {vr(PK+12,4)}, v{VV}, s[36:39], s55 offen offset:512 {WT}"]
    if "stmid" in OPT: a(gst)
    a("s_waitcnt lgkmcnt(0)")
    stamp(a, 5)
    a("s_barrier")
    stamp(a, 6)
    if "stmid" not in OPT and "stearly" not in OPT: a(gst)
    a("s_branch L_haveq")

    a("L_loader:")
    a("s_sub_u32 s52, s25, 8")
    a("s_and_b32 s53, s52, 1", "s_lshl_b32 s53, s53, 2",
      "v_lshrrev_b32 v2, 4, v0", "v_add_u32 v2, s53, v2", "v_and_b32 v3, 7, v0", "v_xor_b32 v2, v2, v3", "v_lshlrev_b32 v2, 4, v2",
      "v_lshrrev_b32 v4, 3, v0", "v_lshl_add_u32 v2, v4, 10, v2")
    a("v_lshrrev_b32 v4, 2, v0", "v_mul_u32_u24 v4, 3072, v4", "v_and_b32 v3, 3, v0",
      "v_lshrrev_b32 v5, 5, v0", "v_lshlrev_b32 v5, 1, v5", "v_xor_b32 v3, v3, v5", "v_lshl_add_u32 v3, v3, 4, v4",
      "s_lshl_b32 s53, s23, 6", "v_add_u32 v3, s53, v3")
    a("s_lshl_b32 s4, s52, 13", "s_add_u32 s5, s4, 65536", "s_add_u32 s6, s4, 131072", "s_add_u32 s7, s4, 196608",
      "s_lshl_b32 s0, s52, 10")
    a("s_and_b32 s53, s52, 3", "s_mul_i32 s1, s53, 49152", "s_lshr_b32 s53, s52, 2", "s_lshl_b32 s53, s53, 10", "s_add_u32 s1, s1, s53")
    a("s_and_b32 s3, s24, 6")
    a("s_cmp_ge_u32 s52, 4", "s_cbranch_scc1 L_loaderB")
    ROT = "rot" in OPT
    def issueW(c, variantA):
        slot = c % NWS
        if ROT: pre = [f"s_add_u32 s53, s24, {c}" if "rotj" in OPT else f"s_add_u32 s53, s3, {c}", "s_and_b32 s53, s53, 7", "s_lshl_b32 s57, s53, 7", "s_mul_i32 s53, s53, 196608", "s_add_u32 s53, s53, s1",
                       f"s_add_u32 m0, s0, {WRING + slot*12288}", "s_nop 0"]
        else: pre = [f"s_add_u32 m0, s0, {WRING + slot*12288}", f"s_add_u32 s53, s1, {c*196608}"]
        out = pre + [
               "buffer_load_dwordx4 v3, s[32:35], s53 offen" + WNT + " lds"]
        if variantA:
            out += [f"s_add_u32 m0, s0, {WRING + slot*12288 + 8192 - 2048}", "s_nop 0",
                    "buffer_load_dwordx4 v3, s[32:35], s53 offen offset:2048" + WNT + " lds"]
        return out
    def issueX(c):
        slot = c % 3
        out = []
        for aa in range(4):
            out += [f"s_add_u32 m0, s0, {XRING + slot*32768 + aa*8192}", (f"s_add_u32 s53, s{4+aa}, s57" if ROT else f"s_add_u32 s53, s{4+aa}, {c*128}"),
                    "buffer_load_dwordx4 v2, s[28:31], s53 offen" + XNT + " lds"]
        return out
    for variantA in (True, False):
        ops = []
        def W(c):
            a(issueW(c, variantA)); ops.extend([c]*(2 if variantA else 1))
        def X(c):
            a(issueX(c)); ops.extend([c]*4)
        if not variantA: a("L_loaderB:")
        if variantA: stamp(a, 1)
        W(0); X(0); a("s_barrier")
        if "b0f" not in OPT: W(1); X(1)
        if variantA: stamp(a, 2)
        if not variantA:
            a.c("workgroup 0 publishes the launch tag (low 4 bits: 8 | room for an XCC id)")
            a("s_cmp_lg_u32 s2, 0", "s_cbranch_scc1 L_notag", "s_cmp_lg_u32 s52, 7", "s_cbranch_scc1 L_notag")
            a("s_lshl_b64 s[48:49], s[48:49], 4", "s_or_b32 s48, s48, 8",
              "v_mov_b32 v8, 0", "v_mov_b32 v4, s48", "v_mov_b32 v5, s49", "s_mov_b64 exec, 1",
              f"global_store_dwordx2 v8, v[4:5], s[18:19] {WT}", "s_mov_b64 exec, -1")
            a("L_notag:")
        ROLL = "roll" in OPT and not variantA
        def TOUCH(c):
            a("s_mov_b64 exec, s[16:17]", "buffer_load_dword v10, v9, s[44:47], s3 offen", "s_mov_b64 exec, -1", "s_add_u32 s3, s3, s27")
            ops.append(99)
        if ROLL:
            a("s_mov_b32 s3, s52")
        common_init(a)
        if ROLL:
            R0 = int([o for o in OPT if o.startswith("r0=")][0][3:]) if any(o.startswith("r0=") for o in OPT) else 2
            a.c("rolling L2 warm-up of later W chunks, spread over the XCD's workgroups")
            a("s_mov_b32 s44, s32", "s_mov_b32 s45, s33", "s_mov_b32 s46, s34", "s_mov_b32 s17, 0", "s_mov_b32 s27, 196608",
              "s_and_b32 s52, s24, 1", "s_lshl_b32 s52, s52, 4", "s_add_u32 s52, s52, s23", "s_and_b32 s3, s3, 3")
            if "roll3" in OPT:
                a("s_mov_b32 s16, 3", "v_lshlrev_b32 v9, 10, v0", "s_min_u32 s3, s3, 2", "s_lshl_b32 s3, s3, 11", "s_mul_i32 s52, s52, 6144",
                  "s_add_u32 s3, s3, s52", f"s_add_u32 s3, s3, {R0*196608 + 384}")
            else:
                a("s_mov_b32 s16, 0xfff", "v_lshlrev_b32 v9, 7, v0", "s_mul_i32 s3, s3, 1536", "s_mul_i32 s52, s52, 6144",
                  "s_add_u32 s3, s3, s52", f"s_add_u32 s3, s3, {R0*196608}")
            nextT = R0
            RD = int([o for o in OPT if o.startswith("rd=")][0][3:]) if any(o.startswith("rd=") for o in OPT) else 4
            while nextT < RD: TOUCH(nextT); nextT += 1
        nextW = 2
        for c in range(8):
            last = max(i for i, x in enumerate(ops) if x <= c)
            wait = len(ops) - 1 - last
            if not variantA and c == 7:
                a.c("launch tag -> LDS")
                spin(a, "tag", ["v_cmp_ne_u64 vcc, 0, v[6:7]", "s_nop 1", "s_cmp_eq_u64 vcc, -1"],
                     ["global_load_dwordx2 v[6:7], v8, s[18:19] sc1"])
                a(f"ds_write_b64 v{T}, v[6:7]")
            else:
                a(f"s_waitcnt vmcnt({wait})")
            a("s_barrier")
            if variantA and c == 0: stamp(a, 3)
            if variantA and c == 7: stamp(a, 4)
            if "b0f" in OPT and c == 0: W(1); X(1)
            if nextW == c + 2 and nextW <= 7: W(nextW); nextW += 1
            if c + 2 <= 7: X(c + 2)
            while nextW <= min(7, c - 1 + NWS): W(nextW); nextW += 1
            if ROLL and nextT <= 7: TOUCH(nextT); nextT += 1
            if not variantA and c == 5:
                a("v_mov_b32 v8, 0", "global_load_dwordx2 v[6:7], v8, s[18:19] sc1"); ops.append(99)
        if variantA: a("s_branch L_p2_start")

    a("L_p2_start:")
    for r in range(16): a(f"v_mov_b32 v{O+r}, 0")
    a(f"s_add_u32 s53, s62, {QX - 8192}", f"v_add_u32 v{T+1}, s53, v{LO}")
    a("s_waitcnt lgkmcnt(0)")
    stamp(a, 5)
    a("s_barrier")
    stamp(a, 6)
    a(f"ds_read_b128 {vr(Q,4)}, v{T+1}")
    a("L_haveq:")
    cstamp(a, 0)
    def kread(u):
        s, t = divmod(u, 8); sl = s % 5
        return [f"ds_read_b128 {vr(KB[u%2],4)}, v{KA[sl//2]} offset:{(sl%2)*32768 + t*2048}"]
    def vread(u):
        s, t = divmod(u, 8); sl = s % 5
        o = (sl % 2)*32768 + t*2048
        return ["s_mov_b64 exec, s[50:51]",
                f"ds_read_b128 {vr(VB[u%2],4)}, v{VA[sl//2]} offset:{o}",
                f"ds_read_b128 {vr(VB[u%2]+4,4)}, v{VA[sl//2]} offset:{o+512}",
                "s_mov_b64 exec, -1"]
    def ex(base, lo, hi): return [f"v_exp_f32 v{base+i}, v{base+i}" for i in range(lo, hi)]
    def dma(s):
        sl = s % 5
        return [f"s_xor_b32 s53, s24, {s}", "s_lshl_b32 s53, s53, 15", "s_add_u32 s53, s53, s54", "s_add_u32 s53, s53, s62",
                f"s_add_u32 m0, s62, {sl*32768}", "s_add_u32 s63, s53, 16384",
                f"buffer_load_dwordx4 v{LO}, s[36:39], s53 offen sc1 lds",
                f"s_add_u32 m0, s62, {sl*32768 + 16384}", "s_nop 0",
                f"buffer_load_dwordx4 v{LO}, s[36:39], s63 offen sc1 lds"]
    kvpoll = [f"buffer_load_dwordx2 {vr(T,2)}, v{T+4}, s[36:39], s60 offen sc1"]
    a("s_setprio 3")
    a(kread(0), kread(1), vread(0), f"ds_read_b64 {vr(T+2,2)}, v{T}", "s_waitcnt lgkmcnt(4)")
    a(mfma(S[0], KB[0], Q, "0"))
    a.c("later-needed lane constants, computed in the shadow of the first MFMA")
    a(f"v_lshrrev_b32 v{WOA}, 4, v{LO}", f"v_bfe_u32 v{CK}, v{WOA}, 4, 1", f"v_lshlrev_b32 v{CK}, 1, v{CK}", f"v_and_b32 v{CK+1}, 7, v{WOA}",
      f"v_xor_b32 v{CK}, v{CK}, v{CK+1}", f"v_lshlrev_b32 v{CK}, 4, v{CK}", f"v_lshrrev_b32 v{WOA}, 3, v{WOA}",
      f"v_lshl_add_u32 v{WOA}, v{WOA}, 10, v{CK}", f"v_and_b32 v{T+5}, 0x78, v{T+4}",
      f"v_mov_b32 v{CK}, 0x33800000", f"v_mov_b32 v{CK+1}, 0x57800000", f"v_mov_b32 v60, 0")
    a("s_waitcnt lgkmcnt(0)")
    a(f"v_readfirstlane_b32 s48, v{T+2}", f"v_readfirstlane_b32 s49, v{T+3}")
    a("s_nop 0")
    NT = 64
    PUB = 0 if "pub0" in OPT else 1
    WO = 98304
    BAR = {14: 0, 30: 0, 46: 0}
    prio_at = {3: 2, 5: 1, 6: 0, 11: 2, 13: 1, 14: 0}
    if "b0late" in OPT: prio_at = {4: 2, 6: 1, 7: 0, 11: 2, 13: 1, 14: 0}
    for o in OPT:
        if o.startswith("pr="): prio_at = {int(x.split(":")[0]): int(x.split(":")[1]) for x in o[3:].split(",")}
    pz = [int(x) for x in ([o for o in OPT if o.startswith("pz=")] or ["pz=8,3,1"])[0][3:].split(",")]
    for b in (30, 46, 63):
        prio_at[b + 1 - pz[0]] = 2; prio_at[b + 1 - pz[1]] = 1; prio_at[b + 1 - pz[2]] = 0
    if "nobar" in OPT:
        BAR = {14: 0}
        prio_at = {3: 2, 5: 1, 6: 0, 11: 2, 13: 1, 14: 0, 26: 2, 42: 1, 62: 0}
    DD = int(([o for o in OPT if o.startswith("dd=")] or ["dd=2"])[0][3:])
    for u in range(NT):
        st, t = divmod(u, 8)
        s = S[u % 2]
        if u in prio_at: a(f"s_setprio {prio_at[u]}")
        special7 = (u == 7) and "b0late" not in OPT
        late7 = (u == 7) and "b0late" in OPT
        if special7:
            stamp(a, 8)
            a("s_waitcnt vmcnt(0) lgkmcnt(0)", "s_barrier", "s_setprio 3")
            stamp(a, 9)
            if "cyc2" in OPT: a("s_memtime s[98:99]", "s_waitcnt lgkmcnt(0)")
            cstamp(a, 1)
            a(kread(8))
        else:
            a("s_waitcnt lgkmcnt(0)")
        a(ex(s, 0, 2))
        if u > 0: a(smf(O, VB[(u-1) % 2] + 4, S[(u-1) % 2] + 8, IDX))
        if u + 1 < NT and not late7: a(vread(u + 1))
        a(ex(s, 2, 5))
        if u + 1 < NT and not special7 and not late7:
            a(mfma(S[(u+1) % 2], KB[(u+1) % 2], Q, "0"))
            if u in BAR:
                a(f"s_waitcnt vmcnt({BAR[u]})", "s_barrier", "s_setprio 3")
                if u == 30 and "cyc2" not in OPT: stamp(a, 10)
                cstamp(a, {14: 2, 30: 3, 46: 4}[u])
            if u + 2 < NT and u != 6: a(kread(u + 2))
        a(ex(s, 5, 10))
        a(smf(O, VB[u % 2], s, IDX))
        if special7:
            a("s_waitcnt lgkmcnt(2)", mfma(S[0], KB[0], Q, "0"), kread(9))
            a(ex(s, 10, 16), "s_nop 3")
        elif late7:
            KEEP = int(([o for o in OPT if o.startswith("keep=")] or ["keep=0"])[0][5:])
            a(ex(s, 10, 16 - KEEP))
            stamp(a, 8)
            a("s_waitcnt vmcnt(0)", "s_barrier", "s_setprio 3")
            stamp(a, 9)
            cstamp(a, 1)
            a(kread(8), kread(9), vread(8), ex(s, 16 - KEEP, 16), "s_waitcnt lgkmcnt(3)", mfma(S[0], KB[0], Q, "0"), "s_nop 10")
        else:
            a(ex(s, 10, 16))
        if u == PUB:
            a.c("publish this wave's K/V tile; wave 8 publishes the workgroup's XCC id")
            a(f"v_mov_b32 v{T}, s48", f"v_mov_b32 v{T+1}, s49",
              "s_cmp_ge_u32 s25, 8", "s_cbranch_scc1 L_nopub", "s_waitcnt vmcnt(0)")
            stamp(a, 7)
            a("s_mov_b64 exec, 1", f"buffer_store_dwordx2 {vr(T,2)}, v60, s[36:39], s61 offen {WT}", "s_mov_b64 exec, -1", "s_branch L_pubdone")
            a("L_nopub:", "s_cmp_lg_u32 s25, 8", "s_cbranch_scc1 L_pubdone",
              f"v_or_b32 v{T}, s26, v{T}", "s_lshl_b32 s53, s23, 3", "s_add_u32 s53, s53, s10",
              "s_mov_b64 exec, 1", f"buffer_store_dwordx2 {vr(T,2)}, v60, s[36:39], s53 offen {WT}", "s_mov_b64 exec, -1", "L_pubdone:")
        PA_, PC_ = [int(x) for x in ([o for o in OPT if o.startswith("pp=")] or ["pp=4,5"])[0][3:].split(",")]
        NL = int(([o for o in OPT if o.startswith("nl=")] or ["nl=4"])[0][3:])
        if u == 8: a(kvpoll)
        if u == PA_:
            if NL < 16: a(f"s_cmp_ge_u32 s25, {NL}", "s_cbranch_scc1 L_nopoll1")
            a(kvpoll)
            if NL < 16: a("L_nopoll1:")
        if u == PC_:
            if NL < 16: a(f"s_cmp_ge_u32 s25, {NL}", "s_cbranch_scc1 L_nodma1")
            spin(a, "kv1", [f"v_cmp_eq_u64 vcc, s[48:49], {vr(T,2)}", "s_nop 1", "s_and_b64 vcc, vcc, s[14:15]", "s_cmp_eq_u64 vcc, s[14:15]"], kvpoll)
            a("s_xor_b32 s53, s24, 1", "s_lshl_b32 s53, s53, 15", "s_add_u32 s53, s53, s54", "s_add_u32 s53, s53, s62")
            for i in range(32 // NL):
                a(f"s_add_u32 m0, s62, {32768 + i*NL*1024}", f"s_add_u32 s63, s53, {i*NL*1024}", f"buffer_load_dwordx4 v{LO}, s[36:39], s63 offen sc1 lds")
            if NL < 16: a("L_nodma1:")
        if u == 10:
            spin(a, "kv2", [f"v_cmp_eq_u64 vcc, s[48:49], {vr(T,2)}", "s_nop 1", "s_cmp_eq_u64 vcc, -1"], kvpoll)
            a(dma(2), dma(3))
        if u == 14 + DD: a(dma(4))
        if u == 15 + DD: a(dma(5))
        if u == 30 + DD: a(dma(6))
        if u == 31 + DD: a(dma(7))
        if u == 46 + DD:
            a.c("Wo tile -> LDS (slots 3, 4)")
            a("s_lshl_b32 s63, s25, 13")
            for aa in range(2):
                a(f"s_add_u32 m0, s62, {WO + aa*16384}", f"s_add_u32 s53, s63, {aa*131072}", f"buffer_load_dwordx4 v{WOA}, s[40:43], s53 offen lds")
        if u == 47 + DD:
            for aa in range(2, 4):
                a(f"s_add_u32 m0, s62, {WO + aa*16384}", f"s_add_u32 s53, s63, {aa*131072}", f"buffer_load_dwordx4 v{WOA}, s[40:43], s53 offen lds")
        if u == 48 + DD:
            a.c("XCC ids of the row block's workgroups; bring the O and O-flag lines this wave will write into L2")
            a(f"buffer_load_dwordx2 {vr(T+2,2)}, v{T+5}, s[36:39], s10 offen sc1",
              f"buffer_load_dword v{T+1}, v60, s[36:39], s59 offen",
              f"buffer_load_dword v{T}, v{LO}, s[36:39], s58 offen")
        if u == 49 + DD and "tout" in OPT:
            a.c("first touch of the output rows' pages ahead of the stores")
            a("s_cmp_ge_u32 s25, 4", "s_cbranch_scc1 L_tout_done", f"v_lshlrev_b32 v59, 8, v{LO}" if False else f"v_lshlrev_b32 v65, 8, v{LO}", "s_mov_b64 exec, 0xffff",
              "buffer_load_dword v65, v65, s[44:47], s13 offen", "s_mov_b64 exec, -1", "L_tout_done:")
        if u == 58:
            a.c("local hand-off only when all 16 workgroups of this row block run on this XCC")
            a("s_waitcnt vmcnt(0)", "s_or_b32 s52, s48, s26", "s_mov_b32 s53, s49", f"v_cmp_eq_u64 vcc, s[52:53], {vr(T+2,2)}", "s_nop 1",
              "s_cmp_eq_u64 vcc, -1", "s_cselect_b32 s27, 1, 0")
            if "noloc" in OPT: a("s_mov_b32 s27, 0")
    a("s_nop 1", smf(O, VB[(NT-1) % 2] + 4, S[(NT-1) % 2] + 8, IDX), "s_setprio 3",
      f"v_mov_b32 v{T}, s48", f"v_mov_b32 v{T+1}, s49", f"v_mov_b32 v{T+3}, 0x7f800000", "s_nop 7")
    a.c("safety check of the zero stand-in: 2^-24 <= l <= 2^48 and finite O, else redo with the true row max")
    a(f"v_cmp_le_f32 s[52:53], v{CK}, v{O+8}", f"v_cmp_ge_f32 s[56:57], v{CK+1}, v{O+8}",
      f"v_max3_f32 v{CK}, abs(v{O}), abs(v{O+1}), abs(v{O+2})", f"v_max3_f32 v{CK}, abs(v{O+3}), abs(v{O+4}), v{CK}",
      f"v_max3_f32 v{CK}, abs(v{O+5}), abs(v{O+6}), v{CK}", f"v_max_f32 v{CK}, abs(v{O+7}), v{CK}",
      "s_and_b64 s[52:53], s[52:53], s[56:57]",
      f"v_cmp_gt_f32 vcc, v{T+3}, v{CK}", f"v_rcp_f32 v{T+2}, v{O+8}", "s_and_b64 s[52:53], s[52:53], vcc",
      "s_cmp_eq_u64 s[52:53], -1", "s_cbranch_scc0 L_fallback")
    a("L_finish:")
    stamp(a, 11)
    cstamp(a, 5)
    if "cyc2" in OPT: a("s_memtime s[96:97]", "s_waitcnt lgkmcnt(0)", "s_sub_u32 s96, s96, s98", "s_add_u32 s66, s82, s96", "s_addc_u32 s67, s83, 0")
    for r in range(4): a(f"v_pk_mul_f32 {vr(O+2*r,2)}, {vr(O+2*r,2)}, {vr(T+2,2)} op_sel_hi:[1,0]")
    for r in range(4): a(f"v_cvt_pk_bf16_f32 v{O+12+r}, v{O+2*r}, v{O+2*r+1}")
    a("s_cmp_eq_u32 s27, 1", "s_cbranch_scc1 L_ostore_local")
    a(f"buffer_store_dwordx4 {vr(O+12,4)}, v{LO}, s[36:39], s58 offen {WT}", "s_waitcnt vmcnt(0)",
      "s_mov_b64 exec, 1", f"buffer_store_dwordx2 {vr(T,2)}, v60, s[36:39], s59 offen {WT}", "s_mov_b64 exec, -1", "s_branch L_ostored")
    a("L_ostore_local:")
    a(f"buffer_store_dwordx4 {vr(O+12,4)}, v{LO}, s[36:39], s58 offen", "s_waitcnt vmcnt(0)",
      "s_mov_b64 exec, 1", f"buffer_store_dwordx2 {vr(T,2)}, v60, s[36:39], s59 offen", "s_mov_b64 exec, -1")
    a("L_ostored:")
    stamp(a, 12)
    a("s_barrier")
    if TS:
        a("s_cmp_lt_u32 s25, 8", "s_cbranch_scc1 L_ts_p3", "s_barrier", "s_barrier", "s_barrier")
        if "allw" in OPT:
            for w in range(8, 16): ts_flush(a, w, w, f"w{w}")
        else:
            ts_flush(a, 1, 8, "w8")
            ts_flush(a, 2, 15, "w15")
        a("s_endpgm", "L_ts_p3:")
    else:
        a("s_cmp_ge_u32 s25, 8", "s_cbranch_scc1 L_done")

    ACC3 = [0, 16]; OFR = 32; WB = [96, 104, 112]; A3 = [120, 122]; VO = 116; PA = 123; L = 118; PF = 124
    opoll = [f"buffer_load_dwordx4 {vr(PF,4)}, v{LO}, s[36:39], s11 offen sc1"]
    ocond = [f"v_cmp_eq_u64 vcc, s[48:49], {vr(PF,2)}", f"v_cmp_eq_u64 s[52:53], s[48:49], {vr(PF+2,2)}", "s_nop 1",
             "s_and_b64 vcc, vcc, s[52:53]", "s_cmp_eq_u64 vcc, -1"]
    a("s_cmp_lt_u32 s25, 4", "s_cbranch_scc1 L_p3c")
    a("s_and_b32 s56, s25, 3", "s_lshl_b32 s56, s56, 14")
    a("s_barrier")
    for i in range(16):
        a(f"s_add_u32 m0, s56, {i*1024}", f"s_add_u32 s53, s12, {(16+i)*1024}", f"buffer_load_dwordx4 v{LO}, s[36:39], s53 offen sc1 lds")
    a("s_waitcnt vmcnt(8)", "s_barrier", "s_waitcnt vmcnt(0)", "s_barrier")
    if "wb2" in OPT:
        a("s_cmp_lg_u32 s25, 4", "s_cbranch_scc1 L_nowb", "buffer_wbl2 sc1", "L_nowb:")
    if "allw" in OPT:
        for w in range(4, 8): ts_flush(a, w, w, f"w{w}")
    a("s_endpgm")
    a("L_p3c:")
    a(opoll)
    a(f"v_lshrrev_b32 v6, 4, v{LO}")
    a(f"v_lshrrev_b32 v4, 5, v6", f"v_bfe_u32 v5, v6, 2, 2", "v_lshl_add_u32 v4, v4, 2, v5", "v_lshlrev_b32 v4, 7, v4",
      f"v_and_b32 v5, 1, v6", "v_lshl_add_u32 v4, v5, 6, v4", f"v_bfe_u32 v5, v6, 4, 1", "v_lshl_add_u32 v4, v5, 4, v4",
      f"v_bfe_u32 v5, v6, 3, 1", "v_lshl_add_u32 v4, v5, 5, v4", f"v_bfe_u32 v5, v6, 1, 1", f"v_lshl_add_u32 v4, v5, 3, v4",
      f"v_add_u32 v{A3[0]}, {WO}, v4", f"v_xor_b32 v{A3[1]}, 32, v{A3[0]}")
    a("s_lshl_b32 s56, s25, 14", f"v_add_u32 v{PA}, s56, v{LO}")
    def reads3(hd, buf):
        out = []
        for cb in range(2):
            for j in range(2):
                out.append(f"ds_read_b64_tr_b16 {vr(buf + cb*4 + j*2, 2)}, v{A3[cb]} offset:{hd*2048 + j*1024}")
        return out
    a(reads3(0, WB[0]), reads3(1, WB[1]))
    spin(a, "o", ocond, opoll)
    stamp(a, 13)
    for i in range(16):
        if i % 4 == 0: a(f"s_add_u32 s53, s12, {i*1024}")
        a(f"buffer_load_dwordx4 {vr(OFR + i*4, 4)}, v{LO}, s[36:39], s53 offen offset:{(i%4)*1024} sc1")
    a("s_barrier")
    lq = ["W0"]*4 + ["W1"]*4
    def lwait(need):
        nonlocal lq
        idx = [i for i, x in enumerate(lq) if x in need]
        if not idx: return None
        keep = len(lq) - 1 - max(idx)
        lq = lq[len(lq) - keep:]
        return keep
    def oread(n):
        lq.append(f"O{n}")
        return f"ds_read_b128 {vr(OFR + (n-16)*4, 4)}, v{PA} offset:{(n-16)*1024}"
    for n in range(32):
        cur = WB[n % 3]
        if n in (16, 24):
            if "p3ts" in OPT and n == 16: stamp(a, 2); lq = []
            a("s_barrier")
            if "p3ts" in OPT and n == 24: stamp(a, 3); lq = []
            for i in range(2): a(oread(n + i))
        if n + 2 < 32:
            a(reads3(n + 2, WB[(n+2) % 3])); lq.extend([f"W{n+2}"]*4)
        if n >= 16 and (n % 8) + 2 < 8: a(oread(n + 2))
        assert len(lq) <= 15, lq
        kw = lwait({f"W{n}", f"O{n}"})
        w = []
        if n < 16: w.append(f"vmcnt({15 - n})")
        if kw is not None: w.append(f"lgkmcnt({kw})")
        if w: a("s_waitcnt " + " ".join(w))
        if "p3ts" in OPT and n in (0, 31): stamp(a, {0: 1, 31: 4}[n]); lq = []
        for cb in range(2):
            a(mfma(ACC3[cb], cur + cb*4, OFR + (n%16)*4, "0" if n == 0 else ACC3[cb]))
    a(f"v_lshrrev_b32 v{L}, 4, v{LO}")
    PA = 117
    a.c("transpose through LDS (slot 1 is free) so that every store writes whole 128-byte lines")
    TA_ = 119; TB_ = 120
    a(f"v_and_b32 v{TA_}, 31, v{L}", f"v_lshrrev_b32 v{PA}, 5, v{L}", f"v_lshlrev_b32 v{PA}, 2, v{PA}", f"v_and_b32 v{TB_}, 7, v{L}",
      f"v_xor_b32 v{PA}, v{PA}, v{TB_}", f"v_lshlrev_b32 v{PA}, 4, v{PA}", f"v_lshl_add_u32 v{TA_}, v{TA_}, 7, v{PA}",
      "s_mov_b32 s52, s56", f"v_add_u32 v{TA_}, s52, v{TA_}",
      f"v_lshrrev_b32 v{PA}, 3, v{L}", f"v_xor_b32 v{VO}, v{PA}, v{TB_}", f"v_lshlrev_b32 v{VO}, 4, v{VO}", f"v_lshl_add_u32 v{VO}, v{PA}, 7, v{VO}",
      f"v_add_u32 v{VO}, s52, v{VO}",
      f"v_lshlrev_b32 v{TB_}, 4, v{TB_}", f"v_lshl_add_u32 v{TB_}, v{PA}, 11, v{TB_}")
    for cb in range(2):
        for q in range(2):
            c = cb*2 + q
            t = 32 + c*4
            for r in range(4): a(f"v_cvt_pk_bf16_f32 v{t+r}, v{ACC3[cb]+q*8+2*r}, v{ACC3[cb]+q*8+2*r+1}")
            if c: a(f"v_xor_b32 v{PA}, {c*16}, v{TA_}")
            a(f"ds_write_b128 v{PA if c else TA_}, {vr(t,4)}")
    a("s_waitcnt lgkmcnt(0)")
    for i in range(4): a(f"ds_read_b128 {vr(48 + i*4, 4)}, v{VO} offset:{i*1024}")
    for i in range(4):
        a(f"s_add_u32 s53, s13, {i*16384}", f"s_waitcnt lgkmcnt({3-i})", f"buffer_store_dwordx4 {vr(48 + i*4, 4)}, v{TB_}, s[44:47], s53 offen" + (" sc1" if "osc1" in OPT else " nt" if "ont" in OPT else " sc0 sc1" if "osys" in OPT else ""))
    if TS:
        if "p3ts" in OPT: stamp(a, 5)
        a("s_waitcnt vmcnt(0)")
        stamp(a, 14)
        ts_flush(a, 0, 0, "w0")
        if "allw" in OPT:
            for w in range(1, 4): ts_flush(a, w, w, f"w{w}")
    a("L_done:", "s_endpgm")

    a("L_fallback:")
    M = T + 2
    a("s_lshr_b32 s52, s25, 3", "s_lshl_b32 s52, s52, 14", "s_add_u32 s52, s52, s54",
      f"v_mov_b32 v{M}, 0xff800000", "s_mov_b32 s63, 0",
      f"v_sub_u32 v{T+3}, v{VA[0]}, v{KA[0]}", f"v_add_u32 v{T+3}, v{T+3}, v{LO}")
    def fb_addr():
        return ["s_lshr_b32 s53, s63, 3", "s_lshl_b32 s53, s53, 15", "s_and_b32 s56, s63, 7", "s_lshl_b32 s56, s56, 11",
                "s_add_u32 s53, s53, s56", "s_add_u32 s53, s53, s52"]
    a("L_fb1:", fb_addr(),
      f"buffer_load_dwordx4 {vr(KB[0],4)}, v{LO}, s[36:39], s53 offen sc1", "s_waitcnt vmcnt(0)",
      mfma(S[0], KB[0], Q, "0"), "s_nop 15")
    for r in range(8): a(f"v_max3_f32 v{M}, v{S[0]+2*r}, v{S[0]+2*r+1}, v{M}")
    a("s_add_u32 s63, s63, 1", "s_cmp_lg_u32 s63, 64", "s_cbranch_scc1 L_fb1")
    a(f"v_mov_b32 v{T}, v{M}", "s_nop 1", f"v_permlane32_swap_b32 v{M}, v{T}", "s_nop 1", f"v_max_f32 v{M}, v{M}, v{T}", f"v_sub_f32 v{M}, 0, v{M}")
    for r in range(16): a(f"v_mov_b32 v{CM+r}, v{M}")
    for r in range(16): a(f"v_mov_b32 v{O+r}, 0")
    a("s_mov_b32 s63, 0")
    a("L_fb2:", fb_addr(),
      f"buffer_load_dwordx4 {vr(KB[0],4)}, v{LO}, s[36:39], s53 offen sc1", "s_mov_b64 exec, s[50:51]",
      f"buffer_load_dwordx4 {vr(VB[0],4)}, v{T+3}, s[36:39], s53 offen sc1",
      f"buffer_load_dwordx4 {vr(VB[0]+4,4)}, v{T+3}, s[36:39], s53 offen offset:512 sc1", "s_mov_b64 exec, -1",
      "s_waitcnt vmcnt(0)", mfma(S[0], KB[0], Q, CM), "s_nop 15")
    a(ex(S[0], 0, 16), "s_nop 1", smf(O, VB[0], S[0], IDX), smf(O, VB[0] + 4, S[0] + 8, IDX))
    a("s_add_u32 s63, s63, 1", "s_cmp_lg_u32 s63, 64", "s_cbranch_scc1 L_fb2")
    a("s_nop 15", f"v_rcp_f32 v{T+2}, v{O+8}", f"v_mov_b32 v{T}, s48", f"v_mov_b32 v{T+1}, s49", "s_branch L_finish", "L_code_end:")
    a.l.append(f""".section .rodata,"a"
.p2align 6
.amdhsa_kernel {k}
  .amdhsa_next_free_vgpr 128
  .amdhsa_next_free_sgpr {102 if TS else 64}
  .amdhsa_accum_offset 128
  .amdhsa_group_segment_fixed_size 0
  .amdhsa_kernarg_size 72
  .amdhsa_user_sgpr_count 2
  .amdhsa_user_sgpr_kernarg_segment_ptr 1
  .amdhsa_system_sgpr_workgroup_id_x 1
.end_amdhsa_kernel""")

a = Asm()
a.l += ["; MHA x2 (S=2048, D=512, H=32), one launch: qkv projection -> attention -> output projection",
        "; @launch grid=(256,1,1) block=(1024,1,1) lds=163840",
        '.amdgcn_target "amdgcn-amd-amdhsa--gfx950"', ".text"]
gen(a)
print(a.text())
```

```python
import sys, subprocess, re
gen=sys.argv[1]; outp=sys.argv[2]; pts=[tuple(int(y) for y in x.split('-')) for x in sys.argv[3].split(',')]; WAVES=sys.argv[4].split(','); opts=sys.argv[5:]
spin='''
.text
.globl spin_kernel
.p2align 8
.type spin_kernel,@function
spin_kernel:
    s_cmp_ge_u32 s2, 1
    s_cbranch_scc1 SP_done
    s_load_dwordx2 s[12:13], s[0:1], 56
    s_waitcnt lgkmcnt(0)
    s_sub_u32 s12, s12, 512
    s_subb_u32 s13, s13, 0
    s_load_dwordx2 s[4:5], s[12:13], 64
    s_waitcnt lgkmcnt(0)
    s_mov_b32 s8, 200000
SP_loop:
    s_memrealtime s[6:7]
    s_waitcnt lgkmcnt(0)
    s_sub_u32 s6, s6, s4
    s_cmp_ge_u32 s6, 10000
    s_cbranch_scc1 SP_done
    s_sub_u32 s8, s8, 1
    s_cmp_lg_u32 s8, 0
    s_cbranch_scc1 SP_loop
SP_done:
    s_endpgm
.section .rodata,"a"
.p2align 6
.amdhsa_kernel spin_kernel
  .amdhsa_next_free_vgpr 8
  .amdhsa_next_free_sgpr 16
  .amdhsa_accum_offset 8
  .amdhsa_group_segment_fixed_size 0
  .amdhsa_kernarg_size 72
  .amdhsa_user_sgpr_count 2
  .amdhsa_user_sgpr_kernarg_segment_ptr 1
  .amdhsa_system_sgpr_workgroup_id_x 1
.end_amdhsa_kernel
'''
src=subprocess.run(['python3',gen,'ts']+opts,capture_output=True,text=True).stdout
K="concat_heads__mha_block__mha_block__prompt_kernel"
src=src.replace("; @launch grid=(256,1,1) block=(1024,1,1) lds=163840", f"; @launch kernel={K} grid=(256,1,1) block=(1024,1,1) lds=163840\n; @launch kernel=spin_kernel grid=(1,1,1) block=(64,1,1) lds=0")
for (j,j0) in pts:
    s=src
    lines=s.split("\n"); out=[]; i=0
    while i<len(lines):
        l=lines[i]
        m=re.match(r"\s*s_memrealtime s\[(\d+):",l)
        if m and int(m.group(1))>=64 and int(m.group(1)) not in (64+2*j,64+2*j0):
            if lines[i+1].strip()=="s_waitcnt lgkmcnt(0)" and int(m.group(1))!=64: i+=2; continue
            i+=1; continue
        out.append(l); i+=1
    s="\n".join(out)
    def repl(m):
        tag=m.group(1)
        if tag not in WAVES: return f"TS_skip_{tag}:"
        DIFF = f"s_sub_u32 s98, s{64+2*j}, s{64+2*j0}" if j0 != 99 else f"s_sub_u32 s98, s96, s{64+2*j}\n    s_add_u32 s98, s98, 5000"
        return (f"s_cbranch_scc1 TS_skip_{tag}\n    s_mov_b64 exec, 1\n    v_mov_b32 v1, 64\n    s_lshr_b64 s[96:97], s[48:49], 4\n    {DIFF}\n    s_add_u32 s96, s96, s98\n    s_addc_u32 s97, s97, 0\n    v_mov_b32 v2, s96\n    v_mov_b32 v3, s97\n"
                f"    global_atomic_umax_x2 v1, v[2:3], s[18:19]\n    s_waitcnt vmcnt(0)\n    s_mov_b64 exec, -1\nTS_skip_{tag}:")
    s=re.sub(r"s_cbranch_scc1 TS_skip_(\w+)\n.*?TS_skip_\1:", repl, s, flags=re.S)
    open(f"{outp}_d{j}_{j0}.s","w").write(s+spin)
```

```python
import sys, math, struct

NAME = "concat_heads__mha_block__mha_block__prompt"
OPT = set(sys.argv[1:]) | {"pub0", "stmid", "tx67", "b0late", "c3=3"}
if not OPT & {"tx", "a3", "nopf"}: OPT |= {"tx", "late", "wa2", "wb4"}
NWS = 5 if "w5" in OPT else (4 if "w4" in OPT else 3)
TS = "ts" in OPT
WT = "sc0 sc1" if "sys" in OPT else "sc1 nt" if "wtnt" in OPT else "sc1"
XNT = " nt" if "xnt" in OPT else ""
WNT = " nt" if "wnt" in OPT else ""
KV_OFF = 0
OF_OFF = 8 << 20
FKV_OFF = 12 << 20
FO_OFF = (12 << 20) + 65536
XID_OFF = (12 << 20) + 131072
WS_USED = 13 << 20
QSCALE = 0.25 * math.log2(math.e)
SPIN_MAX = 1 << 18
def f32bits(x): return struct.unpack("<I", struct.pack("<f", x))[0]

class Asm:
    def __init__(self): self.l = []
    def __call__(self, *lines):
        for x in lines:
            if isinstance(x, (list, tuple)): self(*x)
            else: self.l.append("    " + x if not x.endswith(":") else x)
    def c(self, s): self.l.append("    ; " + s)
    def text(self): return "\n".join(self.l)

def vr(b, n): return f"v[{b}:{b+n-1}]"
def mfma(d, a, b, c):
    cs = vr(c, 16) if isinstance(c, int) else c
    return f"v_mfma_f32_32x32x16_bf16 {vr(d,16)}, {vr(a,4)}, {vr(b,4)}, {cs}"
def smf(d, a, b, idx): return f"v_smfmac_f32_32x32x32_bf16 {vr(d,16)}, {vr(a,4)}, {vr(b,8)}, v{idx}"

P1TS_DONE = False
def stamp(a, j):
    if "p1ts" in OPT and P1TS_DONE and j >= 7: return
    if "cyc3" in OPT: return
    if TS: a(f"s_memrealtime s[{64+2*j}:{65+2*j}]", "s_waitcnt lgkmcnt(0)")
def cstamp(a, j):
    if "cyc3" in OPT:
        if j == 0: a("s_memtime s[98:99]", "s_waitcnt lgkmcnt(0)")
        else: a("s_memtime s[96:97]", "s_waitcnt lgkmcnt(0)", "s_sub_u32 s96, s96, s98", f"s_add_u32 s{64+2*j}, s64, s96", f"s_addc_u32 s{65+2*j}, s65, 0")
def ts_init(a):
    if TS:
        for j in range(15): a(f"s_mov_b64 s[{64+2*j}:{65+2*j}], 0")
        a("s_mov_b32 s94, 0x5151", "s_mov_b32 s95, 0")
def ts_flush(a, kidx, wave, tag):
    if not TS: return
    a(f"s_cmp_lg_u32 s25, {wave}", f"s_cbranch_scc1 TS_skip_{tag}")
    a("s_sleep 127", "s_sleep 127", "s_sleep 127")
    a("s_mov_b64 exec, 1", f"s_lshl_b32 s96, s2, 7", f"s_add_u32 s96, s96, {(32<<20) + kidx*256*128}", "v_mov_b32 v1, s96")
    for j in range(16):
        a(f"v_mov_b32 v2, s{64+2*j}", f"v_mov_b32 v3, s{65+2*j}", f"global_store_dwordx2 v1, v[2:3], s[20:21] offset:{j*8}", "s_nop 1")
    a("s_waitcnt vmcnt(0)", "s_mov_b64 exec, -1", f"TS_skip_{tag}:")

XRING = 0
WRING = 98304
QX = 65536
TAGL = 163832
EREG = 131072

def spin(a, name, cond_lines, reload_lines, slp=1):
    a(f"s_mov_b32 s63, {SPIN_MAX}", f"L_{name}_chk:", "s_waitcnt vmcnt(0)", cond_lines, f"s_cbranch_scc1 L_{name}_ok", f"s_sleep {slp}",
      reload_lines, "s_sub_u32 s63, s63, 1", "s_cmp_lg_u32 s63, 0", f"s_cbranch_scc1 L_{name}_chk", "s_waitcnt vmcnt(0)", f"L_{name}_ok:")

def gen(a):
    k = NAME + "_kernel"
    a.l += [f".globl {k}", ".p2align 8", f".type {k},@function", f"{k}:"]
    a("s_cmp_ge_u32 s2, 256", "s_cbranch_scc1 L_done")
    a("s_load_dwordx16 s[4:19], s[0:1], 0", "s_load_dwordx2 s[20:21], s[0:1], 64")
    ts_init(a)
    if TS: a("s_memrealtime s[64:65]")
    a("s_memrealtime s[48:49]")
    a("s_and_b32 s52, s2, 7", "s_lshr_b32 s53, s2, 3",
      "s_lshr_b32 s22, s52, 2",
      "s_and_b32 s23, s53, 15",
      "s_and_b32 s24, s52, 3", "s_lshl_b32 s24, s24, 1", "s_lshr_b32 s53, s53, 4", "s_add_u32 s24, s24, s53")
    a("v_lshrrev_b32 v1, 6, v0", "v_and_b32 v0, 63, v0", "s_getreg_b32 s26, hwreg(HW_REG_XCC_ID)", "v_readfirstlane_b32 s25, v1")
    a("s_and_b32 s26, s26, 7", "s_lshl_b32 s62, s25, 10")
    a("s_waitcnt lgkmcnt(0)")
    WSB = int(([o for o in OPT if o.startswith("wsb=")] or ["wsb=0"])[0][4:]) << 20
    if WSB: a(f"s_add_u32 s20, s20, {WSB}", "s_addc_u32 s21, s21, 0")
    a("s_cmp_eq_u32 s22, 0",
      "s_cselect_b32 s4, s4, s10", "s_cselect_b32 s5, s5, s11", "s_cselect_b32 s6, s6, s12", "s_cselect_b32 s7, s7, s13",
      "s_cselect_b32 s8, s8, s14", "s_cselect_b32 s9, s9, s15")
    a("s_lshl_b32 s52, s24, 18", "s_add_u32 s28, s4, s52", "s_addc_u32 s29, s5, 0", "s_and_b32 s29, s29, 0xffff",
      "s_mov_b32 s30, 262144", "s_mov_b32 s31, 0x20000")
    a("s_mov_b32 s32, s6", "s_and_b32 s33, s7, 0xffff", f"s_mov_b32 s34, {512*3072}", "s_mov_b32 s35, 0x20000")
    a("s_cmp_ge_u32 s25, 8", "s_cbranch_scc1 L_loader")

    O = 0; Q = 16; S = [20, 36]; KB = [52, 56]; VB = [100, 108]; IDX = 116; KA = [117, 118, 98]; VA = [119, 120, 99]; LO = 121; T = 122
    CM = 80
    WOA = 61; CK = 62

    def common_init(a):
        a("s_mov_b32 s36, s20", "s_and_b32 s37, s21, 0xffff", f"s_mov_b32 s38, {WS_USED}", "s_mov_b32 s39, 0x20000")
        a("s_and_b32 s52, s23, 7", "s_lshl_b32 s52, s52, 7", "s_add_u32 s40, s8, s52", "s_addc_u32 s41, s9, 0", "s_and_b32 s41, s41, 0xffff",
          f"s_sub_u32 s42, {512*1024}, s52", "s_mov_b32 s43, 0x20000")
        a("s_mov_b32 s44, s16", "s_and_b32 s45, s17, 0xffff", f"s_mov_b32 s46, {2048*2048}", "s_mov_b32 s47, 0x20000")
        a("s_mov_b32 s50, 0xffff", "s_mov_b32 s51, 0xffff", "s_mov_b32 s27, 0")
        a("s_lshl_b32 s54, s22, 4", "s_add_u32 s54, s54, s23", "s_lshl_b32 s54, s54, 18", "s_lshl_b32 s55, s24, 15", "s_add_u32 s55, s55, s54")
        a(f"v_lshlrev_b32 v{LO}, 4, v0",
          "s_lshr_b32 s56, s25, 3", "s_lshl_b32 s53, s56, 13",
          f"v_add_u32 v{KA[0]}, s53, v{LO}", f"v_add_u32 v{KA[1]}, 0x10000, v{KA[0]}", f"v_add_u32 v{KA[2]}, 0x20000, v{KA[0]}",
          "v_and_b32 v13, 15, v0", "v_lshlrev_b32 v13, 4, v13", "v_lshrrev_b32 v14, 5, v0", "v_lshl_add_u32 v13, v14, 8, v13",
          "s_add_u32 s53, s53, 1024", f"v_add_u32 v{VA[0]}, s53, v13", f"v_add_u32 v{VA[1]}, 0x10000, v{VA[0]}", f"v_add_u32 v{VA[2]}, 0x20000, v{VA[0]}",
          f"v_mov_b32 v{IDX}, 0xdddddddd")
        a("v_and_b32 v13, 27, v0", "v_cmp_eq_u32 vcc, 16, v13", "v_mov_b32 v14, 0x3f803f80",
          f"v_mov_b32 v{T}, {TAGL}", f"v_lshlrev_b32 v{T+4}, 3, v0", "v_cndmask_b32 v13, 0, v14, vcc")
        for r in range(16): a(f"v_mov_b32 v{VB[0]+r}, v13")
        a("s_and_b32 s53, s25, 7", "s_lshl_b32 s58, s24, 3", "s_add_u32 s58, s58, s53", "s_lshl_b32 s57, s22, 6", "s_add_u32 s58, s58, s57",
          "s_lshl_b32 s58, s58, 5", "s_lshl_b32 s53, s23, 1", "s_add_u32 s53, s53, s56", "s_add_u32 s58, s58, s53",
          "s_lshl_b32 s59, s58, 3", f"s_add_u32 s59, s59, {FO_OFF}", "s_lshl_b32 s58, s58, 10", f"s_add_u32 s58, s58, {OF_OFF}")
        a("s_lshr_b32 s60, s54, 7", f"s_add_u32 s60, s60, {FKV_OFF}", "s_lshl_b32 s61, s24, 8", "s_add_u32 s61, s61, s60",
          "s_bfe_u32 s53, s25, 0x10002", "s_lshl_b32 s53, s53, 7", "s_add_u32 s61, s61, s53",
          "s_and_b32 s53, s25, 3", "s_lshl_b32 s53, s53, 3", "s_add_u32 s61, s61, s53")
        a("s_lshl_b32 s10, s22, 3", "s_add_u32 s10, s10, s24", "s_lshl_b32 s10, s10, 7", f"s_add_u32 s10, s10, {XID_OFF}")
        a("s_lshl_b32 s52, s24, 3", "s_lshr_b32 s53, s23, 3", "s_lshl_b32 s53, s53, 2", "s_add_u32 s52, s52, s53",
          "s_add_u32 s53, s57, s52", "s_lshl_b32 s11, s53, 8", f"s_add_u32 s11, s11, {FO_OFF}",
          "s_and_b32 s12, s25, 3", "s_add_u32 s52, s52, s12", "s_add_u32 s53, s53, s12", "s_lshl_b32 s12, s53, 15", f"s_add_u32 s12, s12, {OF_OFF}",
          "s_lshl_b32 s13, s22, 10", "s_and_b32 s53, s23, 7", "s_lshl_b32 s53, s53, 7", "s_add_u32 s13, s13, s53",
          "s_lshl_b32 s53, s52, 16", "s_add_u32 s13, s13, s53")

    XA = [1, 2]; XB = [3, 4]; WA = [5, 6]; VK = 96; VV = 97; QA = 123
    ACC = 16
    FXR = [64, 68]; FW = 72
    def touches():
        if "tx" in OPT:
            a.c("HBM/L2 warm-up: waves 0,1 touch 8 KB each of this workgroup's share of the X block")
            if "tx67" in OPT:
                a("s_and_b32 s53, s25, 6", "s_mov_b32 s52, s23", "s_cmp_eq_u32 s53, 0", "s_cbranch_scc1 L_tx_own",
                  "s_cmp_lg_u32 s53, 6", "s_cbranch_scc1 L_tx_done", "s_sub_u32 s52, s23, 2", "s_lshr_b32 s53, s52, 1", "s_cmp_lg_u32 s53, 3", "s_cbranch_scc1 L_tx_done",
                  "s_branch L_tx_go", "L_tx_own:", "s_lshr_b32 s53, s52, 1", "s_cmp_eq_u32 s53, 3", "s_cbranch_scc1 L_tx_done", "L_tx_go:",
                  "s_lshl_b32 s52, s52, 14", "s_and_b32 s53, s25, 1", "s_lshl_b32 s53, s53, 13", "s_add_u32 s52, s52, s53",
                  "v_lshlrev_b32 v13, 7, v0", "buffer_load_dword v125, v13, s[28:31], s52 offen" + XNT, "L_tx_done:")
            else:
                a("s_cmp_ge_u32 s25, 2", "s_cbranch_scc1 L_tx_done",
                  "s_lshl_b32 s52, s23, 14", "s_lshl_b32 s53, s25, 13", "s_add_u32 s52, s52, s53",
                  "v_lshlrev_b32 v13, 7, v0", "buffer_load_dword v125, v13, s[28:31], s52 offen" + XNT, "L_tx_done:")
        if "tw" in OPT:
            a.c("waves 2,3 touch 6 KB each of W (1/128 of the matrix per workgroup)")
            a("s_sub_u32 s52, s25, 2", "s_cmp_ge_u32 s52, 2", "s_cbranch_scc1 L_tw_done",
              "s_lshl_b32 s53, s24, 4", "s_add_u32 s53, s53, s23", "s_lshl_b32 s53, s53, 1", "s_add_u32 s52, s52, s53",
              "s_mul_i32 s52, s52, 6144", "v_cmp_gt_u32 vcc, 48, v0", "v_lshlrev_b32 v13, 7, v0", "s_and_saveexec_b64 s[56:57], vcc",
              "buffer_load_dword v125, v13, s[32:35], s52 offen", "s_mov_b64 exec, -1", "L_tw_done:")
        if "twf" in OPT:
            a.c("waves 2..7 touch 8 KB each of W (1/32 of the matrix per workgroup)")
            a("s_sub_u32 s52, s25, 2", "s_cmp_ge_u32 s52, 6", "s_cbranch_scc1 L_twf_done",
              "s_and_b32 s53, s24, 1", "s_lshl_b32 s53, s53, 4", "s_add_u32 s53, s53, s23", "s_mul_i32 s53, s53, 6", "s_add_u32 s52, s52, s53",
              "s_lshl_b32 s52, s52, 13", "v_lshlrev_b32 v13, 7, v0",
              "buffer_load_dword v125, v13, s[32:35], s52 offen", "L_twf_done:")
    def touchX(c0, nc, wave, tag):
        a(f"s_cmp_lg_u32 s25, {wave}", f"s_cbranch_scc1 L_{tag}_done")
        if nc == 2: a("v_lshrrev_b32 v13, 1, v0", "v_and_b32 v14, 1, v0")
        elif nc == 4: a("v_lshrrev_b32 v13, 2, v0", "v_and_b32 v14, 3, v0")
        else: a("v_mul_u32_u24 v13, 43, v0", "v_lshrrev_b32 v13, 7, v13", "v_mul_u32_u24 v14, 3, v13", "v_sub_u32 v14, v0, v14")
        a("v_lshlrev_b32 v13, 10, v13", "v_lshl_add_u32 v13, v14, 7, v13", "s_lshl_b32 s52, s23, 14", f"s_add_u32 s52, s52, {c0*128}",
          f"v_cmp_gt_u32 vcc, {16*nc}, v0", "s_nop 1", "s_and_saveexec_b64 s[56:57], vcc",
          "buffer_load_dword v125, v13, s[28:31], s52 offen" + XNT, "s_mov_b64 exec, -1", f"L_{tag}_done:")
    def touchW(c0, nc, wave, tag):
        a(f"s_cmp_lg_u32 s25, {wave}", f"s_cbranch_scc1 L_{tag}_done",
          "s_lshl_b32 s52, s24, 4", "s_add_u32 s52, s52, s23", f"s_mul_i32 s52, s52, {nc*1536}", f"s_add_u32 s52, s52, {c0*196608}",
          f"v_cmp_gt_u32 vcc, {12*nc}, v0", "v_lshlrev_b32 v13, 7, v0", "s_nop 0", "s_and_saveexec_b64 s[56:57], vcc",
          "buffer_load_dword v125, v13, s[32:35], s52 offen" + WNT, "s_mov_b64 exec, -1", f"L_{tag}_done:")
    if "tlb" in OPT:
        a.c("translation warm-up: wave 0 of workgroup i touches one of the pages the kernel will need")
        a("s_cmp_lg_u32 s25, 0", "s_cbranch_scc1 L_tlb_done",
          "s_and_b32 s52, s23, 7", "v_mov_b32 v13, 0",
          "s_cmp_eq_u32 s52, 0", "s_cbranch_scc1 L_tlb0", "s_cmp_eq_u32 s52, 1", "s_cbranch_scc1 L_tlb1",
          "s_cmp_eq_u32 s52, 2", "s_cbranch_scc1 L_tlb2", "s_cmp_eq_u32 s52, 3", "s_cbranch_scc1 L_tlb3",
          "s_cmp_eq_u32 s52, 4", "s_cbranch_scc1 L_tlb4")
        a("s_lshl_b32 s53, s22, 22", "s_lshr_b32 s56, s23, 3", "s_lshl_b32 s56, s56, 21", "s_add_u32 s53, s53, s56",
          "s_lshl_b32 s56, s22, 21", f"s_add_u32 s56, s56, {OF_OFF}",
          "s_cmp_eq_u32 s52, 6", "s_cselect_b32 s53, s56, s53", "s_cmp_eq_u32 s52, 7", f"s_cselect_b32 s53, {FKV_OFF}, s53",
          "v_mov_b32 v13, s53", "global_load_dword v125, v13, s[20:21]", "s_branch L_tlb_done")
        a("L_tlb0:", "buffer_load_dword v125, v13, s[28:31], 0 offen", "s_branch L_tlb_done")
        a("L_tlb1:", "buffer_load_dword v125, v13, s[32:35], 0 offen", "s_branch L_tlb_done")
        a("L_tlb2:", "global_load_dword v125, v13, s[8:9]", "s_branch L_tlb_done")
        a("L_tlb3:", "s_lshr_b32 s53, s24, 2", "s_lshl_b32 s53, s53, 21", "v_mov_b32 v13, s53", "global_load_dword v125, v13, s[16:17]", "s_branch L_tlb_done")
        a("L_tlb4:", "global_load_dword v125, v13, s[18:19] sc1", "L_tlb_done:")
    if "cpf" in OPT:
        a.c("pull the kernel's code into L2 (waves 4..7, 64 lines each)")
        a("s_sub_u32 s52, s25, 4", "s_cmp_ge_u32 s52, 4", "s_cbranch_scc1 L_cpf_done",
          "s_getpc_b64 s[56:57]", "L_cpf_pc:", "s_lshl_b32 s52, s52, 13", "v_lshlrev_b32 v13, 7, v0", "v_add_u32 v13, s52, v13",
          "v_cmp_gt_u32 vcc, L_code_end-L_cpf_pc, v13", "s_nop 1", "s_and_saveexec_b64 s[52:53], vcc", "s_cbranch_execz L_cpf_skip",
          "global_load_dword v125, v13, s[56:57]", "L_cpf_skip:", "s_mov_b64 exec, -1", "L_cpf_done:")
    if "early" in OPT: touches()
    a("s_barrier")
    if "early" not in OPT and "late" not in OPT: touches()
    if "a3" in OPT:
        touchX(2, 3, 0, "xa3"); touchW(2, 3, 1, "wa3")
    if "wa3" in OPT: touchW(2, 3, 2, "wa3")
    if "wa2" in OPT: touchW(2, 2, 2, "wa2")
    if "wa13" in OPT: touchW(1, 3, 2, "wa13")
    common_init(a)
    a("v_and_b32 v13, 15, v0", "v_lshrrev_b32 v14, 4, v0",
      "v_bfe_u32 v15, v0, 1, 3", "v_xor_b32 v15, v15, v14", "v_lshlrev_b32 v15, 4, v15", "v_lshl_add_u32 v15, v13, 7, v15",
      "s_lshl_b32 s52, s25, 12",
      f"v_add_u32 v{XA[0]}, s52, v15", f"v_xor_b32 v{XA[1]}, 64, v{XA[0]}",
      f"v_add_u32 v{XB[0]}, 0x10000, v{XA[0]}", f"v_add_u32 v{XB[1]}, 0x10000, v{XA[1]}")
    a("v_bfe_u32 v15, v0, 2, 2", "v_lshl_add_u32 v13, v14, 3, v15", "v_lshlrev_b32 v13, 6, v13",
      "v_bfe_u32 v15, v0, 4, 1", "v_lshl_add_u32 v13, v15, 5, v13", "v_and_b32 v15, 3, v0", "v_lshl_add_u32 v13, v15, 3, v13",
      f"v_add_u32 v{WA[0]}, {WRING}, v13", f"v_xor_b32 v{WA[1]}, 32, v{WA[0]}")
    a("s_and_b32 s52, s25, 3", "s_lshl_b32 s52, s52, 11", "s_lshr_b32 s53, s25, 2", "s_lshl_b32 s53, s53, 14", "s_add_u32 s52, s52, s53",
      f"v_add_u32 v{VK}, s52, v{LO}",
      "v_and_b32 v13, 15, v0", "v_lshlrev_b32 v13, 4, v13", "v_lshrrev_b32 v14, 5, v0", "v_lshl_add_u32 v13, v14, 8, v13",
      "v_bfe_u32 v15, v0, 4, 1", "v_lshl_add_u32 v13, v15, 13, v13", "s_add_u32 s52, s52, 1024", f"v_add_u32 v{VV}, s52, v13")
    a(f"s_add_u32 s52, s62, {QX}", f"v_add_u32 v{QA}, s52, v{LO}", "s_add_u32 s0, s55, 8192")
    a("v_lshlrev_b32 v7, 7, v0")
    lq1 = []
    def xread(n, th):
        c, s2 = divmod(n, 2); slot = c % 3
        lq1.append(f"X{th}")
        if slot < 2: return f"ds_read_b128 {vr(FXR[th],4)}, v{XA[s2]} offset:{slot*32768 + th*2048}"
        return f"ds_read_b128 {vr(FXR[th],4)}, v{XB[s2]} offset:{th*2048}"
    def wread(n, b):
        c, s2 = divmod(n, 2); seg, hd = divmod(b, 2)
        lq1.extend([f"W{b}"]*2)
        return [f"ds_read_b64_tr_b16 {vr(FW + b*4 + j*2, 2)}, v{WA[hd]} offset:{(c % NWS)*12288 + seg*4096 + s2*2048 + j*256}" for j in range(2)]
    def lw1(need):
        idx = [i for i, x in enumerate(lq1) if x in need]
        if not idx: return []
        keep = len(lq1) - 1 - max(idx)
        del lq1[:len(lq1) - keep]
        return [f"s_waitcnt lgkmcnt({keep})"]
    def m16(th, b, first):
        d = ACC + (b*2 + th)*4
        cs = "0" if first else vr(d, 4)
        x = vr(FXR[th], 4); w = vr(FW + b*4, 4)
        return f"v_mfma_f32_16x16x32_bf16 {vr(d,4)}, " + (f"{w}, {x}" if b < 4 else f"{x}, {w}") + f", {cs}"
    if "nokvpre" not in OPT:
        a.c("an early poll of a line that is still only in HBM is slow: fetch the group's K/V flag lines now")
        a("s_cmp_lg_u32 s25, 5", "s_cbranch_scc1 L_kvpre_done", "v_lshlrev_b32 v13, 7, v0", "s_mov_b64 exec, 0xffff", "buffer_load_dword v125, v13, s[36:39], s60 offen sc1", "s_mov_b64 exec, -1", "L_kvpre_done:")
    if "tkv" in OPT:
        a.c("first touch of the K/V block's pages ahead of the stores")
        a("s_cmp_lg_u32 s25, 7", "s_cbranch_scc1 L_tkv_done", "v_lshlrev_b32 v13, 12, v0", "s_mov_b64 exec, 0xff",
          "buffer_load_dword v125, v13, s[36:39], s55 offen", "s_mov_b64 exec, -1", "L_tkv_done:")
    if "kvpt" in OPT:
        a.c("fetch every line of the K/V block ahead of the stores (waves 4..7)")
        a("s_sub_u32 s52, s25, 4", "s_cmp_ge_u32 s52, 4", "s_cbranch_scc1 L_kvpt_done", "v_lshlrev_b32 v13, 7, v0", "s_lshl_b32 s52, s52, 13", "s_add_u32 s52, s52, s55",
          "buffer_load_dword v125, v13, s[36:39], s52 offen", "L_kvpt_done:")
    C3 = [o for o in OPT if o.startswith("c3=")]
    if C3:
        cls = int(C3[0][3:])
        a("s_cmp_lg_u32 s25, 6", "s_cbranch_scc1 L_c3_done",
          "s_and_b32 s52, s24, 1", "s_lshl_b32 s52, s52, 4", "s_add_u32 s52, s52, s23", "s_mul_i32 s52, s52, 36864",
          f"s_add_u32 s52, s52, {384*1024 + cls*128}", "v_cmp_gt_u32 vcc, 36, v0", "v_lshlrev_b32 v13, 10, v0", "s_nop 0",
          "s_and_saveexec_b64 s[56:57], vcc", "buffer_load_dword v125, v13, s[32:35], s52 offen", "s_mov_b64 exec, -1", "L_c3_done:")
    if "late" in OPT: touches()
    if "xa" in OPT: touchX(3, 2, 0, "xa")
    if "wa" in OPT: touchW(3, 2, 1, "wa")
    if "wa5" in OPT: touchW(3, 5, 1, "wa5")
    if "xa4" in OPT: touchX(4, 4, 0, "xa4")
    a(f"s_mov_b32 s56, {f32bits(QSCALE):#x}", f"s_mov_b32 s57, {f32bits(QSCALE):#x}")
    stamp(a, 1)
    a("s_barrier")
    stamp(a, 2)
    if "xb" in OPT or "wb" in OPT or "wb4" in OPT:
        if "xb" in OPT: touchX(5, 3, 2, "xb")
        if "wb" in OPT: touchW(5, 3, 3, "wb")
        if "wb4" in OPT: touchW(4, 4, 3, "wb4")
        a(f"s_mov_b32 s56, {f32bits(QSCALE):#x}", f"s_mov_b32 s57, {f32bits(QSCALE):#x}")
    if "cyc" in OPT: a("s_memtime s[98:99]", "s_waitcnt lgkmcnt(0)")
    BO = [2, 3, 4, 5, 0, 1]
    a(xread(0, 0))
    for b in BO: a(wread(0, b))
    a(xread(0, 1))
    for n in range(16):
        c, s2 = divmod(n, 2)
        for b in BO:
            a(lw1({"X0", f"W{b}"}), m16(0, b, n == 0))
        if n < 15:
            if s2 == 1:
                a("s_waitcnt lgkmcnt(0)", "s_barrier"); lq1.clear()
                if c == 3 and "p1ts" not in OPT: stamp(a, 3)
                if "p1ts" in OPT: stamp(a, 7 + c)
                KVL = [o for o in OPT if o.startswith("kvl=")]
                if KVL:
                    c0, span = [int(x) for x in KVL[0][4:].split(",")]
                    if c0 <= c < c0 + span:
                        per = 4 // span
                        w0 = 4 + (c - c0)*per
                        a.c("a write-through store to a line the memory-side cache does not hold is slow: fetch the K/V block's lines first")
                        a(f"s_sub_u32 s52, s25, {w0}", f"s_cmp_ge_u32 s52, {per}", f"s_cbranch_scc1 L_kvl{c}", "s_sub_u32 s52, s25, 4",
                          "s_lshl_b32 s52, s52, 13", "s_add_u32 s52, s52, s55", "buffer_load_dword v125, v7, s[36:39], s52 offen", f"L_kvl{c}:")
            a(xread(n + 1, 0))
        for i, b in enumerate(BO):
            a(lw1({"X1"}), m16(1, b, n == 0))
            if n < 15: a(wread(n + 1, b))
            elif i < 4:
                for r in range(4): a(f"v_mov_b32 v{O + i*4 + r}, 0")
        if n < 15: a(xread(n + 1, 1))
        assert len(lq1) <= 15
    stamp(a, 4)
    global P1TS_DONE
    P1TS_DONE = True
    a.c("P1 epilogue: K, V -> LDS stage slot 0 (and, after the barrier, global) ; Q -> regs / LDS")
    PK = 64
    def pack2(dst, src): return [f"v_cvt_pk_bf16_f32 v{dst+r}, v{src+2*r}, v{src+2*r+1}" for r in range(2)]
    def acc(th, b): return ACC + (b*2 + th)*4
    def swaps(t): return [f"v_permlane16_swap_b32 v{t}, v{t+2}", f"v_permlane16_swap_b32 v{t+1}, v{t+3}"]
    GST = [f"buffer_store_dwordx4 {vr(PK,4)}, v{VK}, s[36:39], s55 offen {WT}",
      f"buffer_store_dwordx4 {vr(PK+4,4)}, v{VK}, s[36:39], s0 offen {WT}",
      f"buffer_store_dwordx4 {vr(PK+8,4)}, v{VV}, s[36:39], s55 offen {WT}",
      f"buffer_store_dwordx4 {vr(PK+12,4)}, v{VV}, s[36:39], s55 offen offset:512 {WT}"]
    a("s_nop 2")
    a(pack2(PK, acc(0, 2)), pack2(PK + 2, acc(1, 2)), pack2(PK + 4, acc(0, 3)), pack2(PK + 6, acc(1, 3)))
    a(swaps(PK), f"ds_write_b128 v{VK}, {vr(PK,4)}")
    if "stearly" in OPT: a(GST[0])
    a(pack2(PK + 8, acc(0, 4)), pack2(PK + 10, acc(0, 5)))
    a(swaps(PK + 4), f"ds_write_b128 v{VK}, {vr(PK+4,4)} offset:8192")
    if "stearly" in OPT: a(GST[1])
    a(pack2(PK + 12, acc(1, 4)), pack2(PK + 14, acc(1, 5)))
    a(swaps(PK + 8), f"ds_write_b128 v{VV}, {vr(PK+8,4)}")
    if "stearly" in OPT: a(GST[2])
    for r in range(4): a(f"v_pk_mul_f32 {vr(acc(0,1)+2*r,2)}, {vr(acc(0,1)+2*r,2)}, s[56:57]")
    a(swaps(PK + 12), f"ds_write_b128 v{VV}, {vr(PK+12,4)} offset:512")
    if "stearly" in OPT: a(GST[3])
    a(pack2(PK + 16, acc(0, 1)), pack2(PK + 18, acc(1, 1)))
    for r in range(4): a(f"v_pk_mul_f32 {vr(acc(0,0)+2*r,2)}, {vr(acc(0,0)+2*r,2)}, s[56:57]")
    a(swaps(PK + 16), f"ds_write_b128 v{QA}, {vr(PK+16,4)}")
    a(pack2(Q, acc(0, 0)), pack2(Q + 2, acc(1, 0)), "s_nop 1", swaps(Q))
    gst = [f"buffer_store_dwordx4 {vr(PK,4)}, v{VK}, s[36:39], s55 offen {WT}",
      f"buffer_store_dwordx4 {vr(PK+4,4)}, v{VK}, s[36:39], s0 offen {WT}",
      f"buffer_store_dwordx4 {vr(PK+8,4)}, v{VV}, s[36:39], s55 offen {WT}",
      f"buffer_store_dwordx4 {vr(PK+12,4)}, v{VV}, s[36:39], s55 offen offset:512 {WT}"]
    a("s_cmp_ge_u32 s25, 4", "s_cbranch_scc1 L_nost", gst, "L_nost:")
    a("s_waitcnt lgkmcnt(0)")
    stamp(a, 5)
    a("s_barrier")
    stamp(a, 6)
    a("s_branch L_haveq")

    a("L_loader:")
    a("s_sub_u32 s52, s25, 8")
    a("s_and_b32 s53, s52, 1", "s_lshl_b32 s53, s53, 2",
      "v_lshrrev_b32 v2, 4, v0", "v_add_u32 v2, s53, v2", "v_and_b32 v3, 7, v0", "v_xor_b32 v2, v2, v3", "v_lshlrev_b32 v2, 4, v2",
      "v_lshrrev_b32 v4, 3, v0", "v_lshl_add_u32 v2, v4, 10, v2")
    a("v_lshrrev_b32 v4, 2, v0", "v_mul_u32_u24 v4, 3072, v4", "v_and_b32 v3, 3, v0",
      "v_lshrrev_b32 v5, 5, v0", "v_lshlrev_b32 v5, 1, v5", "v_xor_b32 v3, v3, v5", "v_lshl_add_u32 v3, v3, 4, v4",
      "s_lshl_b32 s53, s23, 6", "v_add_u32 v3, s53, v3")
    a("s_lshl_b32 s4, s52, 13", "s_add_u32 s5, s4, 65536", "s_add_u32 s6, s4, 131072", "s_add_u32 s7, s4, 196608",
      "s_lshl_b32 s0, s52, 10")
    a("s_and_b32 s53, s52, 3", "s_mul_i32 s1, s53, 49152", "s_lshr_b32 s53, s52, 2", "s_lshl_b32 s53, s53, 10", "s_add_u32 s1, s1, s53")
    a("s_and_b32 s3, s24, 6")
    a("s_cmp_ge_u32 s52, 4", "s_cbranch_scc1 L_loaderB")
    ROT = "rot" in OPT
    def issueW(c, variantA):
        slot = c % NWS
        if ROT: pre = [f"s_add_u32 s53, s24, {c}" if "rotj" in OPT else f"s_add_u32 s53, s3, {c}", "s_and_b32 s53, s53, 7", "s_lshl_b32 s57, s53, 7", "s_mul_i32 s53, s53, 196608", "s_add_u32 s53, s53, s1",
                       f"s_add_u32 m0, s0, {WRING + slot*12288}", "s_nop 0"]
        else: pre = [f"s_add_u32 m0, s0, {WRING + slot*12288}", f"s_add_u32 s53, s1, {c*196608}"]
        out = pre + [
               "buffer_load_dwordx4 v3, s[32:35], s53 offen" + WNT + " lds"]
        if variantA:
            out += [f"s_add_u32 m0, s0, {WRING + slot*12288 + 8192 - 2048}", "s_nop 0",
                    "buffer_load_dwordx4 v3, s[32:35], s53 offen offset:2048" + WNT + " lds"]
        return out
    def issueX(c):
        slot = c % 3
        out = []
        for aa in range(4):
            out += [f"s_add_u32 m0, s0, {XRING + slot*32768 + aa*8192}", (f"s_add_u32 s53, s{4+aa}, s57" if ROT else f"s_add_u32 s53, s{4+aa}, {c*128}"),
                    "buffer_load_dwordx4 v2, s[28:31], s53 offen" + XNT + " lds"]
        return out
    for variantA in (True, False):
        ops = []
        def W(c):
            a(issueW(c, variantA)); ops.extend([c]*(2 if variantA else 1))
        def X(c):
            a(issueX(c)); ops.extend([c]*4)
        if not variantA: a("L_loaderB:")
        if variantA: stamp(a, 1)
        W(0); X(0); a("s_barrier")
        if "b0f" not in OPT: W(1); X(1)
        if variantA: stamp(a, 2)
        if not variantA:
            a.c("workgroup 0 publishes the launch tag (low 4 bits: 8 | room for an XCC id)")
            a("s_cmp_lg_u32 s2, 0", "s_cbranch_scc1 L_notag", "s_cmp_lg_u32 s52, 7", "s_cbranch_scc1 L_notag")
            a("s_lshl_b64 s[48:49], s[48:49], 4", "s_or_b32 s48, s48, 8",
              "v_mov_b32 v8, 0", "v_mov_b32 v4, s48", "v_mov_b32 v5, s49", "s_mov_b64 exec, 1",
              f"global_store_dwordx2 v8, v[4:5], s[18:19] {WT}", "s_mov_b64 exec, -1")
            a("L_notag:")
        ROLL = "roll" in OPT and not variantA
        def TOUCH(c):
            a("s_mov_b64 exec, s[16:17]", "buffer_load_dword v10, v9, s[44:47], s3 offen", "s_mov_b64 exec, -1", "s_add_u32 s3, s3, s27")
            ops.append(99)
        if ROLL:
            a("s_mov_b32 s3, s52")
        common_init(a)
        if ROLL:
            R0 = int([o for o in OPT if o.startswith("r0=")][0][3:]) if any(o.startswith("r0=") for o in OPT) else 2
            a.c("rolling L2 warm-up of later W chunks, spread over the XCD's workgroups")
            a("s_mov_b32 s44, s32", "s_mov_b32 s45, s33", "s_mov_b32 s46, s34", "s_mov_b32 s17, 0", "s_mov_b32 s27, 196608",
              "s_and_b32 s52, s24, 1", "s_lshl_b32 s52, s52, 4", "s_add_u32 s52, s52, s23", "s_and_b32 s3, s3, 3")
            if "roll3" in OPT:
                a("s_mov_b32 s16, 3", "v_lshlrev_b32 v9, 10, v0", "s_min_u32 s3, s3, 2", "s_lshl_b32 s3, s3, 11", "s_mul_i32 s52, s52, 6144",
                  "s_add_u32 s3, s3, s52", f"s_add_u32 s3, s3, {R0*196608 + 384}")
            else:
                a("s_mov_b32 s16, 0xfff", "v_lshlrev_b32 v9, 7, v0", "s_mul_i32 s3, s3, 1536", "s_mul_i32 s52, s52, 6144",
                  "s_add_u32 s3, s3, s52", f"s_add_u32 s3, s3, {R0*196608}")
            nextT = R0
            RD = int([o for o in OPT if o.startswith("rd=")][0][3:]) if any(o.startswith("rd=") for o in OPT) else 4
            while nextT < RD: TOUCH(nextT); nextT += 1
        nextW = 2
        for c in range(8):
            last = max(i for i, x in enumerate(ops) if x <= c)
            wait = len(ops) - 1 - last
            if not variantA and c == 7:
                a.c("launch tag -> LDS")
                spin(a, "tag", ["v_cmp_ne_u64 vcc, 0, v[6:7]", "s_nop 1", "s_cmp_eq_u64 vcc, -1"],
                     ["global_load_dwordx2 v[6:7], v8, s[18:19] sc1"])
                a(f"ds_write_b64 v{T}, v[6:7]")
            else:
                a(f"s_waitcnt vmcnt({wait})")
            a("s_barrier")
            if variantA and c == 0: stamp(a, 3)
            if variantA and c == 7: stamp(a, 4)
            if "b0f" in OPT and c == 0: W(1); X(1)
            if nextW == c + 2 and nextW <= 7: W(nextW); nextW += 1
            if c + 2 <= 7: X(c + 2)
            while nextW <= min(7, c - 1 + NWS): W(nextW); nextW += 1
            if ROLL and nextT <= 7: TOUCH(nextT); nextT += 1
            if not variantA and c == 5:
                a("v_mov_b32 v8, 0", "global_load_dwordx2 v[6:7], v8, s[18:19] sc1"); ops.append(99)
        if variantA: a("s_branch L_p2_start")

    a("L_p2_start:")
    a(f"v_mov_b32 v{VK}, 0", f"v_mov_b32 v{VV}, 0")
    for r in range(16): a(f"v_mov_b32 v{O+r}, 0")
    a(f"s_add_u32 s53, s62, {QX - 8192}", f"v_add_u32 v{T+1}, s53, v{LO}")
    a("s_waitcnt lgkmcnt(0)")
    stamp(a, 5)
    a("s_barrier")
    stamp(a, 6)
    a(f"ds_read_b128 {vr(Q,4)}, v{T+1}")
    a("L_haveq:")
    cstamp(a, 0)
    def loc(u):
        n, i = divmod(u, 4); sl = n % 10
        return sl // 4, (sl % 4)*16384 + i*2048
    def kread(u):
        b, o = loc(u)
        return [f"ds_read_b128 {vr(KB[u%2],4)}, v{KA[b]} offset:{o}"]
    def vread(u):
        b, o = loc(u)
        return ["s_mov_b64 exec, s[50:51]",
                f"ds_read_b128 {vr(VB[u%2],4)}, v{VA[b]} offset:{o}",
                f"ds_read_b128 {vr(VB[u%2]+4,4)}, v{VA[b]} offset:{o+512}",
                "s_mov_b64 exec, -1"]
    def ex(base, lo, hi): return [f"v_exp_f32 v{base+i}, v{base+i}" for i in range(lo, hi)]
    def opt(name, default): return [int(x) for x in ([o for o in OPT if o.startswith(name + "=")] or [name + "=" + default])[0][len(name)+1:].split(",")]
    HB = [(0, 0), (0, 1)] + [(x, 0) for x in range(1, 8)] + [(x, 1) for x in range(1, 8)]
    def fetch(ns, tag, lg):
        per = 16 >> lg
        a("s_sub_u32 s52, s25, 8", f"s_cmp_ge_u32 s52, {len(ns) << lg}", f"s_cbranch_scc1 L_{tag}_done")
        code = 0; slots = 0
        for k_, n in enumerate(ns):
            code |= (HB[n][0]*2 + HB[n][1]) << (4*k_); slots |= (n % 10) << (4*k_)
        a(f"s_lshr_b32 s63, s52, {lg}", "s_lshl_b32 s63, s63, 2", f"s_lshr_b32 s53, {code:#x}, s63", "s_and_b32 s53, s53, 15",
          "s_lshl_b32 s57, s24, 1", "s_xor_b32 s53, s53, s57",
          "s_lshl_b32 s57, s53, 7", "s_add_u32 s57, s57, s60",
          "s_mov_b64 exec, 15")
        poll = [f"buffer_load_dwordx2 {vr(T,2)}, v{T+4}, s[36:39], s57 offen sc1"]
        a(poll)
        a("s_lshl_b32 s53, s53, 14", "s_add_u32 s56, s53, s54",
          f"s_and_b32 s52, s52, {(1 << lg) - 1}", f"s_mul_i32 s52, s52, {per*1024}", "s_add_u32 s56, s56, s52",
          f"s_lshr_b32 s53, {slots:#x}, s63", "s_and_b32 s53, s53, 15", "s_lshl_b32 s53, s53, 14", "s_add_u32 s52, s52, s53")
        spin(a, tag, [f"v_cmp_eq_u64 vcc, s[48:49], {vr(T,2)}", "s_nop 1", "s_cmp_eq_u64 vcc, 15"], poll, SLP)
        a("s_mov_b64 exec, -1")
        for i in range(per):
            if i % 4 == 0: a(f"s_add_u32 m0, s52, {i*1024}", f"s_add_u32 s53, s56, {i*1024}")
            a(f"buffer_load_dwordx4 v{LO}, s[36:39], s53 offen offset:{(i%4)*1024} sc1 lds")
        a(f"L_{tag}_done:")
    SLP = opt("slp", "4")[0]
    a("s_setprio 3", "s_cmp_lt_u32 s25, 4", "s_cselect_b32 s3, 1, 0")
    a(kread(0), kread(1), vread(0), f"ds_read_b64 {vr(T+2,2)}, v{T}", "s_waitcnt lgkmcnt(4)")
    a(mfma(S[0], KB[0], Q, "0"))
    a.c("later-needed lane constants, computed in the shadow of the first MFMA")
    a(f"v_lshrrev_b32 v{WOA}, 4, v{LO}", f"v_bfe_u32 v{CK}, v{WOA}, 4, 1", f"v_lshlrev_b32 v{CK}, 1, v{CK}", f"v_and_b32 v{CK+1}, 7, v{WOA}",
      f"v_xor_b32 v{CK}, v{CK}, v{CK+1}", f"v_lshlrev_b32 v{CK}, 4, v{CK}", f"v_lshrrev_b32 v{WOA}, 3, v{WOA}",
      f"v_lshl_add_u32 v{WOA}, v{WOA}, 10, v{CK}", f"v_and_b32 v{T+5}, 0x78, v{T+4}",
      f"v_mov_b32 v{CK}, 0x33800000", f"v_mov_b32 v{CK+1}, 0x57800000", f"v_mov_b32 v60, 0")
    a("s_waitcnt lgkmcnt(0)")
    a(f"v_readfirstlane_b32 s48, v{T+2}", f"v_readfirstlane_b32 s49, v{T+3}")
    a("s_nop 0")
    NT = 64
    WO = 98304
    LATE = (7, 11)
    BAR = (18, 34, 54)
    prio_at = {4: 2, 6: 1, 7: 0, 10: 2, 11: 1, 14: 2, 17: 1, 18: 0, 27: 2, 32: 1, 34: 0, 45: 2, 52: 1, 54: 0, 60: 2, 62: 1, 63: 0}
    for o in OPT:
        if o.startswith("pr="): prio_at.update({int(x.split(":")[0]): int(x.split(":")[1]) for x in o[3:].split(",")})
    SB = opt("sb", "3")[0]
    F1, F2, F3 = opt("ff", "4,8,12")
    L1, L2 = opt("fl", "0,0")
    PF_ = opt("pf", "16")[0]
    def publish(u, force):
        a("s_cmp_eq_u32 s3, 0", f"s_cbranch_scc1 L_pub{u}")
        if force == "A": a("s_cmp_lt_u32 s25, 4", f"s_cbranch_scc1 L_pubf{u}")
        if force != "all": a("s_getreg_b32 s53, hwreg(HW_REG_IB_STS)", "s_and_b32 s53, s53, 0xc0000f", f"s_cbranch_scc1 L_pub{u}")
        a(f"L_pubf{u}:", f"v_mov_b32 v{T}, s48", f"v_mov_b32 v{T+1}, s49", "s_waitcnt vmcnt(0)")
        stamp(a, 7)
        a("s_mov_b64 exec, 1", f"buffer_store_dwordx2 {vr(T,2)}, v60, s[36:39], s61 offen {WT}", "s_mov_b64 exec, -1", "s_mov_b32 s3, 0", f"L_pub{u}:")
    def barrier(u):
        if u < 30: a("s_cmp_lt_u32 s25, 8", f"s_cbranch_scc1 L_b{u}", "s_waitcnt vmcnt(0)", f"L_b{u}:")
        else: a("s_waitcnt vmcnt(0)")
        a("s_barrier", "s_setprio 3")
    for u in range(NT):
        s = S[u % 2]
        if u in prio_at: a(f"s_setprio {prio_at[u]}")
        late = u in LATE
        a("s_waitcnt lgkmcnt(0)")
        a(ex(s, 0, 2))
        if u > 0: a(smf(O, VB[(u-1) % 2] + 4, S[(u-1) % 2] + 8, IDX))
        if u + 1 < NT and not late: a(vread(u + 1))
        a(ex(s, 2, 5))
        if u + 1 < NT and not late:
            a(mfma(S[(u+1) % 2], KB[(u+1) % 2], Q, "0"))
            if u in BAR:
                barrier(u)
                if u == 34: stamp(a, 10)
                cstamp(a, {18: 3, 34: 4, 54: 6}[u])
            if u + 2 < NT and u + 1 not in LATE: a(kread(u + 2))
        a(ex(s, 5, 10))
        a(smf(O, VB[u % 2], s, IDX))
        a(ex(s, 10, 16))
        if u <= PF_:
            if u == 0: a.c("publish this wave's K/V tile as soon as its stores have been acknowledged")
            publish(u, "A" if u == 7 else "all" if u == PF_ else "")
        if late:
            if u == 7: stamp(a, 8)
            barrier(u)
            if u == 7: stamp(a, 9)
            cstamp(a, {7: 1, 11: 2}[u])
            a(kread(u + 1), kread(u + 2), vread(u + 1), "s_waitcnt lgkmcnt(3)", mfma(S[(u+1) % 2], KB[(u+1) % 2], Q, "0"), "s_nop 10")
        if u == SB:
            a.c("second-half tiles go out after the first-half ones, which are needed sooner")
            a("s_sub_u32 s53, s25, 4", "s_cmp_ge_u32 s53, 4", "s_cbranch_scc1 L_nost2", gst, "s_mov_b32 s3, 1", "L_nost2:")
        if u == 19:
            a.c("wave 0 publishes the workgroup's XCC id")
            a("s_cmp_lg_u32 s25, 0", "s_cbranch_scc1 L_xid", f"v_mov_b32 v{T}, s48", f"v_mov_b32 v{T+1}, s49",
              f"v_or_b32 v{T}, s26, v{T}", "s_lshl_b32 s53, s23, 3", "s_add_u32 s53, s53, s10",
              "s_mov_b64 exec, 1", f"buffer_store_dwordx2 {vr(T,2)}, v60, s[36:39], s53 offen {WT}", "s_mov_b64 exec, -1", "L_xid:")
        if u == F1: fetch([2], "f1", L1)
        if u == F2: fetch([3, 4], "f2", L2)
        if u == F3: fetch([5, 6, 7, 8], "f3", 1)
        if u == 20: fetch([9, 10, 11, 12, 13], "f4", 0)
        if u == 36: fetch([14, 15], "f5", 2)
        if u in (37, 38, 56, 57):
            aa = {37: 0, 38: 1, 56: 2, 57: 3}[u]
            if aa == 0: a.c("Wo tile -> LDS (half-slots 6..9)")
            a("s_lshl_b32 s63, s25, 13", f"s_add_u32 m0, s62, {WO + aa*16384}", f"s_add_u32 s53, s63, {aa*131072}", f"buffer_load_dwordx4 v{WOA}, s[40:43], s53 offen lds")
        if u == 46:
            a.c("XCC ids of the row block's workgroups; bring the O and O-flag lines this wave will write into L2")
            a(f"buffer_load_dwordx2 {vr(T+2,2)}, v{T+5}, s[36:39], s10 offen sc1",
              f"buffer_load_dword v{T+1}, v60, s[36:39], s59 offen",
              f"buffer_load_dword v{T}, v{LO}, s[36:39], s58 offen")
        if u == 55:
            a.c("local hand-off only when all 16 workgroups of this row block run on this XCC")
            a("s_or_b32 s52, s48, s26", "s_mov_b32 s53, s49", f"v_cmp_eq_u64 vcc, s[52:53], {vr(T+2,2)}", "s_nop 1",
              "s_cmp_eq_u64 vcc, -1", "s_cselect_b32 s27, 1, 0")
            if "noloc" in OPT: a("s_mov_b32 s27, 0")
    a("s_nop 1", smf(O, VB[(NT-1) % 2] + 4, S[(NT-1) % 2] + 8, IDX), "s_setprio 3",
      f"v_mov_b32 v{T}, s48", f"v_mov_b32 v{T+1}, s49", f"v_mov_b32 v{T+3}, 0x7f800000", "s_nop 7")
    a.c("safety check of the zero stand-in: 2^-24 <= l <= 2^48 and finite O, else redo with the true row max")
    a(f"v_cmp_le_f32 s[52:53], v{CK}, v{O+8}", f"v_cmp_ge_f32 s[56:57], v{CK+1}, v{O+8}",
      f"v_max3_f32 v{CK}, abs(v{O}), abs(v{O+1}), abs(v{O+2})", f"v_max3_f32 v{CK}, abs(v{O+3}), abs(v{O+4}), v{CK}",
      f"v_max3_f32 v{CK}, abs(v{O+5}), abs(v{O+6}), v{CK}", f"v_max_f32 v{CK}, abs(v{O+7}), v{CK}",
      "s_and_b64 s[52:53], s[52:53], s[56:57]",
      f"v_cmp_gt_f32 vcc, v{T+3}, v{CK}", f"v_rcp_f32 v{T+2}, v{O+8}", "s_and_b64 s[52:53], s[52:53], vcc",
      "s_cmp_eq_u64 s[52:53], -1", "s_cbranch_scc0 L_fallback")
    a("L_finish:")
    stamp(a, 11)
    cstamp(a, 5)
    if "cyc2" in OPT: a("s_memtime s[96:97]", "s_waitcnt lgkmcnt(0)", "s_sub_u32 s96, s96, s98", "s_add_u32 s66, s82, s96", "s_addc_u32 s67, s83, 0")
    for r in range(4): a(f"v_pk_mul_f32 {vr(O+2*r,2)}, {vr(O+2*r,2)}, {vr(T+2,2)} op_sel_hi:[1,0]")
    for r in range(4): a(f"v_cvt_pk_bf16_f32 v{O+12+r}, v{O+2*r}, v{O+2*r+1}")
    a("s_cmp_eq_u32 s27, 1", "s_cbranch_scc1 L_ostore_local")
    a(f"buffer_store_dwordx4 {vr(O+12,4)}, v{LO}, s[36:39], s58 offen {WT}", "s_waitcnt vmcnt(0)",
      "s_mov_b64 exec, 1", f"buffer_store_dwordx2 {vr(T,2)}, v60, s[36:39], s59 offen {WT}", "s_mov_b64 exec, -1", "s_branch L_ostored")
    a("L_ostore_local:")
    a(f"buffer_store_dwordx4 {vr(O+12,4)}, v{LO}, s[36:39], s58 offen", "s_waitcnt vmcnt(0)",
      "s_mov_b64 exec, 1", f"buffer_store_dwordx2 {vr(T,2)}, v60, s[36:39], s59 offen", "s_mov_b64 exec, -1")
    a("L_ostored:")
    stamp(a, 12)
    a("s_barrier")
    if TS:
        a("s_cmp_lt_u32 s25, 8", "s_cbranch_scc1 L_ts_p3", "s_barrier", "s_barrier", "s_barrier")
        if "allw" in OPT:
            for w in range(8, 16): ts_flush(a, w, w, f"w{w}")
        else:
            ts_flush(a, 1, 8, "w8")
            ts_flush(a, 2, 15, "w15")
        a("s_endpgm", "L_ts_p3:")
    else:
        a("s_cmp_ge_u32 s25, 8", "s_cbranch_scc1 L_done")

    ACC3 = [0, 16]; OFR = 32; WB = [96, 104, 112]; A3 = [120, 122]; VO = 116; PA = 123; L = 118; PF = 124
    opoll = [f"buffer_load_dwordx4 {vr(PF,4)}, v{LO}, s[36:39], s11 offen sc1"]
    ocond = [f"v_cmp_eq_u64 vcc, s[48:49], {vr(PF,2)}", f"v_cmp_eq_u64 s[52:53], s[48:49], {vr(PF+2,2)}", "s_nop 1",
             "s_and_b64 vcc, vcc, s[52:53]", "s_cmp_eq_u64 vcc, -1"]
    a("s_cmp_lt_u32 s25, 4", "s_cbranch_scc1 L_p3c")
    a("s_and_b32 s56, s25, 3", "s_lshl_b32 s56, s56, 14")
    a("s_barrier")
    for i in range(16):
        a(f"s_add_u32 m0, s56, {i*1024}", f"s_add_u32 s53, s12, {(16+i)*1024}", f"buffer_load_dwordx4 v{LO}, s[36:39], s53 offen sc1 lds")
    a("s_waitcnt vmcnt(8)", "s_barrier", "s_waitcnt vmcnt(0)", "s_barrier")
    if "wb2" in OPT:
        a("s_cmp_lg_u32 s25, 4", "s_cbranch_scc1 L_nowb", "buffer_wbl2 sc1", "L_nowb:")
    if "allw" in OPT:
        for w in range(4, 8): ts_flush(a, w, w, f"w{w}")
    a("s_endpgm")
    a("L_p3c:")
    a(opoll)
    a(f"v_lshrrev_b32 v6, 4, v{LO}")
    a(f"v_lshrrev_b32 v4, 5, v6", f"v_bfe_u32 v5, v6, 2, 2", "v_lshl_add_u32 v4, v4, 2, v5", "v_lshlrev_b32 v4, 7, v4",
      f"v_and_b32 v5, 1, v6", "v_lshl_add_u32 v4, v5, 6, v4", f"v_bfe_u32 v5, v6, 4, 1", "v_lshl_add_u32 v4, v5, 4, v4",
      f"v_bfe_u32 v5, v6, 3, 1", "v_lshl_add_u32 v4, v5, 5, v4", f"v_bfe_u32 v5, v6, 1, 1", f"v_lshl_add_u32 v4, v5, 3, v4",
      f"v_add_u32 v{A3[0]}, {WO}, v4", f"v_xor_b32 v{A3[1]}, 32, v{A3[0]}")
    a("s_lshl_b32 s56, s25, 14", f"v_add_u32 v{PA}, s56, v{LO}")
    def reads3(hd, buf):
        out = []
        for cb in range(2):
            for j in range(2):
                out.append(f"ds_read_b64_tr_b16 {vr(buf + cb*4 + j*2, 2)}, v{A3[cb]} offset:{hd*2048 + j*1024}")
        return out
    a(reads3(0, WB[0]), reads3(1, WB[1]))
    spin(a, "o", ocond, opoll)
    stamp(a, 13)
    for i in range(16):
        if i % 4 == 0: a(f"s_add_u32 s53, s12, {i*1024}")
        a(f"buffer_load_dwordx4 {vr(OFR + i*4, 4)}, v{LO}, s[36:39], s53 offen offset:{(i%4)*1024} sc1")
    a("s_barrier")
    lq = ["W0"]*4 + ["W1"]*4
    def lwait(need):
        nonlocal lq
        idx = [i for i, x in enumerate(lq) if x in need]
        if not idx: return None
        keep = len(lq) - 1 - max(idx)
        lq = lq[len(lq) - keep:]
        return keep
    def oread(n):
        lq.append(f"O{n}")
        return f"ds_read_b128 {vr(OFR + (n-16)*4, 4)}, v{PA} offset:{(n-16)*1024}"
    for n in range(32):
        cur = WB[n % 3]
        if n in (16, 24):
            if "p3ts" in OPT and n == 16: stamp(a, 2); lq = []
            a("s_barrier")
            if "p3ts" in OPT and n == 24: stamp(a, 3); lq = []
            for i in range(2): a(oread(n + i))
        if n + 2 < 32:
            a(reads3(n + 2, WB[(n+2) % 3])); lq.extend([f"W{n+2}"]*4)
        if n >= 16 and (n % 8) + 2 < 8: a(oread(n + 2))
        assert len(lq) <= 15, lq
        kw = lwait({f"W{n}", f"O{n}"})
        w = []
        if n < 16: w.append(f"vmcnt({15 - n})")
        if kw is not None: w.append(f"lgkmcnt({kw})")
        if w: a("s_waitcnt " + " ".join(w))
        if "p3ts" in OPT and n in (0, 31): stamp(a, {0: 1, 31: 4}[n]); lq = []
        for cb in range(2):
            a(mfma(ACC3[cb], cur + cb*4, OFR + (n%16)*4, "0" if n == 0 else ACC3[cb]))
    a(f"v_lshrrev_b32 v{L}, 4, v{LO}")
    PA = 117
    a.c("transpose through LDS (slot 1 is free) so that every store writes whole 128-byte lines")
    TA_ = 119; TB_ = 120
    a(f"v_and_b32 v{TA_}, 31, v{L}", f"v_lshrrev_b32 v{PA}, 5, v{L}", f"v_lshlrev_b32 v{PA}, 2, v{PA}", f"v_and_b32 v{TB_}, 7, v{L}",
      f"v_xor_b32 v{PA}, v{PA}, v{TB_}", f"v_lshlrev_b32 v{PA}, 4, v{PA}", f"v_lshl_add_u32 v{TA_}, v{TA_}, 7, v{PA}",
      "s_mov_b32 s52, s56", f"v_add_u32 v{TA_}, s52, v{TA_}",
      f"v_lshrrev_b32 v{PA}, 3, v{L}", f"v_xor_b32 v{VO}, v{PA}, v{TB_}", f"v_lshlrev_b32 v{VO}, 4, v{VO}", f"v_lshl_add_u32 v{VO}, v{PA}, 7, v{VO}",
      f"v_add_u32 v{VO}, s52, v{VO}",
      f"v_lshlrev_b32 v{TB_}, 4, v{TB_}", f"v_lshl_add_u32 v{TB_}, v{PA}, 11, v{TB_}")
    for cb in range(2):
        for q in range(2):
            c = cb*2 + q
            t = 32 + c*4
            for r in range(4): a(f"v_cvt_pk_bf16_f32 v{t+r}, v{ACC3[cb]+q*8+2*r}, v{ACC3[cb]+q*8+2*r+1}")
            if c: a(f"v_xor_b32 v{PA}, {c*16}, v{TA_}")
            a(f"ds_write_b128 v{PA if c else TA_}, {vr(t,4)}")
    a("s_waitcnt lgkmcnt(0)")
    for i in range(4): a(f"ds_read_b128 {vr(48 + i*4, 4)}, v{VO} offset:{i*1024}")
    for i in range(4):
        a(f"s_add_u32 s53, s13, {i*16384}", f"s_waitcnt lgkmcnt({3-i})", f"buffer_store_dwordx4 {vr(48 + i*4, 4)}, v{TB_}, s[44:47], s53 offen" + (" sc1" if "osc1" in OPT else " nt" if "ont" in OPT else " sc0 sc1" if "osys" in OPT else ""))
    if TS:
        if "p3ts" in OPT: stamp(a, 5)
        a("s_waitcnt vmcnt(0)")
        stamp(a, 14)
        ts_flush(a, 0, 0, "w0")
        if "allw" in OPT:
            for w in range(1, 4): ts_flush(a, w, w, f"w{w}")
    a("L_done:", "s_endpgm")

    a("L_fallback:")
    M = T + 2
    a("s_lshr_b32 s52, s25, 3", "s_lshl_b32 s52, s52, 13", "s_add_u32 s52, s52, s54",
      f"v_mov_b32 v{M}, 0xff800000", "s_mov_b32 s63, 0",
      f"v_sub_u32 v{T+3}, v{VA[0]}, v{KA[0]}", f"v_add_u32 v{T+3}, v{T+3}, v{LO}")
    def fb_addr():
        return ["s_lshr_b32 s53, s63, 2", "s_lshl_b32 s53, s53, 14", "s_and_b32 s56, s63, 3", "s_lshl_b32 s56, s56, 11",
                "s_add_u32 s53, s53, s56", "s_add_u32 s53, s53, s52"]
    a("L_fb1:", fb_addr(),
      f"buffer_load_dwordx4 {vr(KB[0],4)}, v{LO}, s[36:39], s53 offen sc1", "s_waitcnt vmcnt(0)",
      mfma(S[0], KB[0], Q, "0"), "s_nop 15")
    for r in range(8): a(f"v_max3_f32 v{M}, v{S[0]+2*r}, v{S[0]+2*r+1}, v{M}")
    a("s_add_u32 s63, s63, 1", "s_cmp_lg_u32 s63, 64", "s_cbranch_scc1 L_fb1")
    a(f"v_mov_b32 v{T}, v{M}", "s_nop 1", f"v_permlane32_swap_b32 v{M}, v{T}", "s_nop 1", f"v_max_f32 v{M}, v{M}, v{T}", f"v_sub_f32 v{M}, 0, v{M}")
    for r in range(16): a(f"v_mov_b32 v{CM+r}, v{M}")
    for r in range(16): a(f"v_mov_b32 v{O+r}, 0")
    a("s_mov_b32 s63, 0")
    a("L_fb2:", fb_addr(),
      f"buffer_load_dwordx4 {vr(KB[0],4)}, v{LO}, s[36:39], s53 offen sc1", "s_mov_b64 exec, s[50:51]",
      f"buffer_load_dwordx4 {vr(VB[0],4)}, v{T+3}, s[36:39], s53 offen sc1",
      f"buffer_load_dwordx4 {vr(VB[0]+4,4)}, v{T+3}, s[36:39], s53 offen offset:512 sc1", "s_mov_b64 exec, -1",
      "s_waitcnt vmcnt(0)", mfma(S[0], KB[0], Q, CM), "s_nop 15")
    a(ex(S[0], 0, 16), "s_nop 1", smf(O, VB[0], S[0], IDX), smf(O, VB[0] + 4, S[0] + 8, IDX))
    a("s_add_u32 s63, s63, 1", "s_cmp_lg_u32 s63, 64", "s_cbranch_scc1 L_fb2")
    a("s_nop 15", f"v_rcp_f32 v{T+2}, v{O+8}", f"v_mov_b32 v{T}, s48", f"v_mov_b32 v{T+1}, s49", "s_branch L_finish", "L_code_end:")
    a.l.append(f""".section .rodata,"a"
.p2align 6
.amdhsa_kernel {k}
  .amdhsa_next_free_vgpr 128
  .amdhsa_next_free_sgpr {102 if TS else 64}
  .amdhsa_accum_offset 128
  .amdhsa_group_segment_fixed_size 0
  .amdhsa_kernarg_size 72
  .amdhsa_user_sgpr_count 2
  .amdhsa_user_sgpr_kernarg_segment_ptr 1
  .amdhsa_system_sgpr_workgroup_id_x 1
.end_amdhsa_kernel""")

a = Asm()
a.l += ["; MHA x2 (S=2048, D=512, H=32), one launch: qkv projection -> attention -> output projection",
        "; @launch grid=(256,1,1) block=(1024,1,1) lds=163840",
        '.amdgcn_target "amdgcn-amd-amdhsa--gfx950"', ".text"]
gen(a)
print(a.text())
```

```python
import sys, math, struct

NAME = "concat_heads__mha_block__mha_block__prompt"
OPT = set(sys.argv[1:]) | {"pub0", "stmid", "tx67", "b0late", "c3=3"}
if not OPT & {"tx", "a3", "nopf"}: OPT |= {"tx", "late", "wa2", "wb4"}
NWS = 5 if "w5" in OPT else (4 if "w4" in OPT else 3)
TS = "ts" in OPT
WT = "sc0 sc1" if "sys" in OPT else "sc1 nt" if "wtnt" in OPT else "sc1"
XNT = " nt" if "xnt" in OPT else ""
WNT = " nt" if "wnt" in OPT else ""
KV_OFF = 0
OF_OFF = 8 << 20
FKV_OFF = 12 << 20
FO_OFF = (12 << 20) + 65536
XID_OFF = (12 << 20) + 131072
WS_USED = 13 << 20
QSCALE = 0.25 * math.log2(math.e)
SPIN_MAX = 1 << 18
def f32bits(x): return struct.unpack("<I", struct.pack("<f", x))[0]

class Asm:
    def __init__(self): self.l = []
    def __call__(self, *lines):
        for x in lines:
            if isinstance(x, (list, tuple)): self(*x)
            else: self.l.append("    " + x if not x.endswith(":") else x)
    def c(self, s): self.l.append("    ; " + s)
    def text(self): return "\n".join(self.l)

def vr(b, n): return f"v[{b}:{b+n-1}]"
def mfma(d, a, b, c):
    cs = vr(c, 16) if isinstance(c, int) else c
    return f"v_mfma_f32_32x32x16_bf16 {vr(d,16)}, {vr(a,4)}, {vr(b,4)}, {cs}"
def smf(d, a, b, idx): return f"v_smfmac_f32_32x32x32_bf16 {vr(d,16)}, {vr(a,4)}, {vr(b,8)}, v{idx}"

P1TS_DONE = False
def stamp(a, j):
    if "p1ts" in OPT and P1TS_DONE and j >= 7: return
    if "cyc3" in OPT: return
    if TS: a(f"s_memrealtime s[{64+2*j}:{65+2*j}]", "s_waitcnt lgkmcnt(0)")
def cstamp(a, j):
    if "cyc3" in OPT and not ("ends" in OPT and j not in (0, 5)):
        if j == 0: a("s_memtime s[98:99]", "s_waitcnt lgkmcnt(0)")
        else: a("s_memtime s[96:97]", "s_waitcnt lgkmcnt(0)", "s_sub_u32 s96, s96, s98", f"s_add_u32 s{64+2*j}, s64, s96", f"s_addc_u32 s{65+2*j}, s65, 0")
def ts_init(a):
    if TS:
        for j in range(15): a(f"s_mov_b64 s[{64+2*j}:{65+2*j}], 0")
        a("s_mov_b32 s94, 0x5151", "s_mov_b32 s95, 0")
def ts_flush(a, kidx, wave, tag):
    if not TS: return
    a(f"s_cmp_lg_u32 s25, {wave}", f"s_cbranch_scc1 TS_skip_{tag}")
    a("s_sleep 127", "s_sleep 127", "s_sleep 127")
    a("s_mov_b64 exec, 1", f"s_lshl_b32 s96, s2, 7", f"s_add_u32 s96, s96, {(32<<20) + kidx*256*128}", "v_mov_b32 v1, s96")
    for j in range(16):
        a(f"v_mov_b32 v2, s{64+2*j}", f"v_mov_b32 v3, s{65+2*j}", f"global_store_dwordx2 v1, v[2:3], s[20:21] offset:{j*8}", "s_nop 1")
    a("s_waitcnt vmcnt(0)", "s_mov_b64 exec, -1", f"TS_skip_{tag}:")

XRING = 0
WRING = 98304
QX = 65536
TAGL = 163832
EREG = 131072

def spin(a, name, cond_lines, reload_lines, slp=1):
    a(f"s_mov_b32 s63, {SPIN_MAX}", f"L_{name}_chk:", "s_waitcnt vmcnt(0)", cond_lines, f"s_cbranch_scc1 L_{name}_ok", f"s_sleep {slp}",
      reload_lines, "s_sub_u32 s63, s63, 1", "s_cmp_lg_u32 s63, 0", f"s_cbranch_scc1 L_{name}_chk", "s_waitcnt vmcnt(0)", f"L_{name}_ok:")

def gen(a):
    k = NAME + "_kernel"
    a.l += [f".globl {k}", ".p2align 8", f".type {k},@function", f"{k}:"]
    a("s_cmp_ge_u32 s2, 256", "s_cbranch_scc1 L_done")
    a("s_load_dwordx16 s[4:19], s[0:1], 0", "s_load_dwordx2 s[20:21], s[0:1], 64")
    ts_init(a)
    if TS: a("s_memrealtime s[64:65]")
    a("s_memrealtime s[48:49]")
    a("s_and_b32 s52, s2, 7", "s_lshr_b32 s53, s2, 3",
      "s_lshr_b32 s22, s52, 2",
      "s_and_b32 s23, s53, 15",
      "s_and_b32 s24, s52, 3", "s_lshl_b32 s24, s24, 1", "s_lshr_b32 s53, s53, 4", "s_add_u32 s24, s24, s53")
    a("v_lshrrev_b32 v1, 6, v0", "v_and_b32 v0, 63, v0", "s_getreg_b32 s26, hwreg(HW_REG_XCC_ID)", "v_readfirstlane_b32 s25, v1")
    a("s_and_b32 s26, s26, 7", "s_lshl_b32 s62, s25, 10")
    a("s_waitcnt lgkmcnt(0)")
    WSB = int(([o for o in OPT if o.startswith("wsb=")] or ["wsb=0"])[0][4:]) << 20
    if WSB: a(f"s_add_u32 s20, s20, {WSB}", "s_addc_u32 s21, s21, 0")
    a("s_cmp_eq_u32 s22, 0",
      "s_cselect_b32 s4, s4, s10", "s_cselect_b32 s5, s5, s11", "s_cselect_b32 s6, s6, s12", "s_cselect_b32 s7, s7, s13",
      "s_cselect_b32 s8, s8, s14", "s_cselect_b32 s9, s9, s15")
    a("s_lshl_b32 s52, s24, 18", "s_add_u32 s28, s4, s52", "s_addc_u32 s29, s5, 0", "s_and_b32 s29, s29, 0xffff",
      "s_mov_b32 s30, 262144", "s_mov_b32 s31, 0x20000")
    a("s_mov_b32 s32, s6", "s_and_b32 s33, s7, 0xffff", f"s_mov_b32 s34, {512*3072}", "s_mov_b32 s35, 0x20000")
    a("s_cmp_ge_u32 s25, 8", "s_cbranch_scc1 L_loader")

    O = 0; Q = 16; S = [20, 36]; KB = [52, 56]; VB = [100, 108]; IDX = 116; KA = [117, 118, 98]; VA = [119, 120, 99]; LO = 121; T = 122
    CM = 80
    WOA = 61; CK = 62

    def common_init(a):
        a("s_mov_b32 s36, s20", "s_and_b32 s37, s21, 0xffff", f"s_mov_b32 s38, {WS_USED}", "s_mov_b32 s39, 0x20000")
        a("s_and_b32 s52, s23, 7", "s_lshl_b32 s52, s52, 7", "s_add_u32 s40, s8, s52", "s_addc_u32 s41, s9, 0", "s_and_b32 s41, s41, 0xffff",
          f"s_sub_u32 s42, {512*1024}, s52", "s_mov_b32 s43, 0x20000")
        a("s_mov_b32 s44, s16", "s_and_b32 s45, s17, 0xffff", f"s_mov_b32 s46, {2048*2048}", "s_mov_b32 s47, 0x20000")
        a("s_mov_b32 s50, 0xffff", "s_mov_b32 s51, 0xffff", "s_mov_b32 s27, 0")
        a("s_lshl_b32 s54, s22, 4", "s_add_u32 s54, s54, s23", "s_lshl_b32 s54, s54, 18", "s_lshl_b32 s55, s24, 15", "s_add_u32 s55, s55, s54")
        a(f"v_lshlrev_b32 v{LO}, 4, v0",
          "s_lshr_b32 s56, s25, 3", "s_lshl_b32 s53, s56, 13",
          f"v_add_u32 v{KA[0]}, s53, v{LO}", f"v_add_u32 v{KA[1]}, 0x10000, v{KA[0]}", f"v_add_u32 v{KA[2]}, 0x20000, v{KA[0]}",
          "v_and_b32 v13, 15, v0", "v_lshlrev_b32 v13, 4, v13", "v_lshrrev_b32 v14, 5, v0", "v_lshl_add_u32 v13, v14, 8, v13",
          "s_add_u32 s53, s53, 1024", f"v_add_u32 v{VA[0]}, s53, v13", f"v_add_u32 v{VA[1]}, 0x10000, v{VA[0]}", f"v_add_u32 v{VA[2]}, 0x20000, v{VA[0]}",
          f"v_mov_b32 v{IDX}, 0xdddddddd")
        a("v_and_b32 v13, 27, v0", "v_cmp_eq_u32 vcc, 16, v13", "v_mov_b32 v14, 0x3f803f80",
          f"v_mov_b32 v{T}, {TAGL}", f"v_lshlrev_b32 v{T+4}, 3, v0", "v_cndmask_b32 v13, 0, v14, vcc")
        for r in range(16): a(f"v_mov_b32 v{VB[0]+r}, v13")
        a("s_and_b32 s53, s25, 7", "s_lshl_b32 s58, s24, 3", "s_add_u32 s58, s58, s53", "s_lshl_b32 s57, s22, 6", "s_add_u32 s58, s58, s57",
          "s_lshl_b32 s58, s58, 5", "s_lshl_b32 s53, s23, 1", "s_add_u32 s53, s53, s56", "s_add_u32 s58, s58, s53",
          "s_lshl_b32 s59, s58, 3", f"s_add_u32 s59, s59, {FO_OFF}", "s_lshl_b32 s58, s58, 10", f"s_add_u32 s58, s58, {OF_OFF}")
        a("s_lshr_b32 s60, s54, 7", f"s_add_u32 s60, s60, {FKV_OFF}", "s_lshl_b32 s61, s24, 8", "s_add_u32 s61, s61, s60",
          "s_bfe_u32 s53, s25, 0x10002", "s_lshl_b32 s53, s53, 7", "s_add_u32 s61, s61, s53",
          "s_and_b32 s53, s25, 3", "s_lshl_b32 s53, s53, 3", "s_add_u32 s61, s61, s53")
        a("s_lshl_b32 s10, s22, 3", "s_add_u32 s10, s10, s24", "s_lshl_b32 s10, s10, 7", f"s_add_u32 s10, s10, {XID_OFF}")
        a("s_lshl_b32 s52, s24, 3", "s_lshr_b32 s53, s23, 3", "s_lshl_b32 s53, s53, 2", "s_add_u32 s52, s52, s53",
          "s_add_u32 s53, s57, s52", "s_lshl_b32 s11, s53, 8", f"s_add_u32 s11, s11, {FO_OFF}",
          "s_and_b32 s12, s25, 3", "s_add_u32 s52, s52, s12", "s_add_u32 s53, s53, s12", "s_lshl_b32 s12, s53, 15", f"s_add_u32 s12, s12, {OF_OFF}",
          "s_lshl_b32 s13, s22, 10", "s_and_b32 s53, s23, 7", "s_lshl_b32 s53, s53, 7", "s_add_u32 s13, s13, s53",
          "s_lshl_b32 s53, s52, 16", "s_add_u32 s13, s13, s53")

    XA = [1, 2]; XB = [3, 4]; WA = [5, 6]; VK = 96; VV = 97; QA = 123
    ACC = 16
    FXR = [64, 68]; FW = 72
    def touches():
        if "tx" in OPT:
            a.c("HBM/L2 warm-up: waves 0,1 touch 8 KB each of this workgroup's share of the X block")
            if "tx67" in OPT:
                a("s_and_b32 s53, s25, 6", "s_mov_b32 s52, s23", "s_cmp_eq_u32 s53, 0", "s_cbranch_scc1 L_tx_own",
                  "s_cmp_lg_u32 s53, 6", "s_cbranch_scc1 L_tx_done", "s_sub_u32 s52, s23, 2", "s_lshr_b32 s53, s52, 1", "s_cmp_lg_u32 s53, 3", "s_cbranch_scc1 L_tx_done",
                  "s_branch L_tx_go", "L_tx_own:", "s_lshr_b32 s53, s52, 1", "s_cmp_eq_u32 s53, 3", "s_cbranch_scc1 L_tx_done", "L_tx_go:",
                  "s_lshl_b32 s52, s52, 14", "s_and_b32 s53, s25, 1", "s_lshl_b32 s53, s53, 13", "s_add_u32 s52, s52, s53",
                  "v_lshlrev_b32 v13, 7, v0", "buffer_load_dword v125, v13, s[28:31], s52 offen" + XNT, "L_tx_done:")
            else:
                a("s_cmp_ge_u32 s25, 2", "s_cbranch_scc1 L_tx_done",
                  "s_lshl_b32 s52, s23, 14", "s_lshl_b32 s53, s25, 13", "s_add_u32 s52, s52, s53",
                  "v_lshlrev_b32 v13, 7, v0", "buffer_load_dword v125, v13, s[28:31], s52 offen" + XNT, "L_tx_done:")
        if "tw" in OPT:
            a.c("waves 2,3 touch 6 KB each of W (1/128 of the matrix per workgroup)")
            a("s_sub_u32 s52, s25, 2", "s_cmp_ge_u32 s52, 2", "s_cbranch_scc1 L_tw_done",
              "s_lshl_b32 s53, s24, 4", "s_add_u32 s53, s53, s23", "s_lshl_b32 s53, s53, 1", "s_add_u32 s52, s52, s53",
              "s_mul_i32 s52, s52, 6144", "v_cmp_gt_u32 vcc, 48, v0", "v_lshlrev_b32 v13, 7, v0", "s_and_saveexec_b64 s[56:57], vcc",
              "buffer_load_dword v125, v13, s[32:35], s52 offen", "s_mov_b64 exec, -1", "L_tw_done:")
        if "twf" in OPT:
            a.c("waves 2..7 touch 8 KB each of W (1/32 of the matrix per workgroup)")
            a("s_sub_u32 s52, s25, 2", "s_cmp_ge_u32 s52, 6", "s_cbranch_scc1 L_twf_done",
              "s_and_b32 s53, s24, 1", "s_lshl_b32 s53, s53, 4", "s_add_u32 s53, s53, s23", "s_mul_i32 s53, s53, 6", "s_add_u32 s52, s52, s53",
              "s_lshl_b32 s52, s52, 13", "v_lshlrev_b32 v13, 7, v0",
              "buffer_load_dword v125, v13, s[32:35], s52 offen", "L_twf_done:")
    def touchX(c0, nc, wave, tag):
        a(f"s_cmp_lg_u32 s25, {wave}", f"s_cbranch_scc1 L_{tag}_done")
        if nc == 2: a("v_lshrrev_b32 v13, 1, v0", "v_and_b32 v14, 1, v0")
        elif nc == 4: a("v_lshrrev_b32 v13, 2, v0", "v_and_b32 v14, 3, v0")
        else: a("v_mul_u32_u24 v13, 43, v0", "v_lshrrev_b32 v13, 7, v13", "v_mul_u32_u24 v14, 3, v13", "v_sub_u32 v14, v0, v14")
        a("v_lshlrev_b32 v13, 10, v13", "v_lshl_add_u32 v13, v14, 7, v13", "s_lshl_b32 s52, s23, 14", f"s_add_u32 s52, s52, {c0*128}",
          f"v_cmp_gt_u32 vcc, {16*nc}, v0", "s_nop 1", "s_and_saveexec_b64 s[56:57], vcc",
          "buffer_load_dword v125, v13, s[28:31], s52 offen" + XNT, "s_mov_b64 exec, -1", f"L_{tag}_done:")
    def touchW(c0, nc, wave, tag):
        a(f"s_cmp_lg_u32 s25, {wave}", f"s_cbranch_scc1 L_{tag}_done",
          "s_lshl_b32 s52, s24, 4", "s_add_u32 s52, s52, s23", f"s_mul_i32 s52, s52, {nc*1536}", f"s_add_u32 s52, s52, {c0*196608}",
          f"v_cmp_gt_u32 vcc, {12*nc}, v0", "v_lshlrev_b32 v13, 7, v0", "s_nop 0", "s_and_saveexec_b64 s[56:57], vcc",
          "buffer_load_dword v125, v13, s[32:35], s52 offen" + WNT, "s_mov_b64 exec, -1", f"L_{tag}_done:")
    if "tlb" in OPT:
        a.c("translation warm-up: wave 0 of workgroup i touches one of the pages the kernel will need")
        a("s_cmp_lg_u32 s25, 0", "s_cbranch_scc1 L_tlb_done",
          "s_and_b32 s52, s23, 7", "v_mov_b32 v13, 0",
          "s_cmp_eq_u32 s52, 0", "s_cbranch_scc1 L_tlb0", "s_cmp_eq_u32 s52, 1", "s_cbranch_scc1 L_tlb1",
          "s_cmp_eq_u32 s52, 2", "s_cbranch_scc1 L_tlb2", "s_cmp_eq_u32 s52, 3", "s_cbranch_scc1 L_tlb3",
          "s_cmp_eq_u32 s52, 4", "s_cbranch_scc1 L_tlb4")
        a("s_lshl_b32 s53, s22, 22", "s_lshr_b32 s56, s23, 3", "s_lshl_b32 s56, s56, 21", "s_add_u32 s53, s53, s56",
          "s_lshl_b32 s56, s22, 21", f"s_add_u32 s56, s56, {OF_OFF}",
          "s_cmp_eq_u32 s52, 6", "s_cselect_b32 s53, s56, s53", "s_cmp_eq_u32 s52, 7", f"s_cselect_b32 s53, {FKV_OFF}, s53",
          "v_mov_b32 v13, s53", "global_load_dword v125, v13, s[20:21]", "s_branch L_tlb_done")
        a("L_tlb0:", "buffer_load_dword v125, v13, s[28:31], 0 offen", "s_branch L_tlb_done")
        a("L_tlb1:", "buffer_load_dword v125, v13, s[32:35], 0 offen", "s_branch L_tlb_done")
        a("L_tlb2:", "global_load_dword v125, v13, s[8:9]", "s_branch L_tlb_done")
        a("L_tlb3:", "s_lshr_b32 s53, s24, 2", "s_lshl_b32 s53, s53, 21", "v_mov_b32 v13, s53", "global_load_dword v125, v13, s[16:17]", "s_branch L_tlb_done")
        a("L_tlb4:", "global_load_dword v125, v13, s[18:19] sc1", "L_tlb_done:")
    if "cpf" in OPT:
        a.c("pull the kernel's code into L2 (waves 4..7, 64 lines each)")
        a("s_sub_u32 s52, s25, 4", "s_cmp_ge_u32 s52, 4", "s_cbranch_scc1 L_cpf_done",
          "s_getpc_b64 s[56:57]", "L_cpf_pc:", "s_lshl_b32 s52, s52, 13", "v_lshlrev_b32 v13, 7, v0", "v_add_u32 v13, s52, v13",
          "v_cmp_gt_u32 vcc, L_code_end-L_cpf_pc, v13", "s_nop 1", "s_and_saveexec_b64 s[52:53], vcc", "s_cbranch_execz L_cpf_skip",
          "global_load_dword v125, v13, s[56:57]", "L_cpf_skip:", "s_mov_b64 exec, -1", "L_cpf_done:")
    if "early" in OPT: touches()
    a("s_barrier")
    if "early" not in OPT and "late" not in OPT: touches()
    if "a3" in OPT:
        touchX(2, 3, 0, "xa3"); touchW(2, 3, 1, "wa3")
    if "wa3" in OPT: touchW(2, 3, 2, "wa3")
    if "wa2" in OPT: touchW(2, 2, 2, "wa2")
    if "wa13" in OPT: touchW(1, 3, 2, "wa13")
    common_init(a)
    a("v_and_b32 v13, 15, v0", "v_lshrrev_b32 v14, 4, v0",
      "v_bfe_u32 v15, v0, 1, 3", "v_xor_b32 v15, v15, v14", "v_lshlrev_b32 v15, 4, v15", "v_lshl_add_u32 v15, v13, 7, v15",
      "s_lshl_b32 s52, s25, 12",
      f"v_add_u32 v{XA[0]}, s52, v15", f"v_xor_b32 v{XA[1]}, 64, v{XA[0]}",
      f"v_add_u32 v{XB[0]}, 0x10000, v{XA[0]}", f"v_add_u32 v{XB[1]}, 0x10000, v{XA[1]}")
    a("v_bfe_u32 v15, v0, 2, 2", "v_lshl_add_u32 v13, v14, 3, v15", "v_lshlrev_b32 v13, 6, v13",
      "v_bfe_u32 v15, v0, 4, 1", "v_lshl_add_u32 v13, v15, 5, v13", "v_and_b32 v15, 3, v0", "v_lshl_add_u32 v13, v15, 3, v13",
      f"v_add_u32 v{WA[0]}, {WRING}, v13", f"v_xor_b32 v{WA[1]}, 32, v{WA[0]}")
    a("s_and_b32 s52, s25, 3", "s_lshl_b32 s52, s52, 11", "s_lshr_b32 s53, s25, 2", "s_lshl_b32 s53, s53, 14", "s_add_u32 s52, s52, s53",
      f"v_add_u32 v{VK}, s52, v{LO}",
      "v_and_b32 v13, 15, v0", "v_lshlrev_b32 v13, 4, v13", "v_lshrrev_b32 v14, 5, v0", "v_lshl_add_u32 v13, v14, 8, v13",
      "v_bfe_u32 v15, v0, 4, 1", "v_lshl_add_u32 v13, v15, 13, v13", "s_add_u32 s52, s52, 1024", f"v_add_u32 v{VV}, s52, v13")
    a(f"s_add_u32 s52, s62, {QX}", f"v_add_u32 v{QA}, s52, v{LO}", "s_add_u32 s0, s55, 8192")
    a("v_lshlrev_b32 v7, 7, v0")
    lq1 = []
    def xread(n, th):
        c, s2 = divmod(n, 2); slot = c % 3
        lq1.append(f"X{th}")
        if slot < 2: return f"ds_read_b128 {vr(FXR[th],4)}, v{XA[s2]} offset:{slot*32768 + th*2048}"
        return f"ds_read_b128 {vr(FXR[th],4)}, v{XB[s2]} offset:{th*2048}"
    def wread(n, b):
        c, s2 = divmod(n, 2); seg, hd = divmod(b, 2)
        lq1.extend([f"W{b}"]*2)
        return [f"ds_read_b64_tr_b16 {vr(FW + b*4 + j*2, 2)}, v{WA[hd]} offset:{(c % NWS)*12288 + seg*4096 + s2*2048 + j*256}" for j in range(2)]
    def lw1(need):
        idx = [i for i, x in enumerate(lq1) if x in need]
        if not idx: return []
        keep = len(lq1) - 1 - max(idx)
        del lq1[:len(lq1) - keep]
        return [f"s_waitcnt lgkmcnt({keep})"]
    def m16(th, b, first):
        d = ACC + (b*2 + th)*4
        cs = "0" if first else vr(d, 4)
        x = vr(FXR[th], 4); w = vr(FW + b*4, 4)
        return f"v_mfma_f32_16x16x32_bf16 {vr(d,4)}, " + (f"{w}, {x}" if b < 4 else f"{x}, {w}") + f", {cs}"
    if "nokvpre" not in OPT:
        a.c("an early poll of a line that is still only in HBM is slow: fetch the group's K/V flag lines now")
        a("s_cmp_lg_u32 s25, 5", "s_cbranch_scc1 L_kvpre_done", "v_lshlrev_b32 v13, 7, v0", "s_mov_b64 exec, 0xffff", "buffer_load_dword v125, v13, s[36:39], s60 offen sc1", "s_mov_b64 exec, -1", "L_kvpre_done:")
    if "tkv" in OPT:
        a.c("first touch of the K/V block's pages ahead of the stores")
        a("s_cmp_lg_u32 s25, 7", "s_cbranch_scc1 L_tkv_done", "v_lshlrev_b32 v13, 12, v0", "s_mov_b64 exec, 0xff",
          "buffer_load_dword v125, v13, s[36:39], s55 offen", "s_mov_b64 exec, -1", "L_tkv_done:")
    if "kvpt" in OPT:
        a.c("fetch every line of the K/V block ahead of the stores (waves 4..7)")
        a("s_sub_u32 s52, s25, 4", "s_cmp_ge_u32 s52, 4", "s_cbranch_scc1 L_kvpt_done", "v_lshlrev_b32 v13, 7, v0", "s_lshl_b32 s52, s52, 13", "s_add_u32 s52, s52, s55",
          "buffer_load_dword v125, v13, s[36:39], s52 offen", "L_kvpt_done:")
    C3 = [o for o in OPT if o.startswith("c3=")]
    if C3:
        cls = int(C3[0][3:])
        a("s_cmp_lg_u32 s25, 6", "s_cbranch_scc1 L_c3_done",
          "s_and_b32 s52, s24, 1", "s_lshl_b32 s52, s52, 4", "s_add_u32 s52, s52, s23", "s_mul_i32 s52, s52, 36864",
          f"s_add_u32 s52, s52, {384*1024 + cls*128}", "v_cmp_gt_u32 vcc, 36, v0", "v_lshlrev_b32 v13, 10, v0", "s_nop 0",
          "s_and_saveexec_b64 s[56:57], vcc", "buffer_load_dword v125, v13, s[32:35], s52 offen", "s_mov_b64 exec, -1", "L_c3_done:")
    if "late" in OPT: touches()
    if "xa" in OPT: touchX(3, 2, 0, "xa")
    if "wa" in OPT: touchW(3, 2, 1, "wa")
    if "wa5" in OPT: touchW(3, 5, 1, "wa5")
    if "xa4" in OPT: touchX(4, 4, 0, "xa4")
    a(f"s_mov_b32 s56, {f32bits(QSCALE):#x}", f"s_mov_b32 s57, {f32bits(QSCALE):#x}")
    stamp(a, 1)
    a("s_barrier")
    stamp(a, 2)
    if "xb" in OPT or "wb" in OPT or "wb4" in OPT:
        if "xb" in OPT: touchX(5, 3, 2, "xb")
        if "wb" in OPT: touchW(5, 3, 3, "wb")
        if "wb4" in OPT: touchW(4, 4, 3, "wb4")
        a(f"s_mov_b32 s56, {f32bits(QSCALE):#x}", f"s_mov_b32 s57, {f32bits(QSCALE):#x}")
    if "cyc" in OPT: a("s_memtime s[98:99]", "s_waitcnt lgkmcnt(0)")
    BO = [2, 3, 4, 5, 0, 1]
    a(xread(0, 0))
    for b in BO: a(wread(0, b))
    a(xread(0, 1))
    for n in range(16):
        c, s2 = divmod(n, 2)
        for b in BO:
            a(lw1({"X0", f"W{b}"}), m16(0, b, n == 0))
        if n < 15:
            if s2 == 1:
                a("s_waitcnt lgkmcnt(0)", "s_barrier"); lq1.clear()
                if c == 3 and "p1ts" not in OPT: stamp(a, 3)
                if "p1ts" in OPT: stamp(a, 7 + c)
                KVL = [o for o in OPT if o.startswith("kvl=")]
                if KVL:
                    c0, span = [int(x) for x in KVL[0][4:].split(",")]
                    if c0 <= c < c0 + span:
                        per = 4 // span
                        w0 = 4 + (c - c0)*per
                        a.c("a write-through store to a line the memory-side cache does not hold is slow: fetch the K/V block's lines first")
                        a(f"s_sub_u32 s52, s25, {w0}", f"s_cmp_ge_u32 s52, {per}", f"s_cbranch_scc1 L_kvl{c}", "s_sub_u32 s52, s25, 4",
                          "s_lshl_b32 s52, s52, 13", "s_add_u32 s52, s52, s55", "buffer_load_dword v125, v7, s[36:39], s52 offen", f"L_kvl{c}:")
            a(xread(n + 1, 0))
        for i, b in enumerate(BO):
            a(lw1({"X1"}), m16(1, b, n == 0))
            if n < 15: a(wread(n + 1, b))
            elif i < 4:
                for r in range(4): a(f"v_mov_b32 v{O + i*4 + r}, 0")
        if n < 15: a(xread(n + 1, 1))
        assert len(lq1) <= 15
    stamp(a, 4)
    global P1TS_DONE
    P1TS_DONE = True
    a.c("P1 epilogue: K, V -> LDS stage slot 0 (and, after the barrier, global) ; Q -> regs / LDS")
    PK = 64
    def pack2(dst, src): return [f"v_cvt_pk_bf16_f32 v{dst+r}, v{src+2*r}, v{src+2*r+1}" for r in range(2)]
    def acc(th, b): return ACC + (b*2 + th)*4
    def swaps(t): return [f"v_permlane16_swap_b32 v{t}, v{t+2}", f"v_permlane16_swap_b32 v{t+1}, v{t+3}"]
    GST = [f"buffer_store_dwordx4 {vr(PK,4)}, v{VK}, s[36:39], s55 offen {WT}",
      f"buffer_store_dwordx4 {vr(PK+4,4)}, v{VK}, s[36:39], s0 offen {WT}",
      f"buffer_store_dwordx4 {vr(PK+8,4)}, v{VV}, s[36:39], s55 offen {WT}",
      f"buffer_store_dwordx4 {vr(PK+12,4)}, v{VV}, s[36:39], s55 offen offset:512 {WT}"]
    a("s_nop 2")
    a(pack2(PK, acc(0, 2)), pack2(PK + 2, acc(1, 2)), pack2(PK + 4, acc(0, 3)), pack2(PK + 6, acc(1, 3)))
    a(swaps(PK), f"ds_write_b128 v{VK}, {vr(PK,4)}")
    if "stearly" in OPT: a(GST[0])
    a(pack2(PK + 8, acc(0, 4)), pack2(PK + 10, acc(0, 5)))
    a(swaps(PK + 4), f"ds_write_b128 v{VK}, {vr(PK+4,4)} offset:8192")
    if "stearly" in OPT: a(GST[1])
    a(pack2(PK + 12, acc(1, 4)), pack2(PK + 14, acc(1, 5)))
    a(swaps(PK + 8), f"ds_write_b128 v{VV}, {vr(PK+8,4)}")
    if "stearly" in OPT: a(GST[2])
    for r in range(4): a(f"v_pk_mul_f32 {vr(acc(0,1)+2*r,2)}, {vr(acc(0,1)+2*r,2)}, s[56:57]")
    a(swaps(PK + 12), f"ds_write_b128 v{VV}, {vr(PK+12,4)} offset:512")
    if "stearly" in OPT: a(GST[3])
    a(pack2(PK + 16, acc(0, 1)), pack2(PK + 18, acc(1, 1)))
    for r in range(4): a(f"v_pk_mul_f32 {vr(acc(0,0)+2*r,2)}, {vr(acc(0,0)+2*r,2)}, s[56:57]")
    a(swaps(PK + 16), f"ds_write_b128 v{QA}, {vr(PK+16,4)}")
    a(pack2(Q, acc(0, 0)), pack2(Q + 2, acc(1, 0)), "s_nop 1", swaps(Q))
    gst = [f"buffer_store_dwordx4 {vr(PK,4)}, v{VK}, s[36:39], s55 offen {WT}",
      f"buffer_store_dwordx4 {vr(PK+4,4)}, v{VK}, s[36:39], s0 offen {WT}",
      f"buffer_store_dwordx4 {vr(PK+8,4)}, v{VV}, s[36:39], s55 offen {WT}",
      f"buffer_store_dwordx4 {vr(PK+12,4)}, v{VV}, s[36:39], s55 offen offset:512 {WT}"]
    a("s_cmp_ge_u32 s25, 4", "s_cbranch_scc1 L_nost", gst, "L_nost:")
    a("s_waitcnt lgkmcnt(0)")
    stamp(a, 5)
    a("s_barrier")
    stamp(a, 6)
    a("s_branch L_haveq")

    a("L_loader:")
    a("s_sub_u32 s52, s25, 8")
    a("s_and_b32 s53, s52, 1", "s_lshl_b32 s53, s53, 2",
      "v_lshrrev_b32 v2, 4, v0", "v_add_u32 v2, s53, v2", "v_and_b32 v3, 7, v0", "v_xor_b32 v2, v2, v3", "v_lshlrev_b32 v2, 4, v2",
      "v_lshrrev_b32 v4, 3, v0", "v_lshl_add_u32 v2, v4, 10, v2")
    a("v_lshrrev_b32 v4, 2, v0", "v_mul_u32_u24 v4, 3072, v4", "v_and_b32 v3, 3, v0",
      "v_lshrrev_b32 v5, 5, v0", "v_lshlrev_b32 v5, 1, v5", "v_xor_b32 v3, v3, v5", "v_lshl_add_u32 v3, v3, 4, v4",
      "s_lshl_b32 s53, s23, 6", "v_add_u32 v3, s53, v3")
    a("s_lshl_b32 s4, s52, 13", "s_add_u32 s5, s4, 65536", "s_add_u32 s6, s4, 131072", "s_add_u32 s7, s4, 196608",
      "s_lshl_b32 s0, s52, 10")
    a("s_and_b32 s53, s52, 3", "s_mul_i32 s1, s53, 49152", "s_lshr_b32 s53, s52, 2", "s_lshl_b32 s53, s53, 10", "s_add_u32 s1, s1, s53")
    a("s_and_b32 s3, s24, 6")
    a("s_cmp_ge_u32 s52, 4", "s_cbranch_scc1 L_loaderB")
    ROT = "rot" in OPT
    def issueW(c, variantA):
        slot = c % NWS
        if ROT: pre = [f"s_add_u32 s53, s24, {c}" if "rotj" in OPT else f"s_add_u32 s53, s3, {c}", "s_and_b32 s53, s53, 7", "s_lshl_b32 s57, s53, 7", "s_mul_i32 s53, s53, 196608", "s_add_u32 s53, s53, s1",
                       f"s_add_u32 m0, s0, {WRING + slot*12288}", "s_nop 0"]
        else: pre = [f"s_add_u32 m0, s0, {WRING + slot*12288}", f"s_add_u32 s53, s1, {c*196608}"]
        out = pre + [
               "buffer_load_dwordx4 v3, s[32:35], s53 offen" + WNT + " lds"]
        if variantA:
            out += [f"s_add_u32 m0, s0, {WRING + slot*12288 + 8192 - 2048}", "s_nop 0",
                    "buffer_load_dwordx4 v3, s[32:35], s53 offen offset:2048" + WNT + " lds"]
        return out
    def issueX(c):
        slot = c % 3
        out = []
        for aa in range(4):
            out += [f"s_add_u32 m0, s0, {XRING + slot*32768 + aa*8192}", (f"s_add_u32 s53, s{4+aa}, s57" if ROT else f"s_add_u32 s53, s{4+aa}, {c*128}"),
                    "buffer_load_dwordx4 v2, s[28:31], s53 offen" + XNT + " lds"]
        return out
    for variantA in (True, False):
        ops = []
        def W(c):
            a(issueW(c, variantA)); ops.extend([c]*(2 if variantA else 1))
        def X(c):
            a(issueX(c)); ops.extend([c]*4)
        if not variantA: a("L_loaderB:")
        if variantA: stamp(a, 1)
        W(0); X(0); a("s_barrier")
        if "b0f" not in OPT: W(1); X(1)
        if variantA: stamp(a, 2)
        if not variantA:
            a.c("workgroup 0 publishes the launch tag (low 4 bits: 8 | room for an XCC id)")
            a("s_cmp_lg_u32 s2, 0", "s_cbranch_scc1 L_notag", "s_cmp_lg_u32 s52, 7", "s_cbranch_scc1 L_notag")
            a("s_lshl_b64 s[48:49], s[48:49], 4", "s_or_b32 s48, s48, 8",
              "v_mov_b32 v8, 0", "v_mov_b32 v4, s48", "v_mov_b32 v5, s49", "s_mov_b64 exec, 1",
              f"global_store_dwordx2 v8, v[4:5], s[18:19] {WT}", "s_mov_b64 exec, -1")
            a("L_notag:")
        ROLL = "roll" in OPT and not variantA
        def TOUCH(c):
            a("s_mov_b64 exec, s[16:17]", "buffer_load_dword v10, v9, s[44:47], s3 offen", "s_mov_b64 exec, -1", "s_add_u32 s3, s3, s27")
            ops.append(99)
        if ROLL:
            a("s_mov_b32 s3, s52")
        common_init(a)
        if ROLL:
            R0 = int([o for o in OPT if o.startswith("r0=")][0][3:]) if any(o.startswith("r0=") for o in OPT) else 2
            a.c("rolling L2 warm-up of later W chunks, spread over the XCD's workgroups")
            a("s_mov_b32 s44, s32", "s_mov_b32 s45, s33", "s_mov_b32 s46, s34", "s_mov_b32 s17, 0", "s_mov_b32 s27, 196608",
              "s_and_b32 s52, s24, 1", "s_lshl_b32 s52, s52, 4", "s_add_u32 s52, s52, s23", "s_and_b32 s3, s3, 3")
            if "roll3" in OPT:
                a("s_mov_b32 s16, 3", "v_lshlrev_b32 v9, 10, v0", "s_min_u32 s3, s3, 2", "s_lshl_b32 s3, s3, 11", "s_mul_i32 s52, s52, 6144",
                  "s_add_u32 s3, s3, s52", f"s_add_u32 s3, s3, {R0*196608 + 384}")
            else:
                a("s_mov_b32 s16, 0xfff", "v_lshlrev_b32 v9, 7, v0", "s_mul_i32 s3, s3, 1536", "s_mul_i32 s52, s52, 6144",
                  "s_add_u32 s3, s3, s52", f"s_add_u32 s3, s3, {R0*196608}")
            nextT = R0
            RD = int([o for o in OPT if o.startswith("rd=")][0][3:]) if any(o.startswith("rd=") for o in OPT) else 4
            while nextT < RD: TOUCH(nextT); nextT += 1
        nextW = 2
        for c in range(8):
            last = max(i for i, x in enumerate(ops) if x <= c)
            wait = len(ops) - 1 - last
            if not variantA and c == 7:
                a.c("launch tag -> LDS")
                spin(a, "tag", ["v_cmp_ne_u64 vcc, 0, v[6:7]", "s_nop 1", "s_cmp_eq_u64 vcc, -1"],
                     ["global_load_dwordx2 v[6:7], v8, s[18:19] sc1"])
                a(f"ds_write_b64 v{T}, v[6:7]")
            else:
                a(f"s_waitcnt vmcnt({wait})")
            a("s_barrier")
            if variantA and c == 0: stamp(a, 3)
            if variantA and c == 7: stamp(a, 4)
            if "b0f" in OPT and c == 0: W(1); X(1)
            if nextW == c + 2 and nextW <= 7: W(nextW); nextW += 1
            if c + 2 <= 7: X(c + 2)
            while nextW <= min(7, c - 1 + NWS): W(nextW); nextW += 1
            if ROLL and nextT <= 7: TOUCH(nextT); nextT += 1
            if not variantA and c == 5:
                a("v_mov_b32 v8, 0", "global_load_dwordx2 v[6:7], v8, s[18:19] sc1"); ops.append(99)
        if variantA: a("s_branch L_p2_start")

    a("L_p2_start:")
    a(f"v_mov_b32 v{VK}, 0", f"v_mov_b32 v{VV}, 0")
    for r in range(16): a(f"v_mov_b32 v{O+r}, 0")
    a(f"s_add_u32 s53, s62, {QX - 8192}", f"v_add_u32 v{T+1}, s53, v{LO}")
    a("s_waitcnt lgkmcnt(0)")
    stamp(a, 5)
    a("s_barrier")
    stamp(a, 6)
    a(f"ds_read_b128 {vr(Q,4)}, v{T+1}")
    a("L_haveq:")
    cstamp(a, 0)
    def loc(u):
        n, i = divmod(u, 4); sl = n % 10
        return sl // 4, (sl % 4)*16384 + i*2048
    def kread(u):
        b, o = loc(u)
        return [f"ds_read_b128 {vr(KB[u%2],4)}, v{KA[b]} offset:{o}"]
    def vread(u):
        b, o = loc(u)
        return ["s_mov_b64 exec, s[50:51]",
                f"ds_read_b128 {vr(VB[u%2],4)}, v{VA[b]} offset:{o}",
                f"ds_read_b128 {vr(VB[u%2]+4,4)}, v{VA[b]} offset:{o+512}",
                "s_mov_b64 exec, -1"]
    def ex(base, lo, hi): return [f"v_exp_f32 v{base+i}, v{base+i}" for i in range(lo, hi)]
    def opt(name, default): return [int(x) for x in ([o for o in OPT if o.startswith(name + "=")] or [name + "=" + default])[0][len(name)+1:].split(",")]
    HB = [(0, 0), (0, 1)] + [(x, 0) for x in range(1, 8)] + [(x, 1) for x in range(1, 8)]
    poll = [f"buffer_load_dwordx2 {vr(T,2)}, v{T+4}, s[36:39], s57 offen sc1"]
    def fetch_poll(ns, tag, lg, w0):
        per = 16 >> lg
        a(f"s_sub_u32 s52, s25, {w0}", f"s_cmp_ge_u32 s52, {len(ns) << lg}", f"s_cbranch_scc1 L_{tag}_p")
        code = 0; slots = 0
        for k_, n in enumerate(ns):
            code |= (HB[n][0]*2 + HB[n][1]) << (4*k_); slots |= (n % 10) << (4*k_)
        a(f"s_lshr_b32 s63, s52, {lg}", "s_lshl_b32 s63, s63, 2", f"s_lshr_b32 s53, {code:#x}, s63", "s_and_b32 s53, s53, 15",
          "s_lshl_b32 s57, s24, 1", "s_xor_b32 s53, s53, s57",
          "s_lshl_b32 s57, s53, 7", "s_add_u32 s57, s57, s60",
          "s_mov_b64 exec, 15", poll, "s_mov_b64 exec, -1")
        a("s_lshl_b32 s53, s53, 14", "s_add_u32 s56, s53, s54",
          f"s_and_b32 s52, s52, {(1 << lg) - 1}", f"s_mul_i32 s52, s52, {per*1024}", "s_add_u32 s56, s56, s52",
          f"s_lshr_b32 s53, {slots:#x}, s63", "s_and_b32 s53, s53, 15", "s_lshl_b32 s53, s53, 14", "s_add_u32 s52, s52, s53", f"L_{tag}_p:")
    def fetch_load(ns, tag, lg, w0):
        per = 16 >> lg
        a(f"s_sub_u32 s53, s25, {w0}", f"s_cmp_ge_u32 s53, {len(ns) << lg}", f"s_cbranch_scc1 L_{tag}_done", "s_mov_b64 exec, 15")
        spin(a, tag, [f"v_cmp_eq_u64 vcc, s[48:49], {vr(T,2)}", "s_nop 1", "s_cmp_eq_u64 vcc, 15"], poll, SLP)
        a("s_mov_b64 exec, -1")
        for i in range(per):
            if i % 4 == 0: a(f"s_add_u32 m0, s52, {i*1024}", f"s_add_u32 s53, s56, {i*1024}")
            a(f"buffer_load_dwordx4 v{LO}, s[36:39], s53 offen offset:{(i%4)*1024} sc1 lds")
        a(f"L_{tag}_done:")
    SLP = opt("slp", "4")[0]
    a("s_setprio 3", "s_cmp_lt_u32 s25, 4", "s_cselect_b32 s3, 1, 0")
    a(kread(0), kread(1), vread(0), f"ds_read_b64 {vr(T+2,2)}, v{T}", "s_waitcnt lgkmcnt(4)")
    a(mfma(S[0], KB[0], Q, "0"))
    a.c("later-needed lane constants, computed in the shadow of the first MFMA")
    a(f"v_lshrrev_b32 v{WOA}, 4, v{LO}", f"v_bfe_u32 v{CK}, v{WOA}, 4, 1", f"v_lshlrev_b32 v{CK}, 1, v{CK}", f"v_and_b32 v{CK+1}, 7, v{WOA}",
      f"v_xor_b32 v{CK}, v{CK}, v{CK+1}", f"v_lshlrev_b32 v{CK}, 4, v{CK}", f"v_lshrrev_b32 v{WOA}, 3, v{WOA}",
      f"v_lshl_add_u32 v{WOA}, v{WOA}, 10, v{CK}", f"v_and_b32 v{T+5}, 0x78, v{T+4}",
      f"v_mov_b32 v{CK}, 0x33800000", f"v_mov_b32 v{CK+1}, 0x57800000", f"v_mov_b32 v60, 0")
    a("s_waitcnt lgkmcnt(0)")
    a(f"v_readfirstlane_b32 s48, v{T+2}", f"v_readfirstlane_b32 s49, v{T+3}")
    a("s_nop 0")
    NT = 64
    WO = 98304
    B1L = "b1late" in OPT
    LATE = (7, 11) if B1L else (7,)
    BAR = (18, 34, 54) if B1L else (10, 18, 34, 54)
    prio_at = {4: 2, 6: 1, 7: 0, 10: 2 if B1L else 1, 11: 1 if B1L else 3, 14: 2, 17: 1, 18: 0, 27: 2, 32: 1, 34: 0, 45: 2, 52: 1, 54: 0, 60: 2, 62: 1, 63: 0}
    for o in OPT:
        if o.startswith("pr="): prio_at.update({int(x.split(":")[0]): int(x.split(":")[1]) for x in o[3:].split(",")})
    SB = opt("sb", "3")[0]
    F1, F2, F3 = opt("ff", "4,8,12")
    P1_, Q1_, P2_, Q2_, P3_, Q3_ = opt("fu", "3,4,6,7,11,12")
    FETCH = [([2], "f1", 1, 8, P1_, Q1_), ([3, 4], "f2", 1, 10, P2_, Q2_), ([5, 6, 7, 8], "f3", 1, 8, P3_, Q3_),
             ([9, 10, 11, 12, 13], "f4", 0, 8, 19, 20), ([14, 15], "f5", 2, 8, 35, 36)]
    PF_ = opt("pf", "16")[0]
    def publish(u, force):
        a("s_cmp_eq_u32 s3, 0", f"s_cbranch_scc1 L_pub{u}")
        if force == "A": a("s_cmp_lt_u32 s25, 4", f"s_cbranch_scc1 L_pubf{u}")
        if force != "all": a("s_getreg_b32 s53, hwreg(HW_REG_IB_STS)", "s_and_b32 s53, s53, 0xc0000f", f"s_cbranch_scc1 L_pub{u}")
        a(f"L_pubf{u}:", f"v_mov_b32 v{T}, s48", f"v_mov_b32 v{T+1}, s49", "s_waitcnt vmcnt(0)")
        stamp(a, 7)
        a("s_mov_b64 exec, 1", f"buffer_store_dwordx2 {vr(T,2)}, v60, s[36:39], s61 offen {WT}", "s_mov_b64 exec, -1", "s_mov_b32 s3, 0", f"L_pub{u}:")
    def barrier(u):
        if u < 30: a("s_cmp_lt_u32 s25, 8", f"s_cbranch_scc1 L_b{u}", "s_waitcnt vmcnt(0)", f"L_b{u}:")
        else: a("s_waitcnt vmcnt(0)")
        a("s_barrier", "s_setprio 3")
        IDL = opt("idle", "99,0")
        if u == IDL[0]: a(f"s_sleep {IDL[1]}")
    for u in range(NT):
        s = S[u % 2]
        if u in prio_at: a(f"s_setprio {prio_at[u]}")
        late = u in LATE
        a("s_waitcnt lgkmcnt(0)")
        a(ex(s, 0, 2))
        if u > 0: a(smf(O, VB[(u-1) % 2] + 4, S[(u-1) % 2] + 8, IDX))
        if u + 1 < NT and not late: a(vread(u + 1))
        a(ex(s, 2, 5))
        if u + 1 < NT and not late:
            a(mfma(S[(u+1) % 2], KB[(u+1) % 2], Q, "0"))
            if u in BAR:
                barrier(u)
                if u == 34: stamp(a, 10)
                if u == 18 and "b12" in OPT: stamp(a, 2)
                cstamp(a, {10: 2, 18: 3, 34: 4, 54: 6}[u])
            if u + 2 < NT and u + 1 not in LATE: a(kread(u + 2))
        a(ex(s, 5, 10))
        a(smf(O, VB[u % 2], s, IDX))
        a(ex(s, 10, 16))
        if u <= PF_:
            if u == 0: a.c("publish this wave's K/V tile as soon as its stores have been acknowledged")
            publish(u, "A" if u == 7 else "all" if u == PF_ else "")
        if late:
            if u == 7: stamp(a, 8)
            barrier(u)
            if u == 7: stamp(a, 9)
            if u == 11 and "b12" in OPT: stamp(a, 1)
            cstamp(a, {7: 1, 11: 2}[u])
            a(kread(u + 1), kread(u + 2), vread(u + 1), "s_waitcnt lgkmcnt(3)", mfma(S[(u+1) % 2], KB[(u+1) % 2], Q, "0"), "s_nop 10")
        if u == SB:
            a.c("second-half tiles go out after the first-half ones, which are needed sooner")
            a("s_sub_u32 s53, s25, 4", "s_cmp_ge_u32 s53, 4", "s_cbranch_scc1 L_nost2", gst, "s_mov_b32 s3, 1", "L_nost2:")
        if u == 19:
            a.c("wave 0 publishes the workgroup's XCC id")
            a("s_cmp_lg_u32 s25, 0", "s_cbranch_scc1 L_xid", f"v_mov_b32 v{T}, s48", f"v_mov_b32 v{T+1}, s49",
              f"v_or_b32 v{T}, s26, v{T}", "s_lshl_b32 s53, s23, 3", "s_add_u32 s53, s53, s10",
              "s_mov_b64 exec, 1", f"buffer_store_dwordx2 {vr(T,2)}, v60, s[36:39], s53 offen {WT}", "s_mov_b64 exec, -1", "L_xid:")
        for (ns, tag, lg, w0, up, ul) in FETCH:
            if u == up: fetch_poll(ns, tag, lg, w0)
            if u == ul: fetch_load(ns, tag, lg, w0)
        if u in (37, 38, 56, 57):
            aa = {37: 0, 38: 1, 56: 2, 57: 3}[u]
            if aa == 0: a.c("Wo tile -> LDS (half-slots 6..9)")
            a("s_lshl_b32 s63, s25, 13", f"s_add_u32 m0, s62, {WO + aa*16384}", f"s_add_u32 s53, s63, {aa*131072}", f"buffer_load_dwordx4 v{WOA}, s[40:43], s53 offen lds")
        if u == 46:
            a.c("XCC ids of the row block's workgroups; bring the O and O-flag lines this wave will write into L2")
            a(f"buffer_load_dwordx2 {vr(T+2,2)}, v{T+5}, s[36:39], s10 offen sc1",
              f"buffer_load_dword v{T+1}, v60, s[36:39], s59 offen",
              f"buffer_load_dword v{T}, v{LO}, s[36:39], s58 offen")
        if u == 55:
            a.c("local hand-off only when all 16 workgroups of this row block run on this XCC")
            a("s_or_b32 s52, s48, s26", "s_mov_b32 s53, s49", f"v_cmp_eq_u64 vcc, s[52:53], {vr(T+2,2)}", "s_nop 1",
              "s_cmp_eq_u64 vcc, -1", "s_cselect_b32 s27, 1, 0")
            if "noloc" in OPT: a("s_mov_b32 s27, 0")
    a("s_nop 1", smf(O, VB[(NT-1) % 2] + 4, S[(NT-1) % 2] + 8, IDX), "s_setprio 3",
      f"v_mov_b32 v{T}, s48", f"v_mov_b32 v{T+1}, s49", f"v_mov_b32 v{T+3}, 0x7f800000", "s_nop 7")
    a.c("safety check of the zero stand-in: 2^-24 <= l <= 2^48 and finite O, else redo with the true row max")
    a(f"v_cmp_le_f32 s[52:53], v{CK}, v{O+8}", f"v_cmp_ge_f32 s[56:57], v{CK+1}, v{O+8}",
      f"v_max3_f32 v{CK}, abs(v{O}), abs(v{O+1}), abs(v{O+2})", f"v_max3_f32 v{CK}, abs(v{O+3}), abs(v{O+4}), v{CK}",
      f"v_max3_f32 v{CK}, abs(v{O+5}), abs(v{O+6}), v{CK}", f"v_max_f32 v{CK}, abs(v{O+7}), v{CK}",
      "s_and_b64 s[52:53], s[52:53], s[56:57]",
      f"v_cmp_gt_f32 vcc, v{T+3}, v{CK}", f"v_rcp_f32 v{T+2}, v{O+8}", "s_and_b64 s[52:53], s[52:53], vcc",
      "s_cmp_eq_u64 s[52:53], -1", "s_cbranch_scc0 L_fallback")
    a("L_finish:")
    stamp(a, 11)
    cstamp(a, 5)
    if "cyc2" in OPT: a("s_memtime s[96:97]", "s_waitcnt lgkmcnt(0)", "s_sub_u32 s96, s96, s98", "s_add_u32 s66, s82, s96", "s_addc_u32 s67, s83, 0")
    for r in range(4): a(f"v_pk_mul_f32 {vr(O+2*r,2)}, {vr(O+2*r,2)}, {vr(T+2,2)} op_sel_hi:[1,0]")
    for r in range(4): a(f"v_cvt_pk_bf16_f32 v{O+12+r}, v{O+2*r}, v{O+2*r+1}")
    a("s_cmp_eq_u32 s27, 1", "s_cbranch_scc1 L_ostore_local")
    a(f"buffer_store_dwordx4 {vr(O+12,4)}, v{LO}, s[36:39], s58 offen {WT}", "s_waitcnt vmcnt(0)",
      "s_mov_b64 exec, 1", f"buffer_store_dwordx2 {vr(T,2)}, v60, s[36:39], s59 offen {WT}", "s_mov_b64 exec, -1", "s_branch L_ostored")
    a("L_ostore_local:")
    a(f"buffer_store_dwordx4 {vr(O+12,4)}, v{LO}, s[36:39], s58 offen", "s_waitcnt vmcnt(0)",
      "s_mov_b64 exec, 1", f"buffer_store_dwordx2 {vr(T,2)}, v60, s[36:39], s59 offen", "s_mov_b64 exec, -1")
    a("L_ostored:")
    stamp(a, 12)
    a("s_barrier")
    if TS:
        a("s_cmp_lt_u32 s25, 8", "s_cbranch_scc1 L_ts_p3", "s_barrier", "s_barrier", "s_barrier")
        if "allw" in OPT:
            for w in range(8, 16): ts_flush(a, w, w, f"w{w}")
        else:
            ts_flush(a, 1, 8, "w8")
            ts_flush(a, 2, 15, "w15")
        a("s_endpgm", "L_ts_p3:")
    else:
        a("s_cmp_ge_u32 s25, 8", "s_cbranch_scc1 L_done")

    ACC3 = [0, 16]; OFR = 32; WB = [96, 104, 112]; A3 = [120, 122]; VO = 116; PA = 123; L = 118; PF = 124
    opoll = [f"buffer_load_dwordx4 {vr(PF,4)}, v{LO}, s[36:39], s11 offen sc1"]
    ocond = [f"v_cmp_eq_u64 vcc, s[48:49], {vr(PF,2)}", f"v_cmp_eq_u64 s[52:53], s[48:49], {vr(PF+2,2)}", "s_nop 1",
             "s_and_b64 vcc, vcc, s[52:53]", "s_cmp_eq_u64 vcc, -1"]
    a("s_cmp_lt_u32 s25, 4", "s_cbranch_scc1 L_p3c")
    a("s_and_b32 s56, s25, 3", "s_lshl_b32 s56, s56, 14")
    a("s_barrier")
    for i in range(16):
        a(f"s_add_u32 m0, s56, {i*1024}", f"s_add_u32 s53, s12, {(16+i)*1024}", f"buffer_load_dwordx4 v{LO}, s[36:39], s53 offen sc1 lds")
    a("s_waitcnt vmcnt(8)", "s_barrier", "s_waitcnt vmcnt(0)", "s_barrier")
    if "wb2" in OPT:
        a("s_cmp_lg_u32 s25, 4", "s_cbranch_scc1 L_nowb", "buffer_wbl2 sc1", "L_nowb:")
    if "allw" in OPT:
        for w in range(4, 8): ts_flush(a, w, w, f"w{w}")
    a("s_endpgm")
    a("L_p3c:")
    a(opoll)
    a(f"v_lshrrev_b32 v6, 4, v{LO}")
    a(f"v_lshrrev_b32 v4, 5, v6", f"v_bfe_u32 v5, v6, 2, 2", "v_lshl_add_u32 v4, v4, 2, v5", "v_lshlrev_b32 v4, 7, v4",
      f"v_and_b32 v5, 1, v6", "v_lshl_add_u32 v4, v5, 6, v4", f"v_bfe_u32 v5, v6, 4, 1", "v_lshl_add_u32 v4, v5, 4, v4",
      f"v_bfe_u32 v5, v6, 3, 1", "v_lshl_add_u32 v4, v5, 5, v4", f"v_bfe_u32 v5, v6, 1, 1", f"v_lshl_add_u32 v4, v5, 3, v4",
      f"v_add_u32 v{A3[0]}, {WO}, v4", f"v_xor_b32 v{A3[1]}, 32, v{A3[0]}")
    a("s_lshl_b32 s56, s25, 14", f"v_add_u32 v{PA}, s56, v{LO}")
    def reads3(hd, buf):
        out = []
        for cb in range(2):
            for j in range(2):
                out.append(f"ds_read_b64_tr_b16 {vr(buf + cb*4 + j*2, 2)}, v{A3[cb]} offset:{hd*2048 + j*1024}")
        return out
    a(reads3(0, WB[0]), reads3(1, WB[1]))
    spin(a, "o", ocond, opoll)
    stamp(a, 13)
    for i in range(16):
        if i % 4 == 0: a(f"s_add_u32 s53, s12, {i*1024}")
        a(f"buffer_load_dwordx4 {vr(OFR + i*4, 4)}, v{LO}, s[36:39], s53 offen offset:{(i%4)*1024} sc1")
    a("s_barrier")
    lq = ["W0"]*4 + ["W1"]*4
    def lwait(need):
        nonlocal lq
        idx = [i for i, x in enumerate(lq) if x in need]
        if not idx: return None
        keep = len(lq) - 1 - max(idx)
        lq = lq[len(lq) - keep:]
        return keep
    def oread(n):
        lq.append(f"O{n}")
        return f"ds_read_b128 {vr(OFR + (n-16)*4, 4)}, v{PA} offset:{(n-16)*1024}"
    for n in range(32):
        cur = WB[n % 3]
        if n in (16, 24):
            if "p3ts" in OPT and n == 16: stamp(a, 2); lq = []
            a("s_barrier")
            if "p3ts" in OPT and n == 24: stamp(a, 3); lq = []
            for i in range(2): a(oread(n + i))
        if n + 2 < 32:
            a(reads3(n + 2, WB[(n+2) % 3])); lq.extend([f"W{n+2}"]*4)
        if n >= 16 and (n % 8) + 2 < 8: a(oread(n + 2))
        assert len(lq) <= 15, lq
        kw = lwait({f"W{n}", f"O{n}"})
        w = []
        if n < 16: w.append(f"vmcnt({15 - n})")
        if kw is not None: w.append(f"lgkmcnt({kw})")
        if w: a("s_waitcnt " + " ".join(w))
        if "p3ts" in OPT and n in (0, 31): stamp(a, {0: 1, 31: 4}[n]); lq = []
        for cb in range(2):
            a(mfma(ACC3[cb], cur + cb*4, OFR + (n%16)*4, "0" if n == 0 else ACC3[cb]))
    a(f"v_lshrrev_b32 v{L}, 4, v{LO}")
    PA = 117
    a.c("transpose through LDS (slot 1 is free) so that every store writes whole 128-byte lines")
    TA_ = 119; TB_ = 120
    a(f"v_and_b32 v{TA_}, 31, v{L}", f"v_lshrrev_b32 v{PA}, 5, v{L}", f"v_lshlrev_b32 v{PA}, 2, v{PA}", f"v_and_b32 v{TB_}, 7, v{L}",
      f"v_xor_b32 v{PA}, v{PA}, v{TB_}", f"v_lshlrev_b32 v{PA}, 4, v{PA}", f"v_lshl_add_u32 v{TA_}, v{TA_}, 7, v{PA}",
      "s_mov_b32 s52, s56", f"v_add_u32 v{TA_}, s52, v{TA_}",
      f"v_lshrrev_b32 v{PA}, 3, v{L}", f"v_xor_b32 v{VO}, v{PA}, v{TB_}", f"v_lshlrev_b32 v{VO}, 4, v{VO}", f"v_lshl_add_u32 v{VO}, v{PA}, 7, v{VO}",
      f"v_add_u32 v{VO}, s52, v{VO}",
      f"v_lshlrev_b32 v{TB_}, 4, v{TB_}", f"v_lshl_add_u32 v{TB_}, v{PA}, 11, v{TB_}")
    for cb in range(2):
        for q in range(2):
            c = cb*2 + q
            t = 32 + c*4
            for r in range(4): a(f"v_cvt_pk_bf16_f32 v{t+r}, v{ACC3[cb]+q*8+2*r}, v{ACC3[cb]+q*8+2*r+1}")
            if c: a(f"v_xor_b32 v{PA}, {c*16}, v{TA_}")
            a(f"ds_write_b128 v{PA if c else TA_}, {vr(t,4)}")
    a("s_waitcnt lgkmcnt(0)")
    for i in range(4): a(f"ds_read_b128 {vr(48 + i*4, 4)}, v{VO} offset:{i*1024}")
    for i in range(4):
        a(f"s_add_u32 s53, s13, {i*16384}", f"s_waitcnt lgkmcnt({3-i})", f"buffer_store_dwordx4 {vr(48 + i*4, 4)}, v{TB_}, s[44:47], s53 offen" + (" sc1" if "osc1" in OPT else " nt" if "ont" in OPT else " sc0 sc1" if "osys" in OPT else ""))
    if TS:
        if "p3ts" in OPT: stamp(a, 5)
        a("s_waitcnt vmcnt(0)")
        stamp(a, 14)
        ts_flush(a, 0, 0, "w0")
        if "allw" in OPT:
            for w in range(1, 4): ts_flush(a, w, w, f"w{w}")
    a("L_done:", "s_endpgm")

    a("L_fallback:")
    M = T + 2
    a("s_lshr_b32 s52, s25, 3", "s_lshl_b32 s52, s52, 13", "s_add_u32 s52, s52, s54",
      f"v_mov_b32 v{M}, 0xff800000", "s_mov_b32 s63, 0",
      f"v_sub_u32 v{T+3}, v{VA[0]}, v{KA[0]}", f"v_add_u32 v{T+3}, v{T+3}, v{LO}")
    def fb_addr():
        return ["s_lshr_b32 s53, s63, 2", "s_lshl_b32 s53, s53, 14", "s_and_b32 s56, s63, 3", "s_lshl_b32 s56, s56, 11",
                "s_add_u32 s53, s53, s56", "s_add_u32 s53, s53, s52"]
    a("L_fb1:", fb_addr(),
      f"buffer_load_dwordx4 {vr(KB[0],4)}, v{LO}, s[36:39], s53 offen sc1", "s_waitcnt vmcnt(0)",
      mfma(S[0], KB[0], Q, "0"), "s_nop 15")
    for r in range(8): a(f"v_max3_f32 v{M}, v{S[0]+2*r}, v{S[0]+2*r+1}, v{M}")
    a("s_add_u32 s63, s63, 1", "s_cmp_lg_u32 s63, 64", "s_cbranch_scc1 L_fb1")
    a(f"v_mov_b32 v{T}, v{M}", "s_nop 1", f"v_permlane32_swap_b32 v{M}, v{T}", "s_nop 1", f"v_max_f32 v{M}, v{M}, v{T}", f"v_sub_f32 v{M}, 0, v{M}")
    for r in range(16): a(f"v_mov_b32 v{CM+r}, v{M}")
    for r in range(16): a(f"v_mov_b32 v{O+r}, 0")
    a("s_mov_b32 s63, 0")
    a("L_fb2:", fb_addr(),
      f"buffer_load_dwordx4 {vr(KB[0],4)}, v{LO}, s[36:39], s53 offen sc1", "s_mov_b64 exec, s[50:51]",
      f"buffer_load_dwordx4 {vr(VB[0],4)}, v{T+3}, s[36:39], s53 offen sc1",
      f"buffer_load_dwordx4 {vr(VB[0]+4,4)}, v{T+3}, s[36:39], s53 offen offset:512 sc1", "s_mov_b64 exec, -1",
      "s_waitcnt vmcnt(0)", mfma(S[0], KB[0], Q, CM), "s_nop 15")
    a(ex(S[0], 0, 16), "s_nop 1", smf(O, VB[0], S[0], IDX), smf(O, VB[0] + 4, S[0] + 8, IDX))
    a("s_add_u32 s63, s63, 1", "s_cmp_lg_u32 s63, 64", "s_cbranch_scc1 L_fb2")
    a("s_nop 15", f"v_rcp_f32 v{T+2}, v{O+8}", f"v_mov_b32 v{T}, s48", f"v_mov_b32 v{T+1}, s49", "s_branch L_finish", "L_code_end:")
    a.l.append(f""".section .rodata,"a"
.p2align 6
.amdhsa_kernel {k}
  .amdhsa_next_free_vgpr 128
  .amdhsa_next_free_sgpr {102 if TS else 64}
  .amdhsa_accum_offset 128
  .amdhsa_group_segment_fixed_size 0
  .amdhsa_kernarg_size 72
  .amdhsa_user_sgpr_count 2
  .amdhsa_user_sgpr_kernarg_segment_ptr 1
  .amdhsa_system_sgpr_workgroup_id_x 1
.end_amdhsa_kernel""")

a = Asm()
a.l += ["; MHA x2 (S=2048, D=512, H=32), one launch: qkv projection -> attention -> output projection",
        "; @launch grid=(256,1,1) block=(1024,1,1) lds=163840",
        '.amdgcn_target "amdgcn-amd-amdhsa--gfx950"', ".text"]
gen(a)
print(a.text())
```

```python
import sys, math, struct

NAME = "concat_heads__mha_block__mha_block__prompt"
OPT = set(sys.argv[1:]) | {"pub0", "stmid", "tx67", "b0late", "c3=3"}
if not OPT & {"tx", "a3", "nopf"}: OPT |= {"tx", "late", "wa2", "wb4"}
NWS = 5 if "w5" in OPT else (4 if "w4" in OPT else 3)
TS = "ts" in OPT
WT = "sc0 sc1" if "sys" in OPT else "sc1 nt" if "wtnt" in OPT else "sc1"
XNT = " nt" if "xnt" in OPT else ""
WNT = " nt" if "wnt" in OPT else ""
KV_OFF = 0
OF_OFF = 8 << 20
FKV_OFF = 12 << 20
FO_OFF = (12 << 20) + 65536
XID_OFF = (12 << 20) + 131072
WS_USED = 13 << 20
QSCALE = 0.25 * math.log2(math.e)
SPIN_MAX = 1 << 18
def f32bits(x): return struct.unpack("<I", struct.pack("<f", x))[0]

class Asm:
    def __init__(self): self.l = []
    def __call__(self, *lines):
        for x in lines:
            if isinstance(x, (list, tuple)): self(*x)
            else: self.l.append("    " + x if not x.endswith(":") else x)
    def c(self, s): self.l.append("    ; " + s)
    def text(self): return "\n".join(self.l)

def vr(b, n): return f"v[{b}:{b+n-1}]"
def mfma(d, a, b, c):
    cs = vr(c, 16) if isinstance(c, int) else c
    return f"v_mfma_f32_32x32x16_bf16 {vr(d,16)}, {vr(a,4)}, {vr(b,4)}, {cs}"
def smf(d, a, b, idx): return f"v_smfmac_f32_32x32x32_bf16 {vr(d,16)}, {vr(a,4)}, {vr(b,8)}, v{idx}"

P1TS_DONE = False
def stamp(a, j):
    if "p1ts" in OPT and P1TS_DONE and j >= 7: return
    if "cyc3" in OPT: return
    if TS: a(f"s_memrealtime s[{64+2*j}:{65+2*j}]", "s_waitcnt lgkmcnt(0)")
def cstamp(a, j):
    if "cyc3" in OPT and not ("ends" in OPT and j not in (0, 5)):
        if j == 0: a("s_memtime s[98:99]", "s_waitcnt lgkmcnt(0)")
        else: a("s_memtime s[96:97]", "s_waitcnt lgkmcnt(0)", "s_sub_u32 s96, s96, s98", f"s_add_u32 s{64+2*j}, s64, s96", f"s_addc_u32 s{65+2*j}, s65, 0")
def ts_init(a):
    if TS:
        for j in range(15): a(f"s_mov_b64 s[{64+2*j}:{65+2*j}], 0")
        a("s_mov_b32 s94, 0x5151", "s_mov_b32 s95, 0")
def ts_flush(a, kidx, wave, tag):
    if not TS: return
    a(f"s_cmp_lg_u32 s25, {wave}", f"s_cbranch_scc1 TS_skip_{tag}")
    a("s_sleep 127", "s_sleep 127", "s_sleep 127")
    a("s_mov_b64 exec, 1", f"s_lshl_b32 s96, s2, 7", f"s_add_u32 s96, s96, {(32<<20) + kidx*256*128}", "v_mov_b32 v1, s96")
    for j in range(16):
        a(f"v_mov_b32 v2, s{64+2*j}", f"v_mov_b32 v3, s{65+2*j}", f"global_store_dwordx2 v1, v[2:3], s[20:21] offset:{j*8}", "s_nop 1")
    a("s_waitcnt vmcnt(0)", "s_mov_b64 exec, -1", f"TS_skip_{tag}:")

XRING = 0
WRING = 98304
QX = 65536
TAGL = 163832
EREG = 131072

def spin(a, name, cond_lines, reload_lines, slp=1):
    a(f"s_mov_b32 s63, {SPIN_MAX}", f"L_{name}_chk:", "s_waitcnt vmcnt(0)", cond_lines, f"s_cbranch_scc1 L_{name}_ok", f"s_sleep {slp}",
      reload_lines, "s_sub_u32 s63, s63, 1", "s_cmp_lg_u32 s63, 0", f"s_cbranch_scc1 L_{name}_chk", "s_waitcnt vmcnt(0)", f"L_{name}_ok:")

def gen(a):
    k = NAME + "_kernel"
    a.l += [f".globl {k}", ".p2align 8", f".type {k},@function", f"{k}:"]
    a("s_cmp_ge_u32 s2, 256", "s_cbranch_scc1 L_done")
    a("s_load_dwordx16 s[4:19], s[0:1], 0", "s_load_dwordx2 s[20:21], s[0:1], 64")
    ts_init(a)
    if TS: a("s_memrealtime s[64:65]")
    a("s_memrealtime s[48:49]")
    a("s_and_b32 s52, s2, 7", "s_lshr_b32 s53, s2, 3",
      "s_lshr_b32 s22, s52, 2",
      "s_and_b32 s23, s53, 15",
      "s_and_b32 s24, s52, 3", "s_lshl_b32 s24, s24, 1", "s_lshr_b32 s53, s53, 4", "s_add_u32 s24, s24, s53")
    a("v_lshrrev_b32 v1, 6, v0", "v_and_b32 v0, 63, v0", "s_getreg_b32 s26, hwreg(HW_REG_XCC_ID)", "v_readfirstlane_b32 s25, v1")
    a("s_and_b32 s26, s26, 7", "s_lshl_b32 s62, s25, 10")
    a("s_waitcnt lgkmcnt(0)")
    WSB = int(([o for o in OPT if o.startswith("wsb=")] or ["wsb=0"])[0][4:]) << 20
    if WSB: a(f"s_add_u32 s20, s20, {WSB}", "s_addc_u32 s21, s21, 0")
    a("s_cmp_eq_u32 s22, 0",
      "s_cselect_b32 s4, s4, s10", "s_cselect_b32 s5, s5, s11", "s_cselect_b32 s6, s6, s12", "s_cselect_b32 s7, s7, s13",
      "s_cselect_b32 s8, s8, s14", "s_cselect_b32 s9, s9, s15")
    a("s_lshl_b32 s52, s24, 18", "s_add_u32 s28, s4, s52", "s_addc_u32 s29, s5, 0", "s_and_b32 s29, s29, 0xffff",
      "s_mov_b32 s30, 262144", "s_mov_b32 s31, 0x20000")
    a("s_mov_b32 s32, s6", "s_and_b32 s33, s7, 0xffff", f"s_mov_b32 s34, {512*3072}", "s_mov_b32 s35, 0x20000")
    a("s_cmp_ge_u32 s25, 8", "s_cbranch_scc1 L_loader")

    O = 0; Q = 16; S = [20, 36]; KB = [52, 56]; VB = [100, 108]; IDX = 116; KA = [117, 118, 98]; VA = [119, 120, 99]; LO = 121; T = 122
    CM = 80
    WOA = 61; CK = 62

    def common_init(a):
        a("s_mov_b32 s36, s20", "s_and_b32 s37, s21, 0xffff", f"s_mov_b32 s38, {WS_USED}", "s_mov_b32 s39, 0x20000")
        a("s_and_b32 s52, s23, 7", "s_lshl_b32 s52, s52, 7", "s_add_u32 s40, s8, s52", "s_addc_u32 s41, s9, 0", "s_and_b32 s41, s41, 0xffff",
          f"s_sub_u32 s42, {512*1024}, s52", "s_mov_b32 s43, 0x20000")
        a("s_mov_b32 s44, s16", "s_and_b32 s45, s17, 0xffff", f"s_mov_b32 s46, {2048*2048}", "s_mov_b32 s47, 0x20000")
        a("s_mov_b32 s50, 0xffff", "s_mov_b32 s51, 0xffff", "s_mov_b32 s27, 0")
        a("s_lshl_b32 s54, s22, 4", "s_add_u32 s54, s54, s23", "s_lshl_b32 s54, s54, 18", "s_lshl_b32 s55, s24, 15", "s_add_u32 s55, s55, s54")
        a(f"v_lshlrev_b32 v{LO}, 4, v0",
          "s_lshr_b32 s56, s25, 3", "s_lshl_b32 s53, s56, 13",
          f"v_add_u32 v{KA[0]}, s53, v{LO}", f"v_add_u32 v{KA[1]}, 0x10000, v{KA[0]}", f"v_add_u32 v{KA[2]}, 0x20000, v{KA[0]}",
          "v_and_b32 v13, 15, v0", "v_lshlrev_b32 v13, 4, v13", "v_lshrrev_b32 v14, 5, v0", "v_lshl_add_u32 v13, v14, 8, v13",
          "s_add_u32 s53, s53, 1024", f"v_add_u32 v{VA[0]}, s53, v13", f"v_add_u32 v{VA[1]}, 0x10000, v{VA[0]}", f"v_add_u32 v{VA[2]}, 0x20000, v{VA[0]}",
          f"v_mov_b32 v{IDX}, 0xdddddddd")
        a("v_and_b32 v13, 27, v0", "v_cmp_eq_u32 vcc, 16, v13", "v_mov_b32 v14, 0x3f803f80",
          f"v_mov_b32 v{T}, {TAGL}", f"v_lshlrev_b32 v{T+4}, 3, v0", "v_cndmask_b32 v13, 0, v14, vcc")
        for r in range(16): a(f"v_mov_b32 v{VB[0]+r}, v13")
        a("s_and_b32 s53, s25, 7", "s_lshl_b32 s58, s24, 3", "s_add_u32 s58, s58, s53", "s_lshl_b32 s57, s22, 6", "s_add_u32 s58, s58, s57",
          "s_lshl_b32 s58, s58, 5", "s_lshl_b32 s53, s23, 1", "s_add_u32 s53, s53, s56", "s_add_u32 s58, s58, s53",
          "s_lshl_b32 s59, s58, 3", f"s_add_u32 s59, s59, {FO_OFF}", "s_lshl_b32 s58, s58, 10", f"s_add_u32 s58, s58, {OF_OFF}")
        a("s_lshr_b32 s60, s54, 7", f"s_add_u32 s60, s60, {FKV_OFF}", "s_lshl_b32 s61, s24, 8", "s_add_u32 s61, s61, s60",
          "s_bfe_u32 s53, s25, 0x10002", "s_lshl_b32 s53, s53, 7", "s_add_u32 s61, s61, s53",
          "s_and_b32 s53, s25, 3", "s_lshl_b32 s53, s53, 3", "s_add_u32 s61, s61, s53")
        a("s_lshl_b32 s10, s22, 3", "s_add_u32 s10, s10, s24", "s_lshl_b32 s10, s10, 7", f"s_add_u32 s10, s10, {XID_OFF}")
        a("s_lshl_b32 s52, s24, 3", "s_lshr_b32 s53, s23, 3", "s_lshl_b32 s53, s53, 2", "s_add_u32 s52, s52, s53",
          "s_add_u32 s53, s57, s52", "s_lshl_b32 s11, s53, 8", f"s_add_u32 s11, s11, {FO_OFF}",
          "s_and_b32 s12, s25, 3", "s_add_u32 s52, s52, s12", "s_add_u32 s53, s53, s12", "s_lshl_b32 s12, s53, 15", f"s_add_u32 s12, s12, {OF_OFF}",
          "s_lshl_b32 s13, s22, 10", "s_and_b32 s53, s23, 7", "s_lshl_b32 s53, s53, 7", "s_add_u32 s13, s13, s53",
          "s_lshl_b32 s53, s52, 16", "s_add_u32 s13, s13, s53")

    XA = [1, 2]; XB = [3, 4]; WA = [5, 6]; VK = 96; VV = 97; QA = 123
    ACC = 16
    FXR = [64, 68]; FW = 72
    def touches():
        if "tx" in OPT:
            a.c("HBM/L2 warm-up: waves 0,1 touch 8 KB each of this workgroup's share of the X block")
            if "tx67" in OPT:
                a("s_and_b32 s53, s25, 6", "s_mov_b32 s52, s23", "s_cmp_eq_u32 s53, 0", "s_cbranch_scc1 L_tx_own",
                  "s_cmp_lg_u32 s53, 6", "s_cbranch_scc1 L_tx_done", "s_sub_u32 s52, s23, 2", "s_lshr_b32 s53, s52, 1", "s_cmp_lg_u32 s53, 3", "s_cbranch_scc1 L_tx_done",
                  "s_branch L_tx_go", "L_tx_own:", "s_lshr_b32 s53, s52, 1", "s_cmp_eq_u32 s53, 3", "s_cbranch_scc1 L_tx_done", "L_tx_go:",
                  "s_lshl_b32 s52, s52, 14", "s_and_b32 s53, s25, 1", "s_lshl_b32 s53, s53, 13", "s_add_u32 s52, s52, s53",
                  "v_lshlrev_b32 v13, 7, v0", "buffer_load_dword v125, v13, s[28:31], s52 offen" + XNT, "L_tx_done:")
            else:
                a("s_cmp_ge_u32 s25, 2", "s_cbranch_scc1 L_tx_done",
                  "s_lshl_b32 s52, s23, 14", "s_lshl_b32 s53, s25, 13", "s_add_u32 s52, s52, s53",
                  "v_lshlrev_b32 v13, 7, v0", "buffer_load_dword v125, v13, s[28:31], s52 offen" + XNT, "L_tx_done:")
        if "tw" in OPT:
            a.c("waves 2,3 touch 6 KB each of W (1/128 of the matrix per workgroup)")
            a("s_sub_u32 s52, s25, 2", "s_cmp_ge_u32 s52, 2", "s_cbranch_scc1 L_tw_done",
              "s_lshl_b32 s53, s24, 4", "s_add_u32 s53, s53, s23", "s_lshl_b32 s53, s53, 1", "s_add_u32 s52, s52, s53",
              "s_mul_i32 s52, s52, 6144", "v_cmp_gt_u32 vcc, 48, v0", "v_lshlrev_b32 v13, 7, v0", "s_and_saveexec_b64 s[56:57], vcc",
              "buffer_load_dword v125, v13, s[32:35], s52 offen", "s_mov_b64 exec, -1", "L_tw_done:")
        if "twf" in OPT:
            a.c("waves 2..7 touch 8 KB each of W (1/32 of the matrix per workgroup)")
            a("s_sub_u32 s52, s25, 2", "s_cmp_ge_u32 s52, 6", "s_cbranch_scc1 L_twf_done",
              "s_and_b32 s53, s24, 1", "s_lshl_b32 s53, s53, 4", "s_add_u32 s53, s53, s23", "s_mul_i32 s53, s53, 6", "s_add_u32 s52, s52, s53",
              "s_lshl_b32 s52, s52, 13", "v_lshlrev_b32 v13, 7, v0",
              "buffer_load_dword v125, v13, s[32:35], s52 offen", "L_twf_done:")
    def touchX(c0, nc, wave, tag):
        a(f"s_cmp_lg_u32 s25, {wave}", f"s_cbranch_scc1 L_{tag}_done")
        if nc == 2: a("v_lshrrev_b32 v13, 1, v0", "v_and_b32 v14, 1, v0")
        elif nc == 4: a("v_lshrrev_b32 v13, 2, v0", "v_and_b32 v14, 3, v0")
        else: a("v_mul_u32_u24 v13, 43, v0", "v_lshrrev_b32 v13, 7, v13", "v_mul_u32_u24 v14, 3, v13", "v_sub_u32 v14, v0, v14")
        a("v_lshlrev_b32 v13, 10, v13", "v_lshl_add_u32 v13, v14, 7, v13", "s_lshl_b32 s52, s23, 14", f"s_add_u32 s52, s52, {c0*128}",
          f"v_cmp_gt_u32 vcc, {16*nc}, v0", "s_nop 1", "s_and_saveexec_b64 s[56:57], vcc",
          "buffer_load_dword v125, v13, s[28:31], s52 offen" + XNT, "s_mov_b64 exec, -1", f"L_{tag}_done:")
    def touchW(c0, nc, wave, tag):
        a(f"s_cmp_lg_u32 s25, {wave}", f"s_cbranch_scc1 L_{tag}_done",
          "s_lshl_b32 s52, s24, 4", "s_add_u32 s52, s52, s23", f"s_mul_i32 s52, s52, {nc*1536}", f"s_add_u32 s52, s52, {c0*196608}",
          f"v_cmp_gt_u32 vcc, {12*nc}, v0", "v_lshlrev_b32 v13, 7, v0", "s_nop 0", "s_and_saveexec_b64 s[56:57], vcc",
          "buffer_load_dword v125, v13, s[32:35], s52 offen" + WNT, "s_mov_b64 exec, -1", f"L_{tag}_done:")
    if "tlb" in OPT:
        a.c("translation warm-up: wave 0 of workgroup i touches one of the pages the kernel will need")
        a("s_cmp_lg_u32 s25, 0", "s_cbranch_scc1 L_tlb_done",
          "s_and_b32 s52, s23, 7", "v_mov_b32 v13, 0",
          "s_cmp_eq_u32 s52, 0", "s_cbranch_scc1 L_tlb0", "s_cmp_eq_u32 s52, 1", "s_cbranch_scc1 L_tlb1",
          "s_cmp_eq_u32 s52, 2", "s_cbranch_scc1 L_tlb2", "s_cmp_eq_u32 s52, 3", "s_cbranch_scc1 L_tlb3",
          "s_cmp_eq_u32 s52, 4", "s_cbranch_scc1 L_tlb4")
        a("s_lshl_b32 s53, s22, 22", "s_lshr_b32 s56, s23, 3", "s_lshl_b32 s56, s56, 21", "s_add_u32 s53, s53, s56",
          "s_lshl_b32 s56, s22, 21", f"s_add_u32 s56, s56, {OF_OFF}",
          "s_cmp_eq_u32 s52, 6", "s_cselect_b32 s53, s56, s53", "s_cmp_eq_u32 s52, 7", f"s_cselect_b32 s53, {FKV_OFF}, s53",
          "v_mov_b32 v13, s53", "global_load_dword v125, v13, s[20:21]", "s_branch L_tlb_done")
        a("L_tlb0:", "buffer_load_dword v125, v13, s[28:31], 0 offen", "s_branch L_tlb_done")
        a("L_tlb1:", "buffer_load_dword v125, v13, s[32:35], 0 offen", "s_branch L_tlb_done")
        a("L_tlb2:", "global_load_dword v125, v13, s[8:9]", "s_branch L_tlb_done")
        a("L_tlb3:", "s_lshr_b32 s53, s24, 2", "s_lshl_b32 s53, s53, 21", "v_mov_b32 v13, s53", "global_load_dword v125, v13, s[16:17]", "s_branch L_tlb_done")
        a("L_tlb4:", "global_load_dword v125, v13, s[18:19] sc1", "L_tlb_done:")
    if "cpf" in OPT:
        a.c("pull the kernel's code into L2 (waves 4..7, 64 lines each)")
        a("s_sub_u32 s52, s25, 4", "s_cmp_ge_u32 s52, 4", "s_cbranch_scc1 L_cpf_done",
          "s_getpc_b64 s[56:57]", "L_cpf_pc:", "s_lshl_b32 s52, s52, 13", "v_lshlrev_b32 v13, 7, v0", "v_add_u32 v13, s52, v13",
          "v_cmp_gt_u32 vcc, L_code_end-L_cpf_pc, v13", "s_nop 1", "s_and_saveexec_b64 s[52:53], vcc", "s_cbranch_execz L_cpf_skip",
          "global_load_dword v125, v13, s[56:57]", "L_cpf_skip:", "s_mov_b64 exec, -1", "L_cpf_done:")
    if "early" in OPT: touches()
    a("s_barrier")
    if "early" not in OPT and "late" not in OPT: touches()
    if "a3" in OPT:
        touchX(2, 3, 0, "xa3"); touchW(2, 3, 1, "wa3")
    if "wa3" in OPT: touchW(2, 3, 2, "wa3")
    if "wa2" in OPT: touchW(2, 2, 2, "wa2")
    if "wa13" in OPT: touchW(1, 3, 2, "wa13")
    common_init(a)
    a("v_and_b32 v13, 15, v0", "v_lshrrev_b32 v14, 4, v0",
      "v_bfe_u32 v15, v0, 1, 3", "v_xor_b32 v15, v15, v14", "v_lshlrev_b32 v15, 4, v15", "v_lshl_add_u32 v15, v13, 7, v15",
      "s_lshl_b32 s52, s25, 12",
      f"v_add_u32 v{XA[0]}, s52, v15", f"v_xor_b32 v{XA[1]}, 64, v{XA[0]}",
      f"v_add_u32 v{XB[0]}, 0x10000, v{XA[0]}", f"v_add_u32 v{XB[1]}, 0x10000, v{XA[1]}")
    a("v_bfe_u32 v15, v0, 2, 2", "v_lshl_add_u32 v13, v14, 3, v15", "v_lshlrev_b32 v13, 6, v13",
      "v_bfe_u32 v15, v0, 4, 1", "v_lshl_add_u32 v13, v15, 5, v13", "v_and_b32 v15, 3, v0", "v_lshl_add_u32 v13, v15, 3, v13",
      f"v_add_u32 v{WA[0]}, {WRING}, v13", f"v_xor_b32 v{WA[1]}, 32, v{WA[0]}")
    a("s_and_b32 s52, s25, 3", "s_lshl_b32 s52, s52, 11", "s_lshr_b32 s53, s25, 2", "s_lshl_b32 s53, s53, 14", "s_add_u32 s52, s52, s53",
      f"v_add_u32 v{VK}, s52, v{LO}",
      "v_and_b32 v13, 15, v0", "v_lshlrev_b32 v13, 4, v13", "v_lshrrev_b32 v14, 5, v0", "v_lshl_add_u32 v13, v14, 8, v13",
      "v_bfe_u32 v15, v0, 4, 1", "v_lshl_add_u32 v13, v15, 13, v13", "s_add_u32 s52, s52, 1024", f"v_add_u32 v{VV}, s52, v13")
    a(f"s_add_u32 s52, s62, {QX}", f"v_add_u32 v{QA}, s52, v{LO}", "s_add_u32 s0, s55, 8192")
    a("v_lshlrev_b32 v7, 7, v0")
    lq1 = []
    def xread(n, th):
        c, s2 = divmod(n, 2); slot = c % 3
        lq1.append(f"X{th}")
        if slot < 2: return f"ds_read_b128 {vr(FXR[th],4)}, v{XA[s2]} offset:{slot*32768 + th*2048}"
        return f"ds_read_b128 {vr(FXR[th],4)}, v{XB[s2]} offset:{th*2048}"
    def wread(n, b):
        c, s2 = divmod(n, 2); seg, hd = divmod(b, 2)
        lq1.extend([f"W{b}"]*2)
        return [f"ds_read_b64_tr_b16 {vr(FW + b*4 + j*2, 2)}, v{WA[hd]} offset:{(c % NWS)*12288 + seg*4096 + s2*2048 + j*256}" for j in range(2)]
    def lw1(need):
        idx = [i for i, x in enumerate(lq1) if x in need]
        if not idx: return []
        keep = len(lq1) - 1 - max(idx)
        del lq1[:len(lq1) - keep]
        return [f"s_waitcnt lgkmcnt({keep})"]
    def m16(th, b, first):
        d = ACC + (b*2 + th)*4
        cs = "0" if first else vr(d, 4)
        x = vr(FXR[th], 4); w = vr(FW + b*4, 4)
        return f"v_mfma_f32_16x16x32_bf16 {vr(d,4)}, " + (f"{w}, {x}" if b < 4 else f"{x}, {w}") + f", {cs}"
    if "nokvpre" not in OPT:
        a.c("an early poll of a line that is still only in HBM is slow: fetch the group's K/V flag lines now")
        a("s_cmp_lg_u32 s25, 5", "s_cbranch_scc1 L_kvpre_done", "v_lshlrev_b32 v13, 7, v0", "s_mov_b64 exec, 0xffff", "buffer_load_dword v125, v13, s[36:39], s60 offen sc1", "s_mov_b64 exec, -1", "L_kvpre_done:")
    if "tkv" in OPT:
        a.c("first touch of the K/V block's pages ahead of the stores")
        a("s_cmp_lg_u32 s25, 7", "s_cbranch_scc1 L_tkv_done", "v_lshlrev_b32 v13, 12, v0", "s_mov_b64 exec, 0xff",
          "buffer_load_dword v125, v13, s[36:39], s55 offen", "s_mov_b64 exec, -1", "L_tkv_done:")
    if "kvpt" in OPT:
        a.c("fetch every line of the K/V block ahead of the stores (waves 4..7)")
        a("s_sub_u32 s52, s25, 4", "s_cmp_ge_u32 s52, 4", "s_cbranch_scc1 L_kvpt_done", "v_lshlrev_b32 v13, 7, v0", "s_lshl_b32 s52, s52, 13", "s_add_u32 s52, s52, s55",
          "buffer_load_dword v125, v13, s[36:39], s52 offen", "L_kvpt_done:")
    C3 = [o for o in OPT if o.startswith("c3=")]
    if C3:
        cls = int(C3[0][3:])
        a("s_cmp_lg_u32 s25, 6", "s_cbranch_scc1 L_c3_done",
          "s_and_b32 s52, s24, 1", "s_lshl_b32 s52, s52, 4", "s_add_u32 s52, s52, s23", "s_mul_i32 s52, s52, 36864",
          f"s_add_u32 s52, s52, {384*1024 + cls*128}", "v_cmp_gt_u32 vcc, 36, v0", "v_lshlrev_b32 v13, 10, v0", "s_nop 0",
          "s_and_saveexec_b64 s[56:57], vcc", "buffer_load_dword v125, v13, s[32:35], s52 offen", "s_mov_b64 exec, -1", "L_c3_done:")
    if "late" in OPT: touches()
    if "xa" in OPT: touchX(3, 2, 0, "xa")
    if "wa" in OPT: touchW(3, 2, 1, "wa")
    if "wa5" in OPT: touchW(3, 5, 1, "wa5")
    if "xa4" in OPT: touchX(4, 4, 0, "xa4")
    a(f"s_mov_b32 s56, {f32bits(QSCALE):#x}", f"s_mov_b32 s57, {f32bits(QSCALE):#x}")
    stamp(a, 1)
    a("s_barrier")
    stamp(a, 2)
    if "xb" in OPT or "wb" in OPT or "wb4" in OPT:
        if "xb" in OPT: touchX(5, 3, 2, "xb")
        if "wb" in OPT: touchW(5, 3, 3, "wb")
        if "wb4" in OPT: touchW(4, 4, 3, "wb4")
        a(f"s_mov_b32 s56, {f32bits(QSCALE):#x}", f"s_mov_b32 s57, {f32bits(QSCALE):#x}")
    if "cyc" in OPT: a("s_memtime s[98:99]", "s_waitcnt lgkmcnt(0)")
    BO = [2, 3, 4, 5, 0, 1]
    a(xread(0, 0))
    for b in BO: a(wread(0, b))
    a(xread(0, 1))
    for n in range(16):
        c, s2 = divmod(n, 2)
        for b in BO:
            a(lw1({"X0", f"W{b}"}), m16(0, b, n == 0))
        if n < 15:
            if s2 == 1:
                a("s_waitcnt lgkmcnt(0)", "s_barrier"); lq1.clear()
                if c == 3 and "p1ts" not in OPT: stamp(a, 3)
                if "p1ts" in OPT: stamp(a, 7 + c)
                KVL = [o for o in OPT if o.startswith("kvl=")]
                if KVL:
                    c0, span = [int(x) for x in KVL[0][4:].split(",")]
                    if c0 <= c < c0 + span:
                        per = 4 // span
                        w0 = 4 + (c - c0)*per
                        a.c("a write-through store to a line the memory-side cache does not hold is slow: fetch the K/V block's lines first")
                        a(f"s_sub_u32 s52, s25, {w0}", f"s_cmp_ge_u32 s52, {per}", f"s_cbranch_scc1 L_kvl{c}", "s_sub_u32 s52, s25, 4",
                          "s_lshl_b32 s52, s52, 13", "s_add_u32 s52, s52, s55", "buffer_load_dword v125, v7, s[36:39], s52 offen", f"L_kvl{c}:")
            a(xread(n + 1, 0))
        for i, b in enumerate(BO):
            a(lw1({"X1"}), m16(1, b, n == 0))
            if n < 15: a(wread(n + 1, b))
            elif i < 4:
                for r in range(4): a(f"v_mov_b32 v{O + i*4 + r}, 0")
        if n < 15: a(xread(n + 1, 1))
        assert len(lq1) <= 15
    stamp(a, 4)
    global P1TS_DONE
    P1TS_DONE = True
    a.c("P1 epilogue: K, V -> LDS stage slot 0 (and, after the barrier, global) ; Q -> regs / LDS")
    PK = 64
    def pack2(dst, src): return [f"v_cvt_pk_bf16_f32 v{dst+r}, v{src+2*r}, v{src+2*r+1}" for r in range(2)]
    def acc(th, b): return ACC + (b*2 + th)*4
    def swaps(t): return [f"v_permlane16_swap_b32 v{t}, v{t+2}", f"v_permlane16_swap_b32 v{t+1}, v{t+3}"]
    GST = [f"buffer_store_dwordx4 {vr(PK,4)}, v{VK}, s[36:39], s55 offen {WT}",
      f"buffer_store_dwordx4 {vr(PK+4,4)}, v{VK}, s[36:39], s0 offen {WT}",
      f"buffer_store_dwordx4 {vr(PK+8,4)}, v{VV}, s[36:39], s55 offen {WT}",
      f"buffer_store_dwordx4 {vr(PK+12,4)}, v{VV}, s[36:39], s55 offen offset:512 {WT}"]
    a("s_nop 2")
    a(pack2(PK, acc(0, 2)), pack2(PK + 2, acc(1, 2)), pack2(PK + 4, acc(0, 3)), pack2(PK + 6, acc(1, 3)))
    a(swaps(PK), f"ds_write_b128 v{VK}, {vr(PK,4)}")
    if "stearly" in OPT: a(GST[0])
    a(pack2(PK + 8, acc(0, 4)), pack2(PK + 10, acc(0, 5)))
    a(swaps(PK + 4), f"ds_write_b128 v{VK}, {vr(PK+4,4)} offset:8192")
    if "stearly" in OPT: a(GST[1])
    a(pack2(PK + 12, acc(1, 4)), pack2(PK + 14, acc(1, 5)))
    a(swaps(PK + 8), f"ds_write_b128 v{VV}, {vr(PK+8,4)}")
    if "stearly" in OPT: a(GST[2])
    for r in range(4): a(f"v_pk_mul_f32 {vr(acc(0,1)+2*r,2)}, {vr(acc(0,1)+2*r,2)}, s[56:57]")
    a(swaps(PK + 12), f"ds_write_b128 v{VV}, {vr(PK+12,4)} offset:512")
    if "stearly" in OPT: a(GST[3])
    a(pack2(PK + 16, acc(0, 1)), pack2(PK + 18, acc(1, 1)))
    for r in range(4): a(f"v_pk_mul_f32 {vr(acc(0,0)+2*r,2)}, {vr(acc(0,0)+2*r,2)}, s[56:57]")
    a(swaps(PK + 16), f"ds_write_b128 v{QA}, {vr(PK+16,4)}")
    a(pack2(Q, acc(0, 0)), pack2(Q + 2, acc(1, 0)), "s_nop 1", swaps(Q))
    gst = [f"buffer_store_dwordx4 {vr(PK,4)}, v{VK}, s[36:39], s55 offen {WT}",
      f"buffer_store_dwordx4 {vr(PK+4,4)}, v{VK}, s[36:39], s0 offen {WT}",
      f"buffer_store_dwordx4 {vr(PK+8,4)}, v{VV}, s[36:39], s55 offen {WT}",
      f"buffer_store_dwordx4 {vr(PK+12,4)}, v{VV}, s[36:39], s55 offen offset:512 {WT}"]
    a("s_cmp_ge_u32 s25, 4", "s_cbranch_scc1 L_nost", gst, "L_nost:")
    a("s_waitcnt lgkmcnt(0)")
    stamp(a, 5)
    a("s_barrier")
    stamp(a, 6)
    a("s_branch L_haveq")

    a("L_loader:")
    a("s_sub_u32 s52, s25, 8")
    a("s_and_b32 s53, s52, 1", "s_lshl_b32 s53, s53, 2",
      "v_lshrrev_b32 v2, 4, v0", "v_add_u32 v2, s53, v2", "v_and_b32 v3, 7, v0", "v_xor_b32 v2, v2, v3", "v_lshlrev_b32 v2, 4, v2",
      "v_lshrrev_b32 v4, 3, v0", "v_lshl_add_u32 v2, v4, 10, v2")
    a("v_lshrrev_b32 v4, 2, v0", "v_mul_u32_u24 v4, 3072, v4", "v_and_b32 v3, 3, v0",
      "v_lshrrev_b32 v5, 5, v0", "v_lshlrev_b32 v5, 1, v5", "v_xor_b32 v3, v3, v5", "v_lshl_add_u32 v3, v3, 4, v4",
      "s_lshl_b32 s53, s23, 6", "v_add_u32 v3, s53, v3")
    a("s_lshl_b32 s4, s52, 13", "s_add_u32 s5, s4, 65536", "s_add_u32 s6, s4, 131072", "s_add_u32 s7, s4, 196608",
      "s_lshl_b32 s0, s52, 10")
    a("s_and_b32 s53, s52, 3", "s_mul_i32 s1, s53, 49152", "s_lshr_b32 s53, s52, 2", "s_lshl_b32 s53, s53, 10", "s_add_u32 s1, s1, s53")
    a("s_and_b32 s3, s24, 6")
    a("s_cmp_ge_u32 s52, 4", "s_cbranch_scc1 L_loaderB")
    ROT = "rot" in OPT
    def issueW(c, variantA):
        slot = c % NWS
        if ROT: pre = [f"s_add_u32 s53, s24, {c}" if "rotj" in OPT else f"s_add_u32 s53, s3, {c}", "s_and_b32 s53, s53, 7", "s_lshl_b32 s57, s53, 7", "s_mul_i32 s53, s53, 196608", "s_add_u32 s53, s53, s1",
                       f"s_add_u32 m0, s0, {WRING + slot*12288}", "s_nop 0"]
        else: pre = [f"s_add_u32 m0, s0, {WRING + slot*12288}", f"s_add_u32 s53, s1, {c*196608}"]
        out = pre + [
               "buffer_load_dwordx4 v3, s[32:35], s53 offen" + WNT + " lds"]
        if variantA:
            out += [f"s_add_u32 m0, s0, {WRING + slot*12288 + 8192 - 2048}", "s_nop 0",
                    "buffer_load_dwordx4 v3, s[32:35], s53 offen offset:2048" + WNT + " lds"]
        return out
    def issueX(c):
        slot = c % 3
        out = []
        for aa in range(4):
            out += [f"s_add_u32 m0, s0, {XRING + slot*32768 + aa*8192}", (f"s_add_u32 s53, s{4+aa}, s57" if ROT else f"s_add_u32 s53, s{4+aa}, {c*128}"),
                    "buffer_load_dwordx4 v2, s[28:31], s53 offen" + XNT + " lds"]
        return out
    for variantA in (True, False):
        ops = []
        def W(c):
            a(issueW(c, variantA)); ops.extend([c]*(2 if variantA else 1))
        def X(c):
            a(issueX(c)); ops.extend([c]*4)
        if not variantA: a("L_loaderB:")
        if variantA: stamp(a, 1)
        W(0); X(0); a("s_barrier")
        if "b0f" not in OPT: W(1); X(1)
        if variantA: stamp(a, 2)
        if not variantA:
            a.c("workgroup 0 publishes the launch tag (low 4 bits: 8 | room for an XCC id)")
            a("s_cmp_lg_u32 s2, 0", "s_cbranch_scc1 L_notag", "s_cmp_lg_u32 s52, 7", "s_cbranch_scc1 L_notag")
            a("s_lshl_b64 s[48:49], s[48:49], 4", "s_or_b32 s48, s48, 8",
              "v_mov_b32 v8, 0", "v_mov_b32 v4, s48", "v_mov_b32 v5, s49", "s_mov_b64 exec, 1",
              f"global_store_dwordx2 v8, v[4:5], s[18:19] {WT}", "s_mov_b64 exec, -1")
            a("L_notag:")
        ROLL = "roll" in OPT and not variantA
        def TOUCH(c):
            a("s_mov_b64 exec, s[16:17]", "buffer_load_dword v10, v9, s[44:47], s3 offen", "s_mov_b64 exec, -1", "s_add_u32 s3, s3, s27")
            ops.append(99)
        if ROLL:
            a("s_mov_b32 s3, s52")
        common_init(a)
        if ROLL:
            R0 = int([o for o in OPT if o.startswith("r0=")][0][3:]) if any(o.startswith("r0=") for o in OPT) else 2
            a.c("rolling L2 warm-up of later W chunks, spread over the XCD's workgroups")
            a("s_mov_b32 s44, s32", "s_mov_b32 s45, s33", "s_mov_b32 s46, s34", "s_mov_b32 s17, 0", "s_mov_b32 s27, 196608",
              "s_and_b32 s52, s24, 1", "s_lshl_b32 s52, s52, 4", "s_add_u32 s52, s52, s23", "s_and_b32 s3, s3, 3")
            if "roll3" in OPT:
                a("s_mov_b32 s16, 3", "v_lshlrev_b32 v9, 10, v0", "s_min_u32 s3, s3, 2", "s_lshl_b32 s3, s3, 11", "s_mul_i32 s52, s52, 6144",
                  "s_add_u32 s3, s3, s52", f"s_add_u32 s3, s3, {R0*196608 + 384}")
            else:
                a("s_mov_b32 s16, 0xfff", "v_lshlrev_b32 v9, 7, v0", "s_mul_i32 s3, s3, 1536", "s_mul_i32 s52, s52, 6144",
                  "s_add_u32 s3, s3, s52", f"s_add_u32 s3, s3, {R0*196608}")
            nextT = R0
            RD = int([o for o in OPT if o.startswith("rd=")][0][3:]) if any(o.startswith("rd=") for o in OPT) else 4
            while nextT < RD: TOUCH(nextT); nextT += 1
        nextW = 2
        for c in range(8):
            last = max(i for i, x in enumerate(ops) if x <= c)
            wait = len(ops) - 1 - last
            if not variantA and c == 7:
                a.c("launch tag -> LDS")
                spin(a, "tag", ["v_cmp_ne_u64 vcc, 0, v[6:7]", "s_nop 1", "s_cmp_eq_u64 vcc, -1"],
                     ["global_load_dwordx2 v[6:7], v8, s[18:19] sc1"])
                a(f"ds_write_b64 v{T}, v[6:7]")
            else:
                a(f"s_waitcnt vmcnt({wait})")
            a("s_barrier")
            if variantA and c == 0: stamp(a, 3)
            if variantA and c == 7: stamp(a, 4)
            if "b0f" in OPT and c == 0: W(1); X(1)
            if nextW == c + 2 and nextW <= 7: W(nextW); nextW += 1
            if c + 2 <= 7: X(c + 2)
            while nextW <= min(7, c - 1 + NWS): W(nextW); nextW += 1
            if ROLL and nextT <= 7: TOUCH(nextT); nextT += 1
            if not variantA and c == 5:
                a("v_mov_b32 v8, 0", "global_load_dwordx2 v[6:7], v8, s[18:19] sc1"); ops.append(99)
        if variantA: a("s_branch L_p2_start")

    a("L_p2_start:")
    a(f"v_mov_b32 v{VK}, 0", f"v_mov_b32 v{VV}, 0")
    for r in range(16): a(f"v_mov_b32 v{O+r}, 0")
    a(f"s_add_u32 s53, s62, {QX - 8192}", f"v_add_u32 v{T+1}, s53, v{LO}")
    a("s_waitcnt lgkmcnt(0)")
    stamp(a, 5)
    a("s_barrier")
    stamp(a, 6)
    a(f"ds_read_b128 {vr(Q,4)}, v{T+1}")
    a("L_haveq:")
    cstamp(a, 0)
    def loc(u):
        n, i = divmod(u, 4); sl = n % 10
        return sl // 4, (sl % 4)*16384 + i*2048
    def kread(u):
        b, o = loc(u)
        return [f"ds_read_b128 {vr(KB[u%2],4)}, v{KA[b]} offset:{o}"]
    def vread(u):
        b, o = loc(u)
        return ["s_mov_b64 exec, s[50:51]",
                f"ds_read_b128 {vr(VB[u%2],4)}, v{VA[b]} offset:{o}",
                f"ds_read_b128 {vr(VB[u%2]+4,4)}, v{VA[b]} offset:{o+512}",
                "s_mov_b64 exec, -1"]
    def ex(base, lo, hi): return [f"v_exp_f32 v{base+i}, v{base+i}" for i in range(lo, hi)]
    def opt(name, default): return [int(x) for x in ([o for o in OPT if o.startswith(name + "=")] or [name + "=" + default])[0][len(name)+1:].split(",")]
    HB = [(0, 0), (0, 1)] + [(x, 0) for x in range(1, 8)] + [(x, 1) for x in range(1, 8)]
    poll = [f"buffer_load_dwordx2 {vr(T,2)}, v{T+4}, s[36:39], s57 offen sc1"]
    def fetch_poll(ns, tag, lg, w0):
        per = 16 >> lg
        a(f"s_sub_u32 s52, s25, {w0}", f"s_cmp_ge_u32 s52, {len(ns) << lg}", f"s_cbranch_scc1 L_{tag}_p")
        code = 0; slots = 0
        for k_, n in enumerate(ns):
            code |= (HB[n][0]*2 + HB[n][1]) << (4*k_); slots |= (n % 10) << (4*k_)
        a(f"s_lshr_b32 s63, s52, {lg}", "s_lshl_b32 s63, s63, 2", f"s_lshr_b32 s53, {code:#x}, s63", "s_and_b32 s53, s53, 15",
          "s_lshl_b32 s57, s24, 1", "s_xor_b32 s53, s53, s57",
          "s_lshl_b32 s57, s53, 7", "s_add_u32 s57, s57, s60",
          "s_mov_b64 exec, 15", poll, "s_mov_b64 exec, -1")
        a("s_lshl_b32 s53, s53, 14", "s_add_u32 s56, s53, s54",
          f"s_and_b32 s52, s52, {(1 << lg) - 1}", f"s_mul_i32 s52, s52, {per*1024}", "s_add_u32 s56, s56, s52",
          f"s_lshr_b32 s53, {slots:#x}, s63", "s_and_b32 s53, s53, 15", "s_lshl_b32 s53, s53, 14", "s_add_u32 s52, s52, s53", f"L_{tag}_p:")
    def fetch_load(ns, tag, lg, w0):
        per = 16 >> lg
        a(f"s_sub_u32 s53, s25, {w0}", f"s_cmp_ge_u32 s53, {len(ns) << lg}", f"s_cbranch_scc1 L_{tag}_done", "s_mov_b64 exec, 15")
        spin(a, tag, [f"v_cmp_eq_u64 vcc, s[48:49], {vr(T,2)}", "s_nop 1", "s_cmp_eq_u64 vcc, 15"], poll, SLP)
        a("s_mov_b64 exec, -1")
        for i in range(per):
            if i % 4 == 0: a(f"s_add_u32 m0, s52, {i*1024}", f"s_add_u32 s53, s56, {i*1024}")
            a(f"buffer_load_dwordx4 v{LO}, s[36:39], s53 offen offset:{(i%4)*1024} sc1 lds")
        a(f"L_{tag}_done:")
    SLP = opt("slp", "4")[0]
    a("s_setprio 3", "s_cmp_lt_u32 s25, 4", "s_cselect_b32 s3, 1, 0")
    a(kread(0), kread(1), vread(0), f"ds_read_b64 {vr(T+2,2)}, v{T}", "s_waitcnt lgkmcnt(4)")
    a(mfma(S[0], KB[0], Q, "0"))
    a.c("later-needed lane constants, computed in the shadow of the first MFMA")
    a(f"v_lshrrev_b32 v{WOA}, 4, v{LO}", f"v_bfe_u32 v{CK}, v{WOA}, 4, 1", f"v_lshlrev_b32 v{CK}, 1, v{CK}", f"v_and_b32 v{CK+1}, 7, v{WOA}",
      f"v_xor_b32 v{CK}, v{CK}, v{CK+1}", f"v_lshlrev_b32 v{CK}, 4, v{CK}", f"v_lshrrev_b32 v{WOA}, 3, v{WOA}",
      f"v_lshl_add_u32 v{WOA}, v{WOA}, 10, v{CK}", f"v_and_b32 v{T+5}, 0x78, v{T+4}",
      f"v_mov_b32 v{CK}, 0x33800000", f"v_mov_b32 v{CK+1}, 0x57800000", f"v_mov_b32 v60, 0")
    a("s_waitcnt lgkmcnt(0)")
    a(f"v_readfirstlane_b32 s48, v{T+2}", f"v_readfirstlane_b32 s49, v{T+3}")
    a("s_nop 0")
    NT = 64
    WO = 98304
    B1L = "b1late" in OPT
    LATE = (7, 11) if B1L else (7,)
    BAR = (18, 34, 54) if B1L else (10, 18, 34, 54)
    prio_at = {4: 2, 6: 1, 7: 0, 10: 2 if B1L else 1, 11: 1 if B1L else 3, 14: 2, 17: 1, 18: 0, 27: 2, 32: 1, 34: 0, 45: 2, 52: 1, 54: 0, 60: 2, 62: 1, 63: 0}
    for o in OPT:
        if o.startswith("pr="): prio_at.update({int(x.split(":")[0]): int(x.split(":")[1]) for x in o[3:].split(",")})
    SB = opt("sb", "3")[0]
    F1, F2, F3 = opt("ff", "4,8,12")
    P1_, Q1_, P2_, Q2_, P3_, Q3_ = opt("fu", "3,4,6,7,11,12")
    FETCH = [([2], "f1", 1, 8, P1_, Q1_), ([3, 4], "f2", 1, 10, P2_, Q2_), ([5, 6, 7, 8], "f3", 1, 8, P3_, Q3_),
             ([9, 10, 11, 12, 13], "f4", 0, 8, 19, 20), ([14, 15], "f5", 2, 8, 35, 36)]
    PF_ = opt("pf", "16")[0]
    def publish(u, force):
        a("s_cmp_eq_u32 s3, 0", f"s_cbranch_scc1 L_pub{u}")
        if force == "A": a("s_cmp_lt_u32 s25, 4", f"s_cbranch_scc1 L_pubf{u}")
        if force != "all": a("s_getreg_b32 s53, hwreg(HW_REG_IB_STS)", "s_and_b32 s53, s53, 0xc0000f", f"s_cbranch_scc1 L_pub{u}")
        a(f"L_pubf{u}:", f"v_mov_b32 v{T}, s48", f"v_mov_b32 v{T+1}, s49", "s_waitcnt vmcnt(0)")
        stamp(a, 7)
        a("s_mov_b64 exec, 1", f"buffer_store_dwordx2 {vr(T,2)}, v60, s[36:39], s61 offen {WT}", "s_mov_b64 exec, -1", "s_mov_b32 s3, 0", f"L_pub{u}:")
    def barrier(u):
        if u < 30: a("s_cmp_lt_u32 s25, 8", f"s_cbranch_scc1 L_b{u}", "s_waitcnt vmcnt(0)", f"L_b{u}:")
        else: a("s_waitcnt vmcnt(0)")
        a("s_barrier", "s_setprio 3")
        IDL = opt("idle", "99,0")
        if u == IDL[0]: a(f"s_sleep {IDL[1]}")
    for u in range(NT):
        s = S[u % 2]
        if u in prio_at: a(f"s_setprio {prio_at[u]}")
        late = u in LATE
        a("s_waitcnt lgkmcnt(0)")
        a(ex(s, 0, 2))
        if u > 0: a(smf(O, VB[(u-1) % 2] + 4, S[(u-1) % 2] + 8, IDX))
        if u + 1 < NT and not late: a(vread(u + 1))
        a(ex(s, 2, 5))
        if u + 1 < NT and not late:
            a(mfma(S[(u+1) % 2], KB[(u+1) % 2], Q, "0"))
            if u in BAR:
                barrier(u)
                if u == 34: stamp(a, 10)
                if u == 18 and "b12" in OPT: stamp(a, 2)
                cstamp(a, {10: 2, 18: 3, 34: 4, 54: 6}[u])
            if u + 2 < NT and u + 1 not in LATE: a(kread(u + 2))
        a(ex(s, 5, 10))
        a(smf(O, VB[u % 2], s, IDX))
        a(ex(s, 10, 16))
        if u <= PF_:
            if u == 0: a.c("publish this wave's K/V tile as soon as its stores have been acknowledged")
            publish(u, "A" if u == 7 else "all" if u == PF_ else "")
        if late:
            if u == 7: stamp(a, 8)
            barrier(u)
            if u == 7: stamp(a, 9)
            if u == 11 and "b12" in OPT: stamp(a, 1)
            cstamp(a, {7: 1, 11: 2}[u])
            a(kread(u + 1), kread(u + 2), vread(u + 1), "s_waitcnt lgkmcnt(3)", mfma(S[(u+1) % 2], KB[(u+1) % 2], Q, "0"), "s_nop 10")
        if u == SB:
            a.c("second-half tiles go out after the first-half ones, which are needed sooner")
            a("s_sub_u32 s53, s25, 4", "s_cmp_ge_u32 s53, 4", "s_cbranch_scc1 L_nost2", gst, "s_mov_b32 s3, 1", "L_nost2:")
        if u == 19:
            a.c("wave 0 publishes the workgroup's XCC id")
            a("s_cmp_lg_u32 s25, 0", "s_cbranch_scc1 L_xid", f"v_mov_b32 v{T}, s48", f"v_mov_b32 v{T+1}, s49",
              f"v_or_b32 v{T}, s26, v{T}", "s_lshl_b32 s53, s23, 3", "s_add_u32 s53, s53, s10",
              "s_mov_b64 exec, 1", f"buffer_store_dwordx2 {vr(T,2)}, v60, s[36:39], s53 offen {WT}", "s_mov_b64 exec, -1", "L_xid:")
        for (ns, tag, lg, w0, up, ul) in FETCH:
            if u == up: fetch_poll(ns, tag, lg, w0)
            if u == ul: fetch_load(ns, tag, lg, w0)
        if u in (37, 38, 56, 57):
            aa = {37: 0, 38: 1, 56: 2, 57: 3}[u]
            if aa == 0: a.c("Wo tile -> LDS (half-slots 6..9)")
            a("s_lshl_b32 s63, s25, 13", f"s_add_u32 m0, s62, {WO + aa*16384}", f"s_add_u32 s53, s63, {aa*131072}", f"buffer_load_dwordx4 v{WOA}, s[40:43], s53 offen lds")
        if u == 46:
            a.c("XCC ids of the row block's workgroups; bring the O and O-flag lines this wave will write into L2")
            a(f"buffer_load_dwordx2 {vr(T+2,2)}, v{T+5}, s[36:39], s10 offen sc1",
              f"buffer_load_dword v{T+1}, v60, s[36:39], s59 offen",
              f"buffer_load_dword v{T}, v{LO}, s[36:39], s58 offen")
        if u == 55:
            a.c("local hand-off only when all 16 workgroups of this row block run on this XCC")
            a("s_or_b32 s52, s48, s26", "s_mov_b32 s53, s49", f"v_cmp_eq_u64 vcc, s[52:53], {vr(T+2,2)}", "s_nop 1",
              "s_cmp_eq_u64 vcc, -1", "s_cselect_b32 s27, 1, 0")
            if "noloc" in OPT: a("s_mov_b32 s27, 0")
    a("s_nop 1", smf(O, VB[(NT-1) % 2] + 4, S[(NT-1) % 2] + 8, IDX), "s_setprio 3",
      f"v_mov_b32 v{T}, s48", f"v_mov_b32 v{T+1}, s49", f"v_mov_b32 v{T+3}, 0x7f800000", "s_nop 7")
    a.c("safety check of the zero stand-in: 2^-24 <= l <= 2^48 and finite O, else redo with the true row max")
    a(f"v_cmp_le_f32 s[52:53], v{CK}, v{O+8}", f"v_cmp_ge_f32 s[56:57], v{CK+1}, v{O+8}",
      f"v_max3_f32 v{CK}, abs(v{O}), abs(v{O+1}), abs(v{O+2})", f"v_max3_f32 v{CK}, abs(v{O+3}), abs(v{O+4}), v{CK}",
      f"v_max3_f32 v{CK}, abs(v{O+5}), abs(v{O+6}), v{CK}", f"v_max_f32 v{CK}, abs(v{O+7}), v{CK}",
      "s_and_b64 s[52:53], s[52:53], s[56:57]",
      f"v_cmp_gt_f32 vcc, v{T+3}, v{CK}", f"v_rcp_f32 v{T+2}, v{O+8}", "s_and_b64 s[52:53], s[52:53], vcc",
      "s_cmp_eq_u64 s[52:53], -1", "s_cbranch_scc0 L_fallback")
    a("L_finish:")
    stamp(a, 11)
    cstamp(a, 5)
    if "cyc2" in OPT: a("s_memtime s[96:97]", "s_waitcnt lgkmcnt(0)", "s_sub_u32 s96, s96, s98", "s_add_u32 s66, s82, s96", "s_addc_u32 s67, s83, 0")
    for r in range(4): a(f"v_pk_mul_f32 {vr(O+2*r,2)}, {vr(O+2*r,2)}, {vr(T+2,2)} op_sel_hi:[1,0]")
    for r in range(4): a(f"v_cvt_pk_bf16_f32 v{O+12+r}, v{O+2*r}, v{O+2*r+1}")
    a("s_cmp_eq_u32 s27, 1", "s_cbranch_scc1 L_ostore_local")
    a(f"buffer_store_dwordx4 {vr(O+12,4)}, v{LO}, s[36:39], s58 offen {WT}", "s_waitcnt vmcnt(0)",
      "s_mov_b64 exec, 1", f"buffer_store_dwordx2 {vr(T,2)}, v60, s[36:39], s59 offen {WT}", "s_mov_b64 exec, -1", "s_branch L_ostored")
    a("L_ostore_local:")
    a(f"buffer_store_dwordx4 {vr(O+12,4)}, v{LO}, s[36:39], s58 offen", "s_waitcnt vmcnt(0)",
      "s_mov_b64 exec, 1", f"buffer_store_dwordx2 {vr(T,2)}, v60, s[36:39], s59 offen", "s_mov_b64 exec, -1")
    a("L_ostored:")
    stamp(a, 12)
    a("s_barrier")
    if TS:
        a("s_cmp_lt_u32 s25, 8", "s_cbranch_scc1 L_ts_p3", ["s_barrier"]*(5 if "g4" in OPT else 3))
        if "allw" in OPT:
            for w in range(8, 16): ts_flush(a, w, w, f"w{w}")
        else:
            ts_flush(a, 1, 8, "w8")
            ts_flush(a, 2, 15, "w15")
        a("s_endpgm", "L_ts_p3:")
    else:
        a("s_cmp_ge_u32 s25, 8", "s_cbranch_scc1 L_done")

    ACC3 = [0, 16]; OFR = 32; WB = [96, 104, 112]; A3 = [120, 122]; VO = 116; PA = 123; L = 118; PF = 124
    opoll = [f"buffer_load_dwordx4 {vr(PF,4)}, v{LO}, s[36:39], s11 offen sc1"]
    ocond = [f"v_cmp_eq_u64 vcc, s[48:49], {vr(PF,2)}", f"v_cmp_eq_u64 s[52:53], s[48:49], {vr(PF+2,2)}", "s_nop 1",
             "s_and_b64 vcc, vcc, s[52:53]", "s_cmp_eq_u64 vcc, -1"]
    a("s_cmp_lt_u32 s25, 4", "s_cbranch_scc1 L_p3c")
    a("s_and_b32 s56, s25, 3", "s_lshl_b32 s56, s56, 14")
    a("s_barrier")
    for i in range(16):
        a(f"s_add_u32 m0, s56, {i*1024}", f"s_add_u32 s53, s12, {(16+i)*1024}", f"buffer_load_dwordx4 v{LO}, s[36:39], s53 offen sc1 lds")
    G3 = 4 if "g4" in OPT else 8
    for x in range(16 - G3, -1, -G3): a(f"s_waitcnt vmcnt({x})", "s_barrier")
    if "wb2" in OPT:
        a("s_cmp_lg_u32 s25, 4", "s_cbranch_scc1 L_nowb", "buffer_wbl2 sc1", "L_nowb:")
    if "allw" in OPT:
        for w in range(4, 8): ts_flush(a, w, w, f"w{w}")
    a("s_endpgm")
    a("L_p3c:")
    a(opoll)
    a(f"v_lshrrev_b32 v6, 4, v{LO}")
    a(f"v_lshrrev_b32 v4, 5, v6", f"v_bfe_u32 v5, v6, 2, 2", "v_lshl_add_u32 v4, v4, 2, v5", "v_lshlrev_b32 v4, 7, v4",
      f"v_and_b32 v5, 1, v6", "v_lshl_add_u32 v4, v5, 6, v4", f"v_bfe_u32 v5, v6, 4, 1", "v_lshl_add_u32 v4, v5, 4, v4",
      f"v_bfe_u32 v5, v6, 3, 1", "v_lshl_add_u32 v4, v5, 5, v4", f"v_bfe_u32 v5, v6, 1, 1", f"v_lshl_add_u32 v4, v5, 3, v4",
      f"v_add_u32 v{A3[0]}, {WO}, v4", f"v_xor_b32 v{A3[1]}, 32, v{A3[0]}")
    a("s_lshl_b32 s56, s25, 14", f"v_add_u32 v{PA}, s56, v{LO}")
    def reads3(hd, buf):
        out = []
        for cb in range(2):
            for j in range(2):
                out.append(f"ds_read_b64_tr_b16 {vr(buf + cb*4 + j*2, 2)}, v{A3[cb]} offset:{hd*2048 + j*1024}")
        return out
    a(reads3(0, WB[0]), reads3(1, WB[1]))
    spin(a, "o", ocond, opoll)
    stamp(a, 13)
    for i in range(16):
        if i % 4 == 0: a(f"s_add_u32 s53, s12, {i*1024}")
        a(f"buffer_load_dwordx4 {vr(OFR + i*4, 4)}, v{LO}, s[36:39], s53 offen offset:{(i%4)*1024} sc1")
    a("s_barrier")
    lq = ["W0"]*4 + ["W1"]*4
    def lwait(need):
        nonlocal lq
        idx = [i for i, x in enumerate(lq) if x in need]
        if not idx: return None
        keep = len(lq) - 1 - max(idx)
        lq = lq[len(lq) - keep:]
        return keep
    def oread(n):
        lq.append(f"O{n}")
        return f"ds_read_b128 {vr(OFR + (n-16)*4, 4)}, v{PA} offset:{(n-16)*1024}"
    for n in range(32):
        cur = WB[n % 3]
        if n >= 16 and n % G3 == 0:
            if "p3ts" in OPT and n == 16: stamp(a, 2); lq = []
            a("s_barrier")
            if "p3ts" in OPT and n == 32 - G3: stamp(a, 3); lq = []
            for i in range(2): a(oread(n + i))
        kw = lwait({f"W{n}", f"O{n}"})
        w = []
        if n < 16: w.append(f"vmcnt({15 - n})")
        if kw is not None: w.append(f"lgkmcnt({kw})")
        if w: a("s_waitcnt " + " ".join(w))
        if "p3ts" in OPT and n in (0, 31): stamp(a, {0: 1, 31: 4}[n]); lq = []
        rd = reads3(n + 2, WB[(n+2) % 3]) if n + 2 < 32 else []
        for cb in range(2):
            a(mfma(ACC3[cb], cur + cb*4, OFR + (n%16)*4, "0" if n == 0 else ACC3[cb]))
            if rd: a(rd[2*cb:2*cb+2]); lq.extend([f"W{n+2}"]*2)
            if cb == 0 and n >= 16 and (n % G3) + 2 < G3: a(oread(n + 2))
        assert len(lq) <= 15, lq
    a(f"v_lshrrev_b32 v{L}, 4, v{LO}")
    PA = 117
    a.c("transpose through LDS (slot 1 is free) so that every store writes whole 128-byte lines")
    TA_ = 119; TB_ = 120
    a(f"v_and_b32 v{TA_}, 31, v{L}", f"v_lshrrev_b32 v{PA}, 5, v{L}", f"v_lshlrev_b32 v{PA}, 2, v{PA}", f"v_and_b32 v{TB_}, 7, v{L}",
      f"v_xor_b32 v{PA}, v{PA}, v{TB_}", f"v_lshlrev_b32 v{PA}, 4, v{PA}", f"v_lshl_add_u32 v{TA_}, v{TA_}, 7, v{PA}",
      "s_mov_b32 s52, s56", f"v_add_u32 v{TA_}, s52, v{TA_}",
      f"v_lshrrev_b32 v{PA}, 3, v{L}", f"v_xor_b32 v{VO}, v{PA}, v{TB_}", f"v_lshlrev_b32 v{VO}, 4, v{VO}", f"v_lshl_add_u32 v{VO}, v{PA}, 7, v{VO}",
      f"v_add_u32 v{VO}, s52, v{VO}",
      f"v_lshlrev_b32 v{TB_}, 4, v{TB_}", f"v_lshl_add_u32 v{TB_}, v{PA}, 11, v{TB_}")
    for cb in range(2):
        for q in range(2):
            c = cb*2 + q
            t = 32 + c*4
            for r in range(4): a(f"v_cvt_pk_bf16_f32 v{t+r}, v{ACC3[cb]+q*8+2*r}, v{ACC3[cb]+q*8+2*r+1}")
            if c: a(f"v_xor_b32 v{PA}, {c*16}, v{TA_}")
            a(f"ds_write_b128 v{PA if c else TA_}, {vr(t,4)}")
    a("s_waitcnt lgkmcnt(0)")
    for i in range(4): a(f"ds_read_b128 {vr(48 + i*4, 4)}, v{VO} offset:{i*1024}")
    for i in range(4):
        a(f"s_add_u32 s53, s13, {i*16384}", f"s_waitcnt lgkmcnt({3-i})", f"buffer_store_dwordx4 {vr(48 + i*4, 4)}, v{TB_}, s[44:47], s53 offen" + (" sc1" if "osc1" in OPT else " nt" if "ont" in OPT else " sc0 sc1" if "osys" in OPT else ""))
    if TS:
        if "p3ts" in OPT: stamp(a, 5)
        a("s_waitcnt vmcnt(0)")
        stamp(a, 14)
        ts_flush(a, 0, 0, "w0")
        if "allw" in OPT:
            for w in range(1, 4): ts_flush(a, w, w, f"w{w}")
    a("L_done:", "s_endpgm")

    a("L_fallback:")
    M = T + 2
    a("s_lshr_b32 s52, s25, 3", "s_lshl_b32 s52, s52, 13", "s_add_u32 s52, s52, s54",
      f"v_mov_b32 v{M}, 0xff800000", "s_mov_b32 s63, 0",
      f"v_sub_u32 v{T+3}, v{VA[0]}, v{KA[0]}", f"v_add_u32 v{T+3}, v{T+3}, v{LO}")
    def fb_addr():
        return ["s_lshr_b32 s53, s63, 2", "s_lshl_b32 s53, s53, 14", "s_and_b32 s56, s63, 3", "s_lshl_b32 s56, s56, 11",
                "s_add_u32 s53, s53, s56", "s_add_u32 s53, s53, s52"]
    a("L_fb1:", fb_addr(),
      f"buffer_load_dwordx4 {vr(KB[0],4)}, v{LO}, s[36:39], s53 offen sc1", "s_waitcnt vmcnt(0)",
      mfma(S[0], KB[0], Q, "0"), "s_nop 15")
    for r in range(8): a(f"v_max3_f32 v{M}, v{S[0]+2*r}, v{S[0]+2*r+1}, v{M}")
    a("s_add_u32 s63, s63, 1", "s_cmp_lg_u32 s63, 64", "s_cbranch_scc1 L_fb1")
    a(f"v_mov_b32 v{T}, v{M}", "s_nop 1", f"v_permlane32_swap_b32 v{M}, v{T}", "s_nop 1", f"v_max_f32 v{M}, v{M}, v{T}", f"v_sub_f32 v{M}, 0, v{M}")
    for r in range(16): a(f"v_mov_b32 v{CM+r}, v{M}")
    for r in range(16): a(f"v_mov_b32 v{O+r}, 0")
    a("s_mov_b32 s63, 0")
    a("L_fb2:", fb_addr(),
      f"buffer_load_dwordx4 {vr(KB[0],4)}, v{LO}, s[36:39], s53 offen sc1", "s_mov_b64 exec, s[50:51]",
      f"buffer_load_dwordx4 {vr(VB[0],4)}, v{T+3}, s[36:39], s53 offen sc1",
      f"buffer_load_dwordx4 {vr(VB[0]+4,4)}, v{T+3}, s[36:39], s53 offen offset:512 sc1", "s_mov_b64 exec, -1",
      "s_waitcnt vmcnt(0)", mfma(S[0], KB[0], Q, CM), "s_nop 15")
    a(ex(S[0], 0, 16), "s_nop 1", smf(O, VB[0], S[0], IDX), smf(O, VB[0] + 4, S[0] + 8, IDX))
    a("s_add_u32 s63, s63, 1", "s_cmp_lg_u32 s63, 64", "s_cbranch_scc1 L_fb2")
    a("s_nop 15", f"v_rcp_f32 v{T+2}, v{O+8}", f"v_mov_b32 v{T}, s48", f"v_mov_b32 v{T+1}, s49", "s_branch L_finish", "L_code_end:")
    a.l.append(f""".section .rodata,"a"
.p2align 6
.amdhsa_kernel {k}
  .amdhsa_next_free_vgpr 128
  .amdhsa_next_free_sgpr {102 if TS else 64}
  .amdhsa_accum_offset 128
  .amdhsa_group_segment_fixed_size 0
  .amdhsa_kernarg_size 72
  .amdhsa_user_sgpr_count 2
  .amdhsa_user_sgpr_kernarg_segment_ptr 1
  .amdhsa_system_sgpr_workgroup_id_x 1
.end_amdhsa_kernel""")

a = Asm()
a.l += ["; MHA x2 (S=2048, D=512, H=32), one launch: qkv projection -> attention -> output projection",
        "; @launch grid=(256,1,1) block=(1024,1,1) lds=163840",
        '.amdgcn_target "amdgcn-amd-amdhsa--gfx950"', ".text"]
gen(a)
print(a.text())
```

```python
import sys, math, struct

NAME = "concat_heads__mha_block__mha_block__prompt"
OPT = set(sys.argv[1:]) | {"pub0", "stmid", "tx67", "b0late"}
if "noc3" in OPT: pass
elif not any(o.startswith("stg=") for o in OPT): OPT |= {"c3=3"}
else: OPT |= {"nopf"}
if not OPT & {"tx", "a3", "nopf"}: OPT |= {"tx", "late", "wa2", "wb4"}
NWS = 5 if "w5" in OPT else (4 if "w4" in OPT else 3)
TS = "ts" in OPT
WT = "sc0 sc1" if "sys" in OPT else "sc1 nt" if "wtnt" in OPT else "sc1"
XNT = " nt" if "xnt" in OPT else ""
WNT = " nt" if "wnt" in OPT else ""
KV_OFF = 0
OF_OFF = 8 << 20
FKV_OFF = 12 << 20
FO_OFF = (12 << 20) + 65536
XID_OFF = (12 << 20) + 131072
WS_USED = 13 << 20
QSCALE = 0.25 * math.log2(math.e)
SPIN_MAX = 1 << 18
def f32bits(x): return struct.unpack("<I", struct.pack("<f", x))[0]

class Asm:
    def __init__(self): self.l = []
    def __call__(self, *lines):
        for x in lines:
            if isinstance(x, (list, tuple)): self(*x)
            else: self.l.append("    " + x if not x.endswith(":") else x)
    def c(self, s): self.l.append("    ; " + s)
    def text(self): return "\n".join(self.l)

def vr(b, n): return f"v[{b}:{b+n-1}]"
def mfma(d, a, b, c):
    cs = vr(c, 16) if isinstance(c, int) else c
    return f"v_mfma_f32_32x32x16_bf16 {vr(d,16)}, {vr(a,4)}, {vr(b,4)}, {cs}"
def smf(d, a, b, idx): return f"v_smfmac_f32_32x32x32_bf16 {vr(d,16)}, {vr(a,4)}, {vr(b,8)}, v{idx}"

P1TS_DONE = False
def stamp(a, j):
    if "p1ts" in OPT and P1TS_DONE and j >= 7: return
    if "cyc3" in OPT: return
    if TS: a(f"s_memrealtime s[{64+2*j}:{65+2*j}]", "s_waitcnt lgkmcnt(0)")
def cstamp(a, j):
    if "cyc3" in OPT and not ("ends" in OPT and j not in (0, 5)):
        if j == 0: a("s_memtime s[98:99]", "s_waitcnt lgkmcnt(0)")
        else: a("s_memtime s[96:97]", "s_waitcnt lgkmcnt(0)", "s_sub_u32 s96, s96, s98", f"s_add_u32 s{64+2*j}, s64, s96", f"s_addc_u32 s{65+2*j}, s65, 0")
def ts_init(a):
    if TS:
        for j in range(15): a(f"s_mov_b64 s[{64+2*j}:{65+2*j}], 0")
        a("s_mov_b32 s94, 0x5151", "s_mov_b32 s95, 0")
def ts_flush(a, kidx, wave, tag):
    if not TS: return
    a(f"s_cmp_lg_u32 s25, {wave}", f"s_cbranch_scc1 TS_skip_{tag}")
    a("s_sleep 127", "s_sleep 127", "s_sleep 127")
    a("s_mov_b64 exec, 1", f"s_lshl_b32 s96, s2, 7", f"s_add_u32 s96, s96, {(32<<20) + kidx*256*128}", "v_mov_b32 v1, s96")
    for j in range(16):
        a(f"v_mov_b32 v2, s{64+2*j}", f"v_mov_b32 v3, s{65+2*j}", f"global_store_dwordx2 v1, v[2:3], s[20:21] offset:{j*8}", "s_nop 1")
    a("s_waitcnt vmcnt(0)", "s_mov_b64 exec, -1", f"TS_skip_{tag}:")

XRING = 0
WRING = 98304
QX = 65536
TAGL = 163832
EREG = 131072

def spin(a, name, cond_lines, reload_lines, slp=1):
    a(f"s_mov_b32 s63, {SPIN_MAX}", f"L_{name}_chk:", "s_waitcnt vmcnt(0)", cond_lines, f"s_cbranch_scc1 L_{name}_ok", f"s_sleep {slp}",
      reload_lines, "s_sub_u32 s63, s63, 1", "s_cmp_lg_u32 s63, 0", f"s_cbranch_scc1 L_{name}_chk", "s_waitcnt vmcnt(0)", f"L_{name}_ok:")

def gen(a):
    k = NAME + "_kernel"
    a.l += [f".globl {k}", ".p2align 8", f".type {k},@function", f"{k}:"]
    a("s_cmp_ge_u32 s2, 256", "s_cbranch_scc1 L_done")
    a("s_load_dwordx16 s[4:19], s[0:1], 0", "s_load_dwordx2 s[20:21], s[0:1], 64")
    ts_init(a)
    if TS: a("s_memrealtime s[64:65]")
    a("s_memrealtime s[48:49]")
    a("s_and_b32 s52, s2, 7", "s_lshr_b32 s53, s2, 3",
      "s_lshr_b32 s22, s52, 2",
      "s_and_b32 s23, s53, 15",
      "s_and_b32 s24, s52, 3", "s_lshl_b32 s24, s24, 1", "s_lshr_b32 s53, s53, 4", "s_add_u32 s24, s24, s53")
    a("v_lshrrev_b32 v1, 6, v0", "v_and_b32 v0, 63, v0", "s_getreg_b32 s26, hwreg(HW_REG_XCC_ID)", "v_readfirstlane_b32 s25, v1")
    a("s_and_b32 s26, s26, 7", "s_lshl_b32 s62, s25, 10")
    a("s_waitcnt lgkmcnt(0)")
    WSB = int(([o for o in OPT if o.startswith("wsb=")] or ["wsb=0"])[0][4:]) << 20
    if WSB: a(f"s_add_u32 s20, s20, {WSB}", "s_addc_u32 s21, s21, 0")
    a("s_cmp_eq_u32 s22, 0",
      "s_cselect_b32 s4, s4, s10", "s_cselect_b32 s5, s5, s11", "s_cselect_b32 s6, s6, s12", "s_cselect_b32 s7, s7, s13",
      "s_cselect_b32 s8, s8, s14", "s_cselect_b32 s9, s9, s15")
    a("s_lshl_b32 s52, s24, 18", "s_add_u32 s28, s4, s52", "s_addc_u32 s29, s5, 0", "s_and_b32 s29, s29, 0xffff",
      "s_mov_b32 s30, 262144", "s_mov_b32 s31, 0x20000")
    a("s_mov_b32 s32, s6", "s_and_b32 s33, s7, 0xffff", f"s_mov_b32 s34, {512*3072}", "s_mov_b32 s35, 0x20000")
    a("s_cmp_ge_u32 s25, 8", "s_cbranch_scc1 L_loader")

    O = 0; Q = 16; S = [20, 36]; KB = [52, 56]; VB = [100, 108]; IDX = 116; KA = [117, 118, 98]; VA = [119, 120, 99]; LO = 121; T = 122
    CM = 80
    WOA = 61; CK = 62

    def common_init(a):
        a("s_mov_b32 s36, s20", "s_and_b32 s37, s21, 0xffff", f"s_mov_b32 s38, {WS_USED}", "s_mov_b32 s39, 0x20000")
        a("s_and_b32 s52, s23, 7", "s_lshl_b32 s52, s52, 7", "s_add_u32 s40, s8, s52", "s_addc_u32 s41, s9, 0", "s_and_b32 s41, s41, 0xffff",
          f"s_sub_u32 s42, {512*1024}, s52", "s_mov_b32 s43, 0x20000")
        a("s_mov_b32 s44, s16", "s_and_b32 s45, s17, 0xffff", f"s_mov_b32 s46, {2048*2048}", "s_mov_b32 s47, 0x20000")
        a("s_mov_b32 s50, 0xffff", "s_mov_b32 s51, 0xffff", "s_mov_b32 s27, 0")
        a("s_lshl_b32 s54, s22, 4", "s_add_u32 s54, s54, s23", "s_lshl_b32 s54, s54, 18", "s_lshl_b32 s55, s24, 15", "s_add_u32 s55, s55, s54")
        a(f"v_lshlrev_b32 v{LO}, 4, v0",
          "s_lshr_b32 s56, s25, 3", "s_lshl_b32 s53, s56, 13",
          f"v_add_u32 v{KA[0]}, s53, v{LO}", f"v_add_u32 v{KA[1]}, 0x10000, v{KA[0]}", f"v_add_u32 v{KA[2]}, 0x20000, v{KA[0]}",
          "v_and_b32 v13, 15, v0", "v_lshlrev_b32 v13, 4, v13", "v_lshrrev_b32 v14, 5, v0", "v_lshl_add_u32 v13, v14, 8, v13",
          "s_add_u32 s53, s53, 1024", f"v_add_u32 v{VA[0]}, s53, v13", f"v_add_u32 v{VA[1]}, 0x10000, v{VA[0]}", f"v_add_u32 v{VA[2]}, 0x20000, v{VA[0]}",
          f"v_mov_b32 v{IDX}, 0xdddddddd")
        a("v_and_b32 v13, 27, v0", "v_cmp_eq_u32 vcc, 16, v13", "v_mov_b32 v14, 0x3f803f80",
          f"v_mov_b32 v{T}, {TAGL}", f"v_lshlrev_b32 v{T+4}, 3, v0", "v_cndmask_b32 v13, 0, v14, vcc")
        for r in range(16): a(f"v_mov_b32 v{VB[0]+r}, v13")
        a("s_and_b32 s53, s25, 7", "s_lshl_b32 s58, s24, 3", "s_add_u32 s58, s58, s53", "s_lshl_b32 s57, s22, 6", "s_add_u32 s58, s58, s57",
          "s_lshl_b32 s58, s58, 5", "s_lshl_b32 s53, s23, 1", "s_add_u32 s53, s53, s56", "s_add_u32 s58, s58, s53",
          "s_lshl_b32 s59, s58, 3", f"s_add_u32 s59, s59, {FO_OFF}", "s_lshl_b32 s58, s58, 10", f"s_add_u32 s58, s58, {OF_OFF}")
        a("s_lshr_b32 s60, s54, 7", f"s_add_u32 s60, s60, {FKV_OFF}", "s_lshl_b32 s61, s24, 8", "s_add_u32 s61, s61, s60",
          "s_bfe_u32 s53, s25, 0x10002", "s_lshl_b32 s53, s53, 7", "s_add_u32 s61, s61, s53",
          "s_and_b32 s53, s25, 3", "s_lshl_b32 s53, s53, 3", "s_add_u32 s61, s61, s53")
        a("s_lshl_b32 s10, s22, 3", "s_add_u32 s10, s10, s24", "s_lshl_b32 s10, s10, 7", f"s_add_u32 s10, s10, {XID_OFF}")
        a("s_lshl_b32 s52, s24, 3", "s_lshr_b32 s53, s23, 3", "s_lshl_b32 s53, s53, 2", "s_add_u32 s52, s52, s53",
          "s_add_u32 s53, s57, s52", "s_lshl_b32 s11, s53, 8", f"s_add_u32 s11, s11, {FO_OFF}",
          "s_and_b32 s12, s25, 3", "s_add_u32 s52, s52, s12", "s_add_u32 s53, s53, s12", "s_lshl_b32 s12, s53, 15", f"s_add_u32 s12, s12, {OF_OFF}",
          "s_lshl_b32 s13, s22, 10", "s_and_b32 s53, s23, 7", "s_lshl_b32 s53, s53, 7", "s_add_u32 s13, s13, s53",
          "s_lshl_b32 s53, s52, 16", "s_add_u32 s13, s13, s53")

    XA = [1, 2]; XB = [3, 4]; WA = [5, 6]; VK = 96; VV = 97; QA = 123
    ACC = 16
    FXR = [64, 68]; FW = 72
    def touches():
        if "tx" in OPT:
            a.c("HBM/L2 warm-up: waves 0,1 touch 8 KB each of this workgroup's share of the X block")
            if "tx67" in OPT:
                a("s_and_b32 s53, s25, 6", "s_mov_b32 s52, s23", "s_cmp_eq_u32 s53, 0", "s_cbranch_scc1 L_tx_own",
                  "s_cmp_lg_u32 s53, 6", "s_cbranch_scc1 L_tx_done", "s_sub_u32 s52, s23, 2", "s_lshr_b32 s53, s52, 1", "s_cmp_lg_u32 s53, 3", "s_cbranch_scc1 L_tx_done",
                  "s_branch L_tx_go", "L_tx_own:", "s_lshr_b32 s53, s52, 1", "s_cmp_eq_u32 s53, 3", "s_cbranch_scc1 L_tx_done", "L_tx_go:",
                  "s_lshl_b32 s52, s52, 14", "s_and_b32 s53, s25, 1", "s_lshl_b32 s53, s53, 13", "s_add_u32 s52, s52, s53",
                  "v_lshlrev_b32 v13, 7, v0", "buffer_load_dword v125, v13, s[28:31], s52 offen" + XNT, "L_tx_done:")
            else:
                a("s_cmp_ge_u32 s25, 2", "s_cbranch_scc1 L_tx_done",
                  "s_lshl_b32 s52, s23, 14", "s_lshl_b32 s53, s25, 13", "s_add_u32 s52, s52, s53",
                  "v_lshlrev_b32 v13, 7, v0", "buffer_load_dword v125, v13, s[28:31], s52 offen" + XNT, "L_tx_done:")
        if "tw" in OPT:
            a.c("waves 2,3 touch 6 KB each of W (1/128 of the matrix per workgroup)")
            a("s_sub_u32 s52, s25, 2", "s_cmp_ge_u32 s52, 2", "s_cbranch_scc1 L_tw_done",
              "s_lshl_b32 s53, s24, 4", "s_add_u32 s53, s53, s23", "s_lshl_b32 s53, s53, 1", "s_add_u32 s52, s52, s53",
              "s_mul_i32 s52, s52, 6144", "v_cmp_gt_u32 vcc, 48, v0", "v_lshlrev_b32 v13, 7, v0", "s_and_saveexec_b64 s[56:57], vcc",
              "buffer_load_dword v125, v13, s[32:35], s52 offen", "s_mov_b64 exec, -1", "L_tw_done:")
        if "twf" in OPT:
            a.c("waves 2..7 touch 8 KB each of W (1/32 of the matrix per workgroup)")
            a("s_sub_u32 s52, s25, 2", "s_cmp_ge_u32 s52, 6", "s_cbranch_scc1 L_twf_done",
              "s_and_b32 s53, s24, 1", "s_lshl_b32 s53, s53, 4", "s_add_u32 s53, s53, s23", "s_mul_i32 s53, s53, 6", "s_add_u32 s52, s52, s53",
              "s_lshl_b32 s52, s52, 13", "v_lshlrev_b32 v13, 7, v0",
              "buffer_load_dword v125, v13, s[32:35], s52 offen", "L_twf_done:")
    def touchX(c0, nc, wave, tag):
        a(f"s_cmp_lg_u32 s25, {wave}", f"s_cbranch_scc1 L_{tag}_done")
        if nc == 2: a("v_lshrrev_b32 v13, 1, v0", "v_and_b32 v14, 1, v0")
        elif nc == 4: a("v_lshrrev_b32 v13, 2, v0", "v_and_b32 v14, 3, v0")
        else: a("v_mul_u32_u24 v13, 43, v0", "v_lshrrev_b32 v13, 7, v13", "v_mul_u32_u24 v14, 3, v13", "v_sub_u32 v14, v0, v14")
        a("v_lshlrev_b32 v13, 10, v13", "v_lshl_add_u32 v13, v14, 7, v13", "s_lshl_b32 s52, s23, 14", f"s_add_u32 s52, s52, {c0*128}",
          f"v_cmp_gt_u32 vcc, {16*nc}, v0", "s_nop 1", "s_and_saveexec_b64 s[56:57], vcc",
          "buffer_load_dword v125, v13, s[28:31], s52 offen" + XNT, "s_mov_b64 exec, -1", f"L_{tag}_done:")
    def touchW(c0, nc, wave, tag):
        a(f"s_cmp_lg_u32 s25, {wave}", f"s_cbranch_scc1 L_{tag}_done",
          "s_lshl_b32 s52, s24, 4", "s_add_u32 s52, s52, s23", f"s_mul_i32 s52, s52, {nc*1536}", f"s_add_u32 s52, s52, {c0*196608}",
          f"v_cmp_gt_u32 vcc, {12*nc}, v0", "v_lshlrev_b32 v13, 7, v0", "s_nop 0", "s_and_saveexec_b64 s[56:57], vcc",
          "buffer_load_dword v125, v13, s[32:35], s52 offen" + WNT, "s_mov_b64 exec, -1", f"L_{tag}_done:")
    if "tlb" in OPT:
        a.c("translation warm-up: wave 0 of workgroup i touches one of the pages the kernel will need")
        a("s_cmp_lg_u32 s25, 0", "s_cbranch_scc1 L_tlb_done",
          "s_and_b32 s52, s23, 7", "v_mov_b32 v13, 0",
          "s_cmp_eq_u32 s52, 0", "s_cbranch_scc1 L_tlb0", "s_cmp_eq_u32 s52, 1", "s_cbranch_scc1 L_tlb1",
          "s_cmp_eq_u32 s52, 2", "s_cbranch_scc1 L_tlb2", "s_cmp_eq_u32 s52, 3", "s_cbranch_scc1 L_tlb3",
          "s_cmp_eq_u32 s52, 4", "s_cbranch_scc1 L_tlb4")
        a("s_lshl_b32 s53, s22, 22", "s_lshr_b32 s56, s23, 3", "s_lshl_b32 s56, s56, 21", "s_add_u32 s53, s53, s56",
          "s_lshl_b32 s56, s22, 21", f"s_add_u32 s56, s56, {OF_OFF}",
          "s_cmp_eq_u32 s52, 6", "s_cselect_b32 s53, s56, s53", "s_cmp_eq_u32 s52, 7", f"s_cselect_b32 s53, {FKV_OFF}, s53",
          "v_mov_b32 v13, s53", "global_load_dword v125, v13, s[20:21]", "s_branch L_tlb_done")
        a("L_tlb0:", "buffer_load_dword v125, v13, s[28:31], 0 offen", "s_branch L_tlb_done")
        a("L_tlb1:", "buffer_load_dword v125, v13, s[32:35], 0 offen", "s_branch L_tlb_done")
        a("L_tlb2:", "global_load_dword v125, v13, s[8:9]", "s_branch L_tlb_done")
        a("L_tlb3:", "s_lshr_b32 s53, s24, 2", "s_lshl_b32 s53, s53, 21", "v_mov_b32 v13, s53", "global_load_dword v125, v13, s[16:17]", "s_branch L_tlb_done")
        a("L_tlb4:", "global_load_dword v125, v13, s[18:19] sc1", "L_tlb_done:")
    if "cpf" in OPT:
        a.c("pull the kernel's code into L2 (waves 4..7, 64 lines each)")
        a("s_sub_u32 s52, s25, 4", "s_cmp_ge_u32 s52, 4", "s_cbranch_scc1 L_cpf_done",
          "s_getpc_b64 s[56:57]", "L_cpf_pc:", "s_lshl_b32 s52, s52, 13", "v_lshlrev_b32 v13, 7, v0", "v_add_u32 v13, s52, v13",
          "v_cmp_gt_u32 vcc, L_code_end-L_cpf_pc, v13", "s_nop 1", "s_and_saveexec_b64 s[52:53], vcc", "s_cbranch_execz L_cpf_skip",
          "global_load_dword v125, v13, s[56:57]", "L_cpf_skip:", "s_mov_b64 exec, -1", "L_cpf_done:")
    STG = [o for o in OPT if o.startswith("stg=")]
    stg = [[int(y) for y in x] for x in STG[0][4:].split(",")] if STG else [[], [], [], [], []]
    def stouch(chunks, tag):
        if not chunks: return
        lo, hi = min(chunks), max(chunks)
        a(f"s_sub_u32 s52, s25, {lo}", f"s_cmp_gt_u32 s52, {hi-lo}", f"s_cbranch_scc1 L_{tag}",
          "s_lshl_b32 s52, s23, 14", "s_lshl_b32 s53, s25, 7", "s_add_u32 s52, s52, s53", "v_lshlrev_b32 v8, 10, v0", "s_mov_b64 exec, 0xffff",
          "buffer_load_dword v125, v8, s[28:31], s52 offen",
          "s_and_b32 s52, s24, 1", "s_lshl_b32 s52, s52, 4", "s_add_u32 s52, s52, s23", "s_mul_i32 s52, s52, 6144", "s_mul_i32 s53, s25, 196608",
          "s_add_u32 s52, s52, s53", "s_mov_b64 exec, -1", "v_lshlrev_b32 v8, 7, v0", "s_mov_b32 exec_hi, 0xffff",
          "buffer_load_dword v125, v8, s[32:35], s52 offen", "s_mov_b64 exec, -1", f"L_{tag}:")
    stouch(stg[0], "stg0")
    if "early" in OPT: touches()
    a("s_barrier")
    if "early" not in OPT and "late" not in OPT: touches()
    if "a3" in OPT:
        touchX(2, 3, 0, "xa3"); touchW(2, 3, 1, "wa3")
    if "wa3" in OPT: touchW(2, 3, 2, "wa3")
    if "wa2" in OPT: touchW(2, 2, 2, "wa2")
    if "wa13" in OPT: touchW(1, 3, 2, "wa13")
    common_init(a)
    a("v_and_b32 v13, 15, v0", "v_lshrrev_b32 v14, 4, v0",
      "v_bfe_u32 v15, v0, 1, 3", "v_xor_b32 v15, v15, v14", "v_lshlrev_b32 v15, 4, v15", "v_lshl_add_u32 v15, v13, 7, v15",
      "s_lshl_b32 s52, s25, 12",
      f"v_add_u32 v{XA[0]}, s52, v15", f"v_xor_b32 v{XA[1]}, 64, v{XA[0]}",
      f"v_add_u32 v{XB[0]}, 0x10000, v{XA[0]}", f"v_add_u32 v{XB[1]}, 0x10000, v{XA[1]}")
    a("v_bfe_u32 v15, v0, 2, 2", "v_lshl_add_u32 v13, v14, 3, v15", "v_lshlrev_b32 v13, 6, v13",
      "v_bfe_u32 v15, v0, 4, 1", "v_lshl_add_u32 v13, v15, 5, v13", "v_and_b32 v15, 3, v0", "v_lshl_add_u32 v13, v15, 3, v13",
      f"v_add_u32 v{WA[0]}, {WRING}, v13", f"v_xor_b32 v{WA[1]}, 32, v{WA[0]}")
    a("s_and_b32 s52, s25, 3", "s_lshl_b32 s52, s52, 11", "s_lshr_b32 s53, s25, 2", "s_lshl_b32 s53, s53, 14", "s_add_u32 s52, s52, s53",
      f"v_add_u32 v{VK}, s52, v{LO}",
      "v_and_b32 v13, 15, v0", "v_lshlrev_b32 v13, 4, v13", "v_lshrrev_b32 v14, 5, v0", "v_lshl_add_u32 v13, v14, 8, v13",
      "v_bfe_u32 v15, v0, 4, 1", "v_lshl_add_u32 v13, v15, 13, v13", "s_add_u32 s52, s52, 1024", f"v_add_u32 v{VV}, s52, v13")
    a(f"s_add_u32 s52, s62, {QX}", f"v_add_u32 v{QA}, s52, v{LO}", "s_add_u32 s0, s55, 8192")
    a("v_lshlrev_b32 v7, 7, v0")
    lq1 = []
    def xread(n, th):
        c, s2 = divmod(n, 2); slot = c % 3
        lq1.append(f"X{th}")
        if slot < 2: return f"ds_read_b128 {vr(FXR[th],4)}, v{XA[s2]} offset:{slot*32768 + th*2048}"
        return f"ds_read_b128 {vr(FXR[th],4)}, v{XB[s2]} offset:{th*2048}"
    def wread(n, b):
        c, s2 = divmod(n, 2); seg, hd = divmod(b, 2)
        lq1.extend([f"W{b}"]*2)
        return [f"ds_read_b64_tr_b16 {vr(FW + b*4 + j*2, 2)}, v{WA[hd]} offset:{(c % NWS)*12288 + seg*4096 + s2*2048 + j*256}" for j in range(2)]
    def lw1(need):
        idx = [i for i, x in enumerate(lq1) if x in need]
        if not idx: return []
        keep = len(lq1) - 1 - max(idx)
        del lq1[:len(lq1) - keep]
        return [f"s_waitcnt lgkmcnt({keep})"]
    def m16(th, b, first):
        d = ACC + (b*2 + th)*4
        cs = "0" if first else vr(d, 4)
        x = vr(FXR[th], 4); w = vr(FW + b*4, 4)
        return f"v_mfma_f32_16x16x32_bf16 {vr(d,4)}, " + (f"{w}, {x}" if b < 4 else f"{x}, {w}") + f", {cs}"
    if "nokvpre" not in OPT:
        a.c("an early poll of a line that is still only in HBM is slow: fetch the group's K/V flag lines now")
        a("s_cmp_lg_u32 s25, 5", "s_cbranch_scc1 L_kvpre_done", "v_lshlrev_b32 v13, 7, v0", "s_mov_b64 exec, 0xffff", "buffer_load_dword v125, v13, s[36:39], s60 offen sc1", "s_mov_b64 exec, -1", "L_kvpre_done:")
    if "tkv" in OPT:
        a.c("first touch of the K/V block's pages ahead of the stores")
        a("s_cmp_lg_u32 s25, 7", "s_cbranch_scc1 L_tkv_done", "v_lshlrev_b32 v13, 12, v0", "s_mov_b64 exec, 0xff",
          "buffer_load_dword v125, v13, s[36:39], s55 offen", "s_mov_b64 exec, -1", "L_tkv_done:")
    if "kvpt" in OPT:
        a.c("fetch every line of the K/V block ahead of the stores (waves 4..7)")
        a("s_sub_u32 s52, s25, 4", "s_cmp_ge_u32 s52, 4", "s_cbranch_scc1 L_kvpt_done", "v_lshlrev_b32 v13, 7, v0", "s_lshl_b32 s52, s52, 13", "s_add_u32 s52, s52, s55",
          "buffer_load_dword v125, v13, s[36:39], s52 offen", "L_kvpt_done:")
    C3 = [o for o in OPT if o.startswith("c3=")]
    if C3:
        cls = int(C3[0][3:])
        a("s_cmp_lg_u32 s25, 6", "s_cbranch_scc1 L_c3_done",
          "s_and_b32 s52, s24, 1", "s_lshl_b32 s52, s52, 4", "s_add_u32 s52, s52, s23", "s_mul_i32 s52, s52, 36864",
          f"s_add_u32 s52, s52, {384*1024 + cls*128}", "v_cmp_gt_u32 vcc, 36, v0", "v_lshlrev_b32 v13, 10, v0", "s_nop 0",
          "s_and_saveexec_b64 s[56:57], vcc", "buffer_load_dword v125, v13, s[32:35], s52 offen", "s_mov_b64 exec, -1", "L_c3_done:")
    stouch(stg[1], "stg1")
    if "late" in OPT: touches()
    if "xa" in OPT: touchX(3, 2, 0, "xa")
    if "wa" in OPT: touchW(3, 2, 1, "wa")
    if "wa5" in OPT: touchW(3, 5, 1, "wa5")
    if "xa4" in OPT: touchX(4, 4, 0, "xa4")
    a(f"s_mov_b32 s56, {f32bits(QSCALE):#x}", f"s_mov_b32 s57, {f32bits(QSCALE):#x}")
    stamp(a, 1)
    a("s_barrier")
    stamp(a, 2)
    if "xb" in OPT or "wb" in OPT or "wb4" in OPT:
        if "xb" in OPT: touchX(5, 3, 2, "xb")
        if "wb" in OPT: touchW(5, 3, 3, "wb")
        if "wb4" in OPT: touchW(4, 4, 3, "wb4")
        a(f"s_mov_b32 s56, {f32bits(QSCALE):#x}", f"s_mov_b32 s57, {f32bits(QSCALE):#x}")
    if "cyc" in OPT: a("s_memtime s[98:99]", "s_waitcnt lgkmcnt(0)")
    stouch(stg[2], "stg2")
    BO = [2, 3, 4, 5, 0, 1]
    a(xread(0, 0))
    for b in BO: a(wread(0, b))
    a(xread(0, 1))
    for n in range(16):
        c, s2 = divmod(n, 2)
        for b in BO:
            a(lw1({"X0", f"W{b}"}), m16(0, b, n == 0))
        if n < 15:
            if s2 == 1:
                a("s_waitcnt lgkmcnt(0)", "s_barrier"); lq1.clear()
                if c == 3 and "p1ts" not in OPT: stamp(a, 3)
                if "p1ts" in OPT: stamp(a, 7 + c)
                if c < 2: stouch(stg[3 + c], f"stg{3+c}")
                KVL = [o for o in OPT if o.startswith("kvl=")]
                if KVL:
                    c0, span = [int(x) for x in KVL[0][4:].split(",")]
                    if c0 <= c < c0 + span:
                        per = 4 // span
                        w0 = 4 + (c - c0)*per
                        a.c("a write-through store to a line the memory-side cache does not hold is slow: fetch the K/V block's lines first")
                        a(f"s_sub_u32 s52, s25, {w0}", f"s_cmp_ge_u32 s52, {per}", f"s_cbranch_scc1 L_kvl{c}", "s_sub_u32 s52, s25, 4",
                          "s_lshl_b32 s52, s52, 13", "s_add_u32 s52, s52, s55", "buffer_load_dword v125, v7, s[36:39], s52 offen", f"L_kvl{c}:")
            a(xread(n + 1, 0))
        for i, b in enumerate(BO):
            a(lw1({"X1"}), m16(1, b, n == 0))
            if n < 15: a(wread(n + 1, b))
            elif i < 4:
                for r in range(4): a(f"v_mov_b32 v{O + i*4 + r}, 0")
        if n < 15: a(xread(n + 1, 1))
        assert len(lq1) <= 15
    stamp(a, 4)
    global P1TS_DONE
    P1TS_DONE = True
    a.c("P1 epilogue: K, V -> LDS stage slot 0 (and, after the barrier, global) ; Q -> regs / LDS")
    PK = 64
    def pack2(dst, src): return [f"v_cvt_pk_bf16_f32 v{dst+r}, v{src+2*r}, v{src+2*r+1}" for r in range(2)]
    def acc(th, b): return ACC + (b*2 + th)*4
    def swaps(t): return [f"v_permlane16_swap_b32 v{t}, v{t+2}", f"v_permlane16_swap_b32 v{t+1}, v{t+3}"]
    GST = [f"buffer_store_dwordx4 {vr(PK,4)}, v{VK}, s[36:39], s55 offen {WT}",
      f"buffer_store_dwordx4 {vr(PK+4,4)}, v{VK}, s[36:39], s0 offen {WT}",
      f"buffer_store_dwordx4 {vr(PK+8,4)}, v{VV}, s[36:39], s55 offen {WT}",
      f"buffer_store_dwordx4 {vr(PK+12,4)}, v{VV}, s[36:39], s55 offen offset:512 {WT}"]
    a("s_nop 2")
    a(pack2(PK, acc(0, 2)), pack2(PK + 2, acc(1, 2)), pack2(PK + 4, acc(0, 3)), pack2(PK + 6, acc(1, 3)))
    a(swaps(PK), f"ds_write_b128 v{VK}, {vr(PK,4)}")
    if "stearly" in OPT: a(GST[0])
    a(pack2(PK + 8, acc(0, 4)), pack2(PK + 10, acc(0, 5)))
    a(swaps(PK + 4), f"ds_write_b128 v{VK}, {vr(PK+4,4)} offset:8192")
    if "stearly" in OPT: a(GST[1])
    a(pack2(PK + 12, acc(1, 4)), pack2(PK + 14, acc(1, 5)))
    a(swaps(PK + 8), f"ds_write_b128 v{VV}, {vr(PK+8,4)}")
    if "stearly" in OPT: a(GST[2])
    for r in range(4): a(f"v_pk_mul_f32 {vr(acc(0,1)+2*r,2)}, {vr(acc(0,1)+2*r,2)}, s[56:57]")
    a(swaps(PK + 12), f"ds_write_b128 v{VV}, {vr(PK+12,4)} offset:512")
    if "stearly" in OPT: a(GST[3])
    a(pack2(PK + 16, acc(0, 1)), pack2(PK + 18, acc(1, 1)))
    for r in range(4): a(f"v_pk_mul_f32 {vr(acc(0,0)+2*r,2)}, {vr(acc(0,0)+2*r,2)}, s[56:57]")
    a(swaps(PK + 16), f"ds_write_b128 v{QA}, {vr(PK+16,4)}")
    a(pack2(Q, acc(0, 0)), pack2(Q + 2, acc(1, 0)), "s_nop 1", swaps(Q))
    gst = [f"buffer_store_dwordx4 {vr(PK,4)}, v{VK}, s[36:39], s55 offen {WT}",
      f"buffer_store_dwordx4 {vr(PK+4,4)}, v{VK}, s[36:39], s0 offen {WT}",
      f"buffer_store_dwordx4 {vr(PK+8,4)}, v{VV}, s[36:39], s55 offen {WT}",
      f"buffer_store_dwordx4 {vr(PK+12,4)}, v{VV}, s[36:39], s55 offen offset:512 {WT}"]
    a("s_cmp_ge_u32 s25, 4", "s_cbranch_scc1 L_nost", gst, "L_nost:")
    a("s_waitcnt lgkmcnt(0)")
    stamp(a, 5)
    a("s_barrier")
    stamp(a, 6)
    a("s_branch L_haveq")

    a("L_loader:")
    if "lprio" in OPT: a("s_setprio 3")
    a("s_sub_u32 s52, s25, 8")
    a("s_and_b32 s53, s52, 1", "s_lshl_b32 s53, s53, 2",
      "v_lshrrev_b32 v2, 4, v0", "v_add_u32 v2, s53, v2", "v_and_b32 v3, 7, v0", "v_xor_b32 v2, v2, v3", "v_lshlrev_b32 v2, 4, v2",
      "v_lshrrev_b32 v4, 3, v0", "v_lshl_add_u32 v2, v4, 10, v2")
    a("v_lshrrev_b32 v4, 2, v0", "v_mul_u32_u24 v4, 3072, v4", "v_and_b32 v3, 3, v0",
      "v_lshrrev_b32 v5, 5, v0", "v_lshlrev_b32 v5, 1, v5", "v_xor_b32 v3, v3, v5", "v_lshl_add_u32 v3, v3, 4, v4",
      "s_lshl_b32 s53, s23, 6", "v_add_u32 v3, s53, v3")
    a("s_lshl_b32 s4, s52, 13", "s_add_u32 s5, s4, 65536", "s_add_u32 s6, s4, 131072", "s_add_u32 s7, s4, 196608",
      "s_lshl_b32 s0, s52, 10")
    a("s_and_b32 s53, s52, 3", "s_mul_i32 s1, s53, 49152", "s_lshr_b32 s53, s52, 2", "s_lshl_b32 s53, s53, 10", "s_add_u32 s1, s1, s53")
    a("s_and_b32 s3, s24, 6")
    a("s_cmp_ge_u32 s52, 4", "s_cbranch_scc1 L_loaderB")
    ROT = "rot" in OPT
    def issueW(c, variantA):
        slot = c % NWS
        if ROT: pre = [f"s_add_u32 s53, s24, {c}" if "rotj" in OPT else f"s_add_u32 s53, s3, {c}", "s_and_b32 s53, s53, 7", "s_lshl_b32 s57, s53, 7", "s_mul_i32 s53, s53, 196608", "s_add_u32 s53, s53, s1",
                       f"s_add_u32 m0, s0, {WRING + slot*12288}", "s_nop 0"]
        else: pre = [f"s_add_u32 m0, s0, {WRING + slot*12288}", f"s_add_u32 s53, s1, {c*196608}"]
        out = pre + [
               "buffer_load_dwordx4 v3, s[32:35], s53 offen" + WNT + " lds"]
        if variantA:
            out += [f"s_add_u32 m0, s0, {WRING + slot*12288 + 8192 - 2048}", "s_nop 0",
                    "buffer_load_dwordx4 v3, s[32:35], s53 offen offset:2048" + WNT + " lds"]
        return out
    def issueX(c):
        slot = c % 3
        out = []
        for aa in range(4):
            out += [f"s_add_u32 m0, s0, {XRING + slot*32768 + aa*8192}", (f"s_add_u32 s53, s{4+aa}, s57" if ROT else f"s_add_u32 s53, s{4+aa}, {c*128}"),
                    "buffer_load_dwordx4 v2, s[28:31], s53 offen" + XNT + " lds"]
        return out
    for variantA in (True, False):
        ops = []
        def W(c):
            a(issueW(c, variantA)); ops.extend([c]*(2 if variantA else 1))
        def X(c):
            a(issueX(c)); ops.extend([c]*4)
        if not variantA: a("L_loaderB:")
        if variantA: stamp(a, 1)
        SX = [o for o in OPT if o.startswith("sx=")]
        sx = [[int(y) for y in x] for x in SX[0][3:].split(",")] if SX else [[]]*6
        def spf(chunks):
            for c_ in chunks:
                for off in (0, 64, 1024, 1088): a(f"s_load_dword s63, s[16:17], {c_*128 + off}")
        if SX:
            a("s_lshl_b32 s53, s23, 3", "s_add_u32 s53, s53, s52", "s_lshl_b32 s53, s53, 11")
        W0 = issueW(0, variantA)
        if SX: a("s_add_u32 s96, s28, s53" if TS else "s_add_u32 s64, s28, s53", "s_addc_u32 s97, s29, 0" if TS else "s_addc_u32 s65, s29, 0")
        SXB = "s[96:97]" if TS else "s[64:65]"
        SWB = 98 if TS else 66
        SW = [o for o in OPT if o.startswith("sw=")]
        if SW:
            a("s_lshl_b32 s53, s24, 4", "s_add_u32 s53, s53, s23", "s_mul_i32 s53, s53, 6", "s_min_u32 s56, s52, 5", "s_add_u32 s53, s53, s56",
              "s_lshl_b32 s53, s53, 8", f"s_add_u32 s53, s53, {4*196608}", f"s_add_u32 s{SWB}, s32, s53", f"s_addc_u32 s{SWB+1}, s33, 0")
        def spf(chunks):
            for c_ in chunks:
                if SW:
                    for off in ((0, 128) if SW[0] == "sw=1" else (0, 64, 128, 192)): a(f"s_load_dword s3, s[{SWB}:{SWB+1}], {(c_-4)*196608 + off}")
                for off in (0, 64, 1024, 1088): a(f"s_load_dword s3, {SXB}, {c_*128 + off}")
        W(0); X(0); spf(sx[0]); a("s_barrier")
        if "b0f" not in OPT: W(1); X(1)
        spf(sx[1])
        if variantA and not SX: stamp(a, 2)
        if not variantA:
            a.c("workgroup 0 publishes the launch tag (low 4 bits: 8 | room for an XCC id)")
            a("s_cmp_lg_u32 s2, 0", "s_cbranch_scc1 L_notag", "s_cmp_lg_u32 s52, 7", "s_cbranch_scc1 L_notag")
            a("s_lshl_b64 s[48:49], s[48:49], 4", "s_or_b32 s48, s48, 8",
              "v_mov_b32 v8, 0", "v_mov_b32 v4, s48", "v_mov_b32 v5, s49", "s_mov_b64 exec, 1",
              f"global_store_dwordx2 v8, v[4:5], s[18:19] {WT}", "s_mov_b64 exec, -1")
            a("L_notag:")
        ROLL = "roll" in OPT and not variantA
        def TOUCH(c):
            a("s_mov_b64 exec, s[16:17]", "buffer_load_dword v10, v9, s[44:47], s3 offen", "s_mov_b64 exec, -1", "s_add_u32 s3, s3, s27")
            ops.append(99)
        if ROLL:
            a("s_mov_b32 s3, s52")
        common_init(a)
        if ROLL:
            R0 = int([o for o in OPT if o.startswith("r0=")][0][3:]) if any(o.startswith("r0=") for o in OPT) else 2
            a.c("rolling L2 warm-up of later W chunks, spread over the XCD's workgroups")
            a("s_mov_b32 s44, s32", "s_mov_b32 s45, s33", "s_mov_b32 s46, s34", "s_mov_b32 s17, 0", "s_mov_b32 s27, 196608",
              "s_and_b32 s52, s24, 1", "s_lshl_b32 s52, s52, 4", "s_add_u32 s52, s52, s23", "s_and_b32 s3, s3, 3")
            if "roll3" in OPT:
                a("s_mov_b32 s16, 3", "v_lshlrev_b32 v9, 10, v0", "s_min_u32 s3, s3, 2", "s_lshl_b32 s3, s3, 11", "s_mul_i32 s52, s52, 6144",
                  "s_add_u32 s3, s3, s52", f"s_add_u32 s3, s3, {R0*196608 + 384}")
            else:
                a("s_mov_b32 s16, 0xfff", "v_lshlrev_b32 v9, 7, v0", "s_mul_i32 s3, s3, 1536", "s_mul_i32 s52, s52, 6144",
                  "s_add_u32 s3, s3, s52", f"s_add_u32 s3, s3, {R0*196608}")
            nextT = R0
            RD = int([o for o in OPT if o.startswith("rd=")][0][3:]) if any(o.startswith("rd=") for o in OPT) else 4
            while nextT < RD: TOUCH(nextT); nextT += 1
        nextW = 2
        for c in range(8):
            last = max(i for i, x in enumerate(ops) if x <= c)
            wait = len(ops) - 1 - last
            if not variantA and c == 7:
                a.c("launch tag -> LDS")
                spin(a, "tag", ["v_cmp_ne_u64 vcc, 0, v[6:7]", "s_nop 1", "s_cmp_eq_u64 vcc, -1"],
                     ["global_load_dwordx2 v[6:7], v8, s[18:19] sc1"])
                a(f"ds_write_b64 v{T}, v[6:7]")
            else:
                a(f"s_waitcnt vmcnt({wait})")
            a("s_barrier")
            if variantA and c == 0 and not SX: stamp(a, 3)
            if variantA and c == 7: stamp(a, 4)
            if "b0f" in OPT and c == 0: W(1); X(1)
            if nextW == c + 2 and nextW <= 7: W(nextW); nextW += 1
            if c + 2 <= 7: X(c + 2)
            while nextW <= min(7, c - 1 + NWS): W(nextW); nextW += 1
            if c + 2 < len(sx): spf(sx[c + 2])
            if ROLL and nextT <= 7: TOUCH(nextT); nextT += 1
            if not variantA and c == 5:
                a("v_mov_b32 v8, 0", "global_load_dwordx2 v[6:7], v8, s[18:19] sc1"); ops.append(99)
        if variantA: a("s_branch L_p2_start")

    a("L_p2_start:")
    a(f"v_mov_b32 v{VK}, 0", f"v_mov_b32 v{VV}, 0")
    for r in range(16): a(f"v_mov_b32 v{O+r}, 0")
    a(f"s_add_u32 s53, s62, {QX - 8192}", f"v_add_u32 v{T+1}, s53, v{LO}")
    a("s_waitcnt lgkmcnt(0)")
    stamp(a, 5)
    a("s_barrier")
    stamp(a, 6)
    a(f"ds_read_b128 {vr(Q,4)}, v{T+1}")
    a("L_haveq:")
    cstamp(a, 0)
    def loc(u):
        n, i = divmod(u, 4); sl = n % 10
        return sl // 4, (sl % 4)*16384 + i*2048
    def kread(u):
        b, o = loc(u)
        return [f"ds_read_b128 {vr(KB[u%2],4)}, v{KA[b]} offset:{o}"]
    def vread(u):
        b, o = loc(u)
        return ["s_mov_b64 exec, s[50:51]",
                f"ds_read_b128 {vr(VB[u%2],4)}, v{VA[b]} offset:{o}",
                f"ds_read_b128 {vr(VB[u%2]+4,4)}, v{VA[b]} offset:{o+512}",
                "s_mov_b64 exec, -1"]
    def ex(base, lo, hi): return [f"v_exp_f32 v{base+i}, v{base+i}" for i in range(lo, hi)]
    def opt(name, default): return [int(x) for x in ([o for o in OPT if o.startswith(name + "=")] or [name + "=" + default])[0][len(name)+1:].split(",")]
    HB = [(0, 0), (0, 1)] + [(x, 0) for x in range(1, 8)] + [(x, 1) for x in range(1, 8)]
    poll = [f"buffer_load_dwordx2 {vr(T,2)}, v{T+4}, s[36:39], s57 offen sc1"]
    def fetch_poll(ns, tag, lg, w0):
        per = 16 >> lg
        a(f"s_sub_u32 s52, s25, {w0}", f"s_cmp_ge_u32 s52, {len(ns) << lg}", f"s_cbranch_scc1 L_{tag}_p")
        code = 0; slots = 0
        for k_, n in enumerate(ns):
            code |= (HB[n][0]*2 + HB[n][1]) << (4*k_); slots |= (n % 10) << (4*k_)
        a(f"s_lshr_b32 s63, s52, {lg}", "s_lshl_b32 s63, s63, 2", f"s_lshr_b32 s53, {code:#x}, s63", "s_and_b32 s53, s53, 15",
          "s_lshl_b32 s57, s24, 1", "s_xor_b32 s53, s53, s57",
          "s_lshl_b32 s57, s53, 7", "s_add_u32 s57, s57, s60",
          "s_mov_b64 exec, 15", poll, "s_mov_b64 exec, -1")
        a("s_lshl_b32 s53, s53, 14", "s_add_u32 s56, s53, s54",
          f"s_and_b32 s52, s52, {(1 << lg) - 1}", f"s_mul_i32 s52, s52, {per*1024}", "s_add_u32 s56, s56, s52",
          f"s_lshr_b32 s53, {slots:#x}, s63", "s_and_b32 s53, s53, 15", "s_lshl_b32 s53, s53, 14", "s_add_u32 s52, s52, s53", f"L_{tag}_p:")
    def fetch_load(ns, tag, lg, w0):
        per = 16 >> lg
        a(f"s_sub_u32 s53, s25, {w0}", f"s_cmp_ge_u32 s53, {len(ns) << lg}", f"s_cbranch_scc1 L_{tag}_done", "s_mov_b64 exec, 15")
        spin(a, tag, [f"v_cmp_eq_u64 vcc, s[48:49], {vr(T,2)}", "s_nop 1", "s_cmp_eq_u64 vcc, 15"], poll, SLP)
        a("s_mov_b64 exec, -1")
        for i in range(per):
            if i % 4 == 0: a(f"s_add_u32 m0, s52, {i*1024}", f"s_add_u32 s53, s56, {i*1024}")
            a(f"buffer_load_dwordx4 v{LO}, s[36:39], s53 offen offset:{(i%4)*1024} sc1 lds")
        a(f"L_{tag}_done:")
    SLP = opt("slp", "4")[0]
    a("s_setprio 3", "s_cmp_lt_u32 s25, 4", "s_cselect_b32 s3, 1, 0")
    a(kread(0), kread(1), vread(0), f"ds_read_b64 {vr(T+2,2)}, v{T}", "s_waitcnt lgkmcnt(4)")
    a(mfma(S[0], KB[0], Q, "0"))
    a.c("later-needed lane constants, computed in the shadow of the first MFMA")
    a(f"v_lshrrev_b32 v{WOA}, 4, v{LO}", f"v_bfe_u32 v{CK}, v{WOA}, 4, 1", f"v_lshlrev_b32 v{CK}, 1, v{CK}", f"v_and_b32 v{CK+1}, 7, v{WOA}",
      f"v_xor_b32 v{CK}, v{CK}, v{CK+1}", f"v_lshlrev_b32 v{CK}, 4, v{CK}", f"v_lshrrev_b32 v{WOA}, 3, v{WOA}",
      f"v_lshl_add_u32 v{WOA}, v{WOA}, 10, v{CK}", f"v_and_b32 v{T+5}, 0x78, v{T+4}",
      f"v_mov_b32 v{CK}, 0x33800000", f"v_mov_b32 v{CK+1}, 0x57800000", f"v_mov_b32 v60, 0")
    a("s_waitcnt lgkmcnt(0)")
    a(f"v_readfirstlane_b32 s48, v{T+2}", f"v_readfirstlane_b32 s49, v{T+3}")
    a("s_nop 0")
    NT = 64
    WO = 98304
    B1L = "b1late" in OPT
    LATE = (7, 11) if B1L else (7,)
    BAR = (18, 34, 54) if B1L else (10, 18, 34, 54)
    prio_at = {4: 2, 6: 1, 7: 0, 10: 2 if B1L else 1, 11: 1 if B1L else 3, 14: 2, 17: 1, 18: 0, 27: 2, 32: 1, 34: 0, 45: 2, 52: 1, 54: 0, 60: 2, 62: 1, 63: 0}
    for o in OPT:
        if o.startswith("pr="): prio_at.update({int(x.split(":")[0]): int(x.split(":")[1]) for x in o[3:].split(",")})
    SB = opt("sb", "3")[0]
    F1, F2, F3 = opt("ff", "4,8,12")
    P1_, Q1_, P2_, Q2_, P3_, Q3_ = opt("fu", "3,4,6,7,11,12")
    FETCH = [([2], "f1", 1, 8, P1_, Q1_), ([3, 4], "f2", 1, 10, P2_, Q2_), ([5, 6, 7, 8], "f3", 1, 8, P3_, Q3_),
             ([9, 10, 11, 12, 13], "f4", 0, 8, 19, 20), ([14, 15], "f5", 2, 8, 35, 36)]
    PF_ = opt("pf", "16")[0]
    def publish(u, force):
        a("s_cmp_eq_u32 s3, 0", f"s_cbranch_scc1 L_pub{u}")
        if force == "A": a("s_cmp_lt_u32 s25, 4", f"s_cbranch_scc1 L_pubf{u}")
        if force != "all": a("s_getreg_b32 s53, hwreg(HW_REG_IB_STS)", "s_and_b32 s53, s53, 0xc0000f", f"s_cbranch_scc1 L_pub{u}")
        a(f"L_pubf{u}:", f"v_mov_b32 v{T}, s48", f"v_mov_b32 v{T+1}, s49", "s_waitcnt vmcnt(0)")
        stamp(a, 7)
        a("s_mov_b64 exec, 1", f"buffer_store_dwordx2 {vr(T,2)}, v60, s[36:39], s61 offen {WT}", "s_mov_b64 exec, -1", "s_mov_b32 s3, 0", f"L_pub{u}:")
    def barrier(u):
        if u < 30: a("s_cmp_lt_u32 s25, 8", f"s_cbranch_scc1 L_b{u}", "s_waitcnt vmcnt(0)", f"L_b{u}:")
        else: a("s_waitcnt vmcnt(0)")
        a("s_barrier", "s_setprio 3")
        IDL = opt("idle", "99,0")
        if u == IDL[0]: a(f"s_sleep {IDL[1]}")
    for u in range(NT):
        s = S[u % 2]
        if u in prio_at: a(f"s_setprio {prio_at[u]}")
        late = u in LATE
        a("s_waitcnt lgkmcnt(0)")
        a(ex(s, 0, 2))
        if u > 0: a(smf(O, VB[(u-1) % 2] + 4, S[(u-1) % 2] + 8, IDX))
        if u + 1 < NT and not late: a(vread(u + 1))
        a(ex(s, 2, 5))
        if u + 1 < NT and not late:
            a(mfma(S[(u+1) % 2], KB[(u+1) % 2], Q, "0"))
            if u in BAR:
                barrier(u)
                if u == 34: stamp(a, 10)
                if u == 18 and "b12" in OPT: stamp(a, 2)
                if u == 10 and "b12" in OPT: stamp(a, 1)
                cstamp(a, {10: 2, 18: 3, 34: 4, 54: 6}[u])
            if u + 2 < NT and u + 1 not in LATE: a(kread(u + 2))
        a(ex(s, 5, 10))
        a(smf(O, VB[u % 2], s, IDX))
        a(ex(s, 10, 16))
        if u <= PF_:
            if u == 0: a.c("publish this wave's K/V tile as soon as its stores have been acknowledged")
            publish(u, "A" if u == 7 else "all" if u == PF_ else "")
        if late:
            if u == 7: stamp(a, 8)
            barrier(u)
            if u == 7: stamp(a, 9)
            if u == 11 and "b12" in OPT: stamp(a, 1)
            cstamp(a, {7: 1, 11: 2}[u])
            a(kread(u + 1), kread(u + 2), vread(u + 1), "s_waitcnt lgkmcnt(3)", mfma(S[(u+1) % 2], KB[(u+1) % 2], Q, "0"), "s_nop 10")
        if u == SB:
            a.c("second-half tiles go out after the first-half ones, which are needed sooner")
            a("s_sub_u32 s53, s25, 4", "s_cmp_ge_u32 s53, 4", "s_cbranch_scc1 L_nost2", gst, "s_mov_b32 s3, 1", "L_nost2:")
        if u == 19:
            a.c("wave 0 publishes the workgroup's XCC id")
            a("s_cmp_lg_u32 s25, 0", "s_cbranch_scc1 L_xid", f"v_mov_b32 v{T}, s48", f"v_mov_b32 v{T+1}, s49",
              f"v_or_b32 v{T}, s26, v{T}", "s_lshl_b32 s53, s23, 3", "s_add_u32 s53, s53, s10",
              "s_mov_b64 exec, 1", f"buffer_store_dwordx2 {vr(T,2)}, v60, s[36:39], s53 offen {WT}", "s_mov_b64 exec, -1", "L_xid:")
        for (ns, tag, lg, w0, up, ul) in FETCH:
            if u == up: fetch_poll(ns, tag, lg, w0)
            if u == ul: fetch_load(ns, tag, lg, w0)
        if u in (37, 38, 56, 57):
            aa = {37: 0, 38: 1, 56: 2, 57: 3}[u]
            if aa == 0: a.c("Wo tile -> LDS (half-slots 6..9)")
            a("s_lshl_b32 s63, s25, 13", f"s_add_u32 m0, s62, {WO + aa*16384}", f"s_add_u32 s53, s63, {aa*131072}", f"buffer_load_dwordx4 v{WOA}, s[40:43], s53 offen lds")
        if u == 46:
            a.c("XCC ids of the row block's workgroups; bring the O and O-flag lines this wave will write into L2")
            a(f"buffer_load_dwordx2 {vr(T+2,2)}, v{T+5}, s[36:39], s10 offen sc1",
              f"buffer_load_dword v{T+1}, v60, s[36:39], s59 offen",
              f"buffer_load_dword v{T}, v{LO}, s[36:39], s58 offen")
        if u == 55:
            a.c("local hand-off only when all 16 workgroups of this row block run on this XCC")
            a("s_or_b32 s52, s48, s26", "s_mov_b32 s53, s49", f"v_cmp_eq_u64 vcc, s[52:53], {vr(T+2,2)}", "s_nop 1",
              "s_cmp_eq_u64 vcc, -1", "s_cselect_b32 s27, 1, 0")
            if "noloc" in OPT: a("s_mov_b32 s27, 0")
    a("s_nop 1", smf(O, VB[(NT-1) % 2] + 4, S[(NT-1) % 2] + 8, IDX), "s_setprio 3",
      f"v_mov_b32 v{T}, s48", f"v_mov_b32 v{T+1}, s49", f"v_mov_b32 v{T+3}, 0x7f800000", "s_nop 7")
    a.c("safety check of the zero stand-in: 2^-24 <= l <= 2^48 and finite O, else redo with the true row max")
    a(f"v_cmp_le_f32 s[52:53], v{CK}, v{O+8}", f"v_cmp_ge_f32 s[56:57], v{CK+1}, v{O+8}",
      f"v_max3_f32 v{CK}, abs(v{O}), abs(v{O+1}), abs(v{O+2})", f"v_max3_f32 v{CK}, abs(v{O+3}), abs(v{O+4}), v{CK}",
      f"v_max3_f32 v{CK}, abs(v{O+5}), abs(v{O+6}), v{CK}", f"v_max_f32 v{CK}, abs(v{O+7}), v{CK}",
      "s_and_b64 s[52:53], s[52:53], s[56:57]",
      f"v_cmp_gt_f32 vcc, v{T+3}, v{CK}", f"v_rcp_f32 v{T+2}, v{O+8}", "s_and_b64 s[52:53], s[52:53], vcc",
      "s_cmp_eq_u64 s[52:53], -1", "s_cbranch_scc0 L_fallback")
    a("L_finish:")
    stamp(a, 11)
    cstamp(a, 5)
    if "cyc2" in OPT: a("s_memtime s[96:97]", "s_waitcnt lgkmcnt(0)", "s_sub_u32 s96, s96, s98", "s_add_u32 s66, s82, s96", "s_addc_u32 s67, s83, 0")
    for r in range(4): a(f"v_pk_mul_f32 {vr(O+2*r,2)}, {vr(O+2*r,2)}, {vr(T+2,2)} op_sel_hi:[1,0]")
    for r in range(4): a(f"v_cvt_pk_bf16_f32 v{O+12+r}, v{O+2*r}, v{O+2*r+1}")
    a("s_cmp_eq_u32 s27, 1", "s_cbranch_scc1 L_ostore_local")
    a(f"buffer_store_dwordx4 {vr(O+12,4)}, v{LO}, s[36:39], s58 offen {WT}", "s_waitcnt vmcnt(0)",
      "s_mov_b64 exec, 1", f"buffer_store_dwordx2 {vr(T,2)}, v60, s[36:39], s59 offen {WT}", "s_mov_b64 exec, -1", "s_branch L_ostored")
    a("L_ostore_local:")
    a(f"buffer_store_dwordx4 {vr(O+12,4)}, v{LO}, s[36:39], s58 offen", "s_waitcnt vmcnt(0)",
      "s_mov_b64 exec, 1", f"buffer_store_dwordx2 {vr(T,2)}, v60, s[36:39], s59 offen", "s_mov_b64 exec, -1")
    a("L_ostored:")
    stamp(a, 12)
    a("s_barrier")
    if TS:
        a("s_cmp_lt_u32 s25, 8", "s_cbranch_scc1 L_ts_p3", ["s_barrier"]*(5 if "g4" in OPT else 3))
        if "allw" in OPT:
            for w in range(8, 16): ts_flush(a, w, w, f"w{w}")
        else:
            ts_flush(a, 1, 8, "w8")
            ts_flush(a, 2, 15, "w15")
        a("s_endpgm", "L_ts_p3:")
    else:
        a("s_cmp_ge_u32 s25, 8", "s_cbranch_scc1 L_done")

    ACC3 = [0, 16]; OFR = 32; WB = [96, 104, 112]; A3 = [120, 122]; VO = 116; PA = 123; L = 118; PF = 124
    opoll = [f"buffer_load_dwordx4 {vr(PF,4)}, v{LO}, s[36:39], s11 offen sc1"]
    ocond = [f"v_cmp_eq_u64 vcc, s[48:49], {vr(PF,2)}", f"v_cmp_eq_u64 s[52:53], s[48:49], {vr(PF+2,2)}", "s_nop 1",
             "s_and_b64 vcc, vcc, s[52:53]", "s_cmp_eq_u64 vcc, -1"]
    a("s_cmp_lt_u32 s25, 4", "s_cbranch_scc1 L_p3c")
    a("s_and_b32 s56, s25, 3", "s_lshl_b32 s56, s56, 14")
    a("s_barrier")
    for i in range(16):
        a(f"s_add_u32 m0, s56, {i*1024}", f"s_add_u32 s53, s12, {(16+i)*1024}", f"buffer_load_dwordx4 v{LO}, s[36:39], s53 offen sc1 lds")
    G3 = 4 if "g4" in OPT else 8
    for x in range(16 - G3, -1, -G3): a(f"s_waitcnt vmcnt({x})", "s_barrier")
    if "wb2" in OPT:
        a("s_cmp_lg_u32 s25, 4", "s_cbranch_scc1 L_nowb", "buffer_wbl2 sc1", "L_nowb:")
    if "allw" in OPT:
        for w in range(4, 8): ts_flush(a, w, w, f"w{w}")
    a("s_endpgm")
    a("L_p3c:")
    a(opoll)
    a(f"v_lshrrev_b32 v6, 4, v{LO}")
    a(f"v_lshrrev_b32 v4, 5, v6", f"v_bfe_u32 v5, v6, 2, 2", "v_lshl_add_u32 v4, v4, 2, v5", "v_lshlrev_b32 v4, 7, v4",
      f"v_and_b32 v5, 1, v6", "v_lshl_add_u32 v4, v5, 6, v4", f"v_bfe_u32 v5, v6, 4, 1", "v_lshl_add_u32 v4, v5, 4, v4",
      f"v_bfe_u32 v5, v6, 3, 1", "v_lshl_add_u32 v4, v5, 5, v4", f"v_bfe_u32 v5, v6, 1, 1", f"v_lshl_add_u32 v4, v5, 3, v4",
      f"v_add_u32 v{A3[0]}, {WO}, v4", f"v_xor_b32 v{A3[1]}, 32, v{A3[0]}")
    a("s_lshl_b32 s56, s25, 14", f"v_add_u32 v{PA}, s56, v{LO}")
    def reads3(hd, buf):
        out = []
        for cb in range(2):
            for j in range(2):
                out.append(f"ds_read_b64_tr_b16 {vr(buf + cb*4 + j*2, 2)}, v{A3[cb]} offset:{hd*2048 + j*1024}")
        return out
    a(reads3(0, WB[0]), reads3(1, WB[1]))
    spin(a, "o", ocond, opoll)
    stamp(a, 13)
    for i in range(16):
        if i % 4 == 0: a(f"s_add_u32 s53, s12, {i*1024}")
        a(f"buffer_load_dwordx4 {vr(OFR + i*4, 4)}, v{LO}, s[36:39], s53 offen offset:{(i%4)*1024} sc1")
    a("s_barrier")
    lq = ["W0"]*4 + ["W1"]*4
    def lwait(need):
        nonlocal lq
        idx = [i for i, x in enumerate(lq) if x in need]
        if not idx: return None
        keep = len(lq) - 1 - max(idx)
        lq = lq[len(lq) - keep:]
        return keep
    def oread(n):
        lq.append(f"O{n}")
        return f"ds_read_b128 {vr(OFR + (n-16)*4, 4)}, v{PA} offset:{(n-16)*1024}"
    for n in range(32):
        cur = WB[n % 3]
        if n >= 16 and n % G3 == 0:
            if "p3ts" in OPT and n == 16: stamp(a, 2); lq = []
            a("s_barrier")
            if "p3ts" in OPT and n == 32 - G3: stamp(a, 3); lq = []
            for i in range(2): a(oread(n + i))
        kw = lwait({f"W{n}", f"O{n}"})
        w = []
        if n < 16: w.append(f"vmcnt({15 - n})")
        if kw is not None: w.append(f"lgkmcnt({kw})")
        if w: a("s_waitcnt " + " ".join(w))
        if "p3ts" in OPT and n in (0, 31): stamp(a, {0: 1, 31: 4}[n]); lq = []
        rd = reads3(n + 2, WB[(n+2) % 3]) if n + 2 < 32 else []
        for cb in range(2):
            a(mfma(ACC3[cb], cur + cb*4, OFR + (n%16)*4, "0" if n == 0 else ACC3[cb]))
            if rd: a(rd[2*cb:2*cb+2]); lq.extend([f"W{n+2}"]*2)
            if cb == 0 and n >= 16 and (n % G3) + 2 < G3: a(oread(n + 2))
        assert len(lq) <= 15, lq
    a(f"v_lshrrev_b32 v{L}, 4, v{LO}")
    PA = 117
    a.c("transpose through LDS (slot 1 is free) so that every store writes whole 128-byte lines")
    TA_ = 119; TB_ = 120
    a(f"v_and_b32 v{TA_}, 31, v{L}", f"v_lshrrev_b32 v{PA}, 5, v{L}", f"v_lshlrev_b32 v{PA}, 2, v{PA}", f"v_and_b32 v{TB_}, 7, v{L}",
      f"v_xor_b32 v{PA}, v{PA}, v{TB_}", f"v_lshlrev_b32 v{PA}, 4, v{PA}", f"v_lshl_add_u32 v{TA_}, v{TA_}, 7, v{PA}",
      "s_mov_b32 s52, s56", f"v_add_u32 v{TA_}, s52, v{TA_}",
      f"v_lshrrev_b32 v{PA}, 3, v{L}", f"v_xor_b32 v{VO}, v{PA}, v{TB_}", f"v_lshlrev_b32 v{VO}, 4, v{VO}", f"v_lshl_add_u32 v{VO}, v{PA}, 7, v{VO}",
      f"v_add_u32 v{VO}, s52, v{VO}",
      f"v_lshlrev_b32 v{TB_}, 4, v{TB_}", f"v_lshl_add_u32 v{TB_}, v{PA}, 11, v{TB_}")
    for cb in range(2):
        for q in range(2):
            c = cb*2 + q
            t = 32 + c*4
            for r in range(4): a(f"v_cvt_pk_bf16_f32 v{t+r}, v{ACC3[cb]+q*8+2*r}, v{ACC3[cb]+q*8+2*r+1}")
            if c: a(f"v_xor_b32 v{PA}, {c*16}, v{TA_}")
            a(f"ds_write_b128 v{PA if c else TA_}, {vr(t,4)}")
    a("s_waitcnt lgkmcnt(0)")
    for i in range(4): a(f"ds_read_b128 {vr(48 + i*4, 4)}, v{VO} offset:{i*1024}")
    for i in range(4):
        a(f"s_add_u32 s53, s13, {i*16384}", f"s_waitcnt lgkmcnt({3-i})", f"buffer_store_dwordx4 {vr(48 + i*4, 4)}, v{TB_}, s[44:47], s53 offen" + (" sc1" if "osc1" in OPT else " nt" if "ont" in OPT else " sc0 sc1" if "osys" in OPT else ""))
    if TS:
        if "p3ts" in OPT: stamp(a, 5)
        a("s_waitcnt vmcnt(0)")
        stamp(a, 14)
        ts_flush(a, 0, 0, "w0")
        if "allw" in OPT:
            for w in range(1, 4): ts_flush(a, w, w, f"w{w}")
    a("L_done:", "s_endpgm")

    a("L_fallback:")
    M = T + 2
    a("s_lshr_b32 s52, s25, 3", "s_lshl_b32 s52, s52, 13", "s_add_u32 s52, s52, s54",
      f"v_mov_b32 v{M}, 0xff800000", "s_mov_b32 s63, 0",
      f"v_sub_u32 v{T+3}, v{VA[0]}, v{KA[0]}", f"v_add_u32 v{T+3}, v{T+3}, v{LO}")
    def fb_addr():
        return ["s_lshr_b32 s53, s63, 2", "s_lshl_b32 s53, s53, 14", "s_and_b32 s56, s63, 3", "s_lshl_b32 s56, s56, 11",
                "s_add_u32 s53, s53, s56", "s_add_u32 s53, s53, s52"]
    a("L_fb1:", fb_addr(),
      f"buffer_load_dwordx4 {vr(KB[0],4)}, v{LO}, s[36:39], s53 offen sc1", "s_waitcnt vmcnt(0)",
      mfma(S[0], KB[0], Q, "0"), "s_nop 15")
    for r in range(8): a(f"v_max3_f32 v{M}, v{S[0]+2*r}, v{S[0]+2*r+1}, v{M}")
    a("s_add_u32 s63, s63, 1", "s_cmp_lg_u32 s63, 64", "s_cbranch_scc1 L_fb1")
    a(f"v_mov_b32 v{T}, v{M}", "s_nop 1", f"v_permlane32_swap_b32 v{M}, v{T}", "s_nop 1", f"v_max_f32 v{M}, v{M}, v{T}", f"v_sub_f32 v{M}, 0, v{M}")
    for r in range(16): a(f"v_mov_b32 v{CM+r}, v{M}")
    for r in range(16): a(f"v_mov_b32 v{O+r}, 0")
    a("s_mov_b32 s63, 0")
    a("L_fb2:", fb_addr(),
      f"buffer_load_dwordx4 {vr(KB[0],4)}, v{LO}, s[36:39], s53 offen sc1", "s_mov_b64 exec, s[50:51]",
      f"buffer_load_dwordx4 {vr(VB[0],4)}, v{T+3}, s[36:39], s53 offen sc1",
      f"buffer_load_dwordx4 {vr(VB[0]+4,4)}, v{T+3}, s[36:39], s53 offen offset:512 sc1", "s_mov_b64 exec, -1",
      "s_waitcnt vmcnt(0)", mfma(S[0], KB[0], Q, CM), "s_nop 15")
    a(ex(S[0], 0, 16), "s_nop 1", smf(O, VB[0], S[0], IDX), smf(O, VB[0] + 4, S[0] + 8, IDX))
    a("s_add_u32 s63, s63, 1", "s_cmp_lg_u32 s63, 64", "s_cbranch_scc1 L_fb2")
    a("s_nop 15", f"v_rcp_f32 v{T+2}, v{O+8}", f"v_mov_b32 v{T}, s48", f"v_mov_b32 v{T+1}, s49", "s_branch L_finish", "L_code_end:")
    a.l.append(f""".section .rodata,"a"
.p2align 6
.amdhsa_kernel {k}
  .amdhsa_next_free_vgpr 128
  .amdhsa_next_free_sgpr {102 if TS else 68}
  .amdhsa_accum_offset 128
  .amdhsa_group_segment_fixed_size 0
  .amdhsa_kernarg_size 72
  .amdhsa_user_sgpr_count 2
  .amdhsa_user_sgpr_kernarg_segment_ptr 1
  .amdhsa_system_sgpr_workgroup_id_x 1
.end_amdhsa_kernel""")

a = Asm()
a.l += ["; MHA x2 (S=2048, D=512, H=32), one launch: qkv projection -> attention -> output projection",
        "; @launch grid=(256,1,1) block=(1024,1,1) lds=163840",
        '.amdgcn_target "amdgcn-amd-amdhsa--gfx950"', ".text"]
gen(a)
print(a.text())
```

```python
import sys, subprocess, re
gen=sys.argv[1]; outp=sys.argv[2]; pts=[tuple(int(y) for y in x.split('-')) for x in sys.argv[3].split(',')]; WAVES=sys.argv[4].split(','); opts=sys.argv[5:]
spin='''
.text
.globl spin_kernel
.p2align 8
.type spin_kernel,@function
spin_kernel:
    s_cmp_ge_u32 s2, 1
    s_cbranch_scc1 SP_done
    s_load_dwordx2 s[12:13], s[0:1], 56
    s_waitcnt lgkmcnt(0)
    s_sub_u32 s12, s12, 512
    s_subb_u32 s13, s13, 0
    s_load_dwordx2 s[4:5], s[12:13], 64
    s_waitcnt lgkmcnt(0)
    s_mov_b32 s8, 200000
SP_loop:
    s_memrealtime s[6:7]
    s_waitcnt lgkmcnt(0)
    s_sub_u32 s6, s6, s4
    s_cmp_ge_u32 s6, 10000
    s_cbranch_scc1 SP_done
    s_sub_u32 s8, s8, 1
    s_cmp_lg_u32 s8, 0
    s_cbranch_scc1 SP_loop
SP_done:
    s_endpgm
.section .rodata,"a"
.p2align 6
.amdhsa_kernel spin_kernel
  .amdhsa_next_free_vgpr 8
  .amdhsa_next_free_sgpr 16
  .amdhsa_accum_offset 8
  .amdhsa_group_segment_fixed_size 0
  .amdhsa_kernarg_size 72
  .amdhsa_user_sgpr_count 2
  .amdhsa_user_sgpr_kernarg_segment_ptr 1
  .amdhsa_system_sgpr_workgroup_id_x 1
.end_amdhsa_kernel
'''
src=subprocess.run(['python3',gen,'ts']+opts,capture_output=True,text=True).stdout
K="concat_heads__mha_block__mha_block__prompt_kernel"
src=src.replace("; @launch grid=(256,1,1) block=(1024,1,1) lds=163840", f"; @launch kernel={K} grid=(256,1,1) block=(1024,1,1) lds=163840\n; @launch kernel=spin_kernel grid=(1,1,1) block=(64,1,1) lds=0")
for (j,j0,thr) in pts:
    s=src
    lines=s.split("\n"); out=[]; i=0
    while i<len(lines):
        l=lines[i]
        m=re.match(r"\s*s_memrealtime s\[(\d+):",l)
        if m and int(m.group(1))>=64 and int(m.group(1)) not in (64+2*j,64+2*j0):
            if lines[i+1].strip()=="s_waitcnt lgkmcnt(0)" and int(m.group(1))!=64: i+=2; continue
            i+=1; continue
        out.append(l); i+=1
    s="\n".join(out)
    def repl(m):
        tag=m.group(1)
        if tag not in WAVES: return f"TS_skip_{tag}:"
        return (f"s_cbranch_scc1 TS_skip_{tag}\n    s_mov_b64 exec, 1\n    v_mov_b32 v1, 64\n    s_sub_u32 s98, s{64+2*j}, s{64+2*j0}\n"
                f"    s_sub_u32 s98, s98, {thr}\n    s_max_i32 s98, s98, 0\n    s_lshr_b32 s96, s98, 4\n    s_mov_b32 s97, 0\n    s_cmp_lg_u32 s2, 0\n    s_cbranch_scc1 TS_nz\n"
                f"    s_lshr_b64 s[98:99], s[48:49], 4\n    s_add_u32 s96, s96, s98\n    s_addc_u32 s97, s97, s99\nTS_nz:\n"
                f"    v_mov_b32 v2, s96\n    v_mov_b32 v3, s97\n    global_atomic_add_x2 v1, v[2:3], s[18:19]\n    s_waitcnt vmcnt(0)\n    s_mov_b64 exec, -1\nTS_skip_{tag}:")
    s=re.sub(r"s_cbranch_scc1 TS_skip_(\w+)\n.*?TS_skip_\1:", repl, s, flags=re.S)
    open(f"{outp}_m{j}_{j0}.s","w").write(s+spin)
```

```python
import sys, math, struct

NAME = "concat_heads__mha_block__mha_block__prompt"
OPT = set(sys.argv[1:]) | {"pub0", "stmid", "tx67", "b0late"}
if "noc3" in OPT: pass
elif not any(o.startswith("stg=") for o in OPT): OPT |= {"c3=3"}
else: OPT |= {"nopf"}
if not OPT & {"tx", "a3", "nopf"}: OPT |= {"tx", "late", "wa2", "wb4"}
NWS = 5 if "w5" in OPT else (4 if "w4" in OPT else 3)
TS = "ts" in OPT
WT = "sc0 sc1" if "sys" in OPT else "sc1 nt" if "wtnt" in OPT else "sc1"
XNT = " nt" if "xnt" in OPT else ""
WNT = " nt" if "wnt" in OPT else ""
KV_OFF = 0
OF_OFF = 8 << 20
FKV_OFF = 12 << 20
FO_OFF = (12 << 20) + 65536
XID_OFF = (12 << 20) + 131072
WS_USED = 13 << 20
QSCALE = 0.25 * math.log2(math.e)
SPIN_MAX = 1 << 18
def f32bits(x): return struct.unpack("<I", struct.pack("<f", x))[0]

class Asm:
    def __init__(self): self.l = []
    def __call__(self, *lines):
        for x in lines:
            if isinstance(x, (list, tuple)): self(*x)
            else: self.l.append("    " + x if not x.endswith(":") else x)
    def c(self, s): self.l.append("    ; " + s)
    def text(self): return "\n".join(self.l)

def vr(b, n): return f"v[{b}:{b+n-1}]"
def mfma(d, a, b, c):
    cs = vr(c, 16) if isinstance(c, int) else c
    return f"v_mfma_f32_32x32x16_bf16 {vr(d,16)}, {vr(a,4)}, {vr(b,4)}, {cs}"
def smf(d, a, b, idx): return f"v_smfmac_f32_32x32x32_bf16 {vr(d,16)}, {vr(a,4)}, {vr(b,8)}, v{idx}"

P1TS_DONE = False
def stamp(a, j):
    if "p1ts" in OPT and P1TS_DONE and j >= 7: return
    if "cyc3" in OPT: return
    if TS: a(f"s_memrealtime s[{64+2*j}:{65+2*j}]", "s_waitcnt lgkmcnt(0)")
def cstamp(a, j):
    if "cyc3" in OPT and not ("ends" in OPT and j not in (0, 5)):
        if j == 0: a("s_memtime s[98:99]", "s_waitcnt lgkmcnt(0)")
        else: a("s_memtime s[96:97]", "s_waitcnt lgkmcnt(0)", "s_sub_u32 s96, s96, s98", f"s_add_u32 s{64+2*j}, s64, s96", f"s_addc_u32 s{65+2*j}, s65, 0")
def ts_init(a):
    if TS:
        for j in range(15): a(f"s_mov_b64 s[{64+2*j}:{65+2*j}], 0")
        a("s_mov_b32 s94, 0x5151", "s_mov_b32 s95, 0")
def ts_flush(a, kidx, wave, tag):
    if not TS: return
    a(f"s_cmp_lg_u32 s25, {wave}", f"s_cbranch_scc1 TS_skip_{tag}")
    a("s_sleep 127", "s_sleep 127", "s_sleep 127")
    a("s_mov_b64 exec, 1", f"s_lshl_b32 s96, s2, 7", f"s_add_u32 s96, s96, {(32<<20) + kidx*256*128}", "v_mov_b32 v1, s96")
    for j in range(16):
        a(f"v_mov_b32 v2, s{64+2*j}", f"v_mov_b32 v3, s{65+2*j}", f"global_store_dwordx2 v1, v[2:3], s[20:21] offset:{j*8}", "s_nop 1")
    a("s_waitcnt vmcnt(0)", "s_mov_b64 exec, -1", f"TS_skip_{tag}:")

XRING = 0
WRING = 98304
QX = 65536
TAGL = 163832
EREG = 131072

def spin(a, name, cond_lines, reload_lines, slp=1):
    a(f"s_mov_b32 s63, {SPIN_MAX}", f"L_{name}_chk:", "s_waitcnt vmcnt(0)", cond_lines, f"s_cbranch_scc1 L_{name}_ok", f"s_sleep {slp}",
      reload_lines, "s_sub_u32 s63, s63, 1", "s_cmp_lg_u32 s63, 0", f"s_cbranch_scc1 L_{name}_chk", "s_waitcnt vmcnt(0)", f"L_{name}_ok:")

def gen(a):
    k = NAME + "_kernel"
    a.l += [f".globl {k}", ".p2align 8", f".type {k},@function", f"{k}:"]
    a("s_cmp_ge_u32 s2, 256", "s_cbranch_scc1 L_done")
    a("s_load_dwordx16 s[4:19], s[0:1], 0", "s_load_dwordx2 s[20:21], s[0:1], 64")
    ts_init(a)
    if TS: a("s_memrealtime s[64:65]")
    a("s_memrealtime s[48:49]")
    a("s_and_b32 s52, s2, 7", "s_lshr_b32 s53, s2, 3",
      "s_lshr_b32 s22, s52, 2",
      "s_and_b32 s23, s53, 15",
      "s_and_b32 s24, s52, 3", "s_lshl_b32 s24, s24, 1", "s_lshr_b32 s53, s53, 4", "s_add_u32 s24, s24, s53")
    a("v_lshrrev_b32 v1, 6, v0", "v_and_b32 v0, 63, v0", "s_getreg_b32 s26, hwreg(HW_REG_XCC_ID)", "v_readfirstlane_b32 s25, v1")
    a("s_and_b32 s26, s26, 7", "s_lshl_b32 s62, s25, 10")
    a("s_waitcnt lgkmcnt(0)")
    WSB = int(([o for o in OPT if o.startswith("wsb=")] or ["wsb=0"])[0][4:]) << 20
    if WSB: a(f"s_add_u32 s20, s20, {WSB}", "s_addc_u32 s21, s21, 0")
    a("s_cmp_eq_u32 s22, 0",
      "s_cselect_b32 s4, s4, s10", "s_cselect_b32 s5, s5, s11", "s_cselect_b32 s6, s6, s12", "s_cselect_b32 s7, s7, s13",
      "s_cselect_b32 s8, s8, s14", "s_cselect_b32 s9, s9, s15")
    a("s_lshl_b32 s52, s24, 18", "s_add_u32 s28, s4, s52", "s_addc_u32 s29, s5, 0", "s_and_b32 s29, s29, 0xffff",
      "s_mov_b32 s30, 262144", "s_mov_b32 s31, 0x20000")
    a("s_mov_b32 s32, s6", "s_and_b32 s33, s7, 0xffff", f"s_mov_b32 s34, {512*3072}", "s_mov_b32 s35, 0x20000")
    a("s_cmp_ge_u32 s25, 8", "s_cbranch_scc1 L_loader")

    O = 0; Q = 16; S = [20, 36]; KB = [52, 56]; VB = [100, 108]; IDX = 116; KA = [117, 118, 98]; VA = [119, 120, 99]; LO = 121; T = 122
    CM = 80
    WOA = 61; CK = 62

    def common_init(a):
        a("s_mov_b32 s36, s20", "s_and_b32 s37, s21, 0xffff", f"s_mov_b32 s38, {WS_USED}", "s_mov_b32 s39, 0x20000")
        a("s_and_b32 s52, s23, 7", "s_lshl_b32 s52, s52, 7", "s_add_u32 s40, s8, s52", "s_addc_u32 s41, s9, 0", "s_and_b32 s41, s41, 0xffff",
          f"s_sub_u32 s42, {512*1024}, s52", "s_mov_b32 s43, 0x20000")
        a("s_mov_b32 s44, s16", "s_and_b32 s45, s17, 0xffff", f"s_mov_b32 s46, {2048*2048}", "s_mov_b32 s47, 0x20000")
        a("s_mov_b32 s50, 0xffff", "s_mov_b32 s51, 0xffff")
        a("s_lshl_b32 s54, s22, 4", "s_add_u32 s54, s54, s23", "s_lshl_b32 s54, s54, 18", "s_lshl_b32 s55, s24, 15", "s_add_u32 s55, s55, s54")
        a(f"v_lshlrev_b32 v{LO}, 4, v0",
          "s_lshr_b32 s56, s25, 3", "s_lshl_b32 s53, s56, 13",
          f"v_add_u32 v{KA[0]}, s53, v{LO}", f"v_add_u32 v{KA[1]}, 0x10000, v{KA[0]}", f"v_add_u32 v{KA[2]}, 0x20000, v{KA[0]}",
          "v_and_b32 v13, 15, v0", "v_lshlrev_b32 v13, 4, v13", "v_lshrrev_b32 v14, 5, v0", "v_lshl_add_u32 v13, v14, 8, v13",
          "s_add_u32 s53, s53, 1024", f"v_add_u32 v{VA[0]}, s53, v13", f"v_add_u32 v{VA[1]}, 0x10000, v{VA[0]}", f"v_add_u32 v{VA[2]}, 0x20000, v{VA[0]}",
          f"v_mov_b32 v{IDX}, 0xdddddddd")
        a("v_and_b32 v13, 27, v0", "v_cmp_eq_u32 vcc, 16, v13", "v_mov_b32 v14, 0x3f803f80",
          f"v_mov_b32 v{T}, {TAGL}", f"v_lshlrev_b32 v{T+4}, 3, v0", "v_cndmask_b32 v13, 0, v14, vcc")
        for r in range(16): a(f"v_mov_b32 v{VB[0]+r}, v13")
        a("s_and_b32 s53, s25, 7", "s_lshl_b32 s58, s24, 3", "s_add_u32 s58, s58, s53", "s_lshl_b32 s57, s22, 6", "s_add_u32 s58, s58, s57",
          "s_lshl_b32 s58, s58, 5", "s_lshl_b32 s53, s23, 1", "s_add_u32 s53, s53, s56", "s_add_u32 s58, s58, s53",
          "s_lshl_b32 s59, s58, 3", f"s_add_u32 s59, s59, {FO_OFF}", "s_lshl_b32 s58, s58, 10", f"s_add_u32 s58, s58, {OF_OFF}")
        a("s_lshr_b32 s60, s54, 7", f"s_add_u32 s60, s60, {FKV_OFF}", "s_lshl_b32 s61, s24, 8", "s_add_u32 s61, s61, s60",
          "s_bfe_u32 s53, s25, 0x10002", "s_lshl_b32 s53, s53, 7", "s_add_u32 s61, s61, s53",
          "s_and_b32 s53, s25, 3", "s_lshl_b32 s53, s53, 3", "s_add_u32 s61, s61, s53")
        a("s_lshl_b32 s10, s22, 3", "s_add_u32 s10, s10, s24", "s_lshl_b32 s10, s10, 7", f"s_add_u32 s10, s10, {XID_OFF}")
        a("s_lshl_b32 s52, s24, 3", "s_lshr_b32 s53, s23, 3", "s_lshl_b32 s53, s53, 2", "s_add_u32 s52, s52, s53",
          "s_add_u32 s53, s57, s52", "s_lshl_b32 s11, s53, 8", f"s_add_u32 s11, s11, {FO_OFF}",
          "s_and_b32 s12, s25, 3", "s_add_u32 s52, s52, s12", "s_add_u32 s53, s53, s12", "s_lshl_b32 s12, s53, 15", f"s_add_u32 s12, s12, {OF_OFF}",
          "s_lshl_b32 s13, s22, 10", "s_and_b32 s53, s23, 7", "s_lshl_b32 s53, s53, 7", "s_add_u32 s13, s13, s53",
          "s_lshl_b32 s53, s52, 16", "s_add_u32 s13, s13, s53")

    XA = [1, 2]; XB = [3, 4]; WA = [5, 6]; VK = 96; VV = 97; QA = 123
    ACC = 16
    FXR = [64, 68]; FW = 72
    def touches():
        if "tx" in OPT:
            a.c("HBM/L2 warm-up: waves 0,1 touch 8 KB each of this workgroup's share of the X block")
            if "tx67" in OPT:
                a("s_and_b32 s53, s25, 6", "s_mov_b32 s52, s23", "s_cmp_eq_u32 s53, 0", "s_cbranch_scc1 L_tx_own",
                  "s_cmp_lg_u32 s53, 6", "s_cbranch_scc1 L_tx_done", "s_sub_u32 s52, s23, 2", "s_lshr_b32 s53, s52, 1", "s_cmp_lg_u32 s53, 3", "s_cbranch_scc1 L_tx_done",
                  "s_branch L_tx_go", "L_tx_own:", "s_lshr_b32 s53, s52, 1", "s_cmp_eq_u32 s53, 3", "s_cbranch_scc1 L_tx_done", "L_tx_go:",
                  "s_lshl_b32 s52, s52, 14", "s_and_b32 s53, s25, 1", "s_lshl_b32 s53, s53, 13", "s_add_u32 s52, s52, s53",
                  "v_lshlrev_b32 v13, 7, v0", "buffer_load_dword v125, v13, s[28:31], s52 offen" + XNT, "L_tx_done:")
            else:
                a("s_cmp_ge_u32 s25, 2", "s_cbranch_scc1 L_tx_done",
                  "s_lshl_b32 s52, s23, 14", "s_lshl_b32 s53, s25, 13", "s_add_u32 s52, s52, s53",
                  "v_lshlrev_b32 v13, 7, v0", "buffer_load_dword v125, v13, s[28:31], s52 offen" + XNT, "L_tx_done:")
        if "tw" in OPT:
            a.c("waves 2,3 touch 6 KB each of W (1/128 of the matrix per workgroup)")
            a("s_sub_u32 s52, s25, 2", "s_cmp_ge_u32 s52, 2", "s_cbranch_scc1 L_tw_done",
              "s_lshl_b32 s53, s24, 4", "s_add_u32 s53, s53, s23", "s_lshl_b32 s53, s53, 1", "s_add_u32 s52, s52, s53",
              "s_mul_i32 s52, s52, 6144", "v_cmp_gt_u32 vcc, 48, v0", "v_lshlrev_b32 v13, 7, v0", "s_and_saveexec_b64 s[56:57], vcc",
              "buffer_load_dword v125, v13, s[32:35], s52 offen", "s_mov_b64 exec, -1", "L_tw_done:")
        if "twf" in OPT:
            a.c("waves 2..7 touch 8 KB each of W (1/32 of the matrix per workgroup)")
            a("s_sub_u32 s52, s25, 2", "s_cmp_ge_u32 s52, 6", "s_cbranch_scc1 L_twf_done",
              "s_and_b32 s53, s24, 1", "s_lshl_b32 s53, s53, 4", "s_add_u32 s53, s53, s23", "s_mul_i32 s53, s53, 6", "s_add_u32 s52, s52, s53",
              "s_lshl_b32 s52, s52, 13", "v_lshlrev_b32 v13, 7, v0",
              "buffer_load_dword v125, v13, s[32:35], s52 offen", "L_twf_done:")
    def touchX(c0, nc, wave, tag):
        a(f"s_cmp_lg_u32 s25, {wave}", f"s_cbranch_scc1 L_{tag}_done")
        if nc == 2: a("v_lshrrev_b32 v13, 1, v0", "v_and_b32 v14, 1, v0")
        elif nc == 4: a("v_lshrrev_b32 v13, 2, v0", "v_and_b32 v14, 3, v0")
        else: a("v_mul_u32_u24 v13, 43, v0", "v_lshrrev_b32 v13, 7, v13", "v_mul_u32_u24 v14, 3, v13", "v_sub_u32 v14, v0, v14")
        a("v_lshlrev_b32 v13, 10, v13", "v_lshl_add_u32 v13, v14, 7, v13", "s_lshl_b32 s52, s23, 14", f"s_add_u32 s52, s52, {c0*128}",
          f"v_cmp_gt_u32 vcc, {16*nc}, v0", "s_nop 1", "s_and_saveexec_b64 s[56:57], vcc",
          "buffer_load_dword v125, v13, s[28:31], s52 offen" + XNT, "s_mov_b64 exec, -1", f"L_{tag}_done:")
    def touchW(c0, nc, wave, tag):
        a(f"s_cmp_lg_u32 s25, {wave}", f"s_cbranch_scc1 L_{tag}_done",
          "s_lshl_b32 s52, s24, 4", "s_add_u32 s52, s52, s23", f"s_mul_i32 s52, s52, {nc*1536}", f"s_add_u32 s52, s52, {c0*196608}",
          f"v_cmp_gt_u32 vcc, {12*nc}, v0", "v_lshlrev_b32 v13, 7, v0", "s_nop 0", "s_and_saveexec_b64 s[56:57], vcc",
          "buffer_load_dword v125, v13, s[32:35], s52 offen" + WNT, "s_mov_b64 exec, -1", f"L_{tag}_done:")
    if "tlb" in OPT:
        a.c("translation warm-up: wave 0 of workgroup i touches one of the pages the kernel will need")
        a("s_cmp_lg_u32 s25, 0", "s_cbranch_scc1 L_tlb_done",
          "s_and_b32 s52, s23, 7", "v_mov_b32 v13, 0",
          "s_cmp_eq_u32 s52, 0", "s_cbranch_scc1 L_tlb0", "s_cmp_eq_u32 s52, 1", "s_cbranch_scc1 L_tlb1",
          "s_cmp_eq_u32 s52, 2", "s_cbranch_scc1 L_tlb2", "s_cmp_eq_u32 s52, 3", "s_cbranch_scc1 L_tlb3",
          "s_cmp_eq_u32 s52, 4", "s_cbranch_scc1 L_tlb4")
        a("s_lshl_b32 s53, s22, 22", "s_lshr_b32 s56, s23, 3", "s_lshl_b32 s56, s56, 21", "s_add_u32 s53, s53, s56",
          "s_lshl_b32 s56, s22, 21", f"s_add_u32 s56, s56, {OF_OFF}",
          "s_cmp_eq_u32 s52, 6", "s_cselect_b32 s53, s56, s53", "s_cmp_eq_u32 s52, 7", f"s_cselect_b32 s53, {FKV_OFF}, s53",
          "v_mov_b32 v13, s53", "global_load_dword v125, v13, s[20:21]", "s_branch L_tlb_done")
        a("L_tlb0:", "buffer_load_dword v125, v13, s[28:31], 0 offen", "s_branch L_tlb_done")
        a("L_tlb1:", "buffer_load_dword v125, v13, s[32:35], 0 offen", "s_branch L_tlb_done")
        a("L_tlb2:", "global_load_dword v125, v13, s[8:9]", "s_branch L_tlb_done")
        a("L_tlb3:", "s_lshr_b32 s53, s24, 2", "s_lshl_b32 s53, s53, 21", "v_mov_b32 v13, s53", "global_load_dword v125, v13, s[16:17]", "s_branch L_tlb_done")
        a("L_tlb4:", "global_load_dword v125, v13, s[18:19] sc1", "L_tlb_done:")
    if "cpf" in OPT:
        a.c("pull the kernel's code into L2 (waves 4..7, 64 lines each)")
        a("s_sub_u32 s52, s25, 4", "s_cmp_ge_u32 s52, 4", "s_cbranch_scc1 L_cpf_done",
          "s_getpc_b64 s[56:57]", "L_cpf_pc:", "s_lshl_b32 s52, s52, 13", "v_lshlrev_b32 v13, 7, v0", "v_add_u32 v13, s52, v13",
          "v_cmp_gt_u32 vcc, L_code_end-L_cpf_pc, v13", "s_nop 1", "s_and_saveexec_b64 s[52:53], vcc", "s_cbranch_execz L_cpf_skip",
          "global_load_dword v125, v13, s[56:57]", "L_cpf_skip:", "s_mov_b64 exec, -1", "L_cpf_done:")
    STG = [o for o in OPT if o.startswith("stg=")]
    stg = [[int(y) for y in x] for x in STG[0][4:].split(",")] if STG else [[], [], [], [], []]
    def stouch(chunks, tag):
        if not chunks: return
        lo, hi = min(chunks), max(chunks)
        a(f"s_sub_u32 s52, s25, {lo}", f"s_cmp_gt_u32 s52, {hi-lo}", f"s_cbranch_scc1 L_{tag}",
          "s_lshl_b32 s52, s23, 14", "s_lshl_b32 s53, s25, 7", "s_add_u32 s52, s52, s53", "v_lshlrev_b32 v8, 10, v0", "s_mov_b64 exec, 0xffff",
          "buffer_load_dword v125, v8, s[28:31], s52 offen",
          "s_and_b32 s52, s24, 1", "s_lshl_b32 s52, s52, 4", "s_add_u32 s52, s52, s23", "s_mul_i32 s52, s52, 6144", "s_mul_i32 s53, s25, 196608",
          "s_add_u32 s52, s52, s53", "s_mov_b64 exec, -1", "v_lshlrev_b32 v8, 7, v0", "s_mov_b32 exec_hi, 0xffff",
          "buffer_load_dword v125, v8, s[32:35], s52 offen", "s_mov_b64 exec, -1", f"L_{tag}:")
    stouch(stg[0], "stg0")
    if "early" in OPT: touches()
    a("s_barrier")
    if "early" not in OPT and "late" not in OPT: touches()
    if "a3" in OPT:
        touchX(2, 3, 0, "xa3"); touchW(2, 3, 1, "wa3")
    if "wa3" in OPT: touchW(2, 3, 2, "wa3")
    if "wa2" in OPT: touchW(2, 2, 2, "wa2")
    if "wa13" in OPT: touchW(1, 3, 2, "wa13")
    common_init(a)
    a("v_and_b32 v13, 15, v0", "v_lshrrev_b32 v14, 4, v0",
      "v_bfe_u32 v15, v0, 1, 3", "v_xor_b32 v15, v15, v14", "v_lshlrev_b32 v15, 4, v15", "v_lshl_add_u32 v15, v13, 7, v15",
      "s_lshl_b32 s52, s25, 12",
      f"v_add_u32 v{XA[0]}, s52, v15", f"v_xor_b32 v{XA[1]}, 64, v{XA[0]}",
      f"v_add_u32 v{XB[0]}, 0x10000, v{XA[0]}", f"v_add_u32 v{XB[1]}, 0x10000, v{XA[1]}")
    a("v_bfe_u32 v15, v0, 2, 2", "v_lshl_add_u32 v13, v14, 3, v15", "v_lshlrev_b32 v13, 6, v13",
      "v_bfe_u32 v15, v0, 4, 1", "v_lshl_add_u32 v13, v15, 5, v13", "v_and_b32 v15, 3, v0", "v_lshl_add_u32 v13, v15, 3, v13",
      f"v_add_u32 v{WA[0]}, {WRING}, v13", f"v_xor_b32 v{WA[1]}, 32, v{WA[0]}")
    a("s_and_b32 s52, s25, 3", "s_lshl_b32 s52, s52, 11", "s_lshr_b32 s53, s25, 2", "s_lshl_b32 s53, s53, 14", "s_add_u32 s52, s52, s53",
      f"v_add_u32 v{VK}, s52, v{LO}",
      "v_and_b32 v13, 15, v0", "v_lshlrev_b32 v13, 4, v13", "v_lshrrev_b32 v14, 5, v0", "v_lshl_add_u32 v13, v14, 8, v13",
      "v_bfe_u32 v15, v0, 4, 1", "v_lshl_add_u32 v13, v15, 13, v13", "s_add_u32 s52, s52, 1024", f"v_add_u32 v{VV}, s52, v13")
    a(f"s_add_u32 s52, s62, {QX}", f"v_add_u32 v{QA}, s52, v{LO}", "s_add_u32 s0, s55, 8192")
    a("v_lshlrev_b32 v7, 7, v0")
    lq1 = []
    def xread(n, th):
        c, s2 = divmod(n, 2); slot = c % 3
        lq1.append(f"X{th}")
        if slot < 2: return f"ds_read_b128 {vr(FXR[th],4)}, v{XA[s2]} offset:{slot*32768 + th*2048}"
        return f"ds_read_b128 {vr(FXR[th],4)}, v{XB[s2]} offset:{th*2048}"
    def wread(n, b):
        c, s2 = divmod(n, 2); seg, hd = divmod(b, 2)
        lq1.extend([f"W{b}"]*2)
        return [f"ds_read_b64_tr_b16 {vr(FW + b*4 + j*2, 2)}, v{WA[hd]} offset:{(c % NWS)*12288 + seg*4096 + s2*2048 + j*256}" for j in range(2)]
    def lw1(need):
        idx = [i for i, x in enumerate(lq1) if x in need]
        if not idx: return []
        keep = len(lq1) - 1 - max(idx)
        del lq1[:len(lq1) - keep]
        return [f"s_waitcnt lgkmcnt({keep})"]
    def m16(th, b, first):
        d = ACC + (b*2 + th)*4
        cs = "0" if first else vr(d, 4)
        x = vr(FXR[th], 4); w = vr(FW + b*4, 4)
        return f"v_mfma_f32_16x16x32_bf16 {vr(d,4)}, " + (f"{w}, {x}" if b < 4 else f"{x}, {w}") + f", {cs}"
    def kvpre():
        a.c("an early poll of a line that is still only in HBM is slow: fetch the group's K/V flag lines ahead of time")
        a("s_cmp_lg_u32 s25, 5", "s_cbranch_scc1 L_kvpre_done", "s_mov_b64 exec, 0xffff", "buffer_load_dword v125, v7, s[36:39], s60 offen sc1", "s_mov_b64 exec, -1", "L_kvpre_done:")
    KVAT = int(([o for o in OPT if o.startswith("kvat=")] or ["kvat=-1"])[0][5:])
    if KVAT < 0: kvpre()
    if "tkv" in OPT:
        a.c("first touch of the K/V block's pages ahead of the stores")
        a("s_cmp_lg_u32 s25, 7", "s_cbranch_scc1 L_tkv_done", "v_lshlrev_b32 v13, 12, v0", "s_mov_b64 exec, 0xff",
          "buffer_load_dword v125, v13, s[36:39], s55 offen", "s_mov_b64 exec, -1", "L_tkv_done:")
    if "kvpt" in OPT:
        a.c("fetch every line of the K/V block ahead of the stores (waves 4..7)")
        a("s_sub_u32 s52, s25, 4", "s_cmp_ge_u32 s52, 4", "s_cbranch_scc1 L_kvpt_done", "v_lshlrev_b32 v13, 7, v0", "s_lshl_b32 s52, s52, 13", "s_add_u32 s52, s52, s55",
          "buffer_load_dword v125, v13, s[36:39], s52 offen", "L_kvpt_done:")
    C3 = [o for o in OPT if o.startswith("c3=")]
    if C3:
        cls = int(C3[0][3:])
        if "c3r" in OPT:
            a("s_cmp_lg_u32 s25, 6", "s_cbranch_scc1 L_c3_done",
              "s_and_b32 s52, s24, 1", "s_lshl_b32 s52, s52, 4", "s_add_u32 s52, s52, s23", "s_mul_i32 s52, s52, 36",
              "s_and_b32 s53, s24, 6", "s_add_u32 s53, s53, 2", "s_mul_i32 s53, s53, 192", "s_add_u32 s52, s52, s53",
              "v_add_u32 v13, s52, v0", "v_subrev_u32 v14, 1536, v13", "v_min_u32 v13, v13, v14", "v_lshlrev_b32 v13, 10, v13",
              "v_cmp_gt_u32 vcc, 36, v0", f"s_mov_b32 s52, {cls*128}", "s_nop 0",
              "s_and_saveexec_b64 s[56:57], vcc", "buffer_load_dword v125, v13, s[32:35], s52 offen", "s_mov_b64 exec, -1", "L_c3_done:")
        else:
            a("s_cmp_lg_u32 s25, 6", "s_cbranch_scc1 L_c3_done",
              "s_and_b32 s52, s24, 1", "s_lshl_b32 s52, s52, 4", "s_add_u32 s52, s52, s23", "s_mul_i32 s52, s52, 36864",
              f"s_add_u32 s52, s52, {384*1024 + cls*128}", "v_cmp_gt_u32 vcc, 36, v0", "v_lshlrev_b32 v13, 10, v0", "s_nop 0",
              "s_and_saveexec_b64 s[56:57], vcc", "buffer_load_dword v125, v13, s[32:35], s52 offen", "s_mov_b64 exec, -1", "L_c3_done:")
    stouch(stg[1], "stg1")
    if "late" in OPT: touches()
    if "xa" in OPT: touchX(3, 2, 0, "xa")
    if "wa" in OPT: touchW(3, 2, 1, "wa")
    if "wa5" in OPT: touchW(3, 5, 1, "wa5")
    if "xa4" in OPT: touchX(4, 4, 0, "xa4")
    a(f"s_mov_b32 s56, {f32bits(QSCALE):#x}", f"s_mov_b32 s57, {f32bits(QSCALE):#x}")
    stamp(a, 1)
    a("s_barrier")
    stamp(a, 2)
    if "xb" in OPT or "wb" in OPT or "wb4" in OPT:
        if "xb" in OPT: touchX(5, 3, 2, "xb")
        if "wb" in OPT: touchW(5, 3, 3, "wb")
        if "wb4" in OPT: touchW(4, 4, 3, "wb4")
        a(f"s_mov_b32 s56, {f32bits(QSCALE):#x}", f"s_mov_b32 s57, {f32bits(QSCALE):#x}")
    if "cyc" in OPT: a("s_memtime s[98:99]", "s_waitcnt lgkmcnt(0)")
    stouch(stg[2], "stg2")
    BO = [2, 3, 4, 5, 0, 1]
    a(xread(0, 0))
    for b in BO: a(wread(0, b))
    a(xread(0, 1))
    for n in range(16):
        c, s2 = divmod(n, 2)
        for b in BO:
            a(lw1({"X0", f"W{b}"}), m16(0, b, n == 0))
        if n < 15:
            if s2 == 1:
                a("s_waitcnt lgkmcnt(0)", "s_barrier"); lq1.clear()
                if c == 3 and "p1ts" not in OPT: stamp(a, 3)
                if "p1ts" in OPT: stamp(a, 7 + c)
                if c == KVAT: kvpre()
                if c < 2: stouch(stg[3 + c], f"stg{3+c}")
                KVL = [o for o in OPT if o.startswith("kvl=")]
                if KVL:
                    c0, span = [int(x) for x in KVL[0][4:].split(",")]
                    if c0 <= c < c0 + span:
                        per = 4 // span
                        w0 = 4 + (c - c0)*per
                        a.c("a write-through store to a line the memory-side cache does not hold is slow: fetch the K/V block's lines first")
                        a(f"s_sub_u32 s52, s25, {w0}", f"s_cmp_ge_u32 s52, {per}", f"s_cbranch_scc1 L_kvl{c}", "s_sub_u32 s52, s25, 4",
                          "s_lshl_b32 s52, s52, 13", "s_add_u32 s52, s52, s55", "buffer_load_dword v125, v7, s[36:39], s52 offen", f"L_kvl{c}:")
            a(xread(n + 1, 0))
        for i, b in enumerate(BO):
            a(lw1({"X1"}), m16(1, b, n == 0))
            if n < 15: a(wread(n + 1, b))
            elif i < 4:
                for r in range(4): a(f"v_mov_b32 v{O + i*4 + r}, 0")
        if n < 15: a(xread(n + 1, 1))
        assert len(lq1) <= 15
    stamp(a, 4)
    global P1TS_DONE
    P1TS_DONE = True
    a.c("P1 epilogue: K, V -> LDS stage slot 0 (and, after the barrier, global) ; Q -> regs / LDS")
    PK = 64
    def pack2(dst, src): return [f"v_cvt_pk_bf16_f32 v{dst+r}, v{src+2*r}, v{src+2*r+1}" for r in range(2)]
    def acc(th, b): return ACC + (b*2 + th)*4
    def swaps(t): return [f"v_permlane16_swap_b32 v{t}, v{t+2}", f"v_permlane16_swap_b32 v{t+1}, v{t+3}"]
    GST = [f"buffer_store_dwordx4 {vr(PK,4)}, v{VK}, s[36:39], s55 offen {WT}",
      f"buffer_store_dwordx4 {vr(PK+4,4)}, v{VK}, s[36:39], s0 offen {WT}",
      f"buffer_store_dwordx4 {vr(PK+8,4)}, v{VV}, s[36:39], s55 offen {WT}",
      f"buffer_store_dwordx4 {vr(PK+12,4)}, v{VV}, s[36:39], s55 offen offset:512 {WT}"]
    a("s_nop 2")
    a(pack2(PK, acc(0, 2)), pack2(PK + 2, acc(1, 2)), pack2(PK + 4, acc(0, 3)), pack2(PK + 6, acc(1, 3)))
    a(swaps(PK), f"ds_write_b128 v{VK}, {vr(PK,4)}")
    if "stearly" in OPT: a(GST[0])
    a(pack2(PK + 8, acc(0, 4)), pack2(PK + 10, acc(0, 5)))
    a(swaps(PK + 4), f"ds_write_b128 v{VK}, {vr(PK+4,4)} offset:8192")
    if "stearly" in OPT: a(GST[1])
    a(pack2(PK + 12, acc(1, 4)), pack2(PK + 14, acc(1, 5)))
    a(swaps(PK + 8), f"ds_write_b128 v{VV}, {vr(PK+8,4)}")
    if "stearly" in OPT: a(GST[2])
    for r in range(4): a(f"v_pk_mul_f32 {vr(acc(0,1)+2*r,2)}, {vr(acc(0,1)+2*r,2)}, s[56:57]")
    a(swaps(PK + 12), f"ds_write_b128 v{VV}, {vr(PK+12,4)} offset:512")
    if "stearly" in OPT: a(GST[3])
    a(pack2(PK + 16, acc(0, 1)), pack2(PK + 18, acc(1, 1)))
    for r in range(4): a(f"v_pk_mul_f32 {vr(acc(0,0)+2*r,2)}, {vr(acc(0,0)+2*r,2)}, s[56:57]")
    a(swaps(PK + 16), f"ds_write_b128 v{QA}, {vr(PK+16,4)}")
    a(pack2(Q, acc(0, 0)), pack2(Q + 2, acc(1, 0)), "s_nop 1", swaps(Q))
    gst = [f"buffer_store_dwordx4 {vr(PK,4)}, v{VK}, s[36:39], s55 offen {WT}",
      f"buffer_store_dwordx4 {vr(PK+4,4)}, v{VK}, s[36:39], s0 offen {WT}",
      f"buffer_store_dwordx4 {vr(PK+8,4)}, v{VV}, s[36:39], s55 offen {WT}",
      f"buffer_store_dwordx4 {vr(PK+12,4)}, v{VV}, s[36:39], s55 offen offset:512 {WT}"]
    a("s_cmp_ge_u32 s25, 4", "s_cbranch_scc1 L_nost", gst, "L_nost:")
    a("s_waitcnt lgkmcnt(0)")
    stamp(a, 5)
    a("s_barrier")
    stamp(a, 6)
    a("s_branch L_haveq")

    a("L_loader:")
    if "lprio" in OPT: a("s_setprio 3")
    a("s_sub_u32 s52, s25, 8")
    a("s_and_b32 s53, s52, 1", "s_lshl_b32 s53, s53, 2",
      "v_lshrrev_b32 v2, 4, v0", "v_add_u32 v2, s53, v2", "v_and_b32 v3, 7, v0", "v_xor_b32 v2, v2, v3", "v_lshlrev_b32 v2, 4, v2",
      "v_lshrrev_b32 v4, 3, v0", "v_lshl_add_u32 v2, v4, 10, v2")
    a("v_lshrrev_b32 v4, 2, v0", "v_mul_u32_u24 v4, 3072, v4", "v_and_b32 v3, 3, v0",
      "v_lshrrev_b32 v5, 5, v0", "v_lshlrev_b32 v5, 1, v5", "v_xor_b32 v3, v3, v5", "v_lshl_add_u32 v3, v3, 4, v4",
      "s_lshl_b32 s53, s23, 6", "v_add_u32 v3, s53, v3")
    a("s_lshl_b32 s4, s52, 13", "s_add_u32 s5, s4, 65536", "s_add_u32 s6, s4, 131072", "s_add_u32 s7, s4, 196608",
      "s_lshl_b32 s0, s52, 10")
    a("s_and_b32 s53, s52, 3", "s_mul_i32 s1, s53, 49152", "s_lshr_b32 s53, s52, 2", "s_lshl_b32 s53, s53, 10", "s_add_u32 s1, s1, s53")
    a("s_and_b32 s3, s24, 6")
    if "rotb" in OPT:
        a.c("k-chunk order: the XCD's two token blocks take turns at being first to ask for a W chunk")
        a("s_bitcmp1_b32 s24, 0", "s_mov_b32 s27, 0x47653210", "s_cselect_b32 s27, 0x76504321, s27")
    a("s_cmp_ge_u32 s52, 4", "s_cbranch_scc1 L_loaderB")
    ROT = "rot" in OPT
    def issueW(c, variantA):
        slot = c % NWS
        if ROT: pre = ([f"s_bfe_u32 s53, s27, {(4 << 16) | (4*c):#x}", "s_add_u32 s53, s53, s3"] if "rotb" in OPT else
                       [f"s_add_u32 s53, s24, {c}" if "rotj" in OPT else f"s_add_u32 s53, s3, {c}"]) + ["s_and_b32 s53, s53, 7", "s_lshl_b32 s57, s53, 7", "s_mul_i32 s53, s53, 196608", "s_add_u32 s53, s53, s1",
                       f"s_add_u32 m0, s0, {WRING + slot*12288}", "s_nop 0"]
        else: pre = [f"s_add_u32 m0, s0, {WRING + slot*12288}", f"s_add_u32 s53, s1, {c*196608}"]
        out = pre + [
               "buffer_load_dwordx4 v3, s[32:35], s53 offen" + WNT + " lds"]
        if variantA:
            out += [f"s_add_u32 m0, s0, {WRING + slot*12288 + 8192 - 2048}", "s_nop 0",
                    "buffer_load_dwordx4 v3, s[32:35], s53 offen offset:2048" + WNT + " lds"]
        return out
    def issueX(c):
        slot = c % 3
        out = []
        for aa in range(4):
            out += [f"s_add_u32 m0, s0, {XRING + slot*32768 + aa*8192}", (f"s_add_u32 s53, s{4+aa}, s57" if ROT else f"s_add_u32 s53, s{4+aa}, {c*128}"),
                    "buffer_load_dwordx4 v2, s[28:31], s53 offen" + XNT + " lds"]
        return out
    for variantA in (True, False):
        ops = []
        def W(c):
            a(issueW(c, variantA)); ops.extend([c]*(2 if variantA else 1))
        def X(c):
            a(issueX(c)); ops.extend([c]*4)
        if not variantA: a("L_loaderB:")
        if variantA: stamp(a, 1)
        SX = [o for o in OPT if o.startswith("sx=")]
        sx = [[int(y) for y in x] for x in SX[0][3:].split(",")] if SX else [[]]*6
        def spf(chunks):
            for c_ in chunks:
                for off in (0, 64, 1024, 1088): a(f"s_load_dword s63, s[16:17], {c_*128 + off}")
        if SX:
            a("s_lshl_b32 s53, s23, 3", "s_add_u32 s53, s53, s52", "s_lshl_b32 s53, s53, 11")
        W0 = issueW(0, variantA)
        if SX: a("s_add_u32 s96, s28, s53" if TS else "s_add_u32 s64, s28, s53", "s_addc_u32 s97, s29, 0" if TS else "s_addc_u32 s65, s29, 0")
        SXB = "s[96:97]" if TS else "s[64:65]"
        SWB = 98 if TS else 66
        SW = [o for o in OPT if o.startswith("sw=")]
        if SW:
            a("s_lshl_b32 s53, s24, 4", "s_add_u32 s53, s53, s23", "s_mul_i32 s53, s53, 6", "s_min_u32 s56, s52, 5", "s_add_u32 s53, s53, s56",
              "s_lshl_b32 s53, s53, 8", f"s_add_u32 s53, s53, {4*196608}", f"s_add_u32 s{SWB}, s32, s53", f"s_addc_u32 s{SWB+1}, s33, 0")
        def spf(chunks):
            for c_ in chunks:
                if SW:
                    for off in ((0, 128) if SW[0] == "sw=1" else (0, 64, 128, 192)): a(f"s_load_dword s3, s[{SWB}:{SWB+1}], {(c_-4)*196608 + off}")
                for off in (0, 64, 1024, 1088): a(f"s_load_dword s3, {SXB}, {c_*128 + off}")
        W(0); X(0); spf(sx[0]); a("s_barrier")
        if "b0f" not in OPT: W(1); X(1)
        spf(sx[1])
        if variantA and not SX: stamp(a, 2)
        if not variantA:
            a.c("workgroup 0 publishes the launch tag (low 4 bits: 8 | room for an XCC id)")
            a("s_cmp_lg_u32 s2, 0", "s_cbranch_scc1 L_notag", "s_cmp_lg_u32 s52, 7", "s_cbranch_scc1 L_notag")
            a("s_lshl_b64 s[48:49], s[48:49], 4", "s_or_b32 s48, s48, 8",
              "v_mov_b32 v8, 0", "v_mov_b32 v4, s48", "v_mov_b32 v5, s49", "s_mov_b64 exec, 1",
              f"global_store_dwordx2 v8, v[4:5], s[18:19] {WT}", "s_mov_b64 exec, -1")
            a("L_notag:")
        ROLL = "roll" in OPT and not variantA
        def TOUCH(c):
            a("s_mov_b64 exec, s[16:17]", "buffer_load_dword v10, v9, s[44:47], s3 offen", "s_mov_b64 exec, -1", "s_add_u32 s3, s3, s27")
            ops.append(99)
        if ROLL:
            a("s_mov_b32 s3, s52")
        common_init(a)
        if ROLL:
            R0 = int([o for o in OPT if o.startswith("r0=")][0][3:]) if any(o.startswith("r0=") for o in OPT) else 2
            a.c("rolling L2 warm-up of later W chunks, spread over the XCD's workgroups")
            a("s_mov_b32 s44, s32", "s_mov_b32 s45, s33", "s_mov_b32 s46, s34", "s_mov_b32 s17, 0", "s_mov_b32 s27, 196608",
              "s_and_b32 s52, s24, 1", "s_lshl_b32 s52, s52, 4", "s_add_u32 s52, s52, s23", "s_and_b32 s3, s3, 3")
            if "roll3" in OPT:
                a("s_mov_b32 s16, 3", "v_lshlrev_b32 v9, 10, v0", "s_min_u32 s3, s3, 2", "s_lshl_b32 s3, s3, 11", "s_mul_i32 s52, s52, 6144",
                  "s_add_u32 s3, s3, s52", f"s_add_u32 s3, s3, {R0*196608 + 384}")
            else:
                a("s_mov_b32 s16, 0xfff", "v_lshlrev_b32 v9, 7, v0", "s_mul_i32 s3, s3, 1536", "s_mul_i32 s52, s52, 6144",
                  "s_add_u32 s3, s3, s52", f"s_add_u32 s3, s3, {R0*196608}")
            nextT = R0
            RD = int([o for o in OPT if o.startswith("rd=")][0][3:]) if any(o.startswith("rd=") for o in OPT) else 4
            while nextT < RD: TOUCH(nextT); nextT += 1
        nextW = 2
        for c in range(8):
            last = max(i for i, x in enumerate(ops) if x <= c)
            wait = len(ops) - 1 - last
            if not variantA and c == 7:
                a.c("launch tag -> LDS")
                spin(a, "tag", ["v_cmp_ne_u64 vcc, 0, v[6:7]", "s_nop 1", "s_cmp_eq_u64 vcc, -1"],
                     ["global_load_dwordx2 v[6:7], v8, s[18:19] sc1"])
                a(f"ds_write_b64 v{T}, v[6:7]")
            else:
                a(f"s_waitcnt vmcnt({wait})")
            a("s_barrier")
            if variantA and c == 0 and not SX: stamp(a, 3)
            if variantA and c == 7: stamp(a, 4)
            if "b0f" in OPT and c == 0: W(1); X(1)
            if nextW == c + 2 and nextW <= 7: W(nextW); nextW += 1
            if c + 2 <= 7: X(c + 2)
            while nextW <= min(7, c - 1 + NWS): W(nextW); nextW += 1
            if c + 2 < len(sx): spf(sx[c + 2])
            if ROLL and nextT <= 7: TOUCH(nextT); nextT += 1
            if not variantA and c == 5:
                a("v_mov_b32 v8, 0", "global_load_dwordx2 v[6:7], v8, s[18:19] sc1"); ops.append(99)
        if variantA: a("s_branch L_p2_start")

    a("L_p2_start:")
    a(f"v_mov_b32 v{VK}, 0", f"v_mov_b32 v{VV}, 0")
    for r in range(16): a(f"v_mov_b32 v{O+r}, 0")
    a(f"s_add_u32 s53, s62, {QX - 8192}", f"v_add_u32 v{T+1}, s53, v{LO}")
    a("s_waitcnt lgkmcnt(0)")
    stamp(a, 5)
    a("s_barrier")
    stamp(a, 6)
    a(f"ds_read_b128 {vr(Q,4)}, v{T+1}")
    a("L_haveq:")
    cstamp(a, 0)
    def loc(u):
        n, i = divmod(u, 4); sl = n % 10
        return sl // 4, (sl % 4)*16384 + i*2048
    def kread(u):
        b, o = loc(u)
        return [f"ds_read_b128 {vr(KB[u%2],4)}, v{KA[b]} offset:{o}"]
    def vread(u):
        b, o = loc(u)
        return ["s_mov_b64 exec, s[50:51]",
                f"ds_read_b128 {vr(VB[u%2],4)}, v{VA[b]} offset:{o}",
                f"ds_read_b128 {vr(VB[u%2]+4,4)}, v{VA[b]} offset:{o+512}",
                "s_mov_b64 exec, -1"]
    def ex(base, lo, hi): return [f"v_exp_f32 v{base+i}, v{base+i}" for i in range(lo, hi)]
    def opt(name, default): return [int(x) for x in ([o for o in OPT if o.startswith(name + "=")] or [name + "=" + default])[0][len(name)+1:].split(",")]
    HB = [(0, 0), (0, 1)] + [(x, 0) for x in range(1, 8)] + [(x, 1) for x in range(1, 8)]
    poll = [f"buffer_load_dwordx2 {vr(T,2)}, v{T+4}, s[36:39], s57 offen sc1"]
    def fetch_poll(ns, tag, lg, w0):
        per = 16 >> lg
        a(f"s_sub_u32 s52, s25, {w0}", f"s_cmp_ge_u32 s52, {len(ns) << lg}", f"s_cbranch_scc1 L_{tag}_p")
        code = 0; slots = 0
        for k_, n in enumerate(ns):
            code |= (HB[n][0]*2 + HB[n][1]) << (4*k_); slots |= (n % 10) << (4*k_)
        a(f"s_lshr_b32 s63, s52, {lg}", "s_lshl_b32 s63, s63, 2", f"s_lshr_b32 s53, {code:#x}, s63", "s_and_b32 s53, s53, 15",
          "s_lshl_b32 s57, s24, 1", "s_xor_b32 s53, s53, s57",
          "s_lshl_b32 s57, s53, 7", "s_add_u32 s57, s57, s60",
          "s_mov_b64 exec, 15", poll, "s_mov_b64 exec, -1")
        a("s_lshl_b32 s53, s53, 14", "s_add_u32 s56, s53, s54",
          f"s_and_b32 s52, s52, {(1 << lg) - 1}", f"s_mul_i32 s52, s52, {per*1024}", "s_add_u32 s56, s56, s52",
          f"s_lshr_b32 s53, {slots:#x}, s63", "s_and_b32 s53, s53, 15", "s_lshl_b32 s53, s53, 14", "s_add_u32 s52, s52, s53", f"L_{tag}_p:")
    def fetch_load(ns, tag, lg, w0):
        per = 16 >> lg
        a(f"s_sub_u32 s53, s25, {w0}", f"s_cmp_ge_u32 s53, {len(ns) << lg}", f"s_cbranch_scc1 L_{tag}_done", "s_mov_b64 exec, 15")
        spin(a, tag, [f"v_cmp_eq_u64 vcc, s[48:49], {vr(T,2)}", "s_nop 1", "s_cmp_eq_u64 vcc, 15"], poll, SLP)
        a("s_mov_b64 exec, -1")
        for i in range(per):
            if i % 4 == 0: a(f"s_add_u32 m0, s52, {i*1024}", f"s_add_u32 s53, s56, {i*1024}")
            a(f"buffer_load_dwordx4 v{LO}, s[36:39], s53 offen offset:{(i%4)*1024} sc1 lds")
        a(f"L_{tag}_done:")
    SLP = opt("slp", "4")[0]
    a("s_setprio 3", "s_cmp_lt_u32 s25, 4", "s_cselect_b32 s3, 1, 0")
    a(kread(0), kread(1), vread(0), f"ds_read_b64 {vr(T+2,2)}, v{T}", "s_waitcnt lgkmcnt(4)")
    a(mfma(S[0], KB[0], Q, "0"))
    a.c("later-needed lane constants, computed in the shadow of the first MFMA")
    a(f"v_lshrrev_b32 v{WOA}, 4, v{LO}", f"v_bfe_u32 v{CK}, v{WOA}, 4, 1", f"v_lshlrev_b32 v{CK}, 1, v{CK}", f"v_and_b32 v{CK+1}, 7, v{WOA}",
      f"v_xor_b32 v{CK}, v{CK}, v{CK+1}", f"v_lshlrev_b32 v{CK}, 4, v{CK}", f"v_lshrrev_b32 v{WOA}, 3, v{WOA}",
      f"v_lshl_add_u32 v{WOA}, v{WOA}, 10, v{CK}", f"v_and_b32 v{T+5}, 0x78, v{T+4}",
      f"v_mov_b32 v{CK}, 0x33800000", f"v_mov_b32 v{CK+1}, 0x57800000", f"v_mov_b32 v60, 0")
    a("s_waitcnt lgkmcnt(0)")
    a(f"v_readfirstlane_b32 s48, v{T+2}", f"v_readfirstlane_b32 s49, v{T+3}")
    a("s_nop 0")
    NT = 64
    WO = 98304
    B1L = "b1late" in OPT
    LATE = (7, 11) if B1L else (7,)
    BAR = (18, 34, 54) if B1L else (10, 18, 34, 54)
    prio_at = {4: 2, 6: 1, 7: 0, 10: 2 if B1L else 1, 11: 1 if B1L else 3, 14: 2, 17: 1, 18: 0, 27: 2, 32: 1, 34: 0, 45: 2, 52: 1, 54: 0, 60: 2, 62: 1, 63: 0}
    for o in OPT:
        if o.startswith("pr="): prio_at.update({int(x.split(":")[0]): int(x.split(":")[1]) for x in o[3:].split(",")})
    SB = opt("sb", "3")[0]
    F1, F2, F3 = opt("ff", "4,8,12")
    P1_, Q1_, P2_, Q2_, P3_, Q3_ = opt("fu", "3,4,6,7,11,12")
    FETCH = [([2], "f1", 1, 8, P1_, Q1_), ([3, 4], "f2", 1, 10, P2_, Q2_), ([5, 6, 7, 8], "f3", 1, 8, P3_, Q3_),
             ([9, 10, 11, 12, 13], "f4", 0, 8, 19, 20), ([14, 15], "f5", 2, 8, 35, 36)]
    PF_ = opt("pf", "16")[0]
    def publish(u, force):
        a("s_cmp_eq_u32 s3, 0", f"s_cbranch_scc1 L_pub{u}")
        if force == "A": a("s_cmp_lt_u32 s25, 4", f"s_cbranch_scc1 L_pubf{u}")
        if force != "all": a("s_getreg_b32 s53, hwreg(HW_REG_IB_STS)", "s_and_b32 s53, s53, 0xc0000f", f"s_cbranch_scc1 L_pub{u}")
        a(f"L_pubf{u}:", f"v_mov_b32 v{T}, s48", f"v_mov_b32 v{T+1}, s49", "s_waitcnt vmcnt(0)")
        stamp(a, 7)
        a("s_mov_b64 exec, 1", f"buffer_store_dwordx2 {vr(T,2)}, v60, s[36:39], s61 offen {WT}", "s_mov_b64 exec, -1", "s_mov_b32 s3, 0", f"L_pub{u}:")
    def barrier(u):
        if u < 30: a("s_cmp_lt_u32 s25, 8", f"s_cbranch_scc1 L_b{u}", "s_waitcnt vmcnt(0)", f"L_b{u}:")
        else: a("s_waitcnt vmcnt(0)")
        a("s_barrier", "s_setprio 3")
        IDL = opt("idle", "99,0")
        if u == IDL[0]: a(f"s_sleep {IDL[1]}")
    for u in range(NT):
        s = S[u % 2]
        if u in prio_at: a(f"s_setprio {prio_at[u]}")
        late = u in LATE
        a("s_waitcnt lgkmcnt(0)")
        a(ex(s, 0, 2))
        if u > 0: a(smf(O, VB[(u-1) % 2] + 4, S[(u-1) % 2] + 8, IDX))
        if u + 1 < NT and not late: a(vread(u + 1))
        a(ex(s, 2, 5))
        if u + 1 < NT and not late:
            a(mfma(S[(u+1) % 2], KB[(u+1) % 2], Q, "0"))
            if u in BAR:
                barrier(u)
                if u == 34: stamp(a, 10)
                if u == 18 and "b12" in OPT: stamp(a, 2)
                if u == 10 and "b12" in OPT: stamp(a, 1)
                cstamp(a, {10: 2, 18: 3, 34: 4, 54: 6}[u])
            if u + 2 < NT and u + 1 not in LATE: a(kread(u + 2))
        a(ex(s, 5, 10))
        a(smf(O, VB[u % 2], s, IDX))
        a(ex(s, 10, 16))
        if u <= PF_:
            if u == 0: a.c("publish this wave's K/V tile as soon as its stores have been acknowledged")
            publish(u, "A" if u == 7 else "all" if u == PF_ else "")
        if late:
            if u == 7: stamp(a, 8)
            barrier(u)
            if u == 7: stamp(a, 9)
            if u == 11 and "b12" in OPT: stamp(a, 1)
            cstamp(a, {7: 1, 11: 2}[u])
            a(kread(u + 1), kread(u + 2), vread(u + 1), "s_waitcnt lgkmcnt(3)", mfma(S[(u+1) % 2], KB[(u+1) % 2], Q, "0"), "s_nop 10")
        if u == SB:
            a.c("second-half tiles go out after the first-half ones, which are needed sooner")
            a("s_sub_u32 s53, s25, 4", "s_cmp_ge_u32 s53, 4", "s_cbranch_scc1 L_nost2", gst, "s_mov_b32 s3, 1", "L_nost2:")
        if u == 19:
            a.c("wave 0 publishes the workgroup's XCC id")
            a("s_cmp_lg_u32 s25, 0", "s_cbranch_scc1 L_xid", f"v_mov_b32 v{T}, s48", f"v_mov_b32 v{T+1}, s49",
              f"v_or_b32 v{T}, s26, v{T}", "s_lshl_b32 s53, s23, 3", "s_add_u32 s53, s53, s10",
              "s_mov_b64 exec, 1", f"buffer_store_dwordx2 {vr(T,2)}, v60, s[36:39], s53 offen {WT}", "s_mov_b64 exec, -1", "L_xid:")
        for (ns, tag, lg, w0, up, ul) in FETCH:
            if u == up: fetch_poll(ns, tag, lg, w0)
            if u == ul: fetch_load(ns, tag, lg, w0)
        if u in (37, 38, 56, 57):
            aa = {37: 0, 38: 1, 56: 2, 57: 3}[u]
            if aa == 0: a.c("Wo tile -> LDS (half-slots 6..9)")
            a("s_lshl_b32 s63, s25, 13", f"s_add_u32 m0, s62, {WO + aa*16384}", f"s_add_u32 s53, s63, {aa*131072}", f"buffer_load_dwordx4 v{WOA}, s[40:43], s53 offen lds")
        if u == 46:
            a.c("XCC ids of the row block's workgroups; bring the O and O-flag lines this wave will write into L2")
            a(f"buffer_load_dwordx2 {vr(T+2,2)}, v{T+5}, s[36:39], s10 offen sc1",
              f"buffer_load_dword v{T+1}, v60, s[36:39], s59 offen",
              f"buffer_load_dword v{T}, v{LO}, s[36:39], s58 offen")
        if u == 55:
            a.c("local hand-off only when all 16 workgroups of this row block run on this XCC")
            a("s_or_b32 s52, s48, s26", "s_mov_b32 s53, s49", f"v_cmp_eq_u64 vcc, s[52:53], {vr(T+2,2)}", "s_nop 1",
              "s_cmp_eq_u64 vcc, -1", "s_cselect_b32 s27, 1, 0")
            if "noloc" in OPT: a("s_mov_b32 s27, 0")
    a("s_nop 1", smf(O, VB[(NT-1) % 2] + 4, S[(NT-1) % 2] + 8, IDX), "s_setprio 3",
      f"v_mov_b32 v{T}, s48", f"v_mov_b32 v{T+1}, s49", f"v_mov_b32 v{T+3}, 0x7f800000", "s_nop 7")
    a.c("safety check of the zero stand-in: 2^-24 <= l <= 2^48 and finite O, else redo with the true row max")
    a(f"v_cmp_le_f32 s[52:53], v{CK}, v{O+8}", f"v_cmp_ge_f32 s[56:57], v{CK+1}, v{O+8}",
      f"v_max3_f32 v{CK}, abs(v{O}), abs(v{O+1}), abs(v{O+2})", f"v_max3_f32 v{CK}, abs(v{O+3}), abs(v{O+4}), v{CK}",
      f"v_max3_f32 v{CK}, abs(v{O+5}), abs(v{O+6}), v{CK}", f"v_max_f32 v{CK}, abs(v{O+7}), v{CK}",
      "s_and_b64 s[52:53], s[52:53], s[56:57]",
      f"v_cmp_gt_f32 vcc, v{T+3}, v{CK}", f"v_rcp_f32 v{T+2}, v{O+8}", "s_and_b64 s[52:53], s[52:53], vcc",
      "s_cmp_eq_u64 s[52:53], -1", "s_cbranch_scc0 L_fallback")
    a("L_finish:")
    stamp(a, 11)
    cstamp(a, 5)
    if "cyc2" in OPT: a("s_memtime s[96:97]", "s_waitcnt lgkmcnt(0)", "s_sub_u32 s96, s96, s98", "s_add_u32 s66, s82, s96", "s_addc_u32 s67, s83, 0")
    for r in range(4): a(f"v_pk_mul_f32 {vr(O+2*r,2)}, {vr(O+2*r,2)}, {vr(T+2,2)} op_sel_hi:[1,0]")
    for r in range(4): a(f"v_cvt_pk_bf16_f32 v{O+12+r}, v{O+2*r}, v{O+2*r+1}")
    a("s_cmp_eq_u32 s27, 1", "s_cbranch_scc1 L_ostore_local")
    a(f"buffer_store_dwordx4 {vr(O+12,4)}, v{LO}, s[36:39], s58 offen {WT}", "s_waitcnt vmcnt(0)",
      "s_mov_b64 exec, 1", f"buffer_store_dwordx2 {vr(T,2)}, v60, s[36:39], s59 offen {WT}", "s_mov_b64 exec, -1", "s_branch L_ostored")
    a("L_ostore_local:")
    a(f"buffer_store_dwordx4 {vr(O+12,4)}, v{LO}, s[36:39], s58 offen", "s_waitcnt vmcnt(0)",
      "s_mov_b64 exec, 1", f"buffer_store_dwordx2 {vr(T,2)}, v60, s[36:39], s59 offen", "s_mov_b64 exec, -1")
    a("L_ostored:")
    stamp(a, 12)
    a("s_barrier")
    if TS:
        a("s_cmp_lt_u32 s25, 8", "s_cbranch_scc1 L_ts_p3", ["s_barrier"]*(5 if "g4" in OPT else 3))
        if "allw" in OPT:
            for w in range(8, 16): ts_flush(a, w, w, f"w{w}")
        else:
            ts_flush(a, 1, 8, "w8")
            ts_flush(a, 2, 15, "w15")
        a("s_endpgm", "L_ts_p3:")
    else:
        a("s_cmp_ge_u32 s25, 8", "s_cbranch_scc1 L_done")

    ACC3 = [0, 16]; OFR = 32; WB = [96, 104, 112]; A3 = [120, 122]; VO = 116; PA = 123; L = 118; PF = 124
    opoll = [f"buffer_load_dwordx4 {vr(PF,4)}, v{LO}, s[36:39], s11 offen sc1"]
    ocond = [f"v_cmp_eq_u64 vcc, s[48:49], {vr(PF,2)}", f"v_cmp_eq_u64 s[52:53], s[48:49], {vr(PF+2,2)}", "s_nop 1",
             "s_and_b64 vcc, vcc, s[52:53]", "s_cmp_eq_u64 vcc, -1"]
    a("s_cmp_lt_u32 s25, 4", "s_cbranch_scc1 L_p3c")
    a("s_and_b32 s56, s25, 3", "s_lshl_b32 s56, s56, 14")
    a("s_barrier")
    for i in range(16):
        a(f"s_add_u32 m0, s56, {i*1024}", f"s_add_u32 s53, s12, {(16+i)*1024}", f"buffer_load_dwordx4 v{LO}, s[36:39], s53 offen sc1 lds")
    G3 = 4 if "g4" in OPT else 8
    for x in range(16 - G3, -1, -G3): a(f"s_waitcnt vmcnt({x})", "s_barrier")
    if "wb2" in OPT:
        a("s_cmp_lg_u32 s25, 4", "s_cbranch_scc1 L_nowb", "buffer_wbl2 sc1", "L_nowb:")
    if "allw" in OPT:
        for w in range(4, 8): ts_flush(a, w, w, f"w{w}")
    a("s_endpgm")
    a("L_p3c:")
    a(opoll)
    a(f"v_lshrrev_b32 v6, 4, v{LO}")
    a(f"v_lshrrev_b32 v4, 5, v6", f"v_bfe_u32 v5, v6, 2, 2", "v_lshl_add_u32 v4, v4, 2, v5", "v_lshlrev_b32 v4, 7, v4",
      f"v_and_b32 v5, 1, v6", "v_lshl_add_u32 v4, v5, 6, v4", f"v_bfe_u32 v5, v6, 4, 1", "v_lshl_add_u32 v4, v5, 4, v4",
      f"v_bfe_u32 v5, v6, 3, 1", "v_lshl_add_u32 v4, v5, 5, v4", f"v_bfe_u32 v5, v6, 1, 1", f"v_lshl_add_u32 v4, v5, 3, v4",
      f"v_add_u32 v{A3[0]}, {WO}, v4", f"v_xor_b32 v{A3[1]}, 32, v{A3[0]}")
    a("s_lshl_b32 s56, s25, 14", f"v_add_u32 v{PA}, s56, v{LO}")
    def reads3(hd, buf):
        out = []
        for cb in range(2):
            for j in range(2):
                out.append(f"ds_read_b64_tr_b16 {vr(buf + cb*4 + j*2, 2)}, v{A3[cb]} offset:{hd*2048 + j*1024}")
        return out
    a(reads3(0, WB[0]), reads3(1, WB[1]))
    spin(a, "o", ocond, opoll)
    stamp(a, 13)
    for i in range(16):
        if i % 4 == 0: a(f"s_add_u32 s53, s12, {i*1024}")
        a(f"buffer_load_dwordx4 {vr(OFR + i*4, 4)}, v{LO}, s[36:39], s53 offen offset:{(i%4)*1024} sc1")
    a("s_barrier")
    lq = ["W0"]*4 + ["W1"]*4
    def lwait(need):
        nonlocal lq
        idx = [i for i, x in enumerate(lq) if x in need]
        if not idx: return None
        keep = len(lq) - 1 - max(idx)
        lq = lq[len(lq) - keep:]
        return keep
    def oread(n):
        lq.append(f"O{n}")
        return f"ds_read_b128 {vr(OFR + (n-16)*4, 4)}, v{PA} offset:{(n-16)*1024}"
    for n in range(32):
        cur = WB[n % 3]
        if n >= 16 and n % G3 == 0:
            if "p3ts" in OPT and n == 16: stamp(a, 2); lq = []
            a("s_barrier")
            if "p3ts" in OPT and n == 32 - G3: stamp(a, 3); lq = []
            for i in range(2): a(oread(n + i))
        kw = lwait({f"W{n}", f"O{n}"})
        w = []
        if n < 16: w.append(f"vmcnt({15 - n})")
        if kw is not None: w.append(f"lgkmcnt({kw})")
        if w: a("s_waitcnt " + " ".join(w))
        if "p3ts" in OPT and n in (0, 31): stamp(a, {0: 1, 31: 4}[n]); lq = []
        rd = reads3(n + 2, WB[(n+2) % 3]) if n + 2 < 32 else []
        for cb in range(2):
            a(mfma(ACC3[cb], cur + cb*4, OFR + (n%16)*4, "0" if n == 0 else ACC3[cb]))
            if rd: a(rd[2*cb:2*cb+2]); lq.extend([f"W{n+2}"]*2)
            if cb == 0 and n >= 16 and (n % G3) + 2 < G3: a(oread(n + 2))
        assert len(lq) <= 15, lq
    a(f"v_lshrrev_b32 v{L}, 4, v{LO}")
    PA = 117
    a.c("transpose through LDS (slot 1 is free) so that every store writes whole 128-byte lines")
    TA_ = 119; TB_ = 120
    a(f"v_and_b32 v{TA_}, 31, v{L}", f"v_lshrrev_b32 v{PA}, 5, v{L}", f"v_lshlrev_b32 v{PA}, 2, v{PA}", f"v_and_b32 v{TB_}, 7, v{L}",
      f"v_xor_b32 v{PA}, v{PA}, v{TB_}", f"v_lshlrev_b32 v{PA}, 4, v{PA}", f"v_lshl_add_u32 v{TA_}, v{TA_}, 7, v{PA}",
      "s_mov_b32 s52, s56", f"v_add_u32 v{TA_}, s52, v{TA_}",
      f"v_lshrrev_b32 v{PA}, 3, v{L}", f"v_xor_b32 v{VO}, v{PA}, v{TB_}", f"v_lshlrev_b32 v{VO}, 4, v{VO}", f"v_lshl_add_u32 v{VO}, v{PA}, 7, v{VO}",
      f"v_add_u32 v{VO}, s52, v{VO}",
      f"v_lshlrev_b32 v{TB_}, 4, v{TB_}", f"v_lshl_add_u32 v{TB_}, v{PA}, 11, v{TB_}")
    for cb in range(2):
        for q in range(2):
            c = cb*2 + q
            t = 32 + c*4
            for r in range(4): a(f"v_cvt_pk_bf16_f32 v{t+r}, v{ACC3[cb]+q*8+2*r}, v{ACC3[cb]+q*8+2*r+1}")
            if c: a(f"v_xor_b32 v{PA}, {c*16}, v{TA_}")
            a(f"ds_write_b128 v{PA if c else TA_}, {vr(t,4)}")
    a("s_waitcnt lgkmcnt(0)")
    for i in range(4): a(f"ds_read_b128 {vr(48 + i*4, 4)}, v{VO} offset:{i*1024}")
    for i in range(4):
        a(f"s_add_u32 s53, s13, {i*16384}", f"s_waitcnt lgkmcnt({3-i})", f"buffer_store_dwordx4 {vr(48 + i*4, 4)}, v{TB_}, s[44:47], s53 offen" + (" sc1" if "osc1" in OPT else " nt" if "ont" in OPT else " sc0 sc1" if "osys" in OPT else ""))
    if TS:
        if "p3ts" in OPT: stamp(a, 5)
        a("s_waitcnt vmcnt(0)")
        stamp(a, 14)
        ts_flush(a, 0, 0, "w0")
        if "allw" in OPT:
            for w in range(1, 4): ts_flush(a, w, w, f"w{w}")
    a("L_done:", "s_endpgm")

    a("L_fallback:")
    M = T + 2
    a("s_lshr_b32 s52, s25, 3", "s_lshl_b32 s52, s52, 13", "s_add_u32 s52, s52, s54",
      f"v_mov_b32 v{M}, 0xff800000", "s_mov_b32 s63, 0",
      f"v_sub_u32 v{T+3}, v{VA[0]}, v{KA[0]}", f"v_add_u32 v{T+3}, v{T+3}, v{LO}")
    def fb_addr():
        return ["s_lshr_b32 s53, s63, 2", "s_lshl_b32 s53, s53, 14", "s_and_b32 s56, s63, 3", "s_lshl_b32 s56, s56, 11",
                "s_add_u32 s53, s53, s56", "s_add_u32 s53, s53, s52"]
    a("L_fb1:", fb_addr(),
      f"buffer_load_dwordx4 {vr(KB[0],4)}, v{LO}, s[36:39], s53 offen sc1", "s_waitcnt vmcnt(0)",
      mfma(S[0], KB[0], Q, "0"), "s_nop 15")
    for r in range(8): a(f"v_max3_f32 v{M}, v{S[0]+2*r}, v{S[0]+2*r+1}, v{M}")
    a("s_add_u32 s63, s63, 1", "s_cmp_lg_u32 s63, 64", "s_cbranch_scc1 L_fb1")
    a(f"v_mov_b32 v{T}, v{M}", "s_nop 1", f"v_permlane32_swap_b32 v{M}, v{T}", "s_nop 1", f"v_max_f32 v{M}, v{M}, v{T}", f"v_sub_f32 v{M}, 0, v{M}")
    for r in range(16): a(f"v_mov_b32 v{CM+r}, v{M}")
    for r in range(16): a(f"v_mov_b32 v{O+r}, 0")
    a("s_mov_b32 s63, 0")
    a("L_fb2:", fb_addr(),
      f"buffer_load_dwordx4 {vr(KB[0],4)}, v{LO}, s[36:39], s53 offen sc1", "s_mov_b64 exec, s[50:51]",
      f"buffer_load_dwordx4 {vr(VB[0],4)}, v{T+3}, s[36:39], s53 offen sc1",
      f"buffer_load_dwordx4 {vr(VB[0]+4,4)}, v{T+3}, s[36:39], s53 offen offset:512 sc1", "s_mov_b64 exec, -1",
      "s_waitcnt vmcnt(0)", mfma(S[0], KB[0], Q, CM), "s_nop 15")
    a(ex(S[0], 0, 16), "s_nop 1", smf(O, VB[0], S[0], IDX), smf(O, VB[0] + 4, S[0] + 8, IDX))
    a("s_add_u32 s63, s63, 1", "s_cmp_lg_u32 s63, 64", "s_cbranch_scc1 L_fb2")
    a("s_nop 15", f"v_rcp_f32 v{T+2}, v{O+8}", f"v_mov_b32 v{T}, s48", f"v_mov_b32 v{T+1}, s49", "s_branch L_finish", "L_code_end:")
    a.l.append(f""".section .rodata,"a"
.p2align 6
.amdhsa_kernel {k}
  .amdhsa_next_free_vgpr 128
  .amdhsa_next_free_sgpr {102 if TS else 68}
  .amdhsa_accum_offset 128
  .amdhsa_group_segment_fixed_size 0
  .amdhsa_kernarg_size 72
  .amdhsa_user_sgpr_count 2
  .amdhsa_user_sgpr_kernarg_segment_ptr 1
  .amdhsa_system_sgpr_workgroup_id_x 1
.end_amdhsa_kernel""")

a = Asm()
a.l += ["; MHA x2 (S=2048, D=512, H=32), one launch: qkv projection -> attention -> output projection",
        "; @launch grid=(256,1,1) block=(1024,1,1) lds=163840",
        '.amdgcn_target "amdgcn-amd-amdhsa--gfx950"', ".text"]
gen(a)
print(a.text())
```

```python
import sys, math, struct

NAME = "concat_heads__mha_block__mha_block__prompt"
OPT = set(sys.argv[1:]) | {"pub0", "stmid", "tx67", "b0late"}
if "noc3" in OPT: pass
elif not any(o.startswith("stg=") for o in OPT): OPT |= {"c3=3"}
else: OPT |= {"nopf"}
if not OPT & {"tx", "a3", "nopf"}: OPT |= {"tx", "tw", "early", "rot", "rotb", "c3r"}
NWS = 5 if "w5" in OPT else (4 if "w4" in OPT else 3)
TS = "ts" in OPT
WT = "sc0 sc1" if "sys" in OPT else "sc1 nt" if "wtnt" in OPT else "sc1"
XNT = " nt" if "xnt" in OPT else ""
WNT = " nt" if "wnt" in OPT else ""
KV_OFF = 0
OF_OFF = 8 << 20
FKV_OFF = 12 << 20
FO_OFF = (12 << 20) + 65536
XID_OFF = (12 << 20) + 131072
WS_USED = 13 << 20
QSCALE = 0.25 * math.log2(math.e)
SPIN_MAX = 1 << 18
def f32bits(x): return struct.unpack("<I", struct.pack("<f", x))[0]

class Asm:
    def __init__(self): self.l = []
    def __call__(self, *lines):
        for x in lines:
            if isinstance(x, (list, tuple)): self(*x)
            else: self.l.append("    " + x if not x.endswith(":") else x)
    def c(self, s): self.l.append("    ; " + s)
    def text(self): return "\n".join(self.l)

def vr(b, n): return f"v[{b}:{b+n-1}]"
def mfma(d, a, b, c):
    cs = vr(c, 16) if isinstance(c, int) else c
    return f"v_mfma_f32_32x32x16_bf16 {vr(d,16)}, {vr(a,4)}, {vr(b,4)}, {cs}"
def smf(d, a, b, idx): return f"v_smfmac_f32_32x32x32_bf16 {vr(d,16)}, {vr(a,4)}, {vr(b,8)}, v{idx}"

P1TS_DONE = False
def stamp(a, j):
    if "p1ts" in OPT and P1TS_DONE and j >= 7: return
    if "cyc3" in OPT: return
    if TS: a(f"s_memrealtime s[{64+2*j}:{65+2*j}]", "s_waitcnt lgkmcnt(0)")
def cstamp(a, j):
    if "cyc3" in OPT and not ("ends" in OPT and j not in (0, 5)):
        if j == 0: a("s_memtime s[98:99]", "s_waitcnt lgkmcnt(0)")
        else: a("s_memtime s[96:97]", "s_waitcnt lgkmcnt(0)", "s_sub_u32 s96, s96, s98", f"s_add_u32 s{64+2*j}, s64, s96", f"s_addc_u32 s{65+2*j}, s65, 0")
def ts_init(a):
    if TS:
        for j in range(15): a(f"s_mov_b64 s[{64+2*j}:{65+2*j}], 0")
        a("s_mov_b32 s94, 0x5151", "s_mov_b32 s95, 0")
def ts_flush(a, kidx, wave, tag):
    if not TS: return
    a(f"s_cmp_lg_u32 s25, {wave}", f"s_cbranch_scc1 TS_skip_{tag}")
    a("s_sleep 127", "s_sleep 127", "s_sleep 127")
    a("s_mov_b64 exec, 1", f"s_lshl_b32 s96, s2, 7", f"s_add_u32 s96, s96, {(32<<20) + kidx*256*128}", "v_mov_b32 v1, s96")
    for j in range(16):
        a(f"v_mov_b32 v2, s{64+2*j}", f"v_mov_b32 v3, s{65+2*j}", f"global_store_dwordx2 v1, v[2:3], s[20:21] offset:{j*8}", "s_nop 1")
    a("s_waitcnt vmcnt(0)", "s_mov_b64 exec, -1", f"TS_skip_{tag}:")

XRING = 0
WRING = 98304
QX = 65536
TAGL = 163832
EREG = 131072

def spin(a, name, cond_lines, reload_lines, slp=1):
    a(f"s_mov_b32 s63, {SPIN_MAX}", f"L_{name}_chk:", "s_waitcnt vmcnt(0)", cond_lines, f"s_cbranch_scc1 L_{name}_ok", f"s_sleep {slp}",
      reload_lines, "s_sub_u32 s63, s63, 1", "s_cmp_lg_u32 s63, 0", f"s_cbranch_scc1 L_{name}_chk", "s_waitcnt vmcnt(0)", f"L_{name}_ok:")

def gen(a):
    k = NAME + "_kernel"
    a.l += [f".globl {k}", ".p2align 8", f".type {k},@function", f"{k}:"]
    a("s_cmp_ge_u32 s2, 256", "s_cbranch_scc1 L_done")
    a("s_load_dwordx16 s[4:19], s[0:1], 0", "s_load_dwordx2 s[20:21], s[0:1], 64")
    ts_init(a)
    if TS: a("s_memrealtime s[64:65]")
    a("s_memrealtime s[48:49]")
    a("s_and_b32 s52, s2, 7", "s_lshr_b32 s53, s2, 3",
      "s_lshr_b32 s22, s52, 2",
      "s_and_b32 s23, s53, 15",
      "s_and_b32 s24, s52, 3", "s_lshl_b32 s24, s24, 1", "s_lshr_b32 s53, s53, 4", "s_add_u32 s24, s24, s53")
    a("v_lshrrev_b32 v1, 6, v0", "v_and_b32 v0, 63, v0", "s_getreg_b32 s26, hwreg(HW_REG_XCC_ID)", "v_readfirstlane_b32 s25, v1")
    a("s_and_b32 s26, s26, 7", "s_lshl_b32 s62, s25, 10")
    a("s_waitcnt lgkmcnt(0)")
    WSB = int(([o for o in OPT if o.startswith("wsb=")] or ["wsb=0"])[0][4:]) << 20
    if WSB: a(f"s_add_u32 s20, s20, {WSB}", "s_addc_u32 s21, s21, 0")
    a("s_cmp_eq_u32 s22, 0",
      "s_cselect_b32 s4, s4, s10", "s_cselect_b32 s5, s5, s11", "s_cselect_b32 s6, s6, s12", "s_cselect_b32 s7, s7, s13",
      "s_cselect_b32 s8, s8, s14", "s_cselect_b32 s9, s9, s15")
    a("s_lshl_b32 s52, s24, 18", "s_add_u32 s28, s4, s52", "s_addc_u32 s29, s5, 0", "s_and_b32 s29, s29, 0xffff",
      "s_mov_b32 s30, 262144", "s_mov_b32 s31, 0x20000")
    a("s_mov_b32 s32, s6", "s_and_b32 s33, s7, 0xffff", f"s_mov_b32 s34, {512*3072}", "s_mov_b32 s35, 0x20000")
    a("s_cmp_ge_u32 s25, 8", "s_cbranch_scc1 L_loader")

    O = 0; Q = 16; S = [20, 36]; KB = [52, 56]; VB = [100, 108]; IDX = 116; KA = [117, 118, 98]; VA = [119, 120, 99]; LO = 121; T = 122
    CM = 80
    WOA = 61; CK = 62

    def common_init(a):
        a("s_mov_b32 s36, s20", "s_and_b32 s37, s21, 0xffff", f"s_mov_b32 s38, {WS_USED}", "s_mov_b32 s39, 0x20000")
        a("s_and_b32 s52, s23, 7", "s_lshl_b32 s52, s52, 7", "s_add_u32 s40, s8, s52", "s_addc_u32 s41, s9, 0", "s_and_b32 s41, s41, 0xffff",
          f"s_sub_u32 s42, {512*1024}, s52", "s_mov_b32 s43, 0x20000")
        a("s_mov_b32 s44, s16", "s_and_b32 s45, s17, 0xffff", f"s_mov_b32 s46, {2048*2048}", "s_mov_b32 s47, 0x20000")
        a("s_mov_b32 s50, 0xffff", "s_mov_b32 s51, 0xffff")
        a("s_lshl_b32 s54, s22, 4", "s_add_u32 s54, s54, s23", "s_lshl_b32 s54, s54, 18", "s_lshl_b32 s55, s24, 15", "s_add_u32 s55, s55, s54")
        a(f"v_lshlrev_b32 v{LO}, 4, v0",
          "s_lshr_b32 s56, s25, 3", "s_lshl_b32 s53, s56, 13",
          f"v_add_u32 v{KA[0]}, s53, v{LO}", f"v_add_u32 v{KA[1]}, 0x10000, v{KA[0]}", f"v_add_u32 v{KA[2]}, 0x20000, v{KA[0]}",
          "v_and_b32 v13, 15, v0", "v_lshlrev_b32 v13, 4, v13", "v_lshrrev_b32 v14, 5, v0", "v_lshl_add_u32 v13, v14, 8, v13",
          "s_add_u32 s53, s53, 1024", f"v_add_u32 v{VA[0]}, s53, v13", f"v_add_u32 v{VA[1]}, 0x10000, v{VA[0]}", f"v_add_u32 v{VA[2]}, 0x20000, v{VA[0]}",
          f"v_mov_b32 v{IDX}, 0xdddddddd")
        a("v_and_b32 v13, 27, v0", "v_cmp_eq_u32 vcc, 16, v13", "v_mov_b32 v14, 0x3f803f80",
          f"v_mov_b32 v{T}, {TAGL}", f"v_lshlrev_b32 v{T+4}, 3, v0", "v_cndmask_b32 v13, 0, v14, vcc")
        for r in range(16): a(f"v_mov_b32 v{VB[0]+r}, v13")
        a("s_and_b32 s53, s25, 7", "s_lshl_b32 s58, s24, 3", "s_add_u32 s58, s58, s53", "s_lshl_b32 s57, s22, 6", "s_add_u32 s58, s58, s57",
          "s_lshl_b32 s58, s58, 5", "s_lshl_b32 s53, s23, 1", "s_add_u32 s53, s53, s56", "s_add_u32 s58, s58, s53",
          "s_lshl_b32 s59, s58, 3", f"s_add_u32 s59, s59, {FO_OFF}", "s_lshl_b32 s58, s58, 10", f"s_add_u32 s58, s58, {OF_OFF}")
        a("s_lshr_b32 s60, s54, 7", f"s_add_u32 s60, s60, {FKV_OFF}", "s_lshl_b32 s61, s24, 8", "s_add_u32 s61, s61, s60",
          "s_bfe_u32 s53, s25, 0x10002", "s_lshl_b32 s53, s53, 7", "s_add_u32 s61, s61, s53",
          "s_and_b32 s53, s25, 3", "s_lshl_b32 s53, s53, 3", "s_add_u32 s61, s61, s53")
        a("s_lshl_b32 s10, s22, 3", "s_add_u32 s10, s10, s24", "s_lshl_b32 s10, s10, 7", f"s_add_u32 s10, s10, {XID_OFF}")
        a("s_lshl_b32 s52, s24, 3", "s_lshr_b32 s53, s23, 3", "s_lshl_b32 s53, s53, 2", "s_add_u32 s52, s52, s53",
          "s_add_u32 s53, s57, s52", "s_lshl_b32 s11, s53, 8", f"s_add_u32 s11, s11, {FO_OFF}",
          "s_and_b32 s12, s25, 3", "s_add_u32 s52, s52, s12", "s_add_u32 s53, s53, s12", "s_lshl_b32 s12, s53, 15", f"s_add_u32 s12, s12, {OF_OFF}",
          "s_lshl_b32 s13, s22, 10", "s_and_b32 s53, s23, 7", "s_lshl_b32 s53, s53, 7", "s_add_u32 s13, s13, s53",
          "s_lshl_b32 s53, s52, 16", "s_add_u32 s13, s13, s53")

    XA = [1, 2]; XB = [3, 4]; WA = [5, 6]; VK = 96; VV = 97; QA = 123
    ACC = 16
    FXR = [64, 68]; FW = 72
    def touches():
        if "tx" in OPT:
            a.c("HBM/L2 warm-up: waves 0,1 touch 8 KB each of this workgroup's share of the X block")
            if "tx67" in OPT:
                a("s_and_b32 s53, s25, 6", "s_mov_b32 s52, s23", "s_cmp_eq_u32 s53, 0", "s_cbranch_scc1 L_tx_own",
                  "s_cmp_lg_u32 s53, 6", "s_cbranch_scc1 L_tx_done", "s_sub_u32 s52, s23, 2", "s_lshr_b32 s53, s52, 1", "s_cmp_lg_u32 s53, 3", "s_cbranch_scc1 L_tx_done",
                  "s_branch L_tx_go", "L_tx_own:", "s_lshr_b32 s53, s52, 1", "s_cmp_eq_u32 s53, 3", "s_cbranch_scc1 L_tx_done", "L_tx_go:",
                  "s_lshl_b32 s52, s52, 14", "s_and_b32 s53, s25, 1", "s_lshl_b32 s53, s53, 13", "s_add_u32 s52, s52, s53",
                  "v_lshlrev_b32 v13, 7, v0", "buffer_load_dword v125, v13, s[28:31], s52 offen" + XNT, "L_tx_done:")
            else:
                a("s_cmp_ge_u32 s25, 2", "s_cbranch_scc1 L_tx_done",
                  "s_lshl_b32 s52, s23, 14", "s_lshl_b32 s53, s25, 13", "s_add_u32 s52, s52, s53",
                  "v_lshlrev_b32 v13, 7, v0", "buffer_load_dword v125, v13, s[28:31], s52 offen" + XNT, "L_tx_done:")
        if "tw" in OPT:
            a.c("waves 2,3 touch 6 KB each of W (1/128 of the matrix per workgroup)")
            a("s_sub_u32 s52, s25, 2", "s_cmp_ge_u32 s52, 2", "s_cbranch_scc1 L_tw_done",
              "s_lshl_b32 s53, s24, 4", "s_add_u32 s53, s53, s23", "s_lshl_b32 s53, s53, 1", "s_add_u32 s52, s52, s53",
              "s_mul_i32 s52, s52, 6144", "v_cmp_gt_u32 vcc, 48, v0", "v_lshlrev_b32 v13, 7, v0", "s_and_saveexec_b64 s[56:57], vcc",
              "buffer_load_dword v125, v13, s[32:35], s52 offen", "s_mov_b64 exec, -1", "L_tw_done:")
        if "twf" in OPT:
            a.c("waves 2..7 touch 8 KB each of W (1/32 of the matrix per workgroup)")
            a("s_sub_u32 s52, s25, 2", "s_cmp_ge_u32 s52, 6", "s_cbranch_scc1 L_twf_done",
              "s_and_b32 s53, s24, 1", "s_lshl_b32 s53, s53, 4", "s_add_u32 s53, s53, s23", "s_mul_i32 s53, s53, 6", "s_add_u32 s52, s52, s53",
              "s_lshl_b32 s52, s52, 13", "v_lshlrev_b32 v13, 7, v0",
              "buffer_load_dword v125, v13, s[32:35], s52 offen", "L_twf_done:")
    def touchX(c0, nc, wave, tag):
        a(f"s_cmp_lg_u32 s25, {wave}", f"s_cbranch_scc1 L_{tag}_done")
        if nc == 2: a("v_lshrrev_b32 v13, 1, v0", "v_and_b32 v14, 1, v0")
        elif nc == 4: a("v_lshrrev_b32 v13, 2, v0", "v_and_b32 v14, 3, v0")
        else: a("v_mul_u32_u24 v13, 43, v0", "v_lshrrev_b32 v13, 7, v13", "v_mul_u32_u24 v14, 3, v13", "v_sub_u32 v14, v0, v14")
        a("v_lshlrev_b32 v13, 10, v13", "v_lshl_add_u32 v13, v14, 7, v13", "s_lshl_b32 s52, s23, 14", f"s_add_u32 s52, s52, {c0*128}",
          f"v_cmp_gt_u32 vcc, {16*nc}, v0", "s_nop 1", "s_and_saveexec_b64 s[56:57], vcc",
          "buffer_load_dword v125, v13, s[28:31], s52 offen" + XNT, "s_mov_b64 exec, -1", f"L_{tag}_done:")
    def touchW(c0, nc, wave, tag):
        a(f"s_cmp_lg_u32 s25, {wave}", f"s_cbranch_scc1 L_{tag}_done",
          "s_lshl_b32 s52, s24, 4", "s_add_u32 s52, s52, s23", f"s_mul_i32 s52, s52, {nc*1536}", f"s_add_u32 s52, s52, {c0*196608}",
          f"v_cmp_gt_u32 vcc, {12*nc}, v0", "v_lshlrev_b32 v13, 7, v0", "s_nop 0", "s_and_saveexec_b64 s[56:57], vcc",
          "buffer_load_dword v125, v13, s[32:35], s52 offen" + WNT, "s_mov_b64 exec, -1", f"L_{tag}_done:")
    if "tlb" in OPT:
        a.c("translation warm-up: wave 0 of workgroup i touches one of the pages the kernel will need")
        a("s_cmp_lg_u32 s25, 0", "s_cbranch_scc1 L_tlb_done",
          "s_and_b32 s52, s23, 7", "v_mov_b32 v13, 0",
          "s_cmp_eq_u32 s52, 0", "s_cbranch_scc1 L_tlb0", "s_cmp_eq_u32 s52, 1", "s_cbranch_scc1 L_tlb1",
          "s_cmp_eq_u32 s52, 2", "s_cbranch_scc1 L_tlb2", "s_cmp_eq_u32 s52, 3", "s_cbranch_scc1 L_tlb3",
          "s_cmp_eq_u32 s52, 4", "s_cbranch_scc1 L_tlb4")
        a("s_lshl_b32 s53, s22, 22", "s_lshr_b32 s56, s23, 3", "s_lshl_b32 s56, s56, 21", "s_add_u32 s53, s53, s56",
          "s_lshl_b32 s56, s22, 21", f"s_add_u32 s56, s56, {OF_OFF}",
          "s_cmp_eq_u32 s52, 6", "s_cselect_b32 s53, s56, s53", "s_cmp_eq_u32 s52, 7", f"s_cselect_b32 s53, {FKV_OFF}, s53",
          "v_mov_b32 v13, s53", "global_load_dword v125, v13, s[20:21]", "s_branch L_tlb_done")
        a("L_tlb0:", "buffer_load_dword v125, v13, s[28:31], 0 offen", "s_branch L_tlb_done")
        a("L_tlb1:", "buffer_load_dword v125, v13, s[32:35], 0 offen", "s_branch L_tlb_done")
        a("L_tlb2:", "global_load_dword v125, v13, s[8:9]", "s_branch L_tlb_done")
        a("L_tlb3:", "s_lshr_b32 s53, s24, 2", "s_lshl_b32 s53, s53, 21", "v_mov_b32 v13, s53", "global_load_dword v125, v13, s[16:17]", "s_branch L_tlb_done")
        a("L_tlb4:", "global_load_dword v125, v13, s[18:19] sc1", "L_tlb_done:")
    if "cpf" in OPT:
        a.c("pull the kernel's code into L2 (waves 4..7, 64 lines each)")
        a("s_sub_u32 s52, s25, 4", "s_cmp_ge_u32 s52, 4", "s_cbranch_scc1 L_cpf_done",
          "s_getpc_b64 s[56:57]", "L_cpf_pc:", "s_lshl_b32 s52, s52, 13", "v_lshlrev_b32 v13, 7, v0", "v_add_u32 v13, s52, v13",
          "v_cmp_gt_u32 vcc, L_code_end-L_cpf_pc, v13", "s_nop 1", "s_and_saveexec_b64 s[52:53], vcc", "s_cbranch_execz L_cpf_skip",
          "global_load_dword v125, v13, s[56:57]", "L_cpf_skip:", "s_mov_b64 exec, -1", "L_cpf_done:")
    STG = [o for o in OPT if o.startswith("stg=")]
    stg = [[int(y) for y in x] for x in STG[0][4:].split(",")] if STG else [[], [], [], [], []]
    def stouch(chunks, tag):
        if not chunks: return
        lo, hi = min(chunks), max(chunks)
        a(f"s_sub_u32 s52, s25, {lo}", f"s_cmp_gt_u32 s52, {hi-lo}", f"s_cbranch_scc1 L_{tag}",
          "s_lshl_b32 s52, s23, 14", "s_lshl_b32 s53, s25, 7", "s_add_u32 s52, s52, s53", "v_lshlrev_b32 v8, 10, v0", "s_mov_b64 exec, 0xffff",
          "buffer_load_dword v125, v8, s[28:31], s52 offen",
          "s_and_b32 s52, s24, 1", "s_lshl_b32 s52, s52, 4", "s_add_u32 s52, s52, s23", "s_mul_i32 s52, s52, 6144", "s_mul_i32 s53, s25, 196608",
          "s_add_u32 s52, s52, s53", "s_mov_b64 exec, -1", "v_lshlrev_b32 v8, 7, v0", "s_mov_b32 exec_hi, 0xffff",
          "buffer_load_dword v125, v8, s[32:35], s52 offen", "s_mov_b64 exec, -1", f"L_{tag}:")
    stouch(stg[0], "stg0")
    if "early" in OPT: touches()
    a("s_barrier")
    if "early" not in OPT and "late" not in OPT: touches()
    if "a3" in OPT:
        touchX(2, 3, 0, "xa3"); touchW(2, 3, 1, "wa3")
    if "wa3" in OPT: touchW(2, 3, 2, "wa3")
    if "wa2" in OPT: touchW(2, 2, 2, "wa2")
    if "wa13" in OPT: touchW(1, 3, 2, "wa13")
    common_init(a)
    a("v_and_b32 v13, 15, v0", "v_lshrrev_b32 v14, 4, v0",
      "v_bfe_u32 v15, v0, 1, 3", "v_xor_b32 v15, v15, v14", "v_lshlrev_b32 v15, 4, v15", "v_lshl_add_u32 v15, v13, 7, v15",
      "s_lshl_b32 s52, s25, 12",
      f"v_add_u32 v{XA[0]}, s52, v15", f"v_xor_b32 v{XA[1]}, 64, v{XA[0]}",
      f"v_add_u32 v{XB[0]}, 0x10000, v{XA[0]}", f"v_add_u32 v{XB[1]}, 0x10000, v{XA[1]}")
    a("v_bfe_u32 v15, v0, 2, 2", "v_lshl_add_u32 v13, v14, 3, v15", "v_lshlrev_b32 v13, 6, v13",
      "v_bfe_u32 v15, v0, 4, 1", "v_lshl_add_u32 v13, v15, 5, v13", "v_and_b32 v15, 3, v0", "v_lshl_add_u32 v13, v15, 3, v13",
      f"v_add_u32 v{WA[0]}, {WRING}, v13", f"v_xor_b32 v{WA[1]}, 32, v{WA[0]}")
    a("s_and_b32 s52, s25, 3", "s_lshl_b32 s52, s52, 11", "s_lshr_b32 s53, s25, 2", "s_lshl_b32 s53, s53, 14", "s_add_u32 s52, s52, s53",
      f"v_add_u32 v{VK}, s52, v{LO}",
      "v_and_b32 v13, 15, v0", "v_lshlrev_b32 v13, 4, v13", "v_lshrrev_b32 v14, 5, v0", "v_lshl_add_u32 v13, v14, 8, v13",
      "v_bfe_u32 v15, v0, 4, 1", "v_lshl_add_u32 v13, v15, 13, v13", "s_add_u32 s52, s52, 1024", f"v_add_u32 v{VV}, s52, v13")
    a(f"s_add_u32 s52, s62, {QX}", f"v_add_u32 v{QA}, s52, v{LO}", "s_add_u32 s0, s55, 8192")
    a("v_lshlrev_b32 v7, 7, v0")
    lq1 = []
    def xread(n, th):
        c, s2 = divmod(n, 2); slot = c % 3
        lq1.append(f"X{th}")
        if slot < 2: return f"ds_read_b128 {vr(FXR[th],4)}, v{XA[s2]} offset:{slot*32768 + th*2048}"
        return f"ds_read_b128 {vr(FXR[th],4)}, v{XB[s2]} offset:{th*2048}"
    def wread(n, b):
        c, s2 = divmod(n, 2); seg, hd = divmod(b, 2)
        lq1.extend([f"W{b}"]*2)
        return [f"ds_read_b64_tr_b16 {vr(FW + b*4 + j*2, 2)}, v{WA[hd]} offset:{(c % NWS)*12288 + seg*4096 + s2*2048 + j*256}" for j in range(2)]
    def lw1(need):
        idx = [i for i, x in enumerate(lq1) if x in need]
        if not idx: return []
        keep = len(lq1) - 1 - max(idx)
        del lq1[:len(lq1) - keep]
        return [f"s_waitcnt lgkmcnt({keep})"]
    def m16(th, b, first):
        d = ACC + (b*2 + th)*4
        cs = "0" if first else vr(d, 4)
        x = vr(FXR[th], 4); w = vr(FW + b*4, 4)
        return f"v_mfma_f32_16x16x32_bf16 {vr(d,4)}, " + (f"{w}, {x}" if b < 4 else f"{x}, {w}") + f", {cs}"
    def kvpre():
        a.c("an early poll of a line that is still only in HBM is slow: fetch the group's K/V flag lines ahead of time")
        a("s_cmp_lg_u32 s25, 5", "s_cbranch_scc1 L_kvpre_done", "s_mov_b64 exec, 0xffff", "buffer_load_dword v125, v7, s[36:39], s60 offen sc1", "s_mov_b64 exec, -1", "L_kvpre_done:")
    KVAT = int(([o for o in OPT if o.startswith("kvat=")] or ["kvat=-1"])[0][5:])
    if KVAT < 0: kvpre()
    if "tkv" in OPT:
        a.c("first touch of the K/V block's pages ahead of the stores")
        a("s_cmp_lg_u32 s25, 7", "s_cbranch_scc1 L_tkv_done", "v_lshlrev_b32 v13, 12, v0", "s_mov_b64 exec, 0xff",
          "buffer_load_dword v125, v13, s[36:39], s55 offen", "s_mov_b64 exec, -1", "L_tkv_done:")
    if "kvpt" in OPT:
        a.c("fetch every line of the K/V block ahead of the stores (waves 4..7)")
        a("s_sub_u32 s52, s25, 4", "s_cmp_ge_u32 s52, 4", "s_cbranch_scc1 L_kvpt_done", "v_lshlrev_b32 v13, 7, v0", "s_lshl_b32 s52, s52, 13", "s_add_u32 s52, s52, s55",
          "buffer_load_dword v125, v13, s[36:39], s52 offen", "L_kvpt_done:")
    C3 = [o for o in OPT if o.startswith("c3=")]
    if C3:
        cls = int(C3[0][3:])
        if "c3r" in OPT:
            a("s_cmp_lg_u32 s25, 6", "s_cbranch_scc1 L_c3_done",
              "s_and_b32 s52, s24, 1", "s_lshl_b32 s52, s52, 4", "s_add_u32 s52, s52, s23", "s_mul_i32 s52, s52, 36",
              "s_and_b32 s53, s24, 6", "s_add_u32 s53, s53, 2", "s_mul_i32 s53, s53, 192", "s_add_u32 s52, s52, s53",
              "v_add_u32 v13, s52, v0", "v_subrev_u32 v14, 1536, v13", "v_min_u32 v13, v13, v14", "v_lshlrev_b32 v13, 10, v13",
              "v_cmp_gt_u32 vcc, 36, v0", f"s_mov_b32 s52, {cls*128}", "s_nop 0",
              "s_and_saveexec_b64 s[56:57], vcc", "buffer_load_dword v125, v13, s[32:35], s52 offen", "s_mov_b64 exec, -1", "L_c3_done:")
        else:
            a("s_cmp_lg_u32 s25, 6", "s_cbranch_scc1 L_c3_done",
              "s_and_b32 s52, s24, 1", "s_lshl_b32 s52, s52, 4", "s_add_u32 s52, s52, s23", "s_mul_i32 s52, s52, 36864",
              f"s_add_u32 s52, s52, {384*1024 + cls*128}", "v_cmp_gt_u32 vcc, 36, v0", "v_lshlrev_b32 v13, 10, v0", "s_nop 0",
              "s_and_saveexec_b64 s[56:57], vcc", "buffer_load_dword v125, v13, s[32:35], s52 offen", "s_mov_b64 exec, -1", "L_c3_done:")
    stouch(stg[1], "stg1")
    if "late" in OPT: touches()
    if "xa" in OPT: touchX(3, 2, 0, "xa")
    if "wa" in OPT: touchW(3, 2, 1, "wa")
    if "wa5" in OPT: touchW(3, 5, 1, "wa5")
    if "xa4" in OPT: touchX(4, 4, 0, "xa4")
    a(f"s_mov_b32 s56, {f32bits(QSCALE):#x}", f"s_mov_b32 s57, {f32bits(QSCALE):#x}")
    stamp(a, 1)
    a("s_barrier")
    stamp(a, 2)
    if "xb" in OPT or "wb" in OPT or "wb4" in OPT:
        if "xb" in OPT: touchX(5, 3, 2, "xb")
        if "wb" in OPT: touchW(5, 3, 3, "wb")
        if "wb4" in OPT: touchW(4, 4, 3, "wb4")
        a(f"s_mov_b32 s56, {f32bits(QSCALE):#x}", f"s_mov_b32 s57, {f32bits(QSCALE):#x}")
    if "cyc" in OPT: a("s_memtime s[98:99]", "s_waitcnt lgkmcnt(0)")
    stouch(stg[2], "stg2")
    BO = [2, 3, 4, 5, 0, 1]
    a(xread(0, 0))
    for b in BO: a(wread(0, b))
    a(xread(0, 1))
    for n in range(16):
        c, s2 = divmod(n, 2)
        for b in BO:
            a(lw1({"X0", f"W{b}"}), m16(0, b, n == 0))
        if n < 15:
            if s2 == 1:
                a("s_waitcnt lgkmcnt(0)", "s_barrier"); lq1.clear()
                if c == 3 and "p1ts" not in OPT: stamp(a, 3)
                if "p1ts" in OPT: stamp(a, 7 + c)
                if c == 5: a("s_waitcnt vmcnt(0)")
                if c == KVAT: kvpre()
                if c < 2: stouch(stg[3 + c], f"stg{3+c}")
                KVL = [o for o in OPT if o.startswith("kvl=")]
                if KVL:
                    c0, span = [int(x) for x in KVL[0][4:].split(",")]
                    if c0 <= c < c0 + span:
                        per = 4 // span
                        w0 = 4 + (c - c0)*per
                        a.c("a write-through store to a line the memory-side cache does not hold is slow: fetch the K/V block's lines first")
                        a(f"s_sub_u32 s52, s25, {w0}", f"s_cmp_ge_u32 s52, {per}", f"s_cbranch_scc1 L_kvl{c}", "s_sub_u32 s52, s25, 4",
                          "s_lshl_b32 s52, s52, 13", "s_add_u32 s52, s52, s55", "buffer_load_dword v125, v7, s[36:39], s52 offen", f"L_kvl{c}:")
            a(xread(n + 1, 0))
        for i, b in enumerate(BO):
            a(lw1({"X1"}), m16(1, b, n == 0))
            if n < 15: a(wread(n + 1, b))
            elif i < 4:
                for r in range(4): a(f"v_mov_b32 v{O + i*4 + r}, 0")
        if n < 15: a(xread(n + 1, 1))
        assert len(lq1) <= 15
    stamp(a, 4)
    global P1TS_DONE
    P1TS_DONE = True
    a.c("P1 epilogue: K, V -> LDS stage slot 0 (and, after the barrier, global) ; Q -> regs / LDS")
    PK = 64
    def pack2(dst, src): return [f"v_cvt_pk_bf16_f32 v{dst+r}, v{src+2*r}, v{src+2*r+1}" for r in range(2)]
    def acc(th, b): return ACC + (b*2 + th)*4
    def swaps(t): return [f"v_permlane16_swap_b32 v{t}, v{t+2}", f"v_permlane16_swap_b32 v{t+1}, v{t+3}"]
    GST = [f"buffer_store_dwordx4 {vr(PK,4)}, v{VK}, s[36:39], s55 offen {WT}",
      f"buffer_store_dwordx4 {vr(PK+4,4)}, v{VK}, s[36:39], s0 offen {WT}",
      f"buffer_store_dwordx4 {vr(PK+8,4)}, v{VV}, s[36:39], s55 offen {WT}",
      f"buffer_store_dwordx4 {vr(PK+12,4)}, v{VV}, s[36:39], s55 offen offset:512 {WT}"]
    a("s_nop 2")
    a(pack2(PK, acc(0, 2)), pack2(PK + 2, acc(1, 2)), pack2(PK + 4, acc(0, 3)), pack2(PK + 6, acc(1, 3)))
    a(swaps(PK), f"ds_write_b128 v{VK}, {vr(PK,4)}")
    if "stearly" in OPT: a(GST[0])
    a(pack2(PK + 8, acc(0, 4)), pack2(PK + 10, acc(0, 5)))
    a(swaps(PK + 4), f"ds_write_b128 v{VK}, {vr(PK+4,4)} offset:8192")
    if "stearly" in OPT: a(GST[1])
    a(pack2(PK + 12, acc(1, 4)), pack2(PK + 14, acc(1, 5)))
    a(swaps(PK + 8), f"ds_write_b128 v{VV}, {vr(PK+8,4)}")
    if "stearly" in OPT: a(GST[2])
    for r in range(4): a(f"v_pk_mul_f32 {vr(acc(0,1)+2*r,2)}, {vr(acc(0,1)+2*r,2)}, s[56:57]")
    a(swaps(PK + 12), f"ds_write_b128 v{VV}, {vr(PK+12,4)} offset:512")
    if "stearly" in OPT: a(GST[3])
    a(pack2(PK + 16, acc(0, 1)), pack2(PK + 18, acc(1, 1)))
    for r in range(4): a(f"v_pk_mul_f32 {vr(acc(0,0)+2*r,2)}, {vr(acc(0,0)+2*r,2)}, s[56:57]")
    a(swaps(PK + 16), f"ds_write_b128 v{QA}, {vr(PK+16,4)}")
    a(pack2(Q, acc(0, 0)), pack2(Q + 2, acc(1, 0)), "s_nop 1", swaps(Q))
    gst = [f"buffer_store_dwordx4 {vr(PK,4)}, v{VK}, s[36:39], s55 offen {WT}",
      f"buffer_store_dwordx4 {vr(PK+4,4)}, v{VK}, s[36:39], s0 offen {WT}",
      f"buffer_store_dwordx4 {vr(PK+8,4)}, v{VV}, s[36:39], s55 offen {WT}",
      f"buffer_store_dwordx4 {vr(PK+12,4)}, v{VV}, s[36:39], s55 offen offset:512 {WT}"]
    a("s_cmp_ge_u32 s25, 4", "s_cbranch_scc1 L_nost", gst, "L_nost:")
    a("s_waitcnt lgkmcnt(0)")
    stamp(a, 5)
    a("s_barrier")
    stamp(a, 6)
    a("s_branch L_haveq")

    a("L_loader:")
    if "lprio" in OPT: a("s_setprio 3")
    a("s_sub_u32 s52, s25, 8")
    a("s_and_b32 s53, s52, 1", "s_lshl_b32 s53, s53, 2",
      "v_lshrrev_b32 v2, 4, v0", "v_add_u32 v2, s53, v2", "v_and_b32 v3, 7, v0", "v_xor_b32 v2, v2, v3", "v_lshlrev_b32 v2, 4, v2",
      "v_lshrrev_b32 v4, 3, v0", "v_lshl_add_u32 v2, v4, 10, v2")
    a("v_lshrrev_b32 v4, 2, v0", "v_mul_u32_u24 v4, 3072, v4", "v_and_b32 v3, 3, v0",
      "v_lshrrev_b32 v5, 5, v0", "v_lshlrev_b32 v5, 1, v5", "v_xor_b32 v3, v3, v5", "v_lshl_add_u32 v3, v3, 4, v4",
      "s_lshl_b32 s53, s23, 6", "v_add_u32 v3, s53, v3")
    a("s_lshl_b32 s4, s52, 13", "s_add_u32 s5, s4, 65536", "s_add_u32 s6, s4, 131072", "s_add_u32 s7, s4, 196608",
      "s_lshl_b32 s0, s52, 10")
    a("s_and_b32 s53, s52, 3", "s_mul_i32 s1, s53, 49152", "s_lshr_b32 s53, s52, 2", "s_lshl_b32 s53, s53, 10", "s_add_u32 s1, s1, s53")
    a("s_and_b32 s3, s24, 6")
    if "rotb" in OPT:
        a.c("k-chunk order: the XCD's two token blocks take turns at being first to ask for a W chunk")
        a("s_bitcmp1_b32 s24, 0", "s_mov_b32 s27, 0x47653210", "s_cselect_b32 s27, 0x76504321, s27")
    a("s_cmp_ge_u32 s52, 4", "s_cbranch_scc1 L_loaderB")
    ROT = "rot" in OPT
    def issueW(c, variantA):
        slot = c % NWS
        if ROT: pre = ([f"s_bfe_u32 s53, s27, {(4 << 16) | (4*c):#x}", "s_add_u32 s53, s53, s3"] if "rotb" in OPT else
                       [f"s_add_u32 s53, s24, {c}" if "rotj" in OPT else f"s_add_u32 s53, s3, {c}"]) + ["s_and_b32 s53, s53, 7", "s_lshl_b32 s57, s53, 7", "s_mul_i32 s53, s53, 196608", "s_add_u32 s53, s53, s1",
                       f"s_add_u32 m0, s0, {WRING + slot*12288}", "s_nop 0"]
        else: pre = [f"s_add_u32 m0, s0, {WRING + slot*12288}", f"s_add_u32 s53, s1, {c*196608}"]
        out = pre + [
               "buffer_load_dwordx4 v3, s[32:35], s53 offen" + WNT + " lds"]
        if variantA:
            out += [f"s_add_u32 m0, s0, {WRING + slot*12288 + 8192 - 2048}", "s_nop 0",
                    "buffer_load_dwordx4 v3, s[32:35], s53 offen offset:2048" + WNT + " lds"]
        return out
    def issueX(c):
        slot = c % 3
        out = []
        for aa in range(4):
            out += [f"s_add_u32 m0, s0, {XRING + slot*32768 + aa*8192}", (f"s_add_u32 s53, s{4+aa}, s57" if ROT else f"s_add_u32 s53, s{4+aa}, {c*128}"),
                    "buffer_load_dwordx4 v2, s[28:31], s53 offen" + XNT + " lds"]
        return out
    for variantA in (True, False):
        ops = []
        def W(c):
            a(issueW(c, variantA)); ops.extend([c]*(2 if variantA else 1))
        def X(c):
            a(issueX(c)); ops.extend([c]*4)
        if not variantA: a("L_loaderB:")
        if variantA: stamp(a, 1)
        SX = [o for o in OPT if o.startswith("sx=")]
        sx = [[int(y) for y in x] for x in SX[0][3:].split(",")] if SX else [[]]*6
        def spf(chunks):
            for c_ in chunks:
                for off in (0, 64, 1024, 1088): a(f"s_load_dword s63, s[16:17], {c_*128 + off}")
        if SX:
            a("s_lshl_b32 s53, s23, 3", "s_add_u32 s53, s53, s52", "s_lshl_b32 s53, s53, 11")
        W0 = issueW(0, variantA)
        if SX: a("s_add_u32 s96, s28, s53" if TS else "s_add_u32 s64, s28, s53", "s_addc_u32 s97, s29, 0" if TS else "s_addc_u32 s65, s29, 0")
        SXB = "s[96:97]" if TS else "s[64:65]"
        SWB = 98 if TS else 66
        SW = [o for o in OPT if o.startswith("sw=")]
        if SW:
            a("s_lshl_b32 s53, s24, 4", "s_add_u32 s53, s53, s23", "s_mul_i32 s53, s53, 6", "s_min_u32 s56, s52, 5", "s_add_u32 s53, s53, s56",
              "s_lshl_b32 s53, s53, 8", f"s_add_u32 s53, s53, {4*196608}", f"s_add_u32 s{SWB}, s32, s53", f"s_addc_u32 s{SWB+1}, s33, 0")
        def spf(chunks):
            for c_ in chunks:
                if SW:
                    for off in ((0, 128) if SW[0] == "sw=1" else (0, 64, 128, 192)): a(f"s_load_dword s3, s[{SWB}:{SWB+1}], {(c_-4)*196608 + off}")
                for off in (0, 64, 1024, 1088): a(f"s_load_dword s3, {SXB}, {c_*128 + off}")
        W(0); X(0); spf(sx[0]); a("s_barrier")
        if "b0f" not in OPT: W(1); X(1)
        spf(sx[1])
        if variantA and not SX: stamp(a, 2)
        if not variantA:
            a.c("workgroup 0 publishes the launch tag (low 4 bits: 8 | room for an XCC id)")
            a("s_cmp_lg_u32 s2, 0", "s_cbranch_scc1 L_notag", "s_cmp_lg_u32 s52, 7", "s_cbranch_scc1 L_notag")
            a("s_lshl_b64 s[48:49], s[48:49], 4", "s_or_b32 s48, s48, 8",
              "v_mov_b32 v8, 0", "v_mov_b32 v4, s48", "v_mov_b32 v5, s49", "s_mov_b64 exec, 1",
              f"global_store_dwordx2 v8, v[4:5], s[18:19] {WT}", "s_mov_b64 exec, -1")
            a("L_notag:")
        ROLL = "roll" in OPT and not variantA
        def TOUCH(c):
            a("s_mov_b64 exec, s[16:17]", "buffer_load_dword v10, v9, s[44:47], s3 offen", "s_mov_b64 exec, -1", "s_add_u32 s3, s3, s27")
            ops.append(99)
        if ROLL:
            a("s_mov_b32 s3, s52")
        common_init(a)
        if ROLL:
            R0 = int([o for o in OPT if o.startswith("r0=")][0][3:]) if any(o.startswith("r0=") for o in OPT) else 2
            a.c("rolling L2 warm-up of later W chunks, spread over the XCD's workgroups")
            a("s_mov_b32 s44, s32", "s_mov_b32 s45, s33", "s_mov_b32 s46, s34", "s_mov_b32 s17, 0", "s_mov_b32 s27, 196608",
              "s_and_b32 s52, s24, 1", "s_lshl_b32 s52, s52, 4", "s_add_u32 s52, s52, s23", "s_and_b32 s3, s3, 3")
            if "roll3" in OPT:
                a("s_mov_b32 s16, 3", "v_lshlrev_b32 v9, 10, v0", "s_min_u32 s3, s3, 2", "s_lshl_b32 s3, s3, 11", "s_mul_i32 s52, s52, 6144",
                  "s_add_u32 s3, s3, s52", f"s_add_u32 s3, s3, {R0*196608 + 384}")
            else:
                a("s_mov_b32 s16, 0xfff", "v_lshlrev_b32 v9, 7, v0", "s_mul_i32 s3, s3, 1536", "s_mul_i32 s52, s52, 6144",
                  "s_add_u32 s3, s3, s52", f"s_add_u32 s3, s3, {R0*196608}")
            nextT = R0
            RD = int([o for o in OPT if o.startswith("rd=")][0][3:]) if any(o.startswith("rd=") for o in OPT) else 4
            while nextT < RD: TOUCH(nextT); nextT += 1
        nextW = 2
        for c in range(8):
            last = max(i for i, x in enumerate(ops) if x <= c)
            wait = len(ops) - 1 - last
            if not variantA and c == 7:
                a.c("launch tag -> LDS")
                spin(a, "tag", ["v_cmp_ne_u64 vcc, 0, v[6:7]", "s_nop 1", "s_cmp_eq_u64 vcc, -1"],
                     ["global_load_dwordx2 v[6:7], v8, s[18:19] sc1"])
                a(f"ds_write_b64 v{T}, v[6:7]")
            else:
                a(f"s_waitcnt vmcnt({wait})")
            a("s_barrier")
            if variantA and c == 0 and not SX: stamp(a, 3)
            if variantA and c == 7: stamp(a, 4)
            if "b0f" in OPT and c == 0: W(1); X(1)
            if nextW == c + 2 and nextW <= 7: W(nextW); nextW += 1
            if c + 2 <= 7: X(c + 2)
            while nextW <= min(7, c - 1 + NWS): W(nextW); nextW += 1
            if c + 2 < len(sx): spf(sx[c + 2])
            if ROLL and nextT <= 7: TOUCH(nextT); nextT += 1
            if not variantA and c == 5:
                a("v_mov_b32 v8, 0", "global_load_dwordx2 v[6:7], v8, s[18:19] sc1"); ops.append(99)
        if variantA: a("s_branch L_p2_start")

    a("L_p2_start:")
    a(f"v_mov_b32 v{VK}, 0", f"v_mov_b32 v{VV}, 0")
    for r in range(16): a(f"v_mov_b32 v{O+r}, 0")
    a(f"s_add_u32 s53, s62, {QX - 8192}", f"v_add_u32 v{T+1}, s53, v{LO}")
    a("s_waitcnt lgkmcnt(0)")
    stamp(a, 5)
    a("s_barrier")
    stamp(a, 6)
    a(f"ds_read_b128 {vr(Q,4)}, v{T+1}")
    a("L_haveq:")
    cstamp(a, 0)
    def loc(u):
        n, i = divmod(u, 4); sl = n % 10
        return sl // 4, (sl % 4)*16384 + i*2048
    def kread(u):
        b, o = loc(u)
        return [f"ds_read_b128 {vr(KB[u%2],4)}, v{KA[b]} offset:{o}"]
    def vread(u):
        b, o = loc(u)
        return ["s_mov_b64 exec, s[50:51]",
                f"ds_read_b128 {vr(VB[u%2],4)}, v{VA[b]} offset:{o}",
                f"ds_read_b128 {vr(VB[u%2]+4,4)}, v{VA[b]} offset:{o+512}",
                "s_mov_b64 exec, -1"]
    def ex(base, lo, hi): return [f"v_exp_f32 v{base+i}, v{base+i}" for i in range(lo, hi)]
    def opt(name, default): return [int(x) for x in ([o for o in OPT if o.startswith(name + "=")] or [name + "=" + default])[0][len(name)+1:].split(",")]
    HB = [(0, 0), (0, 1)] + [(x, 0) for x in range(1, 8)] + [(x, 1) for x in range(1, 8)]
    poll = [f"buffer_load_dwordx2 {vr(T,2)}, v{T+4}, s[36:39], s57 offen sc1"]
    def fetch_poll(ns, tag, lg, w0):
        per = 16 >> lg
        a(f"s_sub_u32 s52, s25, {w0}", f"s_cmp_ge_u32 s52, {len(ns) << lg}", f"s_cbranch_scc1 L_{tag}_p")
        code = 0; slots = 0
        for k_, n in enumerate(ns):
            code |= (HB[n][0]*2 + HB[n][1]) << (4*k_); slots |= (n % 10) << (4*k_)
        a(f"s_lshr_b32 s63, s52, {lg}", "s_lshl_b32 s63, s63, 2", f"s_lshr_b32 s53, {code:#x}, s63", "s_and_b32 s53, s53, 15",
          "s_lshl_b32 s57, s24, 1", "s_xor_b32 s53, s53, s57",
          "s_lshl_b32 s57, s53, 7", "s_add_u32 s57, s57, s60",
          "s_mov_b64 exec, 15", poll, "s_mov_b64 exec, -1")
        a("s_lshl_b32 s53, s53, 14", "s_add_u32 s56, s53, s54",
          f"s_and_b32 s52, s52, {(1 << lg) - 1}", f"s_mul_i32 s52, s52, {per*1024}", "s_add_u32 s56, s56, s52",
          f"s_lshr_b32 s53, {slots:#x}, s63", "s_and_b32 s53, s53, 15", "s_lshl_b32 s53, s53, 14", "s_add_u32 s52, s52, s53", f"L_{tag}_p:")
    def fetch_load(ns, tag, lg, w0):
        per = 16 >> lg
        a(f"s_sub_u32 s53, s25, {w0}", f"s_cmp_ge_u32 s53, {len(ns) << lg}", f"s_cbranch_scc1 L_{tag}_done", "s_mov_b64 exec, 15")
        spin(a, tag, [f"v_cmp_eq_u64 vcc, s[48:49], {vr(T,2)}", "s_nop 1", "s_cmp_eq_u64 vcc, 15"], poll, SLP)
        a("s_mov_b64 exec, -1")
        for i in range(per):
            if i % 4 == 0: a(f"s_add_u32 m0, s52, {i*1024}", f"s_add_u32 s53, s56, {i*1024}")
            a(f"buffer_load_dwordx4 v{LO}, s[36:39], s53 offen offset:{(i%4)*1024} sc1 lds")
        a(f"L_{tag}_done:")
    SLP = opt("slp", "4")[0]
    a("s_setprio 3", "s_cmp_lt_u32 s25, 4", "s_cselect_b32 s3, 1, 0")
    a(kread(0), kread(1), vread(0), f"ds_read_b64 {vr(T+2,2)}, v{T}", "s_waitcnt lgkmcnt(4)")
    a(mfma(S[0], KB[0], Q, "0"))
    a.c("later-needed lane constants, computed in the shadow of the first MFMA")
    a(f"v_lshrrev_b32 v{WOA}, 4, v{LO}", f"v_bfe_u32 v{CK}, v{WOA}, 4, 1", f"v_lshlrev_b32 v{CK}, 1, v{CK}", f"v_and_b32 v{CK+1}, 7, v{WOA}",
      f"v_xor_b32 v{CK}, v{CK}, v{CK+1}", f"v_lshlrev_b32 v{CK}, 4, v{CK}", f"v_lshrrev_b32 v{WOA}, 3, v{WOA}",
      f"v_lshl_add_u32 v{WOA}, v{WOA}, 10, v{CK}", f"v_and_b32 v{T+5}, 0x78, v{T+4}",
      f"v_mov_b32 v{CK}, 0x33800000", f"v_mov_b32 v{CK+1}, 0x57800000", f"v_mov_b32 v60, 0")
    a("s_waitcnt lgkmcnt(0)")
    a(f"v_readfirstlane_b32 s48, v{T+2}", f"v_readfirstlane_b32 s49, v{T+3}")
    a("s_nop 0")
    NT = 64
    WO = 98304
    B1L = "b1late" in OPT
    LATE = (7, 11) if B1L else (7,)
    BAR = (18, 34, 54) if B1L else (10, 18, 34, 54)
    prio_at = {4: 2, 6: 1, 7: 0, 10: 2 if B1L else 1, 11: 1 if B1L else 3, 14: 2, 17: 1, 18: 0, 27: 2, 32: 1, 34: 0, 45: 2, 52: 1, 54: 0, 60: 2, 62: 1, 63: 0}
    for o in OPT:
        if o.startswith("pr="): prio_at.update({int(x.split(":")[0]): int(x.split(":")[1]) for x in o[3:].split(",")})
    SB = opt("sb", "3")[0]
    F1, F2, F3 = opt("ff", "4,8,12")
    P1_, Q1_, P2_, Q2_, P3_, Q3_ = opt("fu", "3,4,6,7,11,12")
    FETCH = [([2], "f1", 1, 8, P1_, Q1_), ([3, 4], "f2", 1, 10, P2_, Q2_), ([5, 6, 7, 8], "f3", 1, 8, P3_, Q3_),
             ([9, 10, 11, 12, 13], "f4", 0, 8, 19, 20), ([14, 15], "f5", 2, 8, 35, 36)]
    PF_ = opt("pf", "16")[0]
    def publish(u, force):
        a("s_cmp_eq_u32 s3, 0", f"s_cbranch_scc1 L_pub{u}")
        if force == "A": a("s_cmp_lt_u32 s25, 4", f"s_cbranch_scc1 L_pubf{u}")
        if force != "all": a("s_getreg_b32 s53, hwreg(HW_REG_IB_STS)", "s_and_b32 s53, s53, 0xc0000f", f"s_cbranch_scc1 L_pub{u}")
        a(f"L_pubf{u}:", f"v_mov_b32 v{T}, s48", f"v_mov_b32 v{T+1}, s49", "s_waitcnt vmcnt(0)")
        stamp(a, 7)
        a("s_mov_b64 exec, 1", f"buffer_store_dwordx2 {vr(T,2)}, v60, s[36:39], s61 offen {WT}", "s_mov_b64 exec, -1", "s_mov_b32 s3, 0", f"L_pub{u}:")
    def barrier(u):
        if u < 30: a("s_cmp_lt_u32 s25, 8", f"s_cbranch_scc1 L_b{u}", "s_waitcnt vmcnt(0)", f"L_b{u}:")
        else: a("s_waitcnt vmcnt(0)")
        a("s_barrier", "s_setprio 3")
        IDL = opt("idle", "99,0")
        if u == IDL[0]: a(f"s_sleep {IDL[1]}")
    for u in range(NT):
        s = S[u % 2]
        if u in prio_at: a(f"s_setprio {prio_at[u]}")
        late = u in LATE
        a("s_waitcnt lgkmcnt(0)")
        a(ex(s, 0, 2))
        if u > 0: a(smf(O, VB[(u-1) % 2] + 4, S[(u-1) % 2] + 8, IDX))
        if u + 1 < NT and not late: a(vread(u + 1))
        a(ex(s, 2, 5))
        if u + 1 < NT and not late:
            a(mfma(S[(u+1) % 2], KB[(u+1) % 2], Q, "0"))
            if u in BAR:
                barrier(u)
                if u == 34: stamp(a, 10)
                if u == 18 and "b12" in OPT: stamp(a, 2)
                if u == 10 and "b12" in OPT: stamp(a, 1)
                cstamp(a, {10: 2, 18: 3, 34: 4, 54: 6}[u])
            if u + 2 < NT and u + 1 not in LATE: a(kread(u + 2))
        a(ex(s, 5, 10))
        a(smf(O, VB[u % 2], s, IDX))
        a(ex(s, 10, 16))
        if u <= PF_:
            if u == 0: a.c("publish this wave's K/V tile as soon as its stores have been acknowledged")
            publish(u, "A" if u == 7 else "all" if u == PF_ else "")
        if late:
            if u == 7: stamp(a, 8)
            barrier(u)
            if u == 7: stamp(a, 9)
            if u == 11 and "b12" in OPT: stamp(a, 1)
            cstamp(a, {7: 1, 11: 2}[u])
            a(kread(u + 1), kread(u + 2), vread(u + 1), "s_waitcnt lgkmcnt(3)", mfma(S[(u+1) % 2], KB[(u+1) % 2], Q, "0"), "s_nop 10")
        if u == SB:
            a.c("second-half tiles go out after the first-half ones, which are needed sooner")
            a("s_sub_u32 s53, s25, 4", "s_cmp_ge_u32 s53, 4", "s_cbranch_scc1 L_nost2", gst, "s_mov_b32 s3, 1", "L_nost2:")
        if u == 19:
            a.c("wave 0 publishes the workgroup's XCC id")
            a("s_cmp_lg_u32 s25, 0", "s_cbranch_scc1 L_xid", f"v_mov_b32 v{T}, s48", f"v_mov_b32 v{T+1}, s49",
              f"v_or_b32 v{T}, s26, v{T}", "s_lshl_b32 s53, s23, 3", "s_add_u32 s53, s53, s10",
              "s_mov_b64 exec, 1", f"buffer_store_dwordx2 {vr(T,2)}, v60, s[36:39], s53 offen {WT}", "s_mov_b64 exec, -1", "L_xid:")
        for (ns, tag, lg, w0, up, ul) in FETCH:
            if u == up: fetch_poll(ns, tag, lg, w0)
            if u == ul: fetch_load(ns, tag, lg, w0)
        if u in (37, 38, 56, 57):
            aa = {37: 0, 38: 1, 56: 2, 57: 3}[u]
            if aa == 0: a.c("Wo tile -> LDS (half-slots 6..9)")
            a("s_lshl_b32 s63, s25, 13", f"s_add_u32 m0, s62, {WO + aa*16384}", f"s_add_u32 s53, s63, {aa*131072}", f"buffer_load_dwordx4 v{WOA}, s[40:43], s53 offen lds")
        if u == 46:
            a.c("XCC ids of the row block's workgroups; bring the O and O-flag lines this wave will write into L2")
            a(f"buffer_load_dwordx2 {vr(T+2,2)}, v{T+5}, s[36:39], s10 offen sc1",
              f"buffer_load_dword v{T+1}, v60, s[36:39], s59 offen",
              f"buffer_load_dword v{T}, v{LO}, s[36:39], s58 offen")
        if u == 55:
            a.c("local hand-off only when all 16 workgroups of this row block run on this XCC")
            a("s_or_b32 s52, s48, s26", "s_mov_b32 s53, s49", f"v_cmp_eq_u64 vcc, s[52:53], {vr(T+2,2)}", "s_nop 1",
              "s_cmp_eq_u64 vcc, -1", "s_cselect_b32 s27, 1, 0")
            if "noloc" in OPT: a("s_mov_b32 s27, 0")
    a("s_nop 1", smf(O, VB[(NT-1) % 2] + 4, S[(NT-1) % 2] + 8, IDX), "s_setprio 3",
      f"v_mov_b32 v{T}, s48", f"v_mov_b32 v{T+1}, s49", f"v_mov_b32 v{T+3}, 0x7f800000", "s_nop 7")
    a.c("safety check of the zero stand-in: 2^-24 <= l <= 2^48 and finite O, else redo with the true row max")
    a(f"v_cmp_le_f32 s[52:53], v{CK}, v{O+8}", f"v_cmp_ge_f32 s[56:57], v{CK+1}, v{O+8}",
      f"v_maximum3_f32 v{CK}, abs(v{O}), abs(v{O+1}), abs(v{O+2})", f"v_maximum3_f32 v{CK}, abs(v{O+3}), abs(v{O+4}), v{CK}",
      f"v_maximum3_f32 v{CK}, abs(v{O+5}), abs(v{O+6}), v{CK}", f"v_maximum3_f32 v{CK}, abs(v{O+7}), v{CK}, v{CK}",
      "s_and_b64 s[52:53], s[52:53], s[56:57]",
      f"v_cmp_gt_f32 vcc, v{T+3}, v{CK}", f"v_rcp_f32 v{T+2}, v{O+8}", "s_and_b64 s[52:53], s[52:53], vcc",
      "s_cmp_eq_u64 s[52:53], -1", "s_cbranch_scc0 L_fallback")
    a("L_finish:")
    stamp(a, 11)
    cstamp(a, 5)
    if "cyc2" in OPT: a("s_memtime s[96:97]", "s_waitcnt lgkmcnt(0)", "s_sub_u32 s96, s96, s98", "s_add_u32 s66, s82, s96", "s_addc_u32 s67, s83, 0")
    for r in range(4): a(f"v_pk_mul_f32 {vr(O+2*r,2)}, {vr(O+2*r,2)}, {vr(T+2,2)} op_sel_hi:[1,0]")
    for r in range(4): a(f"v_cvt_pk_bf16_f32 v{O+12+r}, v{O+2*r}, v{O+2*r+1}")
    a("s_cmp_eq_u32 s27, 1", "s_cbranch_scc1 L_ostore_local")
    a(f"buffer_store_dwordx4 {vr(O+12,4)}, v{LO}, s[36:39], s58 offen {WT}", "s_waitcnt vmcnt(0)",
      "s_mov_b64 exec, 1", f"buffer_store_dwordx2 {vr(T,2)}, v60, s[36:39], s59 offen {WT}", "s_mov_b64 exec, -1", "s_branch L_ostored")
    a("L_ostore_local:")
    a(f"buffer_store_dwordx4 {vr(O+12,4)}, v{LO}, s[36:39], s58 offen", "s_waitcnt vmcnt(0)",
      "s_mov_b64 exec, 1", f"buffer_store_dwordx2 {vr(T,2)}, v60, s[36:39], s59 offen", "s_mov_b64 exec, -1")
    a("L_ostored:")
    stamp(a, 12)
    a("s_barrier")
    if TS:
        a("s_cmp_lt_u32 s25, 8", "s_cbranch_scc1 L_ts_p3", ["s_barrier"]*(5 if "g4" in OPT else 3))
        if "allw" in OPT:
            for w in range(8, 16): ts_flush(a, w, w, f"w{w}")
        else:
            ts_flush(a, 1, 8, "w8")
            ts_flush(a, 2, 15, "w15")
        a("s_endpgm", "L_ts_p3:")
    else:
        a("s_cmp_ge_u32 s25, 8", "s_cbranch_scc1 L_done")

    ACC3 = [0, 16]; OFR = 32; WB = [96, 104, 112]; A3 = [120, 122]; VO = 116; PA = 123; L = 118; PF = 124
    opoll = [f"buffer_load_dwordx4 {vr(PF,4)}, v{LO}, s[36:39], s11 offen sc1"]
    ocond = [f"v_cmp_eq_u64 vcc, s[48:49], {vr(PF,2)}", f"v_cmp_eq_u64 s[52:53], s[48:49], {vr(PF+2,2)}", "s_nop 1",
             "s_and_b64 vcc, vcc, s[52:53]", "s_cmp_eq_u64 vcc, -1"]
    a("s_cmp_lt_u32 s25, 4", "s_cbranch_scc1 L_p3c")
    a("s_and_b32 s56, s25, 3", "s_lshl_b32 s56, s56, 14")
    a("s_barrier")
    for i in range(16):
        a(f"s_add_u32 m0, s56, {i*1024}", f"s_add_u32 s53, s12, {(16+i)*1024}", f"buffer_load_dwordx4 v{LO}, s[36:39], s53 offen sc1 lds")
    G3 = 4 if "g4" in OPT else 8
    for x in range(16 - G3, -1, -G3): a(f"s_waitcnt vmcnt({x})", "s_barrier")
    if "wb2" in OPT:
        a("s_cmp_lg_u32 s25, 4", "s_cbranch_scc1 L_nowb", "buffer_wbl2 sc1", "L_nowb:")
    if "allw" in OPT:
        for w in range(4, 8): ts_flush(a, w, w, f"w{w}")
    a("s_endpgm")
    a("L_p3c:")
    a(opoll)
    a(f"v_lshrrev_b32 v6, 4, v{LO}")
    a(f"v_lshrrev_b32 v4, 5, v6", f"v_bfe_u32 v5, v6, 2, 2", "v_lshl_add_u32 v4, v4, 2, v5", "v_lshlrev_b32 v4, 7, v4",
      f"v_and_b32 v5, 1, v6", "v_lshl_add_u32 v4, v5, 6, v4", f"v_bfe_u32 v5, v6, 4, 1", "v_lshl_add_u32 v4, v5, 4, v4",
      f"v_bfe_u32 v5, v6, 3, 1", "v_lshl_add_u32 v4, v5, 5, v4", f"v_bfe_u32 v5, v6, 1, 1", f"v_lshl_add_u32 v4, v5, 3, v4",
      f"v_add_u32 v{A3[0]}, {WO}, v4", f"v_xor_b32 v{A3[1]}, 32, v{A3[0]}")
    a("s_lshl_b32 s56, s25, 14", f"v_add_u32 v{PA}, s56, v{LO}")
    def reads3(hd, buf):
        out = []
        for cb in range(2):
            for j in range(2):
                out.append(f"ds_read_b64_tr_b16 {vr(buf + cb*4 + j*2, 2)}, v{A3[cb]} offset:{hd*2048 + j*1024}")
        return out
    a(reads3(0, WB[0]), reads3(1, WB[1]))
    spin(a, "o", ocond, opoll)
    stamp(a, 13)
    for i in range(16):
        if i % 4 == 0: a(f"s_add_u32 s53, s12, {i*1024}")
        a(f"buffer_load_dwordx4 {vr(OFR + i*4, 4)}, v{LO}, s[36:39], s53 offen offset:{(i%4)*1024} sc1")
    a("s_barrier")
    lq = ["W0"]*4 + ["W1"]*4
    def lwait(need):
        nonlocal lq
        idx = [i for i, x in enumerate(lq) if x in need]
        if not idx: return None
        keep = len(lq) - 1 - max(idx)
        lq = lq[len(lq) - keep:]
        return keep
    def oread(n):
        lq.append(f"O{n}")
        return f"ds_read_b128 {vr(OFR + (n-16)*4, 4)}, v{PA} offset:{(n-16)*1024}"
    for n in range(32):
        cur = WB[n % 3]
        if n >= 16 and n % G3 == 0:
            if "p3ts" in OPT and n == 16: stamp(a, 2); lq = []
            a("s_barrier")
            if "p3ts" in OPT and n == 32 - G3: stamp(a, 3); lq = []
            for i in range(2): a(oread(n + i))
        kw = lwait({f"W{n}", f"O{n}"})
        w = []
        if n < 16: w.append(f"vmcnt({15 - n})")
        if kw is not None: w.append(f"lgkmcnt({kw})")
        if w: a("s_waitcnt " + " ".join(w))
        if "p3ts" in OPT and n in (0, 31): stamp(a, {0: 1, 31: 4}[n]); lq = []
        rd = reads3(n + 2, WB[(n+2) % 3]) if n + 2 < 32 else []
        for cb in range(2):
            a(mfma(ACC3[cb], cur + cb*4, OFR + (n%16)*4, "0" if n == 0 else ACC3[cb]))
            if rd: a(rd[2*cb:2*cb+2]); lq.extend([f"W{n+2}"]*2)
            if cb == 0 and n >= 16 and (n % G3) + 2 < G3: a(oread(n + 2))
        assert len(lq) <= 15, lq
    a(f"v_lshrrev_b32 v{L}, 4, v{LO}")
    PA = 117
    a.c("transpose through LDS (slot 1 is free) so that every store writes whole 128-byte lines")
    TA_ = 119; TB_ = 120
    a(f"v_and_b32 v{TA_}, 31, v{L}", f"v_lshrrev_b32 v{PA}, 5, v{L}", f"v_lshlrev_b32 v{PA}, 2, v{PA}", f"v_and_b32 v{TB_}, 7, v{L}",
      f"v_xor_b32 v{PA}, v{PA}, v{TB_}", f"v_lshlrev_b32 v{PA}, 4, v{PA}", f"v_lshl_add_u32 v{TA_}, v{TA_}, 7, v{PA}",
      "s_mov_b32 s52, s56", f"v_add_u32 v{TA_}, s52, v{TA_}",
      f"v_lshrrev_b32 v{PA}, 3, v{L}", f"v_xor_b32 v{VO}, v{PA}, v{TB_}", f"v_lshlrev_b32 v{VO}, 4, v{VO}", f"v_lshl_add_u32 v{VO}, v{PA}, 7, v{VO}",
      f"v_add_u32 v{VO}, s52, v{VO}",
      f"v_lshlrev_b32 v{TB_}, 4, v{TB_}", f"v_lshl_add_u32 v{TB_}, v{PA}, 11, v{TB_}")
    for cb in range(2):
        for q in range(2):
            c = cb*2 + q
            t = 32 + c*4
            for r in range(4): a(f"v_cvt_pk_bf16_f32 v{t+r}, v{ACC3[cb]+q*8+2*r}, v{ACC3[cb]+q*8+2*r+1}")
            if c: a(f"v_xor_b32 v{PA}, {c*16}, v{TA_}")
            a(f"ds_write_b128 v{PA if c else TA_}, {vr(t,4)}")
    a("s_waitcnt lgkmcnt(0)")
    for i in range(4): a(f"ds_read_b128 {vr(48 + i*4, 4)}, v{VO} offset:{i*1024}")
    for i in range(4):
        a(f"s_add_u32 s53, s13, {i*16384}", f"s_waitcnt lgkmcnt({3-i})", f"buffer_store_dwordx4 {vr(48 + i*4, 4)}, v{TB_}, s[44:47], s53 offen" + (" sc1" if "osc1" in OPT else " nt" if "ont" in OPT else " sc0 sc1" if "osys" in OPT else ""))
    if TS:
        if "p3ts" in OPT: stamp(a, 5)
        a("s_waitcnt vmcnt(0)")
        stamp(a, 14)
        ts_flush(a, 0, 0, "w0")
        if "allw" in OPT:
            for w in range(1, 4): ts_flush(a, w, w, f"w{w}")
    a("L_done:", "s_endpgm")

    a("L_fallback:")
    M = T + 2
    a("s_lshr_b32 s52, s25, 3", "s_lshl_b32 s52, s52, 13", "s_add_u32 s52, s52, s54",
      f"v_mov_b32 v{M}, 0xff800000", "s_mov_b32 s63, 0",
      f"v_sub_u32 v{T+3}, v{VA[0]}, v{KA[0]}", f"v_add_u32 v{T+3}, v{T+3}, v{LO}")
    def fb_addr():
        return ["s_lshr_b32 s53, s63, 2", "s_lshl_b32 s53, s53, 14", "s_and_b32 s56, s63, 3", "s_lshl_b32 s56, s56, 11",
                "s_add_u32 s53, s53, s56", "s_add_u32 s53, s53, s52"]
    a("L_fb1:", fb_addr(),
      f"buffer_load_dwordx4 {vr(KB[0],4)}, v{LO}, s[36:39], s53 offen sc1", "s_waitcnt vmcnt(0)",
      mfma(S[0], KB[0], Q, "0"), "s_nop 15")
    for r in range(8): a(f"v_max3_f32 v{M}, v{S[0]+2*r}, v{S[0]+2*r+1}, v{M}")
    a("s_add_u32 s63, s63, 1", "s_cmp_lg_u32 s63, 64", "s_cbranch_scc1 L_fb1")
    a(f"v_mov_b32 v{T}, v{M}", "s_nop 1", f"v_permlane32_swap_b32 v{M}, v{T}", "s_nop 1", f"v_max_f32 v{M}, v{M}, v{T}", f"v_sub_f32 v{M}, 0, v{M}")
    for r in range(16): a(f"v_mov_b32 v{CM+r}, v{M}")
    for r in range(16): a(f"v_mov_b32 v{O+r}, 0")
    a("s_mov_b32 s63, 0")
    a("L_fb2:", fb_addr(),
      f"buffer_load_dwordx4 {vr(KB[0],4)}, v{LO}, s[36:39], s53 offen sc1", "s_mov_b64 exec, s[50:51]",
      f"buffer_load_dwordx4 {vr(VB[0],4)}, v{T+3}, s[36:39], s53 offen sc1",
      f"buffer_load_dwordx4 {vr(VB[0]+4,4)}, v{T+3}, s[36:39], s53 offen offset:512 sc1", "s_mov_b64 exec, -1",
      "s_waitcnt vmcnt(0)", mfma(S[0], KB[0], Q, CM), "s_nop 15")
    a(ex(S[0], 0, 16), "s_nop 1", smf(O, VB[0], S[0], IDX), smf(O, VB[0] + 4, S[0] + 8, IDX))
    a("s_add_u32 s63, s63, 1", "s_cmp_lg_u32 s63, 64", "s_cbranch_scc1 L_fb2")
    a("s_nop 15", f"v_rcp_f32 v{T+2}, v{O+8}", f"v_mov_b32 v{T}, s48", f"v_mov_b32 v{T+1}, s49", "s_branch L_finish", "L_code_end:")
    a.l.append(f""".section .rodata,"a"
.p2align 6
.amdhsa_kernel {k}
  .amdhsa_next_free_vgpr 128
  .amdhsa_next_free_sgpr {102 if TS else 68}
  .amdhsa_accum_offset 128
  .amdhsa_group_segment_fixed_size 0
  .amdhsa_kernarg_size 72
  .amdhsa_user_sgpr_count 2
  .amdhsa_user_sgpr_kernarg_segment_ptr 1
  .amdhsa_system_sgpr_workgroup_id_x 1
.end_amdhsa_kernel""")

a = Asm()
a.l += ["; MHA x2 (S=2048, D=512, H=32), one launch: qkv projection -> attention -> output projection",
        "; @launch grid=(256,1,1) block=(1024,1,1) lds=163840",
        '.amdgcn_target "amdgcn-amd-amdhsa--gfx950"', ".text"]
gen(a)
print(a.text())
```

```python
import sys, math, struct

NAME = "concat_heads__mha_block__mha_block__prompt"
OPT = set(sys.argv[1:]) | {"pub0", "stmid", "tx67", "b0late"}
if "noc3" in OPT: pass
elif not any(o.startswith("stg=") for o in OPT): OPT |= {"c3=3"}
else: OPT |= {"nopf"}
if not OPT & {"tx", "a3", "nopf"}: OPT |= {"tx", "tw", "early", "rot", "rotb", "c3r"}
NWS = 5 if "w5" in OPT else (4 if "w4" in OPT else 3)
TS = "ts" in OPT
WT = "sc0 sc1" if "sys" in OPT else "sc1 nt" if "wtnt" in OPT else "sc1"
XNT = " nt" if "xnt" in OPT else ""
WNT = " nt" if "wnt" in OPT else ""
KV_OFF = 0
OF_OFF = 8 << 20
FKV_OFF = 12 << 20
FO_OFF = (12 << 20) + 65536
XID_OFF = (12 << 20) + 131072
WS_USED = 13 << 20
QSCALE = 0.25 * math.log2(math.e)
SPIN_MAX = 1 << 18
def f32bits(x): return struct.unpack("<I", struct.pack("<f", x))[0]

class Asm:
    def __init__(self): self.l = []
    def __call__(self, *lines):
        for x in lines:
            if isinstance(x, (list, tuple)): self(*x)
            else: self.l.append("    " + x if not x.endswith(":") else x)
    def c(self, s): self.l.append("    ; " + s)
    def text(self): return "\n".join(self.l)

def vr(b, n): return f"v[{b}:{b+n-1}]"
def mfma(d, a, b, c):
    cs = vr(c, 16) if isinstance(c, int) else c
    return f"v_mfma_f32_32x32x16_bf16 {vr(d,16)}, {vr(a,4)}, {vr(b,4)}, {cs}"
def smf(d, a, b, idx): return f"v_smfmac_f32_32x32x32_bf16 {vr(d,16)}, {vr(a,4)}, {vr(b,8)}, v{idx}"

P1TS_DONE = False
def stamp(a, j):
    if "p1ts" in OPT and P1TS_DONE and j >= 7: return
    if "cyc3" in OPT: return
    if TS: a(f"s_memrealtime s[{64+2*j}:{65+2*j}]", "s_waitcnt lgkmcnt(0)")
def cstamp(a, j):
    if "cyc3" in OPT and not ("ends" in OPT and j not in (0, 5)):
        if j == 0: a("s_memtime s[98:99]", "s_waitcnt lgkmcnt(0)")
        else: a("s_memtime s[96:97]", "s_waitcnt lgkmcnt(0)", "s_sub_u32 s96, s96, s98", f"s_add_u32 s{64+2*j}, s64, s96", f"s_addc_u32 s{65+2*j}, s65, 0")
def ts_init(a):
    if TS:
        for j in range(15): a(f"s_mov_b64 s[{64+2*j}:{65+2*j}], 0")
        a("s_mov_b32 s94, 0x5151", "s_mov_b32 s95, 0")
def ts_flush(a, kidx, wave, tag):
    if not TS: return
    a(f"s_cmp_lg_u32 s25, {wave}", f"s_cbranch_scc1 TS_skip_{tag}")
    a("s_sleep 127", "s_sleep 127", "s_sleep 127")
    a("s_mov_b64 exec, 1", f"s_lshl_b32 s96, s2, 7", f"s_add_u32 s96, s96, {(32<<20) + kidx*256*128}", "v_mov_b32 v1, s96")
    for j in range(16):
        a(f"v_mov_b32 v2, s{64+2*j}", f"v_mov_b32 v3, s{65+2*j}", f"global_store_dwordx2 v1, v[2:3], s[20:21] offset:{j*8}", "s_nop 1")
    a("s_waitcnt vmcnt(0)", "s_mov_b64 exec, -1", f"TS_skip_{tag}:")

XRING = 0
WRING = 98304
QX = 65536
TAGL = 163832
EREG = 131072

def spin(a, name, cond_lines, reload_lines, slp=1):
    a(f"s_mov_b32 s63, {SPIN_MAX}", f"L_{name}_chk:", "s_waitcnt vmcnt(0)", cond_lines, f"s_cbranch_scc1 L_{name}_ok", f"s_sleep {slp}",
      reload_lines, "s_sub_u32 s63, s63, 1", "s_cmp_lg_u32 s63, 0", f"s_cbranch_scc1 L_{name}_chk", "s_waitcnt vmcnt(0)", f"L_{name}_ok:")

def gen(a):
    k = NAME + "_kernel"
    a.l += [f".globl {k}", ".p2align 8", f".type {k},@function", f"{k}:"]
    a("s_cmp_ge_u32 s2, 256", "s_cbranch_scc1 L_done")
    a("s_load_dwordx16 s[4:19], s[0:1], 0", "s_load_dwordx2 s[20:21], s[0:1], 64")
    ts_init(a)
    if TS: a("s_memrealtime s[64:65]")
    a("s_memrealtime s[48:49]")
    a("s_and_b32 s52, s2, 7", "s_lshr_b32 s53, s2, 3",
      "s_lshr_b32 s22, s52, 2",
      "s_and_b32 s23, s53, 15",
      "s_and_b32 s24, s52, 3", "s_lshl_b32 s24, s24, 1", "s_lshr_b32 s53, s53, 4", "s_add_u32 s24, s24, s53")
    a("v_lshrrev_b32 v1, 6, v0", "v_and_b32 v0, 63, v0", "s_getreg_b32 s26, hwreg(HW_REG_XCC_ID)", "v_readfirstlane_b32 s25, v1")
    a("s_and_b32 s26, s26, 7", "s_lshl_b32 s62, s25, 10")
    a("s_waitcnt lgkmcnt(0)")
    WSB = int(([o for o in OPT if o.startswith("wsb=")] or ["wsb=0"])[0][4:]) << 20
    if WSB: a(f"s_add_u32 s20, s20, {WSB}", "s_addc_u32 s21, s21, 0")
    a("s_cmp_eq_u32 s22, 0",
      "s_cselect_b32 s4, s4, s10", "s_cselect_b32 s5, s5, s11", "s_cselect_b32 s6, s6, s12", "s_cselect_b32 s7, s7, s13",
      "s_cselect_b32 s8, s8, s14", "s_cselect_b32 s9, s9, s15")
    a("s_lshl_b32 s52, s24, 18", "s_add_u32 s28, s4, s52", "s_addc_u32 s29, s5, 0", "s_and_b32 s29, s29, 0xffff",
      "s_mov_b32 s30, 262144", "s_mov_b32 s31, 0x20000")
    a("s_mov_b32 s32, s6", "s_and_b32 s33, s7, 0xffff", f"s_mov_b32 s34, {512*3072}", "s_mov_b32 s35, 0x20000")
    a("s_cmp_ge_u32 s25, 8", "s_cbranch_scc1 L_loader")

    O = 0; Q = 16; S = [20, 36]; KB = [52, 56]; VB = [100, 108]; IDX = 116; KA = [117, 118, 98]; VA = [119, 120, 99]; LO = 121; T = 122
    CM = 80
    WOA = 61; CK = 62

    def common_init(a):
        a("s_mov_b32 s36, s20", "s_and_b32 s37, s21, 0xffff", f"s_mov_b32 s38, {WS_USED}", "s_mov_b32 s39, 0x20000")
        a("s_and_b32 s52, s23, 7", "s_lshl_b32 s52, s52, 7", "s_add_u32 s40, s8, s52", "s_addc_u32 s41, s9, 0", "s_and_b32 s41, s41, 0xffff",
          f"s_sub_u32 s42, {512*1024}, s52", "s_mov_b32 s43, 0x20000")
        a("s_mov_b32 s44, s16", "s_and_b32 s45, s17, 0xffff", f"s_mov_b32 s46, {2048*2048}", "s_mov_b32 s47, 0x20000")
        a("s_mov_b32 s50, 0xffff", "s_mov_b32 s51, 0xffff")
        a("s_lshl_b32 s54, s22, 4", "s_add_u32 s54, s54, s23", "s_lshl_b32 s54, s54, 18", "s_lshl_b32 s55, s24, 15", "s_add_u32 s55, s55, s54")
        a(f"v_lshlrev_b32 v{LO}, 4, v0",
          "s_lshr_b32 s56, s25, 3", "s_lshl_b32 s53, s56, 13",
          f"v_add_u32 v{KA[0]}, s53, v{LO}", f"v_add_u32 v{KA[1]}, 0x10000, v{KA[0]}", f"v_add_u32 v{KA[2]}, 0x20000, v{KA[0]}",
          "v_and_b32 v13, 15, v0", "v_lshlrev_b32 v13, 4, v13", "v_lshrrev_b32 v14, 5, v0", "v_lshl_add_u32 v13, v14, 8, v13",
          "s_add_u32 s53, s53, 1024", f"v_add_u32 v{VA[0]}, s53, v13", f"v_add_u32 v{VA[1]}, 0x10000, v{VA[0]}", f"v_add_u32 v{VA[2]}, 0x20000, v{VA[0]}",
          f"v_mov_b32 v{IDX}, 0xdddddddd")
        a("v_and_b32 v13, 27, v0", "v_cmp_eq_u32 vcc, 16, v13", "v_mov_b32 v14, 0x3f803f80",
          f"v_mov_b32 v{T}, {TAGL}", f"v_lshlrev_b32 v{T+4}, 3, v0", "v_cndmask_b32 v13, 0, v14, vcc")
        for r in range(16): a(f"v_mov_b32 v{VB[0]+r}, v13")
        a("s_and_b32 s53, s25, 7", "s_lshl_b32 s58, s24, 3", "s_add_u32 s58, s58, s53", "s_lshl_b32 s57, s22, 6", "s_add_u32 s58, s58, s57",
          "s_lshl_b32 s58, s58, 5", "s_lshl_b32 s53, s23, 1", "s_add_u32 s53, s53, s56", "s_add_u32 s58, s58, s53",
          "s_lshl_b32 s59, s58, 3", f"s_add_u32 s59, s59, {FO_OFF}", "s_lshl_b32 s58, s58, 10", f"s_add_u32 s58, s58, {OF_OFF}")
        a("s_lshr_b32 s60, s54, 7", f"s_add_u32 s60, s60, {FKV_OFF}", "s_lshl_b32 s61, s24, 8", "s_add_u32 s61, s61, s60",
          "s_bfe_u32 s53, s25, 0x10002", "s_lshl_b32 s53, s53, 7", "s_add_u32 s61, s61, s53",
          "s_and_b32 s53, s25, 3", "s_lshl_b32 s53, s53, 3", "s_add_u32 s61, s61, s53")
        a("s_lshl_b32 s10, s22, 3", "s_add_u32 s10, s10, s24", "s_lshl_b32 s10, s10, 7", f"s_add_u32 s10, s10, {XID_OFF}")
        a("s_lshl_b32 s52, s24, 3", "s_lshr_b32 s53, s23, 3", "s_lshl_b32 s53, s53, 2", "s_add_u32 s52, s52, s53",
          "s_add_u32 s53, s57, s52", "s_lshl_b32 s11, s53, 8", f"s_add_u32 s11, s11, {FO_OFF}",
          "s_and_b32 s12, s25, 3", "s_add_u32 s52, s52, s12", "s_add_u32 s53, s53, s12", "s_lshl_b32 s12, s53, 15", f"s_add_u32 s12, s12, {OF_OFF}",
          "s_lshl_b32 s13, s22, 10", "s_and_b32 s53, s23, 7", "s_lshl_b32 s53, s53, 7", "s_add_u32 s13, s13, s53",
          "s_lshl_b32 s53, s52, 16", "s_add_u32 s13, s13, s53")

    XA = [1, 2]; XB = [3, 4]; WA = [5, 6]; VK = 96; VV = 97; QA = 123
    ACC = 16
    FXR = [64, 68]; FW = 72
    def touches():
        if "tx" in OPT:
            a.c("HBM/L2 warm-up: waves 0,1 touch 8 KB each of this workgroup's share of the X block")
            if "tx67" in OPT:
                a("s_and_b32 s53, s25, 6", "s_mov_b32 s52, s23", "s_cmp_eq_u32 s53, 0", "s_cbranch_scc1 L_tx_own",
                  "s_cmp_lg_u32 s53, 6", "s_cbranch_scc1 L_tx_done", "s_sub_u32 s52, s23, 2", "s_lshr_b32 s53, s52, 1", "s_cmp_lg_u32 s53, 3", "s_cbranch_scc1 L_tx_done",
                  "s_branch L_tx_go", "L_tx_own:", "s_lshr_b32 s53, s52, 1", "s_cmp_eq_u32 s53, 3", "s_cbranch_scc1 L_tx_done", "L_tx_go:",
                  "s_lshl_b32 s52, s52, 14", "s_and_b32 s53, s25, 1", "s_lshl_b32 s53, s53, 13", "s_add_u32 s52, s52, s53",
                  "v_lshlrev_b32 v13, 7, v0", "buffer_load_dword v125, v13, s[28:31], s52 offen" + XNT, "L_tx_done:")
            else:
                a("s_cmp_ge_u32 s25, 2", "s_cbranch_scc1 L_tx_done",
                  "s_lshl_b32 s52, s23, 14", "s_lshl_b32 s53, s25, 13", "s_add_u32 s52, s52, s53",
                  "v_lshlrev_b32 v13, 7, v0", "buffer_load_dword v125, v13, s[28:31], s52 offen" + XNT, "L_tx_done:")
        if "tw" in OPT:
            a.c("waves 2,3 touch 6 KB each of W (1/128 of the matrix per workgroup)")
            a("s_sub_u32 s52, s25, 2", "s_cmp_ge_u32 s52, 2", "s_cbranch_scc1 L_tw_done",
              "s_lshl_b32 s53, s24, 4", "s_add_u32 s53, s53, s23", "s_lshl_b32 s53, s53, 1", "s_add_u32 s52, s52, s53",
              "s_mul_i32 s52, s52, 6144", "v_cmp_gt_u32 vcc, 48, v0", "v_lshlrev_b32 v13, 7, v0", "s_and_saveexec_b64 s[56:57], vcc",
              "buffer_load_dword v125, v13, s[32:35], s52 offen", "s_mov_b64 exec, -1", "L_tw_done:")
        if "twf" in OPT:
            a.c("waves 2..7 touch 8 KB each of W (1/32 of the matrix per workgroup)")
            a("s_sub_u32 s52, s25, 2", "s_cmp_ge_u32 s52, 6", "s_cbranch_scc1 L_twf_done",
              "s_and_b32 s53, s24, 1", "s_lshl_b32 s53, s53, 4", "s_add_u32 s53, s53, s23", "s_mul_i32 s53, s53, 6", "s_add_u32 s52, s52, s53",
              "s_lshl_b32 s52, s52, 13", "v_lshlrev_b32 v13, 7, v0",
              "buffer_load_dword v125, v13, s[32:35], s52 offen", "L_twf_done:")
    def touchX(c0, nc, wave, tag):
        a(f"s_cmp_lg_u32 s25, {wave}", f"s_cbranch_scc1 L_{tag}_done")
        if nc == 2: a("v_lshrrev_b32 v13, 1, v0", "v_and_b32 v14, 1, v0")
        elif nc == 4: a("v_lshrrev_b32 v13, 2, v0", "v_and_b32 v14, 3, v0")
        else: a("v_mul_u32_u24 v13, 43, v0", "v_lshrrev_b32 v13, 7, v13", "v_mul_u32_u24 v14, 3, v13", "v_sub_u32 v14, v0, v14")
        a("v_lshlrev_b32 v13, 10, v13", "v_lshl_add_u32 v13, v14, 7, v13", "s_lshl_b32 s52, s23, 14", f"s_add_u32 s52, s52, {c0*128}",
          f"v_cmp_gt_u32 vcc, {16*nc}, v0", "s_nop 1", "s_and_saveexec_b64 s[56:57], vcc",
          "buffer_load_dword v125, v13, s[28:31], s52 offen" + XNT, "s_mov_b64 exec, -1", f"L_{tag}_done:")
    def touchW(c0, nc, wave, tag):
        a(f"s_cmp_lg_u32 s25, {wave}", f"s_cbranch_scc1 L_{tag}_done",
          "s_lshl_b32 s52, s24, 4", "s_add_u32 s52, s52, s23", f"s_mul_i32 s52, s52, {nc*1536}", f"s_add_u32 s52, s52, {c0*196608}",
          f"v_cmp_gt_u32 vcc, {12*nc}, v0", "v_lshlrev_b32 v13, 7, v0", "s_nop 0", "s_and_saveexec_b64 s[56:57], vcc",
          "buffer_load_dword v125, v13, s[32:35], s52 offen" + WNT, "s_mov_b64 exec, -1", f"L_{tag}_done:")
    if "tlb" in OPT:
        a.c("translation warm-up: wave 0 of workgroup i touches one of the pages the kernel will need")
        a("s_cmp_lg_u32 s25, 0", "s_cbranch_scc1 L_tlb_done",
          "s_and_b32 s52, s23, 7", "v_mov_b32 v13, 0",
          "s_cmp_eq_u32 s52, 0", "s_cbranch_scc1 L_tlb0", "s_cmp_eq_u32 s52, 1", "s_cbranch_scc1 L_tlb1",
          "s_cmp_eq_u32 s52, 2", "s_cbranch_scc1 L_tlb2", "s_cmp_eq_u32 s52, 3", "s_cbranch_scc1 L_tlb3",
          "s_cmp_eq_u32 s52, 4", "s_cbranch_scc1 L_tlb4")
        a("s_lshl_b32 s53, s22, 22", "s_lshr_b32 s56, s23, 3", "s_lshl_b32 s56, s56, 21", "s_add_u32 s53, s53, s56",
          "s_lshl_b32 s56, s22, 21", f"s_add_u32 s56, s56, {OF_OFF}",
          "s_cmp_eq_u32 s52, 6", "s_cselect_b32 s53, s56, s53", "s_cmp_eq_u32 s52, 7", f"s_cselect_b32 s53, {FKV_OFF}, s53",
          "v_mov_b32 v13, s53", "global_load_dword v125, v13, s[20:21]", "s_branch L_tlb_done")
        a("L_tlb0:", "buffer_load_dword v125, v13, s[28:31], 0 offen", "s_branch L_tlb_done")
        a("L_tlb1:", "buffer_load_dword v125, v13, s[32:35], 0 offen", "s_branch L_tlb_done")
        a("L_tlb2:", "global_load_dword v125, v13, s[8:9]", "s_branch L_tlb_done")
        a("L_tlb3:", "s_lshr_b32 s53, s24, 2", "s_lshl_b32 s53, s53, 21", "v_mov_b32 v13, s53", "global_load_dword v125, v13, s[16:17]", "s_branch L_tlb_done")
        a("L_tlb4:", "global_load_dword v125, v13, s[18:19] sc1", "L_tlb_done:")
    if "cpf" in OPT:
        a.c("pull the kernel's code into L2 (waves 4..7, 64 lines each)")
        a("s_sub_u32 s52, s25, 4", "s_cmp_ge_u32 s52, 4", "s_cbranch_scc1 L_cpf_done",
          "s_getpc_b64 s[56:57]", "L_cpf_pc:", "s_lshl_b32 s52, s52, 13", "v_lshlrev_b32 v13, 7, v0", "v_add_u32 v13, s52, v13",
          "v_cmp_gt_u32 vcc, L_code_end-L_cpf_pc, v13", "s_nop 1", "s_and_saveexec_b64 s[52:53], vcc", "s_cbranch_execz L_cpf_skip",
          "global_load_dword v125, v13, s[56:57]", "L_cpf_skip:", "s_mov_b64 exec, -1", "L_cpf_done:")
    STG = [o for o in OPT if o.startswith("stg=")]
    stg = [[int(y) for y in x] for x in STG[0][4:].split(",")] if STG else [[], [], [], [], []]
    def stouch(chunks, tag):
        if not chunks: return
        lo, hi = min(chunks), max(chunks)
        a(f"s_sub_u32 s52, s25, {lo}", f"s_cmp_gt_u32 s52, {hi-lo}", f"s_cbranch_scc1 L_{tag}",
          "s_lshl_b32 s52, s23, 14", "s_lshl_b32 s53, s25, 7", "s_add_u32 s52, s52, s53", "v_lshlrev_b32 v8, 10, v0", "s_mov_b64 exec, 0xffff",
          "buffer_load_dword v125, v8, s[28:31], s52 offen",
          "s_and_b32 s52, s24, 1", "s_lshl_b32 s52, s52, 4", "s_add_u32 s52, s52, s23", "s_mul_i32 s52, s52, 6144", "s_mul_i32 s53, s25, 196608",
          "s_add_u32 s52, s52, s53", "s_mov_b64 exec, -1", "v_lshlrev_b32 v8, 7, v0", "s_mov_b32 exec_hi, 0xffff",
          "buffer_load_dword v125, v8, s[32:35], s52 offen", "s_mov_b64 exec, -1", f"L_{tag}:")
    stouch(stg[0], "stg0")
    if "early" in OPT: touches()
    a("s_barrier")
    if "early" not in OPT and "late" not in OPT: touches()
    if "a3" in OPT:
        touchX(2, 3, 0, "xa3"); touchW(2, 3, 1, "wa3")
    if "wa3" in OPT: touchW(2, 3, 2, "wa3")
    if "wa2" in OPT: touchW(2, 2, 2, "wa2")
    if "wa13" in OPT: touchW(1, 3, 2, "wa13")
    common_init(a)
    a("v_and_b32 v13, 15, v0", "v_lshrrev_b32 v14, 4, v0",
      "v_bfe_u32 v15, v0, 1, 3", "v_xor_b32 v15, v15, v14", "v_lshlrev_b32 v15, 4, v15", "v_lshl_add_u32 v15, v13, 7, v15",
      "s_lshl_b32 s52, s25, 12",
      f"v_add_u32 v{XA[0]}, s52, v15", f"v_xor_b32 v{XA[1]}, 64, v{XA[0]}",
      f"v_add_u32 v{XB[0]}, 0x10000, v{XA[0]}", f"v_add_u32 v{XB[1]}, 0x10000, v{XA[1]}")
    a("v_bfe_u32 v15, v0, 2, 2", "v_lshl_add_u32 v13, v14, 3, v15", "v_lshlrev_b32 v13, 6, v13",
      "v_bfe_u32 v15, v0, 4, 1", "v_lshl_add_u32 v13, v15, 5, v13", "v_and_b32 v15, 3, v0", "v_lshl_add_u32 v13, v15, 3, v13",
      f"v_add_u32 v{WA[0]}, {WRING}, v13", f"v_xor_b32 v{WA[1]}, 32, v{WA[0]}")
    a("s_and_b32 s52, s25, 3", "s_lshl_b32 s52, s52, 11", "s_lshr_b32 s53, s25, 2", "s_lshl_b32 s53, s53, 14", "s_add_u32 s52, s52, s53",
      f"v_add_u32 v{VK}, s52, v{LO}",
      "v_and_b32 v13, 15, v0", "v_lshlrev_b32 v13, 4, v13", "v_lshrrev_b32 v14, 5, v0", "v_lshl_add_u32 v13, v14, 8, v13",
      "v_bfe_u32 v15, v0, 4, 1", "v_lshl_add_u32 v13, v15, 13, v13", "s_add_u32 s52, s52, 1024", f"v_add_u32 v{VV}, s52, v13")
    a(f"s_add_u32 s52, s62, {QX}", f"v_add_u32 v{QA}, s52, v{LO}", "s_add_u32 s0, s55, 8192")
    a("v_lshlrev_b32 v7, 7, v0")
    lq1 = []
    def xread(n, th):
        c, s2 = divmod(n, 2); slot = c % 3
        lq1.append(f"X{th}")
        if slot < 2: return f"ds_read_b128 {vr(FXR[th],4)}, v{XA[s2]} offset:{slot*32768 + th*2048}"
        return f"ds_read_b128 {vr(FXR[th],4)}, v{XB[s2]} offset:{th*2048}"
    def wread(n, b):
        c, s2 = divmod(n, 2); seg, hd = divmod(b, 2)
        lq1.extend([f"W{b}"]*2)
        return [f"ds_read_b64_tr_b16 {vr(FW + b*4 + j*2, 2)}, v{WA[hd]} offset:{(c % NWS)*12288 + seg*4096 + s2*2048 + j*256}" for j in range(2)]
    def lw1(need):
        idx = [i for i, x in enumerate(lq1) if x in need]
        if not idx: return []
        keep = len(lq1) - 1 - max(idx)
        del lq1[:len(lq1) - keep]
        return [f"s_waitcnt lgkmcnt({keep})"]
    def m16(th, b, first):
        d = ACC + (b*2 + th)*4
        cs = "0" if first else vr(d, 4)
        x = vr(FXR[th], 4); w = vr(FW + b*4, 4)
        return f"v_mfma_f32_16x16x32_bf16 {vr(d,4)}, " + (f"{w}, {x}" if b < 4 else f"{x}, {w}") + f", {cs}"
    def kvpre():
        a.c("an early poll of a line that is still only in HBM is slow: fetch the group's K/V flag lines ahead of time")
        a("s_cmp_lg_u32 s25, 5", "s_cbranch_scc1 L_kvpre_done", "s_mov_b64 exec, 0xffff", "buffer_load_dword v125, v7, s[36:39], s60 offen sc1", "s_mov_b64 exec, -1", "L_kvpre_done:")
    KVAT = int(([o for o in OPT if o.startswith("kvat=")] or ["kvat=-1"])[0][5:])
    if KVAT < 0: kvpre()
    if "tkv" in OPT:
        a.c("first touch of the K/V block's pages ahead of the stores")
        a("s_cmp_lg_u32 s25, 7", "s_cbranch_scc1 L_tkv_done", "v_lshlrev_b32 v13, 12, v0", "s_mov_b64 exec, 0xff",
          "buffer_load_dword v125, v13, s[36:39], s55 offen", "s_mov_b64 exec, -1", "L_tkv_done:")
    if "kvpt" in OPT:
        a.c("fetch every line of the K/V block ahead of the stores (waves 4..7)")
        a("s_sub_u32 s52, s25, 4", "s_cmp_ge_u32 s52, 4", "s_cbranch_scc1 L_kvpt_done", "v_lshlrev_b32 v13, 7, v0", "s_lshl_b32 s52, s52, 13", "s_add_u32 s52, s52, s55",
          "buffer_load_dword v125, v13, s[36:39], s52 offen", "L_kvpt_done:")
    C3 = [o for o in OPT if o.startswith("c3=")]
    if C3:
        cls = int(C3[0][3:])
        if "c3r" in OPT:
            a("s_cmp_lg_u32 s25, 6", "s_cbranch_scc1 L_c3_done",
              "s_and_b32 s52, s24, 1", "s_lshl_b32 s52, s52, 4", "s_add_u32 s52, s52, s23", "s_mul_i32 s52, s52, 36",
              "s_and_b32 s53, s24, 6", "s_add_u32 s53, s53, 2", "s_mul_i32 s53, s53, 192", "s_add_u32 s52, s52, s53",
              "v_add_u32 v13, s52, v0", "v_subrev_u32 v14, 1536, v13", "v_min_u32 v13, v13, v14", "v_lshlrev_b32 v13, 10, v13",
              "v_cmp_gt_u32 vcc, 36, v0", f"s_mov_b32 s52, {cls*128}", "s_nop 0",
              "s_and_saveexec_b64 s[56:57], vcc", "buffer_load_dword v125, v13, s[32:35], s52 offen", "s_mov_b64 exec, -1", "L_c3_done:")
        else:
            a("s_cmp_lg_u32 s25, 6", "s_cbranch_scc1 L_c3_done",
              "s_and_b32 s52, s24, 1", "s_lshl_b32 s52, s52, 4", "s_add_u32 s52, s52, s23", "s_mul_i32 s52, s52, 36864",
              f"s_add_u32 s52, s52, {384*1024 + cls*128}", "v_cmp_gt_u32 vcc, 36, v0", "v_lshlrev_b32 v13, 10, v0", "s_nop 0",
              "s_and_saveexec_b64 s[56:57], vcc", "buffer_load_dword v125, v13, s[32:35], s52 offen", "s_mov_b64 exec, -1", "L_c3_done:")
    stouch(stg[1], "stg1")
    if "late" in OPT: touches()
    if "xa" in OPT: touchX(3, 2, 0, "xa")
    if "wa" in OPT: touchW(3, 2, 1, "wa")
    if "wa5" in OPT: touchW(3, 5, 1, "wa5")
    if "xa4" in OPT: touchX(4, 4, 0, "xa4")
    a(f"s_mov_b32 s56, {f32bits(QSCALE):#x}", f"s_mov_b32 s57, {f32bits(QSCALE):#x}")
    stamp(a, 1)
    a("s_barrier")
    stamp(a, 2)
    if "xb" in OPT or "wb" in OPT or "wb4" in OPT:
        if "xb" in OPT: touchX(5, 3, 2, "xb")
        if "wb" in OPT: touchW(5, 3, 3, "wb")
        if "wb4" in OPT: touchW(4, 4, 3, "wb4")
        a(f"s_mov_b32 s56, {f32bits(QSCALE):#x}", f"s_mov_b32 s57, {f32bits(QSCALE):#x}")
    if "cyc" in OPT: a("s_memtime s[98:99]", "s_waitcnt lgkmcnt(0)")
    stouch(stg[2], "stg2")
    BO = [2, 3, 4, 5, 0, 1]
    a(xread(0, 0))
    for b in BO: a(wread(0, b))
    a(xread(0, 1))
    for n in range(16):
        c, s2 = divmod(n, 2)
        for b in BO:
            a(lw1({"X0", f"W{b}"}), m16(0, b, n == 0))
        if n < 15:
            if s2 == 1:
                a("s_waitcnt lgkmcnt(0)", "s_barrier"); lq1.clear()
                if c == 3 and "p1ts" not in OPT: stamp(a, 3)
                if "p1ts" in OPT: stamp(a, 7 + c)
                if c == 5: a("s_waitcnt vmcnt(0)")
                if c == KVAT: kvpre()
                if c < 2: stouch(stg[3 + c], f"stg{3+c}")
                KVL = [o for o in OPT if o.startswith("kvl=")]
                if KVL:
                    c0, span = [int(x) for x in KVL[0][4:].split(",")]
                    if c0 <= c < c0 + span:
                        per = 4 // span
                        w0 = 4 + (c - c0)*per
                        a.c("a write-through store to a line the memory-side cache does not hold is slow: fetch the K/V block's lines first")
                        a(f"s_sub_u32 s52, s25, {w0}", f"s_cmp_ge_u32 s52, {per}", f"s_cbranch_scc1 L_kvl{c}", "s_sub_u32 s52, s25, 4",
                          "s_lshl_b32 s52, s52, 13", "s_add_u32 s52, s52, s55", "buffer_load_dword v125, v7, s[36:39], s52 offen", f"L_kvl{c}:")
            a(xread(n + 1, 0))
        for i, b in enumerate(BO):
            a(lw1({"X1"}), m16(1, b, n == 0))
            if n < 15: a(wread(n + 1, b))
            elif i < 4:
                for r in range(4): a(f"v_mov_b32 v{O + i*4 + r}, 0")
        if n < 15: a(xread(n + 1, 1))
        assert len(lq1) <= 15
    stamp(a, 4)
    global P1TS_DONE
    P1TS_DONE = True
    a.c("P1 epilogue: K, V -> LDS stage slot 0 (and, after the barrier, global) ; Q -> regs / LDS")
    PK = 64
    def pack2(dst, src): return [f"v_cvt_pk_bf16_f32 v{dst+r}, v{src+2*r}, v{src+2*r+1}" for r in range(2)]
    def acc(th, b): return ACC + (b*2 + th)*4
    def swaps(t): return [f"v_permlane16_swap_b32 v{t}, v{t+2}", f"v_permlane16_swap_b32 v{t+1}, v{t+3}"]
    GST = [f"buffer_store_dwordx4 {vr(PK,4)}, v{VK}, s[36:39], s55 offen {WT}",
      f"buffer_store_dwordx4 {vr(PK+4,4)}, v{VK}, s[36:39], s0 offen {WT}",
      f"buffer_store_dwordx4 {vr(PK+8,4)}, v{VV}, s[36:39], s55 offen {WT}",
      f"buffer_store_dwordx4 {vr(PK+12,4)}, v{VV}, s[36:39], s55 offen offset:512 {WT}"]
    a("s_nop 2")
    a(pack2(PK, acc(0, 2)), pack2(PK + 2, acc(1, 2)), pack2(PK + 4, acc(0, 3)), pack2(PK + 6, acc(1, 3)))
    a(swaps(PK), f"ds_write_b128 v{VK}, {vr(PK,4)}")
    if "stearly" in OPT: a(GST[0])
    a(pack2(PK + 8, acc(0, 4)), pack2(PK + 10, acc(0, 5)))
    a(swaps(PK + 4), f"ds_write_b128 v{VK}, {vr(PK+4,4)} offset:8192")
    if "stearly" in OPT: a(GST[1])
    a(pack2(PK + 12, acc(1, 4)), pack2(PK + 14, acc(1, 5)))
    a(swaps(PK + 8), f"ds_write_b128 v{VV}, {vr(PK+8,4)}")
    if "stearly" in OPT: a(GST[2])
    for r in range(4): a(f"v_pk_mul_f32 {vr(acc(0,1)+2*r,2)}, {vr(acc(0,1)+2*r,2)}, s[56:57]")
    a(swaps(PK + 12), f"ds_write_b128 v{VV}, {vr(PK+12,4)} offset:512")
    if "stearly" in OPT: a(GST[3])
    a(pack2(PK + 16, acc(0, 1)), pack2(PK + 18, acc(1, 1)))
    for r in range(4): a(f"v_pk_mul_f32 {vr(acc(0,0)+2*r,2)}, {vr(acc(0,0)+2*r,2)}, s[56:57]")
    a(swaps(PK + 16), f"ds_write_b128 v{QA}, {vr(PK+16,4)}")
    a(pack2(Q, acc(0, 0)), pack2(Q + 2, acc(1, 0)), "s_nop 1", swaps(Q))
    gst = [f"buffer_store_dwordx4 {vr(PK,4)}, v{VK}, s[36:39], s55 offen {WT}",
      f"buffer_store_dwordx4 {vr(PK+4,4)}, v{VK}, s[36:39], s0 offen {WT}",
      f"buffer_store_dwordx4 {vr(PK+8,4)}, v{VV}, s[36:39], s55 offen {WT}",
      f"buffer_store_dwordx4 {vr(PK+12,4)}, v{VV}, s[36:39], s55 offen offset:512 {WT}"]
    a("s_cmp_ge_u32 s25, 4", "s_cbranch_scc1 L_nost", gst, "L_nost:")
    a("s_waitcnt lgkmcnt(0)")
    stamp(a, 5)
    a("s_barrier")
    stamp(a, 6)
    a("s_branch L_haveq")

    a("L_loader:")
    if "lprio" in OPT: a("s_setprio 3")
    a("s_sub_u32 s52, s25, 8")
    a("s_and_b32 s53, s52, 1", "s_lshl_b32 s53, s53, 2",
      "v_lshrrev_b32 v2, 4, v0", "v_add_u32 v2, s53, v2", "v_and_b32 v3, 7, v0", "v_xor_b32 v2, v2, v3", "v_lshlrev_b32 v2, 4, v2",
      "v_lshrrev_b32 v4, 3, v0", "v_lshl_add_u32 v2, v4, 10, v2")
    a("v_lshrrev_b32 v4, 2, v0", "v_mul_u32_u24 v4, 3072, v4", "v_and_b32 v3, 3, v0",
      "v_lshrrev_b32 v5, 5, v0", "v_lshlrev_b32 v5, 1, v5", "v_xor_b32 v3, v3, v5", "v_lshl_add_u32 v3, v3, 4, v4",
      "s_lshl_b32 s53, s23, 6", "v_add_u32 v3, s53, v3")
    a("s_lshl_b32 s4, s52, 13", "s_add_u32 s5, s4, 65536", "s_add_u32 s6, s4, 131072", "s_add_u32 s7, s4, 196608",
      "s_lshl_b32 s0, s52, 10")
    a("s_and_b32 s53, s52, 3", "s_mul_i32 s1, s53, 49152", "s_lshr_b32 s53, s52, 2", "s_lshl_b32 s53, s53, 10", "s_add_u32 s1, s1, s53")
    a("s_and_b32 s3, s24, 6")
    if "rotb" in OPT:
        a.c("k-chunk order: the XCD's two token blocks take turns at being first to ask for a W chunk")
        a("s_bitcmp1_b32 s24, 0", "s_mov_b32 s27, 0x47653210", "s_cselect_b32 s27, 0x76504321, s27")
    a("s_cmp_ge_u32 s52, 4", "s_cbranch_scc1 L_loaderB")
    ROT = "rot" in OPT
    def issueW(c, variantA):
        slot = c % NWS
        if ROT: pre = ([f"s_bfe_u32 s53, s27, {(4 << 16) | (4*c):#x}", "s_add_u32 s53, s53, s3"] if "rotb" in OPT else
                       [f"s_add_u32 s53, s24, {c}" if "rotj" in OPT else f"s_add_u32 s53, s3, {c}"]) + ["s_and_b32 s53, s53, 7", "s_lshl_b32 s57, s53, 7", "s_mul_i32 s53, s53, 196608", "s_add_u32 s53, s53, s1",
                       f"s_add_u32 m0, s0, {WRING + slot*12288}", "s_nop 0"]
        else: pre = [f"s_add_u32 m0, s0, {WRING + slot*12288}", f"s_add_u32 s53, s1, {c*196608}"]
        out = pre + [
               "buffer_load_dwordx4 v3, s[32:35], s53 offen" + WNT + " lds"]
        if variantA:
            out += [f"s_add_u32 m0, s0, {WRING + slot*12288 + 8192 - 2048}", "s_nop 0",
                    "buffer_load_dwordx4 v3, s[32:35], s53 offen offset:2048" + WNT + " lds"]
        return out
    def issueX(c):
        slot = c % 3
        out = []
        for aa in range(4):
            out += [f"s_add_u32 m0, s0, {XRING + slot*32768 + aa*8192}", (f"s_add_u32 s53, s{4+aa}, s57" if ROT else f"s_add_u32 s53, s{4+aa}, {c*128}"),
                    "buffer_load_dwordx4 v2, s[28:31], s53 offen" + XNT + " lds"]
        return out
    for variantA in (True, False):
        ops = []
        def W(c):
            a(issueW(c, variantA)); ops.extend([c]*(2 if variantA else 1))
        def X(c):
            a(issueX(c)); ops.extend([c]*4)
        if not variantA: a("L_loaderB:")
        if variantA: stamp(a, 1)
        SX = [o for o in OPT if o.startswith("sx=")]
        sx = [[int(y) for y in x] for x in SX[0][3:].split(",")] if SX else [[]]*6
        def spf(chunks):
            for c_ in chunks:
                for off in (0, 64, 1024, 1088): a(f"s_load_dword s63, s[16:17], {c_*128 + off}")
        if SX:
            a("s_lshl_b32 s53, s23, 3", "s_add_u32 s53, s53, s52", "s_lshl_b32 s53, s53, 11")
        W0 = issueW(0, variantA)
        if SX: a("s_add_u32 s96, s28, s53" if TS else "s_add_u32 s64, s28, s53", "s_addc_u32 s97, s29, 0" if TS else "s_addc_u32 s65, s29, 0")
        SXB = "s[96:97]" if TS else "s[64:65]"
        SWB = 98 if TS else 66
        SW = [o for o in OPT if o.startswith("sw=")]
        if SW:
            a("s_lshl_b32 s53, s24, 4", "s_add_u32 s53, s53, s23", "s_mul_i32 s53, s53, 6", "s_min_u32 s56, s52, 5", "s_add_u32 s53, s53, s56",
              "s_lshl_b32 s53, s53, 8", f"s_add_u32 s53, s53, {4*196608}", f"s_add_u32 s{SWB}, s32, s53", f"s_addc_u32 s{SWB+1}, s33, 0")
        def spf(chunks):
            for c_ in chunks:
                if SW:
                    for off in ((0, 128) if SW[0] == "sw=1" else (0, 64, 128, 192)): a(f"s_load_dword s3, s[{SWB}:{SWB+1}], {(c_-4)*196608 + off}")
                for off in (0, 64, 1024, 1088): a(f"s_load_dword s3, {SXB}, {c_*128 + off}")
        W(0); X(0); spf(sx[0]); a("s_barrier")
        if "b0f" not in OPT: W(1); X(1)
        spf(sx[1])
        if variantA and not SX: stamp(a, 2)
        if not variantA:
            a.c("workgroup 0 publishes the launch tag (low 4 bits: 8 | room for an XCC id)")
            a("s_cmp_lg_u32 s2, 0", "s_cbranch_scc1 L_notag", "s_cmp_lg_u32 s52, 7", "s_cbranch_scc1 L_notag")
            a("s_lshl_b64 s[48:49], s[48:49], 4", "s_or_b32 s48, s48, 8",
              "v_mov_b32 v8, 0", "v_mov_b32 v4, s48", "v_mov_b32 v5, s49", "s_mov_b64 exec, 1",
              f"global_store_dwordx2 v8, v[4:5], s[18:19] {WT}", "s_mov_b64 exec, -1")
            a("L_notag:")
        ROLL = "roll" in OPT and not variantA
        def TOUCH(c):
            a("s_mov_b64 exec, s[16:17]", "buffer_load_dword v10, v9, s[44:47], s3 offen", "s_mov_b64 exec, -1", "s_add_u32 s3, s3, s27")
            ops.append(99)
        if ROLL:
            a("s_mov_b32 s3, s52")
        common_init(a)
        if ROLL:
            R0 = int([o for o in OPT if o.startswith("r0=")][0][3:]) if any(o.startswith("r0=") for o in OPT) else 2
            a.c("rolling L2 warm-up of later W chunks, spread over the XCD's workgroups")
            a("s_mov_b32 s44, s32", "s_mov_b32 s45, s33", "s_mov_b32 s46, s34", "s_mov_b32 s17, 0", "s_mov_b32 s27, 196608",
              "s_and_b32 s52, s24, 1", "s_lshl_b32 s52, s52, 4", "s_add_u32 s52, s52, s23", "s_and_b32 s3, s3, 3")
            if "roll3" in OPT:
                a("s_mov_b32 s16, 3", "v_lshlrev_b32 v9, 10, v0", "s_min_u32 s3, s3, 2", "s_lshl_b32 s3, s3, 11", "s_mul_i32 s52, s52, 6144",
                  "s_add_u32 s3, s3, s52", f"s_add_u32 s3, s3, {R0*196608 + 384}")
            else:
                a("s_mov_b32 s16, 0xfff", "v_lshlrev_b32 v9, 7, v0", "s_mul_i32 s3, s3, 1536", "s_mul_i32 s52, s52, 6144",
                  "s_add_u32 s3, s3, s52", f"s_add_u32 s3, s3, {R0*196608}")
            nextT = R0
            RD = int([o for o in OPT if o.startswith("rd=")][0][3:]) if any(o.startswith("rd=") for o in OPT) else 4
            while nextT < RD: TOUCH(nextT); nextT += 1
        nextW = 2
        for c in range(8):
            last = max(i for i, x in enumerate(ops) if x <= c)
            wait = len(ops) - 1 - last
            if not variantA and c == 7:
                a.c("launch tag -> LDS")
                spin(a, "tag", ["v_cmp_ne_u64 vcc, 0, v[6:7]", "s_nop 1", "s_cmp_eq_u64 vcc, -1"],
                     ["global_load_dwordx2 v[6:7], v8, s[18:19] sc1"])
                a(f"ds_write_b64 v{T}, v[6:7]")
            else:
                a(f"s_waitcnt vmcnt({wait})")
            a("s_barrier")
            if variantA and c == 0 and not SX: stamp(a, 3)
            if variantA and c == 7: stamp(a, 4)
            if "b0f" in OPT and c == 0: W(1); X(1)
            if nextW == c + 2 and nextW <= 7: W(nextW); nextW += 1
            if c + 2 <= 7: X(c + 2)
            while nextW <= min(7, c - 1 + NWS): W(nextW); nextW += 1
            if c + 2 < len(sx): spf(sx[c + 2])
            if ROLL and nextT <= 7: TOUCH(nextT); nextT += 1
            if not variantA and c == 5:
                a("v_mov_b32 v8, 0", "global_load_dwordx2 v[6:7], v8, s[18:19] sc1"); ops.append(99)
        if variantA: a("s_branch L_p2_start")

    a("L_p2_start:")
    a(f"v_mov_b32 v{VK}, 0", f"v_mov_b32 v{VV}, 0")
    for r in range(16): a(f"v_mov_b32 v{O+r}, 0")
    a(f"s_add_u32 s53, s62, {QX - 8192}", f"v_add_u32 v{T+1}, s53, v{LO}")
    a("s_waitcnt lgkmcnt(0)")
    stamp(a, 5)
    a("s_barrier")
    stamp(a, 6)
    a(f"ds_read_b128 {vr(Q,4)}, v{T+1}")
    a("L_haveq:")
    cstamp(a, 0)
    def loc(u):
        n, i = divmod(u, 4); sl = n % 10
        return sl // 4, (sl % 4)*16384 + i*2048
    def kread(u):
        b, o = loc(u)
        return [f"ds_read_b128 {vr(KB[u%2],4)}, v{KA[b]} offset:{o}"]
    def vread(u):
        b, o = loc(u)
        return ["s_mov_b64 exec, s[50:51]",
                f"ds_read_b128 {vr(VB[u%2],4)}, v{VA[b]} offset:{o}",
                f"ds_read_b128 {vr(VB[u%2]+4,4)}, v{VA[b]} offset:{o+512}",
                "s_mov_b64 exec, -1"]
    def ex(base, lo, hi): return [f"v_exp_f32 v{base+i}, v{base+i}" for i in range(lo, hi)]
    def opt(name, default): return [int(x) for x in ([o for o in OPT if o.startswith(name + "=")] or [name + "=" + default])[0][len(name)+1:].split(",")]
    HB = [(0, 0), (0, 1)] + [(x, 0) for x in range(1, 8)] + [(x, 1) for x in range(1, 8)]
    poll = [f"buffer_load_dwordx2 {vr(T,2)}, v{T+4}, s[36:39], s57 offen sc1"]
    def fetch_poll(ns, tag, lg, w0):
        per = 16 >> lg
        a(f"s_sub_u32 s52, s25, {w0}", f"s_cmp_ge_u32 s52, {len(ns) << lg}", f"s_cbranch_scc1 L_{tag}_p")
        code = 0; slots = 0
        for k_, n in enumerate(ns):
            code |= (HB[n][0]*2 + HB[n][1]) << (4*k_); slots |= (n % 10) << (4*k_)
        a(f"s_lshr_b32 s63, s52, {lg}", "s_lshl_b32 s63, s63, 2", f"s_lshr_b32 s53, {code:#x}, s63", "s_and_b32 s53, s53, 15",
          "s_lshl_b32 s57, s24, 1", "s_xor_b32 s53, s53, s57",
          "s_lshl_b32 s57, s53, 7", "s_add_u32 s57, s57, s60",
          "s_mov_b64 exec, 15", poll, "s_mov_b64 exec, -1")
        a("s_lshl_b32 s53, s53, 14", "s_add_u32 s56, s53, s54",
          f"s_and_b32 s52, s52, {(1 << lg) - 1}", f"s_mul_i32 s52, s52, {per*1024}", "s_add_u32 s56, s56, s52",
          f"s_lshr_b32 s53, {slots:#x}, s63", "s_and_b32 s53, s53, 15", "s_lshl_b32 s53, s53, 14", "s_add_u32 s52, s52, s53", f"L_{tag}_p:")
    def fetch_load(ns, tag, lg, w0):
        per = 16 >> lg
        a(f"s_sub_u32 s53, s25, {w0}", f"s_cmp_ge_u32 s53, {len(ns) << lg}", f"s_cbranch_scc1 L_{tag}_done", "s_mov_b64 exec, 15")
        spin(a, tag, [f"v_cmp_eq_u64 vcc, s[48:49], {vr(T,2)}", "s_nop 1", "s_cmp_eq_u64 vcc, 15"], poll, SLP)
        a("s_mov_b64 exec, -1")
        for i in range(per):
            if i % 4 == 0: a(f"s_add_u32 m0, s52, {i*1024}", f"s_add_u32 s53, s56, {i*1024}")
            a(f"buffer_load_dwordx4 v{LO}, s[36:39], s53 offen offset:{(i%4)*1024} sc1 lds")
        a(f"L_{tag}_done:")
    SLP = opt("slp", "4")[0]
    a("s_setprio 3", "s_cmp_lt_u32 s25, 4", "s_cselect_b32 s3, 1, 0")
    a(kread(0), kread(1), vread(0), f"ds_read_b64 {vr(T+2,2)}, v{T}", "s_waitcnt lgkmcnt(4)")
    a(mfma(S[0], KB[0], Q, "0"))
    a.c("later-needed lane constants, computed in the shadow of the first MFMA")
    a(f"v_lshrrev_b32 v{WOA}, 4, v{LO}", f"v_bfe_u32 v{CK}, v{WOA}, 4, 1", f"v_lshlrev_b32 v{CK}, 1, v{CK}", f"v_and_b32 v{CK+1}, 7, v{WOA}",
      f"v_xor_b32 v{CK}, v{CK}, v{CK+1}", f"v_lshlrev_b32 v{CK}, 4, v{CK}", f"v_lshrrev_b32 v{WOA}, 3, v{WOA}",
      f"v_lshl_add_u32 v{WOA}, v{WOA}, 10, v{CK}", f"v_and_b32 v{T+5}, 0x78, v{T+4}",
      f"v_mov_b32 v{CK}, 1.0", f"v_mov_b32 v{CK+1}, 0x57800000", f"v_mov_b32 v60, 0")
    a("s_waitcnt lgkmcnt(0)")
    a(f"v_readfirstlane_b32 s48, v{T+2}", f"v_readfirstlane_b32 s49, v{T+3}")
    a("s_nop 0")
    NT = 64
    WO = 98304
    B1L = "b1late" in OPT
    LATE = (7, 11) if B1L else (7,)
    BAR = (18, 34, 54) if B1L else (10, 18, 34, 54)
    prio_at = {4: 2, 6: 1, 7: 0, 10: 2 if B1L else 1, 11: 1 if B1L else 3, 14: 2, 17: 1, 18: 0, 27: 2, 32: 1, 34: 0, 45: 2, 52: 1, 54: 0, 60: 2, 62: 1, 63: 0}
    for o in OPT:
        if o.startswith("pr="): prio_at.update({int(x.split(":")[0]): int(x.split(":")[1]) for x in o[3:].split(",")})
    SB = opt("sb", "3")[0]
    F1, F2, F3 = opt("ff", "4,8,12")
    P1_, Q1_, P2_, Q2_, P3_, Q3_ = opt("fu", "3,4,6,7,11,12")
    FETCH = [([2], "f1", 1, 8, P1_, Q1_), ([3, 4], "f2", 1, 10, P2_, Q2_), ([5, 6, 7, 8], "f3", 1, 8, P3_, Q3_),
             ([9, 10, 11, 12, 13], "f4", 0, 8, 19, 20), ([14, 15], "f5", 2, 8, 35, 36)]
    PF_ = opt("pf", "16")[0]
    def publish(u, force):
        a("s_cmp_eq_u32 s3, 0", f"s_cbranch_scc1 L_pub{u}")
        if force == "A": a("s_cmp_lt_u32 s25, 4", f"s_cbranch_scc1 L_pubf{u}")
        if force != "all": a("s_getreg_b32 s53, hwreg(HW_REG_IB_STS)", "s_and_b32 s53, s53, 0xc0000f", f"s_cbranch_scc1 L_pub{u}")
        a(f"L_pubf{u}:", f"v_mov_b32 v{T}, s48", f"v_mov_b32 v{T+1}, s49", "s_waitcnt vmcnt(0)")
        stamp(a, 7)
        a("s_mov_b64 exec, 1", f"buffer_store_dwordx2 {vr(T,2)}, v60, s[36:39], s61 offen {WT}", "s_mov_b64 exec, -1", "s_mov_b32 s3, 0", f"L_pub{u}:")
    def barrier(u):
        if u < 30: a("s_cmp_lt_u32 s25, 8", f"s_cbranch_scc1 L_b{u}", "s_waitcnt vmcnt(0)", f"L_b{u}:")
        else: a("s_waitcnt vmcnt(0)")
        a("s_barrier", "s_setprio 3")
        IDL = opt("idle", "99,0")
        if u == IDL[0]: a(f"s_sleep {IDL[1]}")
    for u in range(NT):
        s = S[u % 2]
        if u in prio_at: a(f"s_setprio {prio_at[u]}")
        late = u in LATE
        a("s_waitcnt lgkmcnt(0)")
        a(ex(s, 0, 2))
        if u > 0: a(smf(O, VB[(u-1) % 2] + 4, S[(u-1) % 2] + 8, IDX))
        if u + 1 < NT and not late: a(vread(u + 1))
        a(ex(s, 2, 5))
        if u + 1 < NT and not late:
            a(mfma(S[(u+1) % 2], KB[(u+1) % 2], Q, "0"))
            if u in BAR:
                barrier(u)
                if u == 34: stamp(a, 10)
                if u == 18 and "b12" in OPT: stamp(a, 2)
                if u == 10 and "b12" in OPT: stamp(a, 1)
                cstamp(a, {10: 2, 18: 3, 34: 4, 54: 6}[u])
            if u + 2 < NT and u + 1 not in LATE: a(kread(u + 2))
        a(ex(s, 5, 10))
        a(smf(O, VB[u % 2], s, IDX))
        a(ex(s, 10, 16))
        if u <= PF_:
            if u == 0: a.c("publish this wave's K/V tile as soon as its stores have been acknowledged")
            publish(u, "A" if u == 7 else "all" if u == PF_ else "")
        if late:
            if u == 7: stamp(a, 8)
            barrier(u)
            if u == 7: stamp(a, 9)
            if u == 11 and "b12" in OPT: stamp(a, 1)
            cstamp(a, {7: 1, 11: 2}[u])
            a(kread(u + 1), kread(u + 2), vread(u + 1), "s_waitcnt lgkmcnt(3)", mfma(S[(u+1) % 2], KB[(u+1) % 2], Q, "0"), "s_nop 10")
        if u == SB:
            a.c("second-half tiles go out after the first-half ones, which are needed sooner")
            a("s_sub_u32 s53, s25, 4", "s_cmp_ge_u32 s53, 4", "s_cbranch_scc1 L_nost2", gst, "s_mov_b32 s3, 1", "L_nost2:")
        if u == 19:
            a.c("wave 0 publishes the workgroup's XCC id")
            a("s_cmp_lg_u32 s25, 0", "s_cbranch_scc1 L_xid", f"v_mov_b32 v{T}, s48", f"v_mov_b32 v{T+1}, s49",
              f"v_or_b32 v{T}, s26, v{T}", "s_lshl_b32 s53, s23, 3", "s_add_u32 s53, s53, s10",
              "s_mov_b64 exec, 1", f"buffer_store_dwordx2 {vr(T,2)}, v60, s[36:39], s53 offen {WT}", "s_mov_b64 exec, -1", "L_xid:")
        for (ns, tag, lg, w0, up, ul) in FETCH:
            if u == up: fetch_poll(ns, tag, lg, w0)
            if u == ul: fetch_load(ns, tag, lg, w0)
        if u in (37, 38, 56, 57):
            aa = {37: 0, 38: 1, 56: 2, 57: 3}[u]
            if aa == 0: a.c("Wo tile -> LDS (half-slots 6..9)")
            a("s_lshl_b32 s63, s25, 13", f"s_add_u32 m0, s62, {WO + aa*16384}", f"s_add_u32 s53, s63, {aa*131072}", f"buffer_load_dwordx4 v{WOA}, s[40:43], s53 offen lds")
        if u == 46:
            a.c("XCC ids of the row block's workgroups; bring the O and O-flag lines this wave will write into L2")
            a(f"buffer_load_dwordx2 {vr(T+2,2)}, v{T+5}, s[36:39], s10 offen sc1",
              f"buffer_load_dword v{T+1}, v60, s[36:39], s59 offen",
              f"buffer_load_dword v{T}, v{LO}, s[36:39], s58 offen")
        if u == 55:
            a.c("local hand-off only when all 16 workgroups of this row block run on this XCC")
            a("s_or_b32 s52, s48, s26", "s_mov_b32 s53, s49", f"v_cmp_eq_u64 vcc, s[52:53], {vr(T+2,2)}", "s_nop 1",
              "s_cmp_eq_u64 vcc, -1", "s_cselect_b32 s27, 1, 0")
            if "noloc" in OPT: a("s_mov_b32 s27, 0")
    a("s_nop 1", smf(O, VB[(NT-1) % 2] + 4, S[(NT-1) % 2] + 8, IDX), "s_setprio 3",
      f"v_mov_b32 v{T}, s48", f"v_mov_b32 v{T+1}, s49", f"v_mov_b32 v{T+3}, 0x7f800000", "s_nop 7")
    a.c("safety check of the zero stand-in: 1 <= l <= 2^48 and finite O, else redo with the true row max")
    a(f"v_cmp_le_f32 s[52:53], v{CK}, v{O+8}", f"v_cmp_ge_f32 s[56:57], v{CK+1}, v{O+8}",
      f"v_maximum3_f32 v{CK}, abs(v{O}), abs(v{O+1}), abs(v{O+2})", f"v_maximum3_f32 v{CK}, abs(v{O+3}), abs(v{O+4}), v{CK}",
      f"v_maximum3_f32 v{CK}, abs(v{O+5}), abs(v{O+6}), v{CK}", f"v_maximum3_f32 v{CK}, abs(v{O+7}), v{CK}, v{CK}",
      "s_and_b64 s[52:53], s[52:53], s[56:57]",
      f"v_cmp_gt_f32 vcc, v{T+3}, v{CK}", f"v_rcp_f32 v{T+2}, v{O+8}", "s_and_b64 s[52:53], s[52:53], vcc",
      "s_cmp_eq_u64 s[52:53], -1", "s_cbranch_scc0 L_fallback")
    a("L_finish:")
    stamp(a, 11)
    cstamp(a, 5)
    if "cyc2" in OPT: a("s_memtime s[96:97]", "s_waitcnt lgkmcnt(0)", "s_sub_u32 s96, s96, s98", "s_add_u32 s66, s82, s96", "s_addc_u32 s67, s83, 0")
    for r in range(4): a(f"v_pk_mul_f32 {vr(O+2*r,2)}, {vr(O+2*r,2)}, {vr(T+2,2)} op_sel_hi:[1,0]")
    for r in range(4): a(f"v_cvt_pk_bf16_f32 v{O+12+r}, v{O+2*r}, v{O+2*r+1}")
    a("s_cmp_eq_u32 s27, 1", "s_cbranch_scc1 L_ostore_local")
    a(f"buffer_store_dwordx4 {vr(O+12,4)}, v{LO}, s[36:39], s58 offen {WT}", "s_waitcnt vmcnt(0)",
      "s_mov_b64 exec, 1", f"buffer_store_dwordx2 {vr(T,2)}, v60, s[36:39], s59 offen {WT}", "s_mov_b64 exec, -1", "s_branch L_ostored")
    a("L_ostore_local:")
    a(f"buffer_store_dwordx4 {vr(O+12,4)}, v{LO}, s[36:39], s58 offen", "s_waitcnt vmcnt(0)",
      "s_mov_b64 exec, 1", f"buffer_store_dwordx2 {vr(T,2)}, v60, s[36:39], s59 offen", "s_mov_b64 exec, -1")
    a("L_ostored:")
    stamp(a, 12)
    a("s_barrier")
    if TS:
        a("s_cmp_lt_u32 s25, 8", "s_cbranch_scc1 L_ts_p3", ["s_barrier"]*(5 if "g4" in OPT else 3))
        if "allw" in OPT:
            for w in range(8, 16): ts_flush(a, w, w, f"w{w}")
        else:
            ts_flush(a, 1, 8, "w8")
            ts_flush(a, 2, 15, "w15")
        a("s_endpgm", "L_ts_p3:")
    else:
        a("s_cmp_ge_u32 s25, 8", "s_cbranch_scc1 L_done")

    ACC3 = [0, 16]; OFR = 32; WB = [96, 104, 112]; A3 = [120, 122]; VO = 116; PA = 123; L = 118; PF = 124
    opoll = [f"buffer_load_dwordx4 {vr(PF,4)}, v{LO}, s[36:39], s11 offen sc1"]
    ocond = [f"v_cmp_eq_u64 vcc, s[48:49], {vr(PF,2)}", f"v_cmp_eq_u64 s[52:53], s[48:49], {vr(PF+2,2)}", "s_nop 1",
             "s_and_b64 vcc, vcc, s[52:53]", "s_cmp_eq_u64 vcc, -1"]
    a("s_cmp_lt_u32 s25, 4", "s_cbranch_scc1 L_p3c")
    a("s_and_b32 s56, s25, 3", "s_lshl_b32 s56, s56, 14")
    a("s_barrier")
    for i in range(16):
        a(f"s_add_u32 m0, s56, {i*1024}", f"s_add_u32 s53, s12, {(16+i)*1024}", f"buffer_load_dwordx4 v{LO}, s[36:39], s53 offen sc1 lds")
    G3 = 4 if "g4" in OPT else 8
    for x in range(16 - G3, -1, -G3): a(f"s_waitcnt vmcnt({x})", "s_barrier")
    if "wb2" in OPT:
        a("s_cmp_lg_u32 s25, 4", "s_cbranch_scc1 L_nowb", "buffer_wbl2 sc1", "L_nowb:")
    if "allw" in OPT:
        for w in range(4, 8): ts_flush(a, w, w, f"w{w}")
    a("s_endpgm")
    a("L_p3c:")
    a(opoll)
    a(f"v_lshrrev_b32 v6, 4, v{LO}")
    a(f"v_lshrrev_b32 v4, 5, v6", f"v_bfe_u32 v5, v6, 2, 2", "v_lshl_add_u32 v4, v4, 2, v5", "v_lshlrev_b32 v4, 7, v4",
      f"v_and_b32 v5, 1, v6", "v_lshl_add_u32 v4, v5, 6, v4", f"v_bfe_u32 v5, v6, 4, 1", "v_lshl_add_u32 v4, v5, 4, v4",
      f"v_bfe_u32 v5, v6, 3, 1", "v_lshl_add_u32 v4, v5, 5, v4", f"v_bfe_u32 v5, v6, 1, 1", f"v_lshl_add_u32 v4, v5, 3, v4",
      f"v_add_u32 v{A3[0]}, {WO}, v4", f"v_xor_b32 v{A3[1]}, 32, v{A3[0]}")
    a("s_lshl_b32 s56, s25, 14", f"v_add_u32 v{PA}, s56, v{LO}")
    def reads3(hd, buf):
        out = []
        for cb in range(2):
            for j in range(2):
                out.append(f"ds_read_b64_tr_b16 {vr(buf + cb*4 + j*2, 2)}, v{A3[cb]} offset:{hd*2048 + j*1024}")
        return out
    a(reads3(0, WB[0]), reads3(1, WB[1]))
    spin(a, "o", ocond, opoll)
    stamp(a, 13)
    for i in range(16):
        if i % 4 == 0: a(f"s_add_u32 s53, s12, {i*1024}")
        a(f"buffer_load_dwordx4 {vr(OFR + i*4, 4)}, v{LO}, s[36:39], s53 offen offset:{(i%4)*1024} sc1")
    a("s_barrier")
    lq = ["W0"]*4 + ["W1"]*4
    def lwait(need):
        nonlocal lq
        idx = [i for i, x in enumerate(lq) if x in need]
        if not idx: return None
        keep = len(lq) - 1 - max(idx)
        lq = lq[len(lq) - keep:]
        return keep
    def oread(n):
        lq.append(f"O{n}")
        return f"ds_read_b128 {vr(OFR + (n-16)*4, 4)}, v{PA} offset:{(n-16)*1024}"
    for n in range(32):
        cur = WB[n % 3]
        if n >= 16 and n % G3 == 0:
            if "p3ts" in OPT and n == 16: stamp(a, 2); lq = []
            a("s_barrier")
            if "p3ts" in OPT and n == 32 - G3: stamp(a, 3); lq = []
            for i in range(2): a(oread(n + i))
        kw = lwait({f"W{n}", f"O{n}"})
        w = []
        if n < 16: w.append(f"vmcnt({15 - n})")
        if kw is not None: w.append(f"lgkmcnt({kw})")
        if w: a("s_waitcnt " + " ".join(w))
        if "p3ts" in OPT and n in (0, 31): stamp(a, {0: 1, 31: 4}[n]); lq = []
        rd = reads3(n + 2, WB[(n+2) % 3]) if n + 2 < 32 else []
        for cb in range(2):
            a(mfma(ACC3[cb], cur + cb*4, OFR + (n%16)*4, "0" if n == 0 else ACC3[cb]))
            if rd: a(rd[2*cb:2*cb+2]); lq.extend([f"W{n+2}"]*2)
            if cb == 0 and n >= 16 and (n % G3) + 2 < G3: a(oread(n + 2))
        assert len(lq) <= 15, lq
    a(f"v_lshrrev_b32 v{L}, 4, v{LO}")
    PA = 117
    a.c("transpose through LDS (slot 1 is free) so that every store writes whole 128-byte lines")
    TA_ = 119; TB_ = 120
    a(f"v_and_b32 v{TA_}, 31, v{L}", f"v_lshrrev_b32 v{PA}, 5, v{L}", f"v_lshlrev_b32 v{PA}, 2, v{PA}", f"v_and_b32 v{TB_}, 7, v{L}",
      f"v_xor_b32 v{PA}, v{PA}, v{TB_}", f"v_lshlrev_b32 v{PA}, 4, v{PA}", f"v_lshl_add_u32 v{TA_}, v{TA_}, 7, v{PA}",
      "s_mov_b32 s52, s56", f"v_add_u32 v{TA_}, s52, v{TA_}",
      f"v_lshrrev_b32 v{PA}, 3, v{L}", f"v_xor_b32 v{VO}, v{PA}, v{TB_}", f"v_lshlrev_b32 v{VO}, 4, v{VO}", f"v_lshl_add_u32 v{VO}, v{PA}, 7, v{VO}",
      f"v_add_u32 v{VO}, s52, v{VO}",
      f"v_lshlrev_b32 v{TB_}, 4, v{TB_}", f"v_lshl_add_u32 v{TB_}, v{PA}, 11, v{TB_}")
    for cb in range(2):
        for q in range(2):
            c = cb*2 + q
            t = 32 + c*4
            for r in range(4): a(f"v_cvt_pk_bf16_f32 v{t+r}, v{ACC3[cb]+q*8+2*r}, v{ACC3[cb]+q*8+2*r+1}")
            if c: a(f"v_xor_b32 v{PA}, {c*16}, v{TA_}")
            a(f"ds_write_b128 v{PA if c else TA_}, {vr(t,4)}")
    a("s_waitcnt lgkmcnt(0)")
    for i in range(4): a(f"ds_read_b128 {vr(48 + i*4, 4)}, v{VO} offset:{i*1024}")
    for i in range(4):
        a(f"s_add_u32 s53, s13, {i*16384}", f"s_waitcnt lgkmcnt({3-i})", f"buffer_store_dwordx4 {vr(48 + i*4, 4)}, v{TB_}, s[44:47], s53 offen" + (" sc1" if "osc1" in OPT else " nt" if "ont" in OPT else " sc0 sc1" if "osys" in OPT else ""))
    if TS:
        if "p3ts" in OPT: stamp(a, 5)
        a("s_waitcnt vmcnt(0)")
        stamp(a, 14)
        ts_flush(a, 0, 0, "w0")
        if "allw" in OPT:
            for w in range(1, 4): ts_flush(a, w, w, f"w{w}")
    a("L_done:", "s_endpgm")

    a("L_fallback:")
    M = T + 2
    a("s_lshr_b32 s52, s25, 3", "s_lshl_b32 s52, s52, 13", "s_add_u32 s52, s52, s54",
      f"v_mov_b32 v{M}, 0xff800000", "s_mov_b32 s63, 0",
      f"v_sub_u32 v{T+3}, v{VA[0]}, v{KA[0]}", f"v_add_u32 v{T+3}, v{T+3}, v{LO}")
    def fb_addr():
        return ["s_lshr_b32 s53, s63, 2", "s_lshl_b32 s53, s53, 14", "s_and_b32 s56, s63, 3", "s_lshl_b32 s56, s56, 11",
                "s_add_u32 s53, s53, s56", "s_add_u32 s53, s53, s52"]
    a("L_fb1:", fb_addr(),
      f"buffer_load_dwordx4 {vr(KB[0],4)}, v{LO}, s[36:39], s53 offen sc1", "s_waitcnt vmcnt(0)",
      mfma(S[0], KB[0], Q, "0"), "s_nop 15")
    for r in range(8): a(f"v_max3_f32 v{M}, v{S[0]+2*r}, v{S[0]+2*r+1}, v{M}")
    a("s_add_u32 s63, s63, 1", "s_cmp_lg_u32 s63, 64", "s_cbranch_scc1 L_fb1")
    a(f"v_mov_b32 v{T}, v{M}", "s_nop 1", f"v_permlane32_swap_b32 v{M}, v{T}", "s_nop 1", f"v_max_f32 v{M}, v{M}, v{T}", f"v_sub_f32 v{M}, 0, v{M}")
    for r in range(16): a(f"v_mov_b32 v{CM+r}, v{M}")
    for r in range(16): a(f"v_mov_b32 v{O+r}, 0")
    a("s_mov_b32 s63, 0")
    a("L_fb2:", fb_addr(),
      f"buffer_load_dwordx4 {vr(KB[0],4)}, v{LO}, s[36:39], s53 offen sc1", "s_mov_b64 exec, s[50:51]",
      f"buffer_load_dwordx4 {vr(VB[0],4)}, v{T+3}, s[36:39], s53 offen sc1",
      f"buffer_load_dwordx4 {vr(VB[0]+4,4)}, v{T+3}, s[36:39], s53 offen offset:512 sc1", "s_mov_b64 exec, -1",
      "s_waitcnt vmcnt(0)", mfma(S[0], KB[0], Q, CM), "s_nop 15")
    a(ex(S[0], 0, 16), "s_nop 1", smf(O, VB[0], S[0], IDX), smf(O, VB[0] + 4, S[0] + 8, IDX))
    a("s_add_u32 s63, s63, 1", "s_cmp_lg_u32 s63, 64", "s_cbranch_scc1 L_fb2")
    a("s_nop 15", f"v_rcp_f32 v{T+2}, v{O+8}", f"v_mov_b32 v{T}, s48", f"v_mov_b32 v{T+1}, s49", "s_branch L_finish", "L_code_end:")
    a.l.append(f""".section .rodata,"a"
.p2align 6
.amdhsa_kernel {k}
  .amdhsa_next_free_vgpr 128
  .amdhsa_next_free_sgpr {102 if TS else 68}
  .amdhsa_accum_offset 128
  .amdhsa_group_segment_fixed_size 0
  .amdhsa_kernarg_size 72
  .amdhsa_user_sgpr_count 2
  .amdhsa_user_sgpr_kernarg_segment_ptr 1
  .amdhsa_system_sgpr_workgroup_id_x 1
.end_amdhsa_kernel""")

a = Asm()
a.l += """; Two multi-head attention blocks (S=2048, D=512, H=32, Dh=16) in one launch, 256 workgroups x 16 waves.
; @launch grid=(256,1,1) block=(1024,1,1) lds=163840
; Workgroup = (problem p, head pair hp, block j of 256 tokens); ids are laid out so that a token block's 16 workgroups
; share an XCD (speed only - every hand-off below is valid under any placement).
;  P1  q,k,v projection of the 256 tokens x 2 heads: waves 8-15 stream x / wqkv k-chunks into LDS (LDS-DMA ring),
;      waves 0-7 run 16x16x32 MFMAs and leave Q, K and V^T as ready MFMA fragments (Q scaled by log2(e)/4).
;      K/V go to LDS (own tiles) and, write-through, to d_ws for the other seven token blocks.
;  P2  wave = (32 queries, head). S^T = K Q^T (32x32x16 MFMA), p = exp2(S^T) in place, O^T += V^T p with the 2:4
;      sparse MFMA reading the fp32 p registers as bf16 pairs (index 0xdddd keeps the high halves = truncated bf16);
;      a ones row in V^T accumulates the row sum. No max is subtracted; afterwards the wave checks that the row sums
;      lie in [1, 2^48] and O is finite, otherwise it redoes its rows with the true row max (L_fallback).
;      Remote K/V arrive in 16 KB half-blocks through a ten-slot LDS ring, each after its producer's flags.
;  P3  output projection of a 128 x 64 tile after the row block's O fragments are flagged.
; Flags carry a per-launch tag (clock value published through d_debug by workgroup 0); every wait is bounded.
.amdgcn_target "amdgcn-amd-amdhsa--gfx950"
.text""".split("\n")
gen(a)
print(a.text())
```

```python
import sys, math, struct

NAME = "concat_heads__mha_block__mha_block__prompt"
OPT = set(sys.argv[1:]) | {"pub0", "stmid", "tx67", "b0late"}
if "noc3" in OPT: pass
elif not any(o.startswith("stg=") for o in OPT): OPT |= {"c3=3"}
else: OPT |= {"nopf"}
if not OPT & {"tx", "a3", "nopf"}: OPT |= {"tx", "tw", "early", "rot", "rotb", "c3r"}
NWS = 5 if "w5" in OPT else (4 if "w4" in OPT else 3)
TS = "ts" in OPT
WT = "sc0 sc1" if "sys" in OPT else "sc1 nt" if "wtnt" in OPT else "sc1"
XNT = " nt" if "xnt" in OPT else ""
WNT = " nt" if "wnt" in OPT else ""
KV_OFF = 0
OF_OFF = 8 << 20
FKV_OFF = 12 << 20
FO_OFF = (12 << 20) + 65536
XID_OFF = (12 << 20) + 131072
WS_USED = 13 << 20
QSCALE = 0.25 * math.log2(math.e)
SPIN_MAX = 1 << 18
def f32bits(x): return struct.unpack("<I", struct.pack("<f", x))[0]

class Asm:
    def __init__(self): self.l = []
    def __call__(self, *lines):
        for x in lines:
            if isinstance(x, (list, tuple)): self(*x)
            else: self.l.append("    " + x if not x.endswith(":") else x)
    def c(self, s): self.l.append("    ; " + s)
    def text(self): return "\n".join(self.l)

def vr(b, n): return f"v[{b}:{b+n-1}]"
def mfma(d, a, b, c):
    cs = vr(c, 16) if isinstance(c, int) else c
    return f"v_mfma_f32_32x32x16_bf16 {vr(d,16)}, {vr(a,4)}, {vr(b,4)}, {cs}"
def smf(d, a, b, idx): return f"v_smfmac_f32_32x32x32_bf16 {vr(d,16)}, {vr(a,4)}, {vr(b,8)}, v{idx}"

P1TS_DONE = False
def stamp(a, j):
    if "p1ts" in OPT and P1TS_DONE and j >= 7: return
    if "cyc3" in OPT: return
    if TS: a(f"s_memrealtime s[{64+2*j}:{65+2*j}]", "s_waitcnt lgkmcnt(0)")
def cstamp(a, j):
    if "cyc3" in OPT and not ("ends" in OPT and j not in (0, 5)):
        if j == 0: a("s_memtime s[98:99]", "s_waitcnt lgkmcnt(0)")
        else: a("s_memtime s[96:97]", "s_waitcnt lgkmcnt(0)", "s_sub_u32 s96, s96, s98", f"s_add_u32 s{64+2*j}, s64, s96", f"s_addc_u32 s{65+2*j}, s65, 0")
def ts_init(a):
    if TS:
        for j in range(15): a(f"s_mov_b64 s[{64+2*j}:{65+2*j}], 0")
        a("s_mov_b32 s94, 0x5151", "s_mov_b32 s95, 0")
def ts_flush(a, kidx, wave, tag):
    if not TS: return
    a(f"s_cmp_lg_u32 s25, {wave}", f"s_cbranch_scc1 TS_skip_{tag}")
    a("s_sleep 127", "s_sleep 127", "s_sleep 127")
    a("s_mov_b64 exec, 1", f"s_lshl_b32 s96, s2, 7", f"s_add_u32 s96, s96, {(32<<20) + kidx*256*128}", "v_mov_b32 v1, s96")
    for j in range(16):
        a(f"v_mov_b32 v2, s{64+2*j}", f"v_mov_b32 v3, s{65+2*j}", f"global_store_dwordx2 v1, v[2:3], s[20:21] offset:{j*8}", "s_nop 1")
    a("s_waitcnt vmcnt(0)", "s_mov_b64 exec, -1", f"TS_skip_{tag}:")

XRING = 0
WRING = 98304
QX = 65536
TAGL = 163832
EREG = 131072

def spin(a, name, cond_lines, reload_lines, slp=1):
    a(f"s_mov_b32 s63, {SPIN_MAX}", f"L_{name}_chk:", "s_waitcnt vmcnt(0)", cond_lines, f"s_cbranch_scc1 L_{name}_ok", f"s_sleep {slp}",
      reload_lines, "s_sub_u32 s63, s63, 1", "s_cmp_lg_u32 s63, 0", f"s_cbranch_scc1 L_{name}_chk", "s_waitcnt vmcnt(0)", f"L_{name}_ok:")

def gen(a):
    k = NAME + "_kernel"
    a.l += [f".globl {k}", ".p2align 8", f".type {k},@function", f"{k}:"]
    a("s_cmp_ge_u32 s2, 256", "s_cbranch_scc1 L_done")
    a("s_load_dwordx16 s[4:19], s[0:1], 0", "s_load_dwordx2 s[20:21], s[0:1], 64")
    ts_init(a)
    if TS: a("s_memrealtime s[64:65]")
    a("s_memrealtime s[48:49]")
    a("s_and_b32 s52, s2, 7", "s_lshr_b32 s53, s2, 3",
      "s_lshr_b32 s22, s52, 2",
      "s_and_b32 s23, s53, 15",
      "s_and_b32 s24, s52, 3", "s_lshl_b32 s24, s24, 1", "s_lshr_b32 s53, s53, 4", "s_add_u32 s24, s24, s53")
    a("v_lshrrev_b32 v1, 6, v0", "v_and_b32 v0, 63, v0", "s_getreg_b32 s26, hwreg(HW_REG_XCC_ID)", "v_readfirstlane_b32 s25, v1")
    a("s_and_b32 s26, s26, 7", "s_lshl_b32 s62, s25, 10")
    a("s_waitcnt lgkmcnt(0)")
    WSB = int(([o for o in OPT if o.startswith("wsb=")] or ["wsb=0"])[0][4:]) << 20
    if WSB: a(f"s_add_u32 s20, s20, {WSB}", "s_addc_u32 s21, s21, 0")
    a("s_cmp_eq_u32 s22, 0",
      "s_cselect_b32 s4, s4, s10", "s_cselect_b32 s5, s5, s11", "s_cselect_b32 s6, s6, s12", "s_cselect_b32 s7, s7, s13",
      "s_cselect_b32 s8, s8, s14", "s_cselect_b32 s9, s9, s15")
    a("s_lshl_b32 s52, s24, 18", "s_add_u32 s28, s4, s52", "s_addc_u32 s29, s5, 0", "s_and_b32 s29, s29, 0xffff",
      "s_mov_b32 s30, 262144", "s_mov_b32 s31, 0x20000")
    a("s_mov_b32 s32, s6", "s_and_b32 s33, s7, 0xffff", f"s_mov_b32 s34, {512*3072}", "s_mov_b32 s35, 0x20000")
    a("s_cmp_ge_u32 s25, 8", "s_cbranch_scc1 L_loader")
    MARK0 = len(a.l)

    O = 0; Q = 16; S = [20, 36]; KB = [52, 56]; VB = [100, 108]; IDX = 116; KA = [117, 118, 98]; VA = [119, 120, 99]; LO = 121; T = 122
    CM = 80
    WOA = 61; CK = 62

    def common_init(a):
        a("s_mov_b32 s36, s20", "s_and_b32 s37, s21, 0xffff", f"s_mov_b32 s38, {WS_USED}", "s_mov_b32 s39, 0x20000")
        a("s_and_b32 s52, s23, 7", "s_lshl_b32 s52, s52, 7", "s_add_u32 s40, s8, s52", "s_addc_u32 s41, s9, 0", "s_and_b32 s41, s41, 0xffff",
          f"s_sub_u32 s42, {512*1024}, s52", "s_mov_b32 s43, 0x20000")
        a("s_mov_b32 s44, s16", "s_and_b32 s45, s17, 0xffff", f"s_mov_b32 s46, {2048*2048}", "s_mov_b32 s47, 0x20000")
        a("s_mov_b32 s50, 0xffff", "s_mov_b32 s51, 0xffff")
        a("s_lshl_b32 s54, s22, 4", "s_add_u32 s54, s54, s23", "s_lshl_b32 s54, s54, 18", "s_lshl_b32 s55, s24, 15", "s_add_u32 s55, s55, s54")
        a(f"v_lshlrev_b32 v{LO}, 4, v0",
          "s_lshr_b32 s56, s25, 3", "s_lshl_b32 s53, s56, 13",
          f"v_add_u32 v{KA[0]}, s53, v{LO}", f"v_add_u32 v{KA[1]}, 0x10000, v{KA[0]}", f"v_add_u32 v{KA[2]}, 0x20000, v{KA[0]}",
          "v_and_b32 v13, 15, v0", "v_lshlrev_b32 v13, 4, v13", "v_lshrrev_b32 v14, 5, v0", "v_lshl_add_u32 v13, v14, 8, v13",
          "s_add_u32 s53, s53, 1024", f"v_add_u32 v{VA[0]}, s53, v13", f"v_add_u32 v{VA[1]}, 0x10000, v{VA[0]}", f"v_add_u32 v{VA[2]}, 0x20000, v{VA[0]}",
          f"v_mov_b32 v{IDX}, 0xdddddddd")
        a("v_and_b32 v13, 27, v0", "v_cmp_eq_u32 vcc, 16, v13", "v_mov_b32 v14, 0x3f803f80",
          f"v_mov_b32 v{T}, {TAGL}", f"v_lshlrev_b32 v{T+4}, 3, v0", "v_cndmask_b32 v13, 0, v14, vcc")
        for r in range(16): a(f"v_mov_b32 v{VB[0]+r}, v13")
        a("s_and_b32 s53, s25, 7", "s_lshl_b32 s58, s24, 3", "s_add_u32 s58, s58, s53", "s_lshl_b32 s57, s22, 6", "s_add_u32 s58, s58, s57",
          "s_lshl_b32 s58, s58, 5", "s_lshl_b32 s53, s23, 1", "s_add_u32 s53, s53, s56", "s_add_u32 s58, s58, s53",
          "s_lshl_b32 s59, s58, 3", f"s_add_u32 s59, s59, {FO_OFF}", "s_lshl_b32 s58, s58, 10", f"s_add_u32 s58, s58, {OF_OFF}")
        a("s_lshr_b32 s60, s54, 7", f"s_add_u32 s60, s60, {FKV_OFF}", "s_lshl_b32 s61, s24, 8", "s_add_u32 s61, s61, s60",
          "s_bfe_u32 s53, s25, 0x10002", "s_lshl_b32 s53, s53, 7", "s_add_u32 s61, s61, s53",
          "s_and_b32 s53, s25, 3", "s_lshl_b32 s53, s53, 3", "s_add_u32 s61, s61, s53")
        a("s_lshl_b32 s10, s22, 3", "s_add_u32 s10, s10, s24", "s_lshl_b32 s10, s10, 7", f"s_add_u32 s10, s10, {XID_OFF}")
        a("s_lshl_b32 s52, s24, 3", "s_lshr_b32 s53, s23, 3", "s_lshl_b32 s53, s53, 2", "s_add_u32 s52, s52, s53",
          "s_add_u32 s53, s57, s52", "s_lshl_b32 s11, s53, 8", f"s_add_u32 s11, s11, {FO_OFF}",
          "s_and_b32 s12, s25, 3", "s_add_u32 s52, s52, s12", "s_add_u32 s53, s53, s12", "s_lshl_b32 s12, s53, 15", f"s_add_u32 s12, s12, {OF_OFF}",
          "s_lshl_b32 s13, s22, 10", "s_and_b32 s53, s23, 7", "s_lshl_b32 s53, s53, 7", "s_add_u32 s13, s13, s53",
          "s_lshl_b32 s53, s52, 16", "s_add_u32 s13, s13, s53")

    XA = [1, 2]; XB = [3, 4]; WA = [5, 6]; VK = 96; VV = 97; QA = 123
    ACC = 16
    FXR = [64, 68]; FW = 72
    def touches():
        if "tx" in OPT:
            a.c("HBM/L2 warm-up: waves 0,1 touch 8 KB each of this workgroup's share of the X block")
            if "tx67" in OPT:
                a("s_and_b32 s53, s25, 6", "s_mov_b32 s52, s23", "s_cmp_eq_u32 s53, 0", "s_cbranch_scc1 L_tx_own",
                  "s_cmp_lg_u32 s53, 6", "s_cbranch_scc1 L_tx_done", "s_sub_u32 s52, s23, 2", "s_lshr_b32 s53, s52, 1", "s_cmp_lg_u32 s53, 3", "s_cbranch_scc1 L_tx_done",
                  "s_branch L_tx_go", "L_tx_own:", "s_lshr_b32 s53, s52, 1", "s_cmp_eq_u32 s53, 3", "s_cbranch_scc1 L_tx_done", "L_tx_go:",
                  "s_lshl_b32 s52, s52, 14", "s_and_b32 s53, s25, 1", "s_lshl_b32 s53, s53, 13", "s_add_u32 s52, s52, s53",
                  "v_lshlrev_b32 v13, 7, v0", "buffer_load_dword v125, v13, s[28:31], s52 offen" + XNT, "L_tx_done:")
            else:
                a("s_cmp_ge_u32 s25, 2", "s_cbranch_scc1 L_tx_done",
                  "s_lshl_b32 s52, s23, 14", "s_lshl_b32 s53, s25, 13", "s_add_u32 s52, s52, s53",
                  "v_lshlrev_b32 v13, 7, v0", "buffer_load_dword v125, v13, s[28:31], s52 offen" + XNT, "L_tx_done:")
        if "tw" in OPT:
            a.c("waves 2,3 touch 6 KB each of W (1/128 of the matrix per workgroup)")
            a("s_sub_u32 s52, s25, 2", "s_cmp_ge_u32 s52, 2", "s_cbranch_scc1 L_tw_done",
              "s_lshl_b32 s53, s24, 4", "s_add_u32 s53, s53, s23", "s_lshl_b32 s53, s53, 1", "s_add_u32 s52, s52, s53",
              "s_mul_i32 s52, s52, 6144", "v_cmp_gt_u32 vcc, 48, v0", "v_lshlrev_b32 v13, 7, v0", "s_and_saveexec_b64 s[56:57], vcc",
              "buffer_load_dword v125, v13, s[32:35], s52 offen", "s_mov_b64 exec, -1", "L_tw_done:")
        if "twf" in OPT:
            a.c("waves 2..7 touch 8 KB each of W (1/32 of the matrix per workgroup)")
            a("s_sub_u32 s52, s25, 2", "s_cmp_ge_u32 s52, 6", "s_cbranch_scc1 L_twf_done",
              "s_and_b32 s53, s24, 1", "s_lshl_b32 s53, s53, 4", "s_add_u32 s53, s53, s23", "s_mul_i32 s53, s53, 6", "s_add_u32 s52, s52, s53",
              "s_lshl_b32 s52, s52, 13", "v_lshlrev_b32 v13, 7, v0",
              "buffer_load_dword v125, v13, s[32:35], s52 offen", "L_twf_done:")
    def touchX(c0, nc, wave, tag):
        a(f"s_cmp_lg_u32 s25, {wave}", f"s_cbranch_scc1 L_{tag}_done")
        if nc == 2: a("v_lshrrev_b32 v13, 1, v0", "v_and_b32 v14, 1, v0")
        elif nc == 4: a("v_lshrrev_b32 v13, 2, v0", "v_and_b32 v14, 3, v0")
        else: a("v_mul_u32_u24 v13, 43, v0", "v_lshrrev_b32 v13, 7, v13", "v_mul_u32_u24 v14, 3, v13", "v_sub_u32 v14, v0, v14")
        a("v_lshlrev_b32 v13, 10, v13", "v_lshl_add_u32 v13, v14, 7, v13", "s_lshl_b32 s52, s23, 14", f"s_add_u32 s52, s52, {c0*128}",
          f"v_cmp_gt_u32 vcc, {16*nc}, v0", "s_nop 1", "s_and_saveexec_b64 s[56:57], vcc",
          "buffer_load_dword v125, v13, s[28:31], s52 offen" + XNT, "s_mov_b64 exec, -1", f"L_{tag}_done:")
    def touchW(c0, nc, wave, tag):
        a(f"s_cmp_lg_u32 s25, {wave}", f"s_cbranch_scc1 L_{tag}_done",
          "s_lshl_b32 s52, s24, 4", "s_add_u32 s52, s52, s23", f"s_mul_i32 s52, s52, {nc*1536}", f"s_add_u32 s52, s52, {c0*196608}",
          f"v_cmp_gt_u32 vcc, {12*nc}, v0", "v_lshlrev_b32 v13, 7, v0", "s_nop 0", "s_and_saveexec_b64 s[56:57], vcc",
          "buffer_load_dword v125, v13, s[32:35], s52 offen" + WNT, "s_mov_b64 exec, -1", f"L_{tag}_done:")
    if "tlb" in OPT:
        a.c("translation warm-up: wave 0 of workgroup i touches one of the pages the kernel will need")
        a("s_cmp_lg_u32 s25, 0", "s_cbranch_scc1 L_tlb_done",
          "s_and_b32 s52, s23, 7", "v_mov_b32 v13, 0",
          "s_cmp_eq_u32 s52, 0", "s_cbranch_scc1 L_tlb0", "s_cmp_eq_u32 s52, 1", "s_cbranch_scc1 L_tlb1",
          "s_cmp_eq_u32 s52, 2", "s_cbranch_scc1 L_tlb2", "s_cmp_eq_u32 s52, 3", "s_cbranch_scc1 L_tlb3",
          "s_cmp_eq_u32 s52, 4", "s_cbranch_scc1 L_tlb4")
        a("s_lshl_b32 s53, s22, 22", "s_lshr_b32 s56, s23, 3", "s_lshl_b32 s56, s56, 21", "s_add_u32 s53, s53, s56",
          "s_lshl_b32 s56, s22, 21", f"s_add_u32 s56, s56, {OF_OFF}",
          "s_cmp_eq_u32 s52, 6", "s_cselect_b32 s53, s56, s53", "s_cmp_eq_u32 s52, 7", f"s_cselect_b32 s53, {FKV_OFF}, s53",
          "v_mov_b32 v13, s53", "global_load_dword v125, v13, s[20:21]", "s_branch L_tlb_done")
        a("L_tlb0:", "buffer_load_dword v125, v13, s[28:31], 0 offen", "s_branch L_tlb_done")
        a("L_tlb1:", "buffer_load_dword v125, v13, s[32:35], 0 offen", "s_branch L_tlb_done")
        a("L_tlb2:", "global_load_dword v125, v13, s[8:9]", "s_branch L_tlb_done")
        a("L_tlb3:", "s_lshr_b32 s53, s24, 2", "s_lshl_b32 s53, s53, 21", "v_mov_b32 v13, s53", "global_load_dword v125, v13, s[16:17]", "s_branch L_tlb_done")
        a("L_tlb4:", "global_load_dword v125, v13, s[18:19] sc1", "L_tlb_done:")
    if "cpf" in OPT:
        a.c("pull the kernel's code into L2 (waves 4..7, 64 lines each)")
        a("s_sub_u32 s52, s25, 4", "s_cmp_ge_u32 s52, 4", "s_cbranch_scc1 L_cpf_done",
          "s_getpc_b64 s[56:57]", "L_cpf_pc:", "s_lshl_b32 s52, s52, 13", "v_lshlrev_b32 v13, 7, v0", "v_add_u32 v13, s52, v13",
          "v_cmp_gt_u32 vcc, L_code_end-L_cpf_pc, v13", "s_nop 1", "s_and_saveexec_b64 s[52:53], vcc", "s_cbranch_execz L_cpf_skip",
          "global_load_dword v125, v13, s[56:57]", "L_cpf_skip:", "s_mov_b64 exec, -1", "L_cpf_done:")
    STG = [o for o in OPT if o.startswith("stg=")]
    stg = [[int(y) for y in x] for x in STG[0][4:].split(",")] if STG else [[], [], [], [], []]
    def stouch(chunks, tag):
        if not chunks: return
        lo, hi = min(chunks), max(chunks)
        a(f"s_sub_u32 s52, s25, {lo}", f"s_cmp_gt_u32 s52, {hi-lo}", f"s_cbranch_scc1 L_{tag}",
          "s_lshl_b32 s52, s23, 14", "s_lshl_b32 s53, s25, 7", "s_add_u32 s52, s52, s53", "v_lshlrev_b32 v8, 10, v0", "s_mov_b64 exec, 0xffff",
          "buffer_load_dword v125, v8, s[28:31], s52 offen",
          "s_and_b32 s52, s24, 1", "s_lshl_b32 s52, s52, 4", "s_add_u32 s52, s52, s23", "s_mul_i32 s52, s52, 6144", "s_mul_i32 s53, s25, 196608",
          "s_add_u32 s52, s52, s53", "s_mov_b64 exec, -1", "v_lshlrev_b32 v8, 7, v0", "s_mov_b32 exec_hi, 0xffff",
          "buffer_load_dword v125, v8, s[32:35], s52 offen", "s_mov_b64 exec, -1", f"L_{tag}:")
    stouch(stg[0], "stg0")
    if "early" in OPT: touches()
    a("s_branch L_compute")
    MARK1 = len(a.l)
    a("L_compute:")
    a("s_barrier")
    if "early" not in OPT and "late" not in OPT: touches()
    if "a3" in OPT:
        touchX(2, 3, 0, "xa3"); touchW(2, 3, 1, "wa3")
    if "wa3" in OPT: touchW(2, 3, 2, "wa3")
    if "wa2" in OPT: touchW(2, 2, 2, "wa2")
    if "wa13" in OPT: touchW(1, 3, 2, "wa13")
    common_init(a)
    a("v_and_b32 v13, 15, v0", "v_lshrrev_b32 v14, 4, v0",
      "v_bfe_u32 v15, v0, 1, 3", "v_xor_b32 v15, v15, v14", "v_lshlrev_b32 v15, 4, v15", "v_lshl_add_u32 v15, v13, 7, v15",
      "s_lshl_b32 s52, s25, 12",
      f"v_add_u32 v{XA[0]}, s52, v15", f"v_xor_b32 v{XA[1]}, 64, v{XA[0]}",
      f"v_add_u32 v{XB[0]}, 0x10000, v{XA[0]}", f"v_add_u32 v{XB[1]}, 0x10000, v{XA[1]}")
    a("v_bfe_u32 v15, v0, 2, 2", "v_lshl_add_u32 v13, v14, 3, v15", "v_lshlrev_b32 v13, 6, v13",
      "v_bfe_u32 v15, v0, 4, 1", "v_lshl_add_u32 v13, v15, 5, v13", "v_and_b32 v15, 3, v0", "v_lshl_add_u32 v13, v15, 3, v13",
      f"v_add_u32 v{WA[0]}, {WRING}, v13", f"v_xor_b32 v{WA[1]}, 32, v{WA[0]}")
    a("s_and_b32 s52, s25, 3", "s_lshl_b32 s52, s52, 11", "s_lshr_b32 s53, s25, 2", "s_lshl_b32 s53, s53, 14", "s_add_u32 s52, s52, s53",
      f"v_add_u32 v{VK}, s52, v{LO}",
      "v_and_b32 v13, 15, v0", "v_lshlrev_b32 v13, 4, v13", "v_lshrrev_b32 v14, 5, v0", "v_lshl_add_u32 v13, v14, 8, v13",
      "v_bfe_u32 v15, v0, 4, 1", "v_lshl_add_u32 v13, v15, 13, v13", "s_add_u32 s52, s52, 1024", f"v_add_u32 v{VV}, s52, v13")
    a(f"s_add_u32 s52, s62, {QX}", f"v_add_u32 v{QA}, s52, v{LO}", "s_add_u32 s0, s55, 8192")
    a("v_lshlrev_b32 v7, 7, v0")
    lq1 = []
    def xread(n, th):
        c, s2 = divmod(n, 2); slot = c % 3
        lq1.append(f"X{th}")
        if slot < 2: return f"ds_read_b128 {vr(FXR[th],4)}, v{XA[s2]} offset:{slot*32768 + th*2048}"
        return f"ds_read_b128 {vr(FXR[th],4)}, v{XB[s2]} offset:{th*2048}"
    def wread(n, b):
        c, s2 = divmod(n, 2); seg, hd = divmod(b, 2)
        lq1.extend([f"W{b}"]*2)
        return [f"ds_read_b64_tr_b16 {vr(FW + b*4 + j*2, 2)}, v{WA[hd]} offset:{(c % NWS)*12288 + seg*4096 + s2*2048 + j*256}" for j in range(2)]
    def lw1(need):
        idx = [i for i, x in enumerate(lq1) if x in need]
        if not idx: return []
        keep = len(lq1) - 1 - max(idx)
        del lq1[:len(lq1) - keep]
        return [f"s_waitcnt lgkmcnt({keep})"]
    def m16(th, b, first):
        d = ACC + (b*2 + th)*4
        cs = "0" if first else vr(d, 4)
        x = vr(FXR[th], 4); w = vr(FW + b*4, 4)
        return f"v_mfma_f32_16x16x32_bf16 {vr(d,4)}, " + (f"{w}, {x}" if b < 4 else f"{x}, {w}") + f", {cs}"
    def kvpre():
        a.c("an early poll of a line that is still only in HBM is slow: fetch the group's K/V flag lines ahead of time")
        a("s_cmp_lg_u32 s25, 5", "s_cbranch_scc1 L_kvpre_done", "s_mov_b64 exec, 0xffff", "buffer_load_dword v125, v7, s[36:39], s60 offen sc1", "s_mov_b64 exec, -1", "L_kvpre_done:")
    KVAT = int(([o for o in OPT if o.startswith("kvat=")] or ["kvat=-1"])[0][5:])
    if KVAT < 0: kvpre()
    if "tkv" in OPT:
        a.c("first touch of the K/V block's pages ahead of the stores")
        a("s_cmp_lg_u32 s25, 7", "s_cbranch_scc1 L_tkv_done", "v_lshlrev_b32 v13, 12, v0", "s_mov_b64 exec, 0xff",
          "buffer_load_dword v125, v13, s[36:39], s55 offen", "s_mov_b64 exec, -1", "L_tkv_done:")
    if "kvpt" in OPT:
        a.c("fetch every line of the K/V block ahead of the stores (waves 4..7)")
        a("s_sub_u32 s52, s25, 4", "s_cmp_ge_u32 s52, 4", "s_cbranch_scc1 L_kvpt_done", "v_lshlrev_b32 v13, 7, v0", "s_lshl_b32 s52, s52, 13", "s_add_u32 s52, s52, s55",
          "buffer_load_dword v125, v13, s[36:39], s52 offen", "L_kvpt_done:")
    C3 = [o for o in OPT if o.startswith("c3=")]
    if C3:
        cls = int(C3[0][3:])
        if "c3r" in OPT:
            a("s_cmp_lg_u32 s25, 6", "s_cbranch_scc1 L_c3_done",
              "s_and_b32 s52, s24, 1", "s_lshl_b32 s52, s52, 4", "s_add_u32 s52, s52, s23", "s_mul_i32 s52, s52, 36",
              "s_and_b32 s53, s24, 6", "s_add_u32 s53, s53, 2", "s_mul_i32 s53, s53, 192", "s_add_u32 s52, s52, s53",
              "v_add_u32 v13, s52, v0", "v_subrev_u32 v14, 1536, v13", "v_min_u32 v13, v13, v14", "v_lshlrev_b32 v13, 10, v13",
              "v_cmp_gt_u32 vcc, 36, v0", f"s_mov_b32 s52, {cls*128}", "s_nop 0",
              "s_and_saveexec_b64 s[56:57], vcc", "buffer_load_dword v125, v13, s[32:35], s52 offen", "s_mov_b64 exec, -1", "L_c3_done:")
        else:
            a("s_cmp_lg_u32 s25, 6", "s_cbranch_scc1 L_c3_done",
              "s_and_b32 s52, s24, 1", "s_lshl_b32 s52, s52, 4", "s_add_u32 s52, s52, s23", "s_mul_i32 s52, s52, 36864",
              f"s_add_u32 s52, s52, {384*1024 + cls*128}", "v_cmp_gt_u32 vcc, 36, v0", "v_lshlrev_b32 v13, 10, v0", "s_nop 0",
              "s_and_saveexec_b64 s[56:57], vcc", "buffer_load_dword v125, v13, s[32:35], s52 offen", "s_mov_b64 exec, -1", "L_c3_done:")
    stouch(stg[1], "stg1")
    if "late" in OPT: touches()
    if "xa" in OPT: touchX(3, 2, 0, "xa")
    if "wa" in OPT: touchW(3, 2, 1, "wa")
    if "wa5" in OPT: touchW(3, 5, 1, "wa5")
    if "xa4" in OPT: touchX(4, 4, 0, "xa4")
    a(f"s_mov_b32 s56, {f32bits(QSCALE):#x}", f"s_mov_b32 s57, {f32bits(QSCALE):#x}")
    stamp(a, 1)
    a("s_barrier")
    stamp(a, 2)
    if "xb" in OPT or "wb" in OPT or "wb4" in OPT:
        if "xb" in OPT: touchX(5, 3, 2, "xb")
        if "wb" in OPT: touchW(5, 3, 3, "wb")
        if "wb4" in OPT: touchW(4, 4, 3, "wb4")
        a(f"s_mov_b32 s56, {f32bits(QSCALE):#x}", f"s_mov_b32 s57, {f32bits(QSCALE):#x}")
    if "cyc" in OPT: a("s_memtime s[98:99]", "s_waitcnt lgkmcnt(0)")
    stouch(stg[2], "stg2")
    BO = [2, 3, 4, 5, 0, 1]
    a(xread(0, 0))
    for b in BO: a(wread(0, b))
    a(xread(0, 1))
    for n in range(16):
        c, s2 = divmod(n, 2)
        for b in BO:
            a(lw1({"X0", f"W{b}"}), m16(0, b, n == 0))
        if n < 15:
            if s2 == 1:
                a("s_waitcnt lgkmcnt(0)", "s_barrier"); lq1.clear()
                if c == 3 and "p1ts" not in OPT: stamp(a, 3)
                if "p1ts" in OPT: stamp(a, 7 + c)
                if c == 5: a("s_waitcnt vmcnt(0)")
                if c == KVAT: kvpre()
                if c < 2: stouch(stg[3 + c], f"stg{3+c}")
                KVL = [o for o in OPT if o.startswith("kvl=")]
                if KVL:
                    c0, span = [int(x) for x in KVL[0][4:].split(",")]
                    if c0 <= c < c0 + span:
                        per = 4 // span
                        w0 = 4 + (c - c0)*per
                        a.c("a write-through store to a line the memory-side cache does not hold is slow: fetch the K/V block's lines first")
                        a(f"s_sub_u32 s52, s25, {w0}", f"s_cmp_ge_u32 s52, {per}", f"s_cbranch_scc1 L_kvl{c}", "s_sub_u32 s52, s25, 4",
                          "s_lshl_b32 s52, s52, 13", "s_add_u32 s52, s52, s55", "buffer_load_dword v125, v7, s[36:39], s52 offen", f"L_kvl{c}:")
            a(xread(n + 1, 0))
        for i, b in enumerate(BO):
            a(lw1({"X1"}), m16(1, b, n == 0))
            if n < 15: a(wread(n + 1, b))
            elif i < 4:
                for r in range(4): a(f"v_mov_b32 v{O + i*4 + r}, 0")
        if n < 15: a(xread(n + 1, 1))
        assert len(lq1) <= 15
    stamp(a, 4)
    global P1TS_DONE
    P1TS_DONE = True
    a.c("P1 epilogue: K, V -> LDS stage slot 0 (and, after the barrier, global) ; Q -> regs / LDS")
    PK = 64
    def pack2(dst, src): return [f"v_cvt_pk_bf16_f32 v{dst+r}, v{src+2*r}, v{src+2*r+1}" for r in range(2)]
    def acc(th, b): return ACC + (b*2 + th)*4
    def swaps(t): return [f"v_permlane16_swap_b32 v{t}, v{t+2}", f"v_permlane16_swap_b32 v{t+1}, v{t+3}"]
    GST = [f"buffer_store_dwordx4 {vr(PK,4)}, v{VK}, s[36:39], s55 offen {WT}",
      f"buffer_store_dwordx4 {vr(PK+4,4)}, v{VK}, s[36:39], s0 offen {WT}",
      f"buffer_store_dwordx4 {vr(PK+8,4)}, v{VV}, s[36:39], s55 offen {WT}",
      f"buffer_store_dwordx4 {vr(PK+12,4)}, v{VV}, s[36:39], s55 offen offset:512 {WT}"]
    a("s_nop 2")
    a(pack2(PK, acc(0, 2)), pack2(PK + 2, acc(1, 2)), pack2(PK + 4, acc(0, 3)), pack2(PK + 6, acc(1, 3)))
    a(swaps(PK), f"ds_write_b128 v{VK}, {vr(PK,4)}")
    if "stearly" in OPT: a(GST[0])
    a(pack2(PK + 8, acc(0, 4)), pack2(PK + 10, acc(0, 5)))
    a(swaps(PK + 4), f"ds_write_b128 v{VK}, {vr(PK+4,4)} offset:8192")
    if "stearly" in OPT: a(GST[1])
    a(pack2(PK + 12, acc(1, 4)), pack2(PK + 14, acc(1, 5)))
    a(swaps(PK + 8), f"ds_write_b128 v{VV}, {vr(PK+8,4)}")
    if "stearly" in OPT: a(GST[2])
    for r in range(4): a(f"v_pk_mul_f32 {vr(acc(0,1)+2*r,2)}, {vr(acc(0,1)+2*r,2)}, s[56:57]")
    a(swaps(PK + 12), f"ds_write_b128 v{VV}, {vr(PK+12,4)} offset:512")
    if "stearly" in OPT: a(GST[3])
    a(pack2(PK + 16, acc(0, 1)), pack2(PK + 18, acc(1, 1)))
    for r in range(4): a(f"v_pk_mul_f32 {vr(acc(0,0)+2*r,2)}, {vr(acc(0,0)+2*r,2)}, s[56:57]")
    a(swaps(PK + 16), f"ds_write_b128 v{QA}, {vr(PK+16,4)}")
    a(pack2(Q, acc(0, 0)), pack2(Q + 2, acc(1, 0)), "s_nop 1", swaps(Q))
    gst = [f"buffer_store_dwordx4 {vr(PK,4)}, v{VK}, s[36:39], s55 offen {WT}",
      f"buffer_store_dwordx4 {vr(PK+4,4)}, v{VK}, s[36:39], s0 offen {WT}",
      f"buffer_store_dwordx4 {vr(PK+8,4)}, v{VV}, s[36:39], s55 offen {WT}",
      f"buffer_store_dwordx4 {vr(PK+12,4)}, v{VV}, s[36:39], s55 offen offset:512 {WT}"]
    a("s_cmp_ge_u32 s25, 4", "s_cbranch_scc1 L_nost", gst, "L_nost:")
    a("s_waitcnt lgkmcnt(0)")
    stamp(a, 5)
    a("s_barrier")
    stamp(a, 6)
    a("s_branch L_haveq")

    MARK2 = len(a.l)
    a("L_loader:")
    if "lprio" in OPT: a("s_setprio 3")
    a("s_sub_u32 s52, s25, 8")
    a("s_and_b32 s53, s52, 1", "s_lshl_b32 s53, s53, 2",
      "v_lshrrev_b32 v2, 4, v0", "v_add_u32 v2, s53, v2", "v_and_b32 v3, 7, v0", "v_xor_b32 v2, v2, v3", "v_lshlrev_b32 v2, 4, v2",
      "v_lshrrev_b32 v4, 3, v0", "v_lshl_add_u32 v2, v4, 10, v2")
    a("v_lshrrev_b32 v4, 2, v0", "v_mul_u32_u24 v4, 3072, v4", "v_and_b32 v3, 3, v0",
      "v_lshrrev_b32 v5, 5, v0", "v_lshlrev_b32 v5, 1, v5", "v_xor_b32 v3, v3, v5", "v_lshl_add_u32 v3, v3, 4, v4",
      "s_lshl_b32 s53, s23, 6", "v_add_u32 v3, s53, v3")
    a("s_lshl_b32 s4, s52, 13", "s_add_u32 s5, s4, 65536", "s_add_u32 s6, s4, 131072", "s_add_u32 s7, s4, 196608",
      "s_lshl_b32 s0, s52, 10")
    a("s_and_b32 s53, s52, 3", "s_mul_i32 s1, s53, 49152", "s_lshr_b32 s53, s52, 2", "s_lshl_b32 s53, s53, 10", "s_add_u32 s1, s1, s53")
    a("s_and_b32 s3, s24, 6")
    if "rotb" in OPT:
        a.c("k-chunk order: the XCD's two token blocks take turns at being first to ask for a W chunk")
        a("s_bitcmp1_b32 s24, 0", "s_mov_b32 s27, 0x47653210", "s_cselect_b32 s27, 0x76504321, s27")
    ROT = "rot" in OPT
    def issueW(c, variantA):
        slot = c % NWS
        if ROT: pre = ([f"s_bfe_u32 s53, s27, {(4 << 16) | (4*c):#x}", "s_add_u32 s53, s53, s3"] if "rotb" in OPT else
                       [f"s_add_u32 s53, s24, {c}" if "rotj" in OPT else f"s_add_u32 s53, s3, {c}"]) + ["s_and_b32 s53, s53, 7", "s_lshl_b32 s57, s53, 7", "s_mul_i32 s53, s53, 196608", "s_add_u32 s53, s53, s1",
                       f"s_add_u32 m0, s0, {WRING + slot*12288}", "s_nop 0"]
        else: pre = [f"s_add_u32 m0, s0, {WRING + slot*12288}", f"s_add_u32 s53, s1, {c*196608}"]
        out = pre + [
               "buffer_load_dwordx4 v3, s[32:35], s53 offen" + WNT + " lds"]
        if variantA:
            out += [f"s_add_u32 m0, s0, {WRING + slot*12288 + 8192 - 2048}", "s_nop 0",
                    "buffer_load_dwordx4 v3, s[32:35], s53 offen offset:2048" + WNT + " lds"]
        return out
    def issueX(c):
        slot = c % 3
        out = []
        for aa in range(4):
            out += [f"s_add_u32 m0, s0, {XRING + slot*32768 + aa*8192}", (f"s_add_u32 s53, s{4+aa}, s57" if ROT else f"s_add_u32 s53, s{4+aa}, {c*128}"),
                    "buffer_load_dwordx4 v2, s[28:31], s53 offen" + XNT + " lds"]
        return out
    for variantA in (True, False):
        ops = []
        def W(c):
            a(issueW(c, variantA)); ops.extend([c]*(2 if variantA else 1))
        def X(c):
            a(issueX(c)); ops.extend([c]*4)
        if variantA:
            stamp(a, 1)
            for c0 in range(2):
                wa = issueW(c0, True)
                a(wa[:-3], "s_cmp_ge_u32 s52, 4", f"s_cbranch_scc1 L_w1_{c0}", wa[-3:], f"L_w1_{c0}:", issueX(c0))
                if c0 == 0: a("s_barrier")
            a("s_cmp_ge_u32 s52, 4", "s_cbranch_scc1 L_loaderB")
        else: a("L_loaderB:")
        for c0 in range(2): ops.extend([c0]*((2 if variantA else 1) + 4))
        SX = [o for o in OPT if o.startswith("sx=")]
        sx = [[int(y) for y in x] for x in SX[0][3:].split(",")] if SX else [[]]*6
        def spf(chunks):
            for c_ in chunks:
                for off in (0, 64, 1024, 1088): a(f"s_load_dword s63, s[16:17], {c_*128 + off}")
        if SX:
            a("s_lshl_b32 s53, s23, 3", "s_add_u32 s53, s53, s52", "s_lshl_b32 s53, s53, 11")
        W0 = issueW(0, variantA)
        if SX: a("s_add_u32 s96, s28, s53" if TS else "s_add_u32 s64, s28, s53", "s_addc_u32 s97, s29, 0" if TS else "s_addc_u32 s65, s29, 0")
        SXB = "s[96:97]" if TS else "s[64:65]"
        SWB = 98 if TS else 66
        SW = [o for o in OPT if o.startswith("sw=")]
        if SW:
            a("s_lshl_b32 s53, s24, 4", "s_add_u32 s53, s53, s23", "s_mul_i32 s53, s53, 6", "s_min_u32 s56, s52, 5", "s_add_u32 s53, s53, s56",
              "s_lshl_b32 s53, s53, 8", f"s_add_u32 s53, s53, {4*196608}", f"s_add_u32 s{SWB}, s32, s53", f"s_addc_u32 s{SWB+1}, s33, 0")
        def spf(chunks):
            for c_ in chunks:
                if SW:
                    for off in ((0, 128) if SW[0] == "sw=1" else (0, 64, 128, 192)): a(f"s_load_dword s3, s[{SWB}:{SWB+1}], {(c_-4)*196608 + off}")
                for off in (0, 64, 1024, 1088): a(f"s_load_dword s3, {SXB}, {c_*128 + off}")

        if variantA and not SX: stamp(a, 2)
        if not variantA:
            a.c("workgroup 0 publishes the launch tag (low 4 bits: 8 | room for an XCC id)")
            a("s_cmp_lg_u32 s2, 0", "s_cbranch_scc1 L_notag", "s_cmp_lg_u32 s52, 7", "s_cbranch_scc1 L_notag")
            a("s_lshl_b64 s[48:49], s[48:49], 4", "s_or_b32 s48, s48, 8",
              "v_mov_b32 v8, 0", "v_mov_b32 v4, s48", "v_mov_b32 v5, s49", "s_mov_b64 exec, 1",
              f"global_store_dwordx2 v8, v[4:5], s[18:19] {WT}", "s_mov_b64 exec, -1")
            a("L_notag:")
        ROLL = "roll" in OPT and not variantA
        def TOUCH(c):
            a("s_mov_b64 exec, s[16:17]", "buffer_load_dword v10, v9, s[44:47], s3 offen", "s_mov_b64 exec, -1", "s_add_u32 s3, s3, s27")
            ops.append(99)
        if ROLL:
            a("s_mov_b32 s3, s52")
        common_init(a)
        if ROLL:
            R0 = int([o for o in OPT if o.startswith("r0=")][0][3:]) if any(o.startswith("r0=") for o in OPT) else 2
            a.c("rolling L2 warm-up of later W chunks, spread over the XCD's workgroups")
            a("s_mov_b32 s44, s32", "s_mov_b32 s45, s33", "s_mov_b32 s46, s34", "s_mov_b32 s17, 0", "s_mov_b32 s27, 196608",
              "s_and_b32 s52, s24, 1", "s_lshl_b32 s52, s52, 4", "s_add_u32 s52, s52, s23", "s_and_b32 s3, s3, 3")
            if "roll3" in OPT:
                a("s_mov_b32 s16, 3", "v_lshlrev_b32 v9, 10, v0", "s_min_u32 s3, s3, 2", "s_lshl_b32 s3, s3, 11", "s_mul_i32 s52, s52, 6144",
                  "s_add_u32 s3, s3, s52", f"s_add_u32 s3, s3, {R0*196608 + 384}")
            else:
                a("s_mov_b32 s16, 0xfff", "v_lshlrev_b32 v9, 7, v0", "s_mul_i32 s3, s3, 1536", "s_mul_i32 s52, s52, 6144",
                  "s_add_u32 s3, s3, s52", f"s_add_u32 s3, s3, {R0*196608}")
            nextT = R0
            RD = int([o for o in OPT if o.startswith("rd=")][0][3:]) if any(o.startswith("rd=") for o in OPT) else 4
            while nextT < RD: TOUCH(nextT); nextT += 1
        nextW = 2
        for c in range(8):
            last = max(i for i, x in enumerate(ops) if x <= c)
            wait = len(ops) - 1 - last
            if not variantA and c == 7:
                a.c("launch tag -> LDS")
                spin(a, "tag", ["v_cmp_ne_u64 vcc, 0, v[6:7]", "s_nop 1", "s_cmp_eq_u64 vcc, -1"],
                     ["global_load_dwordx2 v[6:7], v8, s[18:19] sc1"])
                a(f"ds_write_b64 v{T}, v[6:7]")
            else:
                a(f"s_waitcnt vmcnt({wait})")
            a("s_barrier")
            if variantA and c == 0 and not SX: stamp(a, 3)
            if variantA and c == 7: stamp(a, 4)
            if "b0f" in OPT and c == 0: W(1); X(1)
            if nextW == c + 2 and nextW <= 7: W(nextW); nextW += 1
            if c + 2 <= 7: X(c + 2)
            while nextW <= min(7, c - 1 + NWS): W(nextW); nextW += 1
            if c + 2 < len(sx): spf(sx[c + 2])
            if ROLL and nextT <= 7: TOUCH(nextT); nextT += 1
            if not variantA and c == 5:
                a("v_mov_b32 v8, 0", "global_load_dwordx2 v[6:7], v8, s[18:19] sc1"); ops.append(99)
        a("s_branch L_p2_start")
    MARK3 = len(a.l)
    a.l[MARK1:MARK3] = a.l[MARK2:MARK3] + a.l[MARK1:MARK2]

    a("L_p2_start:")
    a(f"v_mov_b32 v{VK}, 0", f"v_mov_b32 v{VV}, 0")
    for r in range(16): a(f"v_mov_b32 v{O+r}, 0")
    a(f"s_add_u32 s53, s62, {QX - 8192}", f"v_add_u32 v{T+1}, s53, v{LO}")
    a("s_waitcnt lgkmcnt(0)")
    stamp(a, 5)
    a("s_barrier")
    stamp(a, 6)
    a(f"ds_read_b128 {vr(Q,4)}, v{T+1}")
    a("L_haveq:")
    cstamp(a, 0)
    def loc(u):
        n, i = divmod(u, 4); sl = n % 10
        return sl // 4, (sl % 4)*16384 + i*2048
    def kread(u):
        b, o = loc(u)
        return [f"ds_read_b128 {vr(KB[u%2],4)}, v{KA[b]} offset:{o}"]
    def vread(u):
        b, o = loc(u)
        return ["s_mov_b64 exec, s[50:51]",
                f"ds_read_b128 {vr(VB[u%2],4)}, v{VA[b]} offset:{o}",
                f"ds_read_b128 {vr(VB[u%2]+4,4)}, v{VA[b]} offset:{o+512}",
                "s_mov_b64 exec, -1"]
    def ex(base, lo, hi): return [f"v_exp_f32 v{base+i}, v{base+i}" for i in range(lo, hi)]
    def opt(name, default): return [int(x) for x in ([o for o in OPT if o.startswith(name + "=")] or [name + "=" + default])[0][len(name)+1:].split(",")]
    HB = [(0, 0), (0, 1)] + [(x, 0) for x in range(1, 8)] + [(x, 1) for x in range(1, 8)]
    poll = [f"buffer_load_dwordx2 {vr(T,2)}, v{T+4}, s[36:39], s57 offen sc1"]
    def fetch_poll(ns, tag, lg, w0):
        per = 16 >> lg
        a(f"s_sub_u32 s52, s25, {w0}", f"s_cmp_ge_u32 s52, {len(ns) << lg}", f"s_cbranch_scc1 L_{tag}_p")
        code = 0; slots = 0
        for k_, n in enumerate(ns):
            code |= (HB[n][0]*2 + HB[n][1]) << (4*k_); slots |= (n % 10) << (4*k_)
        a(f"s_lshr_b32 s63, s52, {lg}", "s_lshl_b32 s63, s63, 2", f"s_lshr_b32 s53, {code:#x}, s63", "s_and_b32 s53, s53, 15",
          "s_lshl_b32 s57, s24, 1", "s_xor_b32 s53, s53, s57",
          "s_lshl_b32 s57, s53, 7", "s_add_u32 s57, s57, s60",
          "s_mov_b64 exec, 15", poll, "s_mov_b64 exec, -1")
        a("s_lshl_b32 s53, s53, 14", "s_add_u32 s56, s53, s54",
          f"s_and_b32 s52, s52, {(1 << lg) - 1}", f"s_mul_i32 s52, s52, {per*1024}", "s_add_u32 s56, s56, s52",
          f"s_lshr_b32 s53, {slots:#x}, s63", "s_and_b32 s53, s53, 15", "s_lshl_b32 s53, s53, 14", "s_add_u32 s52, s52, s53", f"L_{tag}_p:")
    def fetch_load(ns, tag, lg, w0):
        per = 16 >> lg
        a(f"s_sub_u32 s53, s25, {w0}", f"s_cmp_ge_u32 s53, {len(ns) << lg}", f"s_cbranch_scc1 L_{tag}_done", "s_mov_b64 exec, 15")
        spin(a, tag, [f"v_cmp_eq_u64 vcc, s[48:49], {vr(T,2)}", "s_nop 1", "s_cmp_eq_u64 vcc, 15"], poll, SLP)
        a("s_mov_b64 exec, -1")
        for i in range(per):
            if i % 4 == 0: a(f"s_add_u32 m0, s52, {i*1024}", f"s_add_u32 s53, s56, {i*1024}")
            a(f"buffer_load_dwordx4 v{LO}, s[36:39], s53 offen offset:{(i%4)*1024} sc1 lds")
        a(f"L_{tag}_done:")
    SLP = opt("slp", "4")[0]
    a("s_setprio 3", "s_cmp_lt_u32 s25, 4", "s_cselect_b32 s3, 1, 0")
    a(kread(0), kread(1), vread(0), f"ds_read_b64 {vr(T+2,2)}, v{T}", "s_waitcnt lgkmcnt(4)")
    a(mfma(S[0], KB[0], Q, "0"))
    a.c("later-needed lane constants, computed in the shadow of the first MFMA")
    a(f"v_lshrrev_b32 v{WOA}, 4, v{LO}", f"v_bfe_u32 v{CK}, v{WOA}, 4, 1", f"v_lshlrev_b32 v{CK}, 1, v{CK}", f"v_and_b32 v{CK+1}, 7, v{WOA}",
      f"v_xor_b32 v{CK}, v{CK}, v{CK+1}", f"v_lshlrev_b32 v{CK}, 4, v{CK}", f"v_lshrrev_b32 v{WOA}, 3, v{WOA}",
      f"v_lshl_add_u32 v{WOA}, v{WOA}, 10, v{CK}", f"v_and_b32 v{T+5}, 0x78, v{T+4}",
      f"v_mov_b32 v{CK}, 1.0", f"v_mov_b32 v{CK+1}, 0x57800000", f"v_mov_b32 v60, 0")
    a("s_waitcnt lgkmcnt(0)")
    a(f"v_readfirstlane_b32 s48, v{T+2}", f"v_readfirstlane_b32 s49, v{T+3}")
    a("s_nop 0")
    NT = 64
    WO = 98304
    B1L = "b1late" in OPT
    LATE = (7, 11) if B1L else (7,)
    BAR = (18, 34, 54) if B1L else (10, 18, 34, 54)
    prio_at = {4: 2, 6: 1, 7: 0, 10: 2 if B1L else 1, 11: 1 if B1L else 3, 14: 2, 17: 1, 18: 0, 27: 2, 32: 1, 34: 0, 45: 2, 52: 1, 54: 0, 60: 2, 62: 1, 63: 0}
    for o in OPT:
        if o.startswith("pr="): prio_at.update({int(x.split(":")[0]): int(x.split(":")[1]) for x in o[3:].split(",")})
    SB = opt("sb", "3")[0]
    F1, F2, F3 = opt("ff", "4,8,12")
    P1_, Q1_, P2_, Q2_, P3_, Q3_ = opt("fu", "3,4,6,7,11,12")
    FETCH = [([2], "f1", 1, 8, P1_, Q1_), ([3, 4], "f2", 1, 10, P2_, Q2_), ([5, 6, 7, 8], "f3", 1, 8, P3_, Q3_),
             ([9, 10, 11, 12, 13], "f4", 0, 8, 19, 20), ([14, 15], "f5", 2, 8, 35, 36)]
    PF_ = opt("pf", "16")[0]
    WOU = {37: 0, 38: 1, 56: 2, 57: 3}; XU, XC = 46, 55
    if "plan4" in OPT:
        BAR = (10, 26, 46)
        prio_at = {4: 2, 6: 1, 7: 0, 10: 1, 11: 3, 18: 2, 24: 1, 26: 0, 37: 2, 44: 1, 46: 0, 56: 2, 61: 1, 63: 0}
        FETCH = [([2], "f1", 1, 8, P1_, Q1_), ([3, 4, 5, 6], "f2", 1, 8, 6, 7), ([7, 8, 9, 10, 11], "f3", 0, 8, 14, 15), ([12, 13, 14, 15], "f4", 1, 8, 27, 28)]
        PF_ = 12; WOU = {48: 0, 49: 1, 50: 2, 51: 3}; XU, XC = 38, 47
    def publish(u, force):
        a("s_cmp_eq_u32 s3, 0", f"s_cbranch_scc1 L_pub{u}")
        if force == "A": a("s_cmp_lt_u32 s25, 4", f"s_cbranch_scc1 L_pubf{u}")
        if force != "all": a("s_getreg_b32 s53, hwreg(HW_REG_IB_STS)", "s_and_b32 s53, s53, 0xc0000f", f"s_cbranch_scc1 L_pub{u}")
        a(f"L_pubf{u}:", f"v_mov_b32 v{T}, s48", f"v_mov_b32 v{T+1}, s49", "s_waitcnt vmcnt(0)")
        stamp(a, 7)
        a("s_mov_b64 exec, 1", f"buffer_store_dwordx2 {vr(T,2)}, v60, s[36:39], s61 offen {WT}", "s_mov_b64 exec, -1", "s_mov_b32 s3, 0", f"L_pub{u}:")
    def barrier(u):
        if u < 20: a("s_cmp_lt_u32 s25, 8", f"s_cbranch_scc1 L_b{u}", "s_waitcnt vmcnt(0)", f"L_b{u}:")
        else: a("s_waitcnt vmcnt(0)")
        a("s_barrier", "s_setprio 3")
        IDL = opt("idle", "99,0")
        if u == IDL[0]: a(f"s_sleep {IDL[1]}")
    for u in range(NT):
        s = S[u % 2]
        if u in prio_at: a(f"s_setprio {prio_at[u]}")
        late = u in LATE
        a("s_waitcnt lgkmcnt(0)")
        a(ex(s, 0, 2))
        if u > 0: a(smf(O, VB[(u-1) % 2] + 4, S[(u-1) % 2] + 8, IDX))
        if u + 1 < NT and not late: a(vread(u + 1))
        a(ex(s, 2, 5))
        if u + 1 < NT and not late:
            a(mfma(S[(u+1) % 2], KB[(u+1) % 2], Q, "0"))
            if u in BAR:
                barrier(u)
                if u == 34: stamp(a, 10)
                if u == 18 and "b12" in OPT: stamp(a, 2)
                if u == 10 and "b12" in OPT: stamp(a, 1)
                cstamp(a, {10: 2, 18: 3, 34: 4, 54: 6}.get(u, 7))
            if u + 2 < NT and u + 1 not in LATE: a(kread(u + 2))
        a(ex(s, 5, 10))
        a(smf(O, VB[u % 2], s, IDX))
        a(ex(s, 10, 16))
        if u <= PF_:
            if u == 0: a.c("publish this wave's K/V tile as soon as its stores have been acknowledged")
            publish(u, "A" if u == 7 else "all" if u == PF_ else "")
        if late:
            if u == 7: stamp(a, 8)
            barrier(u)
            if u == 7: stamp(a, 9)
            if u == 11 and "b12" in OPT: stamp(a, 1)
            cstamp(a, {7: 1, 11: 2}[u])
            a(kread(u + 1), kread(u + 2), vread(u + 1), "s_waitcnt lgkmcnt(3)", mfma(S[(u+1) % 2], KB[(u+1) % 2], Q, "0"), "s_nop 10")
        if u == SB:
            a.c("second-half tiles go out after the first-half ones, which are needed sooner")
            a("s_sub_u32 s53, s25, 4", "s_cmp_ge_u32 s53, 4", "s_cbranch_scc1 L_nost2", gst, "s_mov_b32 s3, 1", "L_nost2:")
        if u == 19:
            a.c("wave 0 publishes the workgroup's XCC id")
            a("s_cmp_lg_u32 s25, 0", "s_cbranch_scc1 L_xid", f"v_mov_b32 v{T}, s48", f"v_mov_b32 v{T+1}, s49",
              f"v_or_b32 v{T}, s26, v{T}", "s_lshl_b32 s53, s23, 3", "s_add_u32 s53, s53, s10",
              "s_mov_b64 exec, 1", f"buffer_store_dwordx2 {vr(T,2)}, v60, s[36:39], s53 offen {WT}", "s_mov_b64 exec, -1", "L_xid:")
        for (ns, tag, lg, w0, up, ul) in FETCH:
            if u == up: fetch_poll(ns, tag, lg, w0)
            if u == ul: fetch_load(ns, tag, lg, w0)
        if u in WOU:
            aa = WOU[u]
            if aa == 0: a.c("Wo tile -> LDS (half-slots 6..9)")
            a("s_lshl_b32 s63, s25, 13", f"s_add_u32 m0, s62, {WO + aa*16384}", f"s_add_u32 s53, s63, {aa*131072}", f"buffer_load_dwordx4 v{WOA}, s[40:43], s53 offen lds")
        if u == XU:
            a.c("XCC ids of the row block's workgroups; bring the O and O-flag lines this wave will write into L2")
            a(f"buffer_load_dwordx2 {vr(T+2,2)}, v{T+5}, s[36:39], s10 offen sc1",
              f"buffer_load_dword v{T+1}, v60, s[36:39], s59 offen",
              f"buffer_load_dword v{T}, v{LO}, s[36:39], s58 offen")
        if u == XC:
            a.c("local hand-off only when all 16 workgroups of this row block run on this XCC")
            a("s_or_b32 s52, s48, s26", "s_mov_b32 s53, s49", f"v_cmp_eq_u64 vcc, s[52:53], {vr(T+2,2)}", "s_nop 1",
              "s_cmp_eq_u64 vcc, -1", "s_cselect_b32 s27, 1, 0")
            if "noloc" in OPT: a("s_mov_b32 s27, 0")
    a("s_nop 1", smf(O, VB[(NT-1) % 2] + 4, S[(NT-1) % 2] + 8, IDX), "s_setprio 3",
      f"v_mov_b32 v{T}, s48", f"v_mov_b32 v{T+1}, s49", f"v_mov_b32 v{T+3}, 0x7f800000", "s_nop 7")
    a.c("safety check of the zero stand-in: 1 <= l <= 2^48 and finite O, else redo with the true row max")
    a(f"v_cmp_le_f32 s[52:53], v{CK}, v{O+8}", f"v_cmp_ge_f32 s[56:57], v{CK+1}, v{O+8}",
      f"v_maximum3_f32 v{CK}, abs(v{O}), abs(v{O+1}), abs(v{O+2})", f"v_maximum3_f32 v{CK}, abs(v{O+3}), abs(v{O+4}), v{CK}",
      f"v_maximum3_f32 v{CK}, abs(v{O+5}), abs(v{O+6}), v{CK}", f"v_maximum3_f32 v{CK}, abs(v{O+7}), v{CK}, v{CK}",
      "s_and_b64 s[52:53], s[52:53], s[56:57]",
      f"v_cmp_gt_f32 vcc, v{T+3}, v{CK}", f"v_rcp_f32 v{T+2}, v{O+8}", "s_and_b64 s[52:53], s[52:53], vcc",
      "s_cmp_eq_u64 s[52:53], -1", "s_cbranch_scc0 L_fallback")
    a("L_finish:")
    stamp(a, 11)
    cstamp(a, 5)
    if "cyc2" in OPT: a("s_memtime s[96:97]", "s_waitcnt lgkmcnt(0)", "s_sub_u32 s96, s96, s98", "s_add_u32 s66, s82, s96", "s_addc_u32 s67, s83, 0")
    for r in range(4): a(f"v_pk_mul_f32 {vr(O+2*r,2)}, {vr(O+2*r,2)}, {vr(T+2,2)} op_sel_hi:[1,0]")
    for r in range(4): a(f"v_cvt_pk_bf16_f32 v{O+12+r}, v{O+2*r}, v{O+2*r+1}")
    a("s_cmp_eq_u32 s27, 1", "s_cbranch_scc1 L_ostore_local")
    a(f"buffer_store_dwordx4 {vr(O+12,4)}, v{LO}, s[36:39], s58 offen {WT}", "s_waitcnt vmcnt(0)",
      "s_mov_b64 exec, 1", f"buffer_store_dwordx2 {vr(T,2)}, v60, s[36:39], s59 offen {WT}", "s_mov_b64 exec, -1", "s_branch L_ostored")
    a("L_ostore_local:")
    a(f"buffer_store_dwordx4 {vr(O+12,4)}, v{LO}, s[36:39], s58 offen", "s_waitcnt vmcnt(0)",
      "s_mov_b64 exec, 1", f"buffer_store_dwordx2 {vr(T,2)}, v60, s[36:39], s59 offen", "s_mov_b64 exec, -1")
    a("L_ostored:")
    stamp(a, 12)
    a("s_barrier")
    if TS:
        a("s_cmp_lt_u32 s25, 8", "s_cbranch_scc1 L_ts_p3", ["s_barrier"]*(5 if "g4" in OPT else 3))
        if "allw" in OPT:
            for w in range(8, 16): ts_flush(a, w, w, f"w{w}")
        else:
            ts_flush(a, 1, 8, "w8")
            ts_flush(a, 2, 15, "w15")
        a("s_endpgm", "L_ts_p3:")
    else:
        a("s_cmp_ge_u32 s25, 8", "s_cbranch_scc1 L_done")

    ACC3 = [0, 16]; OFR = 32; WB = [96, 104, 112]; A3 = [120, 122]; VO = 116; PA = 123; L = 118; PF = 124
    opoll = [f"buffer_load_dwordx4 {vr(PF,4)}, v{LO}, s[36:39], s11 offen sc1"]
    ocond = [f"v_cmp_eq_u64 vcc, s[48:49], {vr(PF,2)}", f"v_cmp_eq_u64 s[52:53], s[48:49], {vr(PF+2,2)}", "s_nop 1",
             "s_and_b64 vcc, vcc, s[52:53]", "s_cmp_eq_u64 vcc, -1"]
    a("s_cmp_lt_u32 s25, 4", "s_cbranch_scc1 L_p3c")
    a("s_and_b32 s56, s25, 3", "s_lshl_b32 s56, s56, 14")
    a("s_barrier")
    for i in range(16):
        a(f"s_add_u32 m0, s56, {i*1024}", f"s_add_u32 s53, s12, {(16+i)*1024}", f"buffer_load_dwordx4 v{LO}, s[36:39], s53 offen sc1 lds")
    G3 = 4 if "g4" in OPT else 8
    for x in range(16 - G3, -1, -G3): a(f"s_waitcnt vmcnt({x})", "s_barrier")
    if "wb2" in OPT:
        a("s_cmp_lg_u32 s25, 4", "s_cbranch_scc1 L_nowb", "buffer_wbl2 sc1", "L_nowb:")
    if "allw" in OPT:
        for w in range(4, 8): ts_flush(a, w, w, f"w{w}")
    a("s_endpgm")
    a("L_p3c:")
    a(opoll)
    a(f"v_lshrrev_b32 v6, 4, v{LO}")
    a(f"v_lshrrev_b32 v4, 5, v6", f"v_bfe_u32 v5, v6, 2, 2", "v_lshl_add_u32 v4, v4, 2, v5", "v_lshlrev_b32 v4, 7, v4",
      f"v_and_b32 v5, 1, v6", "v_lshl_add_u32 v4, v5, 6, v4", f"v_bfe_u32 v5, v6, 4, 1", "v_lshl_add_u32 v4, v5, 4, v4",
      f"v_bfe_u32 v5, v6, 3, 1", "v_lshl_add_u32 v4, v5, 5, v4", f"v_bfe_u32 v5, v6, 1, 1", f"v_lshl_add_u32 v4, v5, 3, v4",
      f"v_add_u32 v{A3[0]}, {WO}, v4", f"v_xor_b32 v{A3[1]}, 32, v{A3[0]}")
    a("s_lshl_b32 s56, s25, 14", f"v_add_u32 v{PA}, s56, v{LO}")
    def reads3(hd, buf):
        out = []
        for cb in range(2):
            for j in range(2):
                out.append(f"ds_read_b64_tr_b16 {vr(buf + cb*4 + j*2, 2)}, v{A3[cb]} offset:{hd*2048 + j*1024}")
        return out
    a(reads3(0, WB[0]), reads3(1, WB[1]))
    spin(a, "o", ocond, opoll)
    stamp(a, 13)
    for i in range(16):
        if i % 4 == 0: a(f"s_add_u32 s53, s12, {i*1024}")
        a(f"buffer_load_dwordx4 {vr(OFR + i*4, 4)}, v{LO}, s[36:39], s53 offen offset:{(i%4)*1024} sc1")
    a("s_barrier")
    lq = ["W0"]*4 + ["W1"]*4
    def lwait(need):
        nonlocal lq
        idx = [i for i, x in enumerate(lq) if x in need]
        if not idx: return None
        keep = len(lq) - 1 - max(idx)
        lq = lq[len(lq) - keep:]
        return keep
    def oread(n):
        lq.append(f"O{n}")
        return f"ds_read_b128 {vr(OFR + (n-16)*4, 4)}, v{PA} offset:{(n-16)*1024}"
    for n in range(32):
        cur = WB[n % 3]
        if n >= 16 and n % G3 == 0:
            if "p3ts" in OPT and n == 16: stamp(a, 2); lq = []
            a("s_barrier")
            if "p3ts" in OPT and n == 32 - G3: stamp(a, 3); lq = []
            for i in range(2): a(oread(n + i))
        kw = lwait({f"W{n}", f"O{n}"})
        w = []
        if n < 16: w.append(f"vmcnt({15 - n})")
        if kw is not None: w.append(f"lgkmcnt({kw})")
        if w: a("s_waitcnt " + " ".join(w))
        if "p3ts" in OPT and n in (0, 31): stamp(a, {0: 1, 31: 4}[n]); lq = []
        rd = reads3(n + 2, WB[(n+2) % 3]) if n + 2 < 32 else []
        for cb in range(2):
            a(mfma(ACC3[cb], cur + cb*4, OFR + (n%16)*4, "0" if n == 0 else ACC3[cb]))
            if rd: a(rd[2*cb:2*cb+2]); lq.extend([f"W{n+2}"]*2)
            if cb == 0 and n >= 16 and (n % G3) + 2 < G3: a(oread(n + 2))
        assert len(lq) <= 15, lq
    a(f"v_lshrrev_b32 v{L}, 4, v{LO}")
    PA = 117
    a.c("transpose through LDS (slot 1 is free) so that every store writes whole 128-byte lines")
    TA_ = 119; TB_ = 120
    a(f"v_and_b32 v{TA_}, 31, v{L}", f"v_lshrrev_b32 v{PA}, 5, v{L}", f"v_lshlrev_b32 v{PA}, 2, v{PA}", f"v_and_b32 v{TB_}, 7, v{L}",
      f"v_xor_b32 v{PA}, v{PA}, v{TB_}", f"v_lshlrev_b32 v{PA}, 4, v{PA}", f"v_lshl_add_u32 v{TA_}, v{TA_}, 7, v{PA}",
      "s_mov_b32 s52, s56", f"v_add_u32 v{TA_}, s52, v{TA_}",
      f"v_lshrrev_b32 v{PA}, 3, v{L}", f"v_xor_b32 v{VO}, v{PA}, v{TB_}", f"v_lshlrev_b32 v{VO}, 4, v{VO}", f"v_lshl_add_u32 v{VO}, v{PA}, 7, v{VO}",
      f"v_add_u32 v{VO}, s52, v{VO}",
      f"v_lshlrev_b32 v{TB_}, 4, v{TB_}", f"v_lshl_add_u32 v{TB_}, v{PA}, 11, v{TB_}")
    for cb in range(2):
        for q in range(2):
            c = cb*2 + q
            t = 32 + c*4
            for r in range(4): a(f"v_cvt_pk_bf16_f32 v{t+r}, v{ACC3[cb]+q*8+2*r}, v{ACC3[cb]+q*8+2*r+1}")
            if c: a(f"v_xor_b32 v{PA}, {c*16}, v{TA_}")
            a(f"ds_write_b128 v{PA if c else TA_}, {vr(t,4)}")
    a("s_waitcnt lgkmcnt(0)")
    for i in range(4): a(f"ds_read_b128 {vr(48 + i*4, 4)}, v{VO} offset:{i*1024}")
    for i in range(4):
        a(f"s_add_u32 s53, s13, {i*16384}", f"s_waitcnt lgkmcnt({3-i})", f"buffer_store_dwordx4 {vr(48 + i*4, 4)}, v{TB_}, s[44:47], s53 offen" + (" sc1" if "osc1" in OPT else " nt" if "ont" in OPT else " sc0 sc1" if "osys" in OPT else ""))
    if TS:
        if "p3ts" in OPT: stamp(a, 5)
        a("s_waitcnt vmcnt(0)")
        stamp(a, 14)
        ts_flush(a, 0, 0, "w0")
        if "allw" in OPT:
            for w in range(1, 4): ts_flush(a, w, w, f"w{w}")
    a("L_done:", "s_endpgm")

    a("L_fallback:")
    M = T + 2
    a("s_lshr_b32 s52, s25, 3", "s_lshl_b32 s52, s52, 13", "s_add_u32 s52, s52, s54",
      f"v_mov_b32 v{M}, 0xff800000", "s_mov_b32 s63, 0",
      f"v_sub_u32 v{T+3}, v{VA[0]}, v{KA[0]}", f"v_add_u32 v{T+3}, v{T+3}, v{LO}")
    def fb_addr():
        return ["s_lshr_b32 s53, s63, 2", "s_lshl_b32 s53, s53, 14", "s_and_b32 s56, s63, 3", "s_lshl_b32 s56, s56, 11",
                "s_add_u32 s53, s53, s56", "s_add_u32 s53, s53, s52"]
    a("L_fb1:", fb_addr(),
      f"buffer_load_dwordx4 {vr(KB[0],4)}, v{LO}, s[36:39], s53 offen sc1", "s_waitcnt vmcnt(0)",
      mfma(S[0], KB[0], Q, "0"), "s_nop 15")
    for r in range(8): a(f"v_max3_f32 v{M}, v{S[0]+2*r}, v{S[0]+2*r+1}, v{M}")
    a("s_add_u32 s63, s63, 1", "s_cmp_lg_u32 s63, 64", "s_cbranch_scc1 L_fb1")
    a(f"v_mov_b32 v{T}, v{M}", "s_nop 1", f"v_permlane32_swap_b32 v{M}, v{T}", "s_nop 1", f"v_max_f32 v{M}, v{M}, v{T}", f"v_sub_f32 v{M}, 0, v{M}")
    for r in range(16): a(f"v_mov_b32 v{CM+r}, v{M}")
    for r in range(16): a(f"v_mov_b32 v{O+r}, 0")
    a("s_mov_b32 s63, 0")
    a("L_fb2:", fb_addr(),
      f"buffer_load_dwordx4 {vr(KB[0],4)}, v{LO}, s[36:39], s53 offen sc1", "s_mov_b64 exec, s[50:51]",
      f"buffer_load_dwordx4 {vr(VB[0],4)}, v{T+3}, s[36:39], s53 offen sc1",
      f"buffer_load_dwordx4 {vr(VB[0]+4,4)}, v{T+3}, s[36:39], s53 offen offset:512 sc1", "s_mov_b64 exec, -1",
      "s_waitcnt vmcnt(0)", mfma(S[0], KB[0], Q, CM), "s_nop 15")
    a(ex(S[0], 0, 16), "s_nop 1", smf(O, VB[0], S[0], IDX), smf(O, VB[0] + 4, S[0] + 8, IDX))
    a("s_add_u32 s63, s63, 1", "s_cmp_lg_u32 s63, 64", "s_cbranch_scc1 L_fb2")
    a("s_nop 15", f"v_rcp_f32 v{T+2}, v{O+8}", f"v_mov_b32 v{T}, s48", f"v_mov_b32 v{T+1}, s49", "s_branch L_finish", "L_code_end:")
    a.l.append(f""".section .rodata,"a"
.p2align 6
.amdhsa_kernel {k}
  .amdhsa_next_free_vgpr 128
  .amdhsa_next_free_sgpr {102 if TS else 68}
  .amdhsa_accum_offset 128
  .amdhsa_group_segment_fixed_size 0
  .amdhsa_kernarg_size 72
  .amdhsa_user_sgpr_count 2
  .amdhsa_user_sgpr_kernarg_segment_ptr 1
  .amdhsa_system_sgpr_workgroup_id_x 1
.end_amdhsa_kernel""")

a = Asm()
a.l += """; Two multi-head attention blocks (S=2048, D=512, H=32, Dh=16) in one launch, 256 workgroups x 16 waves.
; @launch grid=(256,1,1) block=(1024,1,1) lds=163840
; Workgroup = (problem p, head pair hp, block j of 256 tokens); ids are laid out so that a token block's 16 workgroups
; share an XCD (speed only - every hand-off below is valid under any placement).
;  P1  q,k,v projection of the 256 tokens x 2 heads: waves 8-15 stream x / wqkv k-chunks into LDS (LDS-DMA ring),
;      waves 0-7 run 16x16x32 MFMAs and leave Q, K and V^T as ready MFMA fragments (Q scaled by log2(e)/4).
;      K/V go to LDS (own tiles) and, write-through, to d_ws for the other seven token blocks.
;  P2  wave = (32 queries, head). S^T = K Q^T (32x32x16 MFMA), p = exp2(S^T) in place, O^T += V^T p with the 2:4
;      sparse MFMA reading the fp32 p registers as bf16 pairs (index 0xdddd keeps the high halves = truncated bf16);
;      a ones row in V^T accumulates the row sum. No max is subtracted; afterwards the wave checks that the row sums
;      lie in [1, 2^48] and O is finite, otherwise it redoes its rows with the true row max (L_fallback).
;      Remote K/V arrive in 16 KB half-blocks through a ten-slot LDS ring, each after its producer's flags.
;  P3  output projection of a 128 x 64 tile after the row block's O fragments are flagged.
; Flags carry a per-launch tag (clock value published through d_debug by workgroup 0); every wait is bounded.
.amdgcn_target "amdgcn-amd-amdhsa--gfx950"
.text""".split("\n")
gen(a)
print(a.text())
```

```python
import sys, math, struct

NAME = "concat_heads__mha_block__mha_block__prompt"
OPT = set(sys.argv[1:]) | {"pub0", "stmid", "tx67", "b0late"}
if "noc3" in OPT: pass
elif not any(o.startswith("stg=") for o in OPT): OPT |= {"c3=3"}
else: OPT |= {"nopf"}
if not OPT & {"tx", "a3", "nopf"}: OPT |= {"tx", "tw", "early", "rot", "rotb", "c3r"}
NWS = 5 if "w5" in OPT else (4 if "w4" in OPT else 3)
TS = "ts" in OPT
WT = "sc0 sc1" if "sys" in OPT else "sc1 nt" if "wtnt" in OPT else "sc1"
XNT = " nt" if "xnt" in OPT else ""
WNT = " nt" if "wnt" in OPT else ""
KV_OFF = 0
OF_OFF = 8 << 20
FKV_OFF = 12 << 20
FO_OFF = (12 << 20) + 65536
XID_OFF = (12 << 20) + 131072
WS_USED = 13 << 20
QSCALE = 0.25 * math.log2(math.e)
SPIN_MAX = 1 << 18
def f32bits(x): return struct.unpack("<I", struct.pack("<f", x))[0]

class Asm:
    def __init__(self): self.l = []
    def __call__(self, *lines):
        for x in lines:
            if isinstance(x, (list, tuple)): self(*x)
            else: self.l.append("    " + x if not x.endswith(":") else x)
    def c(self, s): self.l.append("    ; " + s)
    def text(self): return "\n".join(self.l)

def vr(b, n): return f"v[{b}:{b+n-1}]"
def mfma(d, a, b, c):
    cs = vr(c, 16) if isinstance(c, int) else c
    return f"v_mfma_f32_32x32x16_bf16 {vr(d,16)}, {vr(a,4)}, {vr(b,4)}, {cs}"
def smf(d, a, b, idx): return f"v_smfmac_f32_32x32x32_bf16 {vr(d,16)}, {vr(a,4)}, {vr(b,8)}, v{idx}"

P1TS_DONE = False
def stamp(a, j):
    if "p1ts" in OPT and P1TS_DONE and j >= 7: return
    if "cyc3" in OPT: return
    if TS: a(f"s_memrealtime s[{64+2*j}:{65+2*j}]", "s_waitcnt lgkmcnt(0)")
def cstamp(a, j):
    if "cyc3" in OPT and not ("ends" in OPT and j not in (0, 5)):
        if j == 0: a("s_memtime s[98:99]", "s_waitcnt lgkmcnt(0)")
        else: a("s_memtime s[96:97]", "s_waitcnt lgkmcnt(0)", "s_sub_u32 s96, s96, s98", f"s_add_u32 s{64+2*j}, s64, s96", f"s_addc_u32 s{65+2*j}, s65, 0")
def ts_init(a):
    if TS:
        for j in range(15): a(f"s_mov_b64 s[{64+2*j}:{65+2*j}], 0")
        a("s_mov_b32 s94, 0x5151", "s_mov_b32 s95, 0")
def ts_flush(a, kidx, wave, tag):
    if not TS: return
    a(f"s_cmp_lg_u32 s25, {wave}", f"s_cbranch_scc1 TS_skip_{tag}")
    a("s_sleep 127", "s_sleep 127", "s_sleep 127")
    a("s_mov_b64 exec, 1", f"s_lshl_b32 s96, s2, 7", f"s_add_u32 s96, s96, {(32<<20) + kidx*256*128}", "v_mov_b32 v1, s96")
    for j in range(16):
        a(f"v_mov_b32 v2, s{64+2*j}", f"v_mov_b32 v3, s{65+2*j}", f"global_store_dwordx2 v1, v[2:3], s[20:21] offset:{j*8}", "s_nop 1")
    a("s_waitcnt vmcnt(0)", "s_mov_b64 exec, -1", f"TS_skip_{tag}:")

XRING = 0
WRING = 98304
QX = 65536
TAGL = 163832
EREG = 131072

def spin(a, name, cond_lines, reload_lines, slp=1):
    a(f"s_mov_b32 s63, {SPIN_MAX}", f"L_{name}_chk:", "s_waitcnt vmcnt(0)", cond_lines, f"s_cbranch_scc1 L_{name}_ok", f"s_sleep {slp}",
      reload_lines, "s_sub_u32 s63, s63, 1", "s_cmp_lg_u32 s63, 0", f"s_cbranch_scc1 L_{name}_chk", "s_waitcnt vmcnt(0)", f"L_{name}_ok:")

def gen(a):
    k = NAME + "_kernel"
    a.l += [f".globl {k}", ".p2align 8", f".type {k},@function", f"{k}:"]
    a("s_cmp_ge_u32 s2, 256", "s_cbranch_scc1 L_done")
    a("s_load_dwordx16 s[4:19], s[0:1], 0", "s_load_dwordx2 s[20:21], s[0:1], 64")
    ts_init(a)
    if TS: a("s_memrealtime s[64:65]")
    a("s_memrealtime s[48:49]")
    a("s_and_b32 s52, s2, 7", "s_lshr_b32 s53, s2, 3",
      "s_lshr_b32 s22, s52, 2",
      "s_and_b32 s23, s53, 15",
      "s_and_b32 s24, s52, 3", "s_lshl_b32 s24, s24, 1", "s_lshr_b32 s53, s53, 4", "s_add_u32 s24, s24, s53")
    a("v_lshrrev_b32 v1, 6, v0", "v_and_b32 v0, 63, v0", "s_getreg_b32 s26, hwreg(HW_REG_XCC_ID)", "v_readfirstlane_b32 s25, v1")
    a("s_and_b32 s26, s26, 7", "s_lshl_b32 s62, s25, 10")
    a("s_waitcnt lgkmcnt(0)")
    WSB = int(([o for o in OPT if o.startswith("wsb=")] or ["wsb=0"])[0][4:]) << 20
    if WSB: a(f"s_add_u32 s20, s20, {WSB}", "s_addc_u32 s21, s21, 0")
    a("s_cmp_eq_u32 s22, 0",
      "s_cselect_b32 s4, s4, s10", "s_cselect_b32 s5, s5, s11", "s_cselect_b32 s6, s6, s12", "s_cselect_b32 s7, s7, s13",
      "s_cselect_b32 s8, s8, s14", "s_cselect_b32 s9, s9, s15")
    a("s_lshl_b32 s52, s24, 18", "s_add_u32 s28, s4, s52", "s_addc_u32 s29, s5, 0", "s_and_b32 s29, s29, 0xffff",
      "s_mov_b32 s30, 262144", "s_mov_b32 s31, 0x20000")
    a("s_mov_b32 s32, s6", "s_and_b32 s33, s7, 0xffff", f"s_mov_b32 s34, {512*3072}", "s_mov_b32 s35, 0x20000")
    a("s_cmp_ge_u32 s25, 8", "s_cbranch_scc1 L_loader")
    MARK0 = len(a.l)

    O = 0; Q = 16; S = [20, 36]; KB = [52, 56]; VB = [100, 108]; IDX = 116; KA = [117, 118, 98]; VA = [119, 120, 99]; LO = 121; T = 122
    CM = 80
    WOA = 61; CK = 62

    def common_init(a):
        a("s_mov_b32 s36, s20", "s_and_b32 s37, s21, 0xffff", f"s_mov_b32 s38, {WS_USED}", "s_mov_b32 s39, 0x20000")
        a("s_and_b32 s52, s23, 7", "s_lshl_b32 s52, s52, 7", "s_add_u32 s40, s8, s52", "s_addc_u32 s41, s9, 0", "s_and_b32 s41, s41, 0xffff",
          f"s_sub_u32 s42, {512*1024}, s52", "s_mov_b32 s43, 0x20000")
        a("s_mov_b32 s44, s16", "s_and_b32 s45, s17, 0xffff", f"s_mov_b32 s46, {2048*2048}", "s_mov_b32 s47, 0x20000")
        a("s_mov_b32 s50, 0xffff", "s_mov_b32 s51, 0xffff")
        a("s_lshl_b32 s54, s22, 4", "s_add_u32 s54, s54, s23", "s_lshl_b32 s54, s54, 18", "s_lshl_b32 s55, s24, 15", "s_add_u32 s55, s55, s54")
        a(f"v_lshlrev_b32 v{LO}, 4, v0",
          "s_lshr_b32 s56, s25, 3", "s_lshl_b32 s53, s56, 13",
          f"v_add_u32 v{KA[0]}, s53, v{LO}", f"v_add_u32 v{KA[1]}, 0x10000, v{KA[0]}", f"v_add_u32 v{KA[2]}, 0x20000, v{KA[0]}",
          "v_and_b32 v13, 15, v0", "v_lshlrev_b32 v13, 4, v13", "v_lshrrev_b32 v14, 5, v0", "v_lshl_add_u32 v13, v14, 8, v13",
          "s_add_u32 s53, s53, 1024", f"v_add_u32 v{VA[0]}, s53, v13", f"v_add_u32 v{VA[1]}, 0x10000, v{VA[0]}", f"v_add_u32 v{VA[2]}, 0x20000, v{VA[0]}",
          f"v_mov_b32 v{IDX}, 0xdddddddd")
        a("v_and_b32 v13, 27, v0", "v_cmp_eq_u32 vcc, 16, v13", "v_mov_b32 v14, 0x3f803f80",
          f"v_mov_b32 v{T}, {TAGL}", f"v_lshlrev_b32 v{T+4}, 3, v0", "v_cndmask_b32 v13, 0, v14, vcc")
        for r in range(16): a(f"v_mov_b32 v{VB[0]+r}, v13")
        a("s_and_b32 s53, s25, 7", "s_lshl_b32 s58, s24, 3", "s_add_u32 s58, s58, s53", "s_lshl_b32 s57, s22, 6", "s_add_u32 s58, s58, s57",
          "s_lshl_b32 s58, s58, 5", "s_lshl_b32 s53, s23, 1", "s_add_u32 s53, s53, s56", "s_add_u32 s58, s58, s53",
          "s_lshl_b32 s59, s58, 3", f"s_add_u32 s59, s59, {FO_OFF}", "s_lshl_b32 s58, s58, 10", f"s_add_u32 s58, s58, {OF_OFF}")
        a("s_lshr_b32 s60, s54, 7", f"s_add_u32 s60, s60, {FKV_OFF}", "s_lshl_b32 s61, s24, 8", "s_add_u32 s61, s61, s60",
          "s_bfe_u32 s53, s25, 0x10002", "s_lshl_b32 s53, s53, 7", "s_add_u32 s61, s61, s53",
          "s_and_b32 s53, s25, 3", "s_lshl_b32 s53, s53, 3", "s_add_u32 s61, s61, s53")
        a("s_lshl_b32 s10, s22, 3", "s_add_u32 s10, s10, s24", "s_lshl_b32 s10, s10, 7", f"s_add_u32 s10, s10, {XID_OFF}")
        a("s_lshl_b32 s52, s24, 3", "s_lshr_b32 s53, s23, 3", "s_lshl_b32 s53, s53, 2", "s_add_u32 s52, s52, s53",
          "s_add_u32 s53, s57, s52", "s_lshl_b32 s11, s53, 8", f"s_add_u32 s11, s11, {FO_OFF}",
          "s_and_b32 s12, s25, 3", "s_add_u32 s52, s52, s12", "s_add_u32 s53, s53, s12", "s_lshl_b32 s12, s53, 15", f"s_add_u32 s12, s12, {OF_OFF}",
          "s_lshl_b32 s13, s22, 10", "s_and_b32 s53, s23, 7", "s_lshl_b32 s53, s53, 7", "s_add_u32 s13, s13, s53",
          "s_lshl_b32 s53, s52, 16", "s_add_u32 s13, s13, s53")

    XA = [1, 2]; XB = [3, 4]; WA = [5, 6]; VK = 96; VV = 97; QA = 123
    ACC = 16
    FXR = [64, 68]; FW = 72
    def touches():
        if "tx" in OPT:
            a.c("HBM/L2 warm-up: waves 0,1 touch 8 KB each of this workgroup's share of the X block")
            if "tx67" in OPT:
                a("s_and_b32 s53, s25, 6", "s_mov_b32 s52, s23", "s_cmp_eq_u32 s53, 0", "s_cbranch_scc1 L_tx_own",
                  "s_cmp_lg_u32 s53, 6", "s_cbranch_scc1 L_tx_done", "s_sub_u32 s52, s23, 2", "s_lshr_b32 s53, s52, 1", "s_cmp_lg_u32 s53, 3", "s_cbranch_scc1 L_tx_done",
                  "s_branch L_tx_go", "L_tx_own:", "s_lshr_b32 s53, s52, 1", "s_cmp_eq_u32 s53, 3", "s_cbranch_scc1 L_tx_done", "L_tx_go:",
                  "s_lshl_b32 s52, s52, 14", "s_and_b32 s53, s25, 1", "s_lshl_b32 s53, s53, 13", "s_add_u32 s52, s52, s53",
                  "v_lshlrev_b32 v13, 7, v0", "buffer_load_dword v125, v13, s[28:31], s52 offen" + XNT, "L_tx_done:")
            else:
                a("s_cmp_ge_u32 s25, 2", "s_cbranch_scc1 L_tx_done",
                  "s_lshl_b32 s52, s23, 14", "s_lshl_b32 s53, s25, 13", "s_add_u32 s52, s52, s53",
                  "v_lshlrev_b32 v13, 7, v0", "buffer_load_dword v125, v13, s[28:31], s52 offen" + XNT, "L_tx_done:")
        if "tw" in OPT:
            a.c("waves 2,3 touch 6 KB each of W (1/128 of the matrix per workgroup)")
            a("s_sub_u32 s52, s25, 2", "s_cmp_ge_u32 s52, 2", "s_cbranch_scc1 L_tw_done",
              "s_lshl_b32 s53, s24, 4", "s_add_u32 s53, s53, s23", "s_lshl_b32 s53, s53, 1", "s_add_u32 s52, s52, s53",
              "s_mul_i32 s52, s52, 6144", "v_cmp_gt_u32 vcc, 48, v0", "v_lshlrev_b32 v13, 7, v0", "s_and_saveexec_b64 s[56:57], vcc",
              "buffer_load_dword v125, v13, s[32:35], s52 offen", "s_mov_b64 exec, -1", "L_tw_done:")
        if "twf" in OPT:
            a.c("waves 2..7 touch 8 KB each of W (1/32 of the matrix per workgroup)")
            a("s_sub_u32 s52, s25, 2", "s_cmp_ge_u32 s52, 6", "s_cbranch_scc1 L_twf_done",
              "s_and_b32 s53, s24, 1", "s_lshl_b32 s53, s53, 4", "s_add_u32 s53, s53, s23", "s_mul_i32 s53, s53, 6", "s_add_u32 s52, s52, s53",
              "s_lshl_b32 s52, s52, 13", "v_lshlrev_b32 v13, 7, v0",
              "buffer_load_dword v125, v13, s[32:35], s52 offen", "L_twf_done:")
    def touchX(c0, nc, wave, tag):
        a(f"s_cmp_lg_u32 s25, {wave}", f"s_cbranch_scc1 L_{tag}_done")
        if nc == 2: a("v_lshrrev_b32 v13, 1, v0", "v_and_b32 v14, 1, v0")
        elif nc == 4: a("v_lshrrev_b32 v13, 2, v0", "v_and_b32 v14, 3, v0")
        else: a("v_mul_u32_u24 v13, 43, v0", "v_lshrrev_b32 v13, 7, v13", "v_mul_u32_u24 v14, 3, v13", "v_sub_u32 v14, v0, v14")
        a("v_lshlrev_b32 v13, 10, v13", "v_lshl_add_u32 v13, v14, 7, v13", "s_lshl_b32 s52, s23, 14", f"s_add_u32 s52, s52, {c0*128}",
          f"v_cmp_gt_u32 vcc, {16*nc}, v0", "s_nop 1", "s_and_saveexec_b64 s[56:57], vcc",
          "buffer_load_dword v125, v13, s[28:31], s52 offen" + XNT, "s_mov_b64 exec, -1", f"L_{tag}_done:")
    def touchW(c0, nc, wave, tag):
        a(f"s_cmp_lg_u32 s25, {wave}", f"s_cbranch_scc1 L_{tag}_done",
          "s_lshl_b32 s52, s24, 4", "s_add_u32 s52, s52, s23", f"s_mul_i32 s52, s52, {nc*1536}", f"s_add_u32 s52, s52, {c0*196608}",
          f"v_cmp_gt_u32 vcc, {12*nc}, v0", "v_lshlrev_b32 v13, 7, v0", "s_nop 0", "s_and_saveexec_b64 s[56:57], vcc",
          "buffer_load_dword v125, v13, s[32:35], s52 offen" + WNT, "s_mov_b64 exec, -1", f"L_{tag}_done:")
    if "tlb" in OPT:
        a.c("translation warm-up: wave 0 of workgroup i touches one of the pages the kernel will need")
        a("s_cmp_lg_u32 s25, 0", "s_cbranch_scc1 L_tlb_done",
          "s_and_b32 s52, s23, 7", "v_mov_b32 v13, 0",
          "s_cmp_eq_u32 s52, 0", "s_cbranch_scc1 L_tlb0", "s_cmp_eq_u32 s52, 1", "s_cbranch_scc1 L_tlb1",
          "s_cmp_eq_u32 s52, 2", "s_cbranch_scc1 L_tlb2", "s_cmp_eq_u32 s52, 3", "s_cbranch_scc1 L_tlb3",
          "s_cmp_eq_u32 s52, 4", "s_cbranch_scc1 L_tlb4")
        a("s_lshl_b32 s53, s22, 22", "s_lshr_b32 s56, s23, 3", "s_lshl_b32 s56, s56, 21", "s_add_u32 s53, s53, s56",
          "s_lshl_b32 s56, s22, 21", f"s_add_u32 s56, s56, {OF_OFF}",
          "s_cmp_eq_u32 s52, 6", "s_cselect_b32 s53, s56, s53", "s_cmp_eq_u32 s52, 7", f"s_cselect_b32 s53, {FKV_OFF}, s53",
          "v_mov_b32 v13, s53", "global_load_dword v125, v13, s[20:21]", "s_branch L_tlb_done")
        a("L_tlb0:", "buffer_load_dword v125, v13, s[28:31], 0 offen", "s_branch L_tlb_done")
        a("L_tlb1:", "buffer_load_dword v125, v13, s[32:35], 0 offen", "s_branch L_tlb_done")
        a("L_tlb2:", "global_load_dword v125, v13, s[8:9]", "s_branch L_tlb_done")
        a("L_tlb3:", "s_lshr_b32 s53, s24, 2", "s_lshl_b32 s53, s53, 21", "v_mov_b32 v13, s53", "global_load_dword v125, v13, s[16:17]", "s_branch L_tlb_done")
        a("L_tlb4:", "global_load_dword v125, v13, s[18:19] sc1", "L_tlb_done:")
    if "cpf" in OPT:
        a.c("pull the kernel's code into L2 (waves 4..7, 64 lines each)")
        a("s_sub_u32 s52, s25, 4", "s_cmp_ge_u32 s52, 4", "s_cbranch_scc1 L_cpf_done",
          "s_getpc_b64 s[56:57]", "L_cpf_pc:", "s_lshl_b32 s52, s52, 13", "v_lshlrev_b32 v13, 7, v0", "v_add_u32 v13, s52, v13",
          "v_cmp_gt_u32 vcc, L_code_end-L_cpf_pc, v13", "s_nop 1", "s_and_saveexec_b64 s[52:53], vcc", "s_cbranch_execz L_cpf_skip",
          "global_load_dword v125, v13, s[56:57]", "L_cpf_skip:", "s_mov_b64 exec, -1", "L_cpf_done:")
    STG = [o for o in OPT if o.startswith("stg=")]
    stg = [[int(y) for y in x] for x in STG[0][4:].split(",")] if STG else [[], [], [], [], []]
    def stouch(chunks, tag):
        if not chunks: return
        lo, hi = min(chunks), max(chunks)
        a(f"s_sub_u32 s52, s25, {lo}", f"s_cmp_gt_u32 s52, {hi-lo}", f"s_cbranch_scc1 L_{tag}",
          "s_lshl_b32 s52, s23, 14", "s_lshl_b32 s53, s25, 7", "s_add_u32 s52, s52, s53", "v_lshlrev_b32 v8, 10, v0", "s_mov_b64 exec, 0xffff",
          "buffer_load_dword v125, v8, s[28:31], s52 offen",
          "s_and_b32 s52, s24, 1", "s_lshl_b32 s52, s52, 4", "s_add_u32 s52, s52, s23", "s_mul_i32 s52, s52, 6144", "s_mul_i32 s53, s25, 196608",
          "s_add_u32 s52, s52, s53", "s_mov_b64 exec, -1", "v_lshlrev_b32 v8, 7, v0", "s_mov_b32 exec_hi, 0xffff",
          "buffer_load_dword v125, v8, s[32:35], s52 offen", "s_mov_b64 exec, -1", f"L_{tag}:")
    stouch(stg[0], "stg0")
    if "early" in OPT: touches()
    a("s_branch L_compute")
    MARK1 = len(a.l)
    a("L_compute:")
    a("s_barrier")
    if "early" not in OPT and "late" not in OPT: touches()
    if "a3" in OPT:
        touchX(2, 3, 0, "xa3"); touchW(2, 3, 1, "wa3")
    if "wa3" in OPT: touchW(2, 3, 2, "wa3")
    if "wa2" in OPT: touchW(2, 2, 2, "wa2")
    if "wa13" in OPT: touchW(1, 3, 2, "wa13")
    common_init(a)
    a("v_and_b32 v13, 15, v0", "v_lshrrev_b32 v14, 4, v0",
      "v_bfe_u32 v15, v0, 1, 3", "v_xor_b32 v15, v15, v14", "v_lshlrev_b32 v15, 4, v15", "v_lshl_add_u32 v15, v13, 7, v15",
      "s_lshl_b32 s52, s25, 12",
      f"v_add_u32 v{XA[0]}, s52, v15", f"v_xor_b32 v{XA[1]}, 64, v{XA[0]}",
      f"v_add_u32 v{XB[0]}, 0x10000, v{XA[0]}", f"v_add_u32 v{XB[1]}, 0x10000, v{XA[1]}")
    a("v_bfe_u32 v15, v0, 2, 2", "v_lshl_add_u32 v13, v14, 3, v15", "v_lshlrev_b32 v13, 6, v13",
      "v_bfe_u32 v15, v0, 4, 1", "v_lshl_add_u32 v13, v15, 5, v13", "v_and_b32 v15, 3, v0", "v_lshl_add_u32 v13, v15, 3, v13",
      f"v_add_u32 v{WA[0]}, {WRING}, v13", f"v_xor_b32 v{WA[1]}, 32, v{WA[0]}")
    a("s_and_b32 s52, s25, 3", "s_lshl_b32 s52, s52, 11", "s_lshr_b32 s53, s25, 2", "s_lshl_b32 s53, s53, 14", "s_add_u32 s52, s52, s53",
      f"v_add_u32 v{VK}, s52, v{LO}",
      "v_and_b32 v13, 15, v0", "v_lshlrev_b32 v13, 4, v13", "v_lshrrev_b32 v14, 5, v0", "v_lshl_add_u32 v13, v14, 8, v13",
      "v_bfe_u32 v15, v0, 4, 1", "v_lshl_add_u32 v13, v15, 13, v13", "s_add_u32 s52, s52, 1024", f"v_add_u32 v{VV}, s52, v13")
    a(f"s_add_u32 s52, s62, {QX}", f"v_add_u32 v{QA}, s52, v{LO}", "s_add_u32 s0, s55, 8192")
    a("v_lshlrev_b32 v7, 7, v0")
    lq1 = []
    def xread(n, th):
        c, s2 = divmod(n, 2); slot = c % 3
        lq1.append(f"X{th}")
        if slot < 2: return f"ds_read_b128 {vr(FXR[th],4)}, v{XA[s2]} offset:{slot*32768 + th*2048}"
        return f"ds_read_b128 {vr(FXR[th],4)}, v{XB[s2]} offset:{th*2048}"
    def wread(n, b):
        c, s2 = divmod(n, 2); seg, hd = divmod(b, 2)
        lq1.extend([f"W{b}"]*2)
        return [f"ds_read_b64_tr_b16 {vr(FW + b*4 + j*2, 2)}, v{WA[hd]} offset:{(c % NWS)*12288 + seg*4096 + s2*2048 + j*256}" for j in range(2)]
    def lw1(need):
        idx = [i for i, x in enumerate(lq1) if x in need]
        if not idx: return []
        keep = len(lq1) - 1 - max(idx)
        del lq1[:len(lq1) - keep]
        return [f"s_waitcnt lgkmcnt({keep})"]
    def m16(th, b, first):
        d = ACC + (b*2 + th)*4
        cs = "0" if first else vr(d, 4)
        x = vr(FXR[th], 4); w = vr(FW + b*4, 4)
        return f"v_mfma_f32_16x16x32_bf16 {vr(d,4)}, " + (f"{w}, {x}" if b < 4 else f"{x}, {w}") + f", {cs}"
    def kvpre():
        a.c("an early poll of a line that is still only in HBM is slow: fetch the group's K/V flag lines ahead of time")
        a("s_cmp_lg_u32 s25, 5", "s_cbranch_scc1 L_kvpre_done", "s_mov_b64 exec, 0xffff", "buffer_load_dword v125, v7, s[36:39], s60 offen sc1", "s_mov_b64 exec, -1", "L_kvpre_done:")
    KVAT = int(([o for o in OPT if o.startswith("kvat=")] or ["kvat=-1"])[0][5:])
    if KVAT < 0: kvpre()
    if "tkv" in OPT:
        a.c("first touch of the K/V block's pages ahead of the stores")
        a("s_cmp_lg_u32 s25, 7", "s_cbranch_scc1 L_tkv_done", "v_lshlrev_b32 v13, 12, v0", "s_mov_b64 exec, 0xff",
          "buffer_load_dword v125, v13, s[36:39], s55 offen", "s_mov_b64 exec, -1", "L_tkv_done:")
    if "kvpt" in OPT:
        a.c("fetch every line of the K/V block ahead of the stores (waves 4..7)")
        a("s_sub_u32 s52, s25, 4", "s_cmp_ge_u32 s52, 4", "s_cbranch_scc1 L_kvpt_done", "v_lshlrev_b32 v13, 7, v0", "s_lshl_b32 s52, s52, 13", "s_add_u32 s52, s52, s55",
          "buffer_load_dword v125, v13, s[36:39], s52 offen", "L_kvpt_done:")
    C3 = [o for o in OPT if o.startswith("c3=")]
    if C3:
        cls = int(C3[0][3:])
        if "c3r" in OPT:
            a("s_cmp_lg_u32 s25, 6", "s_cbranch_scc1 L_c3_done",
              "s_and_b32 s52, s24, 1", "s_lshl_b32 s52, s52, 4", "s_add_u32 s52, s52, s23", "s_mul_i32 s52, s52, 36",
              "s_and_b32 s53, s24, 6", "s_add_u32 s53, s53, 2", "s_mul_i32 s53, s53, 192", "s_add_u32 s52, s52, s53",
              "v_add_u32 v13, s52, v0", "v_subrev_u32 v14, 1536, v13", "v_min_u32 v13, v13, v14", "v_lshlrev_b32 v13, 10, v13",
              "v_cmp_gt_u32 vcc, 36, v0", f"s_mov_b32 s52, {cls*128}", "s_nop 0",
              "s_and_saveexec_b64 s[56:57], vcc", "buffer_load_dword v125, v13, s[32:35], s52 offen", "s_mov_b64 exec, -1", "L_c3_done:")
        else:
            a("s_cmp_lg_u32 s25, 6", "s_cbranch_scc1 L_c3_done",
              "s_and_b32 s52, s24, 1", "s_lshl_b32 s52, s52, 4", "s_add_u32 s52, s52, s23", "s_mul_i32 s52, s52, 36864",
              f"s_add_u32 s52, s52, {384*1024 + cls*128}", "v_cmp_gt_u32 vcc, 36, v0", "v_lshlrev_b32 v13, 10, v0", "s_nop 0",
              "s_and_saveexec_b64 s[56:57], vcc", "buffer_load_dword v125, v13, s[32:35], s52 offen", "s_mov_b64 exec, -1", "L_c3_done:")
    stouch(stg[1], "stg1")
    if "late" in OPT: touches()
    if "xa" in OPT: touchX(3, 2, 0, "xa")
    if "wa" in OPT: touchW(3, 2, 1, "wa")
    if "wa5" in OPT: touchW(3, 5, 1, "wa5")
    if "xa4" in OPT: touchX(4, 4, 0, "xa4")
    a(f"s_mov_b32 s56, {f32bits(QSCALE):#x}", f"s_mov_b32 s57, {f32bits(QSCALE):#x}")
    stamp(a, 1)
    a("s_barrier")
    stamp(a, 2)
    if "xb" in OPT or "wb" in OPT or "wb4" in OPT:
        if "xb" in OPT: touchX(5, 3, 2, "xb")
        if "wb" in OPT: touchW(5, 3, 3, "wb")
        if "wb4" in OPT: touchW(4, 4, 3, "wb4")
        a(f"s_mov_b32 s56, {f32bits(QSCALE):#x}", f"s_mov_b32 s57, {f32bits(QSCALE):#x}")
    if "cyc" in OPT: a("s_memtime s[98:99]", "s_waitcnt lgkmcnt(0)")
    stouch(stg[2], "stg2")
    BO = [2, 3, 4, 5, 0, 1]
    a(xread(0, 0))
    for b in BO: a(wread(0, b))
    a(xread(0, 1))
    for n in range(16):
        c, s2 = divmod(n, 2)
        for b in BO:
            a(lw1({"X0", f"W{b}"}), m16(0, b, n == 0))
        if n < 15:
            if s2 == 1:
                a("s_waitcnt lgkmcnt(0)", "s_barrier"); lq1.clear()
                if c == 3 and "p1ts" not in OPT: stamp(a, 3)
                if "p1ts" in OPT: stamp(a, 7 + c)
                if c == 5: a("s_waitcnt vmcnt(0)")
                if c == KVAT: kvpre()
                if c < 2: stouch(stg[3 + c], f"stg{3+c}")
                KVL = [o for o in OPT if o.startswith("kvl=")]
                if KVL:
                    c0, span = [int(x) for x in KVL[0][4:].split(",")]
                    if c0 <= c < c0 + span:
                        per = 4 // span
                        w0 = 4 + (c - c0)*per
                        a.c("a write-through store to a line the memory-side cache does not hold is slow: fetch the K/V block's lines first")
                        a(f"s_sub_u32 s52, s25, {w0}", f"s_cmp_ge_u32 s52, {per}", f"s_cbranch_scc1 L_kvl{c}", "s_sub_u32 s52, s25, 4",
                          "s_lshl_b32 s52, s52, 13", "s_add_u32 s52, s52, s55", "buffer_load_dword v125, v7, s[36:39], s52 offen", f"L_kvl{c}:")
            a(xread(n + 1, 0))
        for i, b in enumerate(BO):
            a(lw1({"X1"}), m16(1, b, n == 0))
            if n < 15: a(wread(n + 1, b))
            elif i < 4:
                for r in range(4): a(f"v_mov_b32 v{O + i*4 + r}, 0")
        if n < 15: a(xread(n + 1, 1))
        assert len(lq1) <= 15
    stamp(a, 4)
    global P1TS_DONE
    P1TS_DONE = True
    a.c("P1 epilogue: K, V -> LDS stage slot 0 (and, after the barrier, global) ; Q -> regs / LDS")
    PK = 64
    def pack2(dst, src): return [f"v_cvt_pk_bf16_f32 v{dst+r}, v{src+2*r}, v{src+2*r+1}" for r in range(2)]
    def acc(th, b): return ACC + (b*2 + th)*4
    def swaps(t): return [f"v_permlane16_swap_b32 v{t}, v{t+2}", f"v_permlane16_swap_b32 v{t+1}, v{t+3}"]
    GST = [f"buffer_store_dwordx4 {vr(PK,4)}, v{VK}, s[36:39], s55 offen {WT}",
      f"buffer_store_dwordx4 {vr(PK+4,4)}, v{VK}, s[36:39], s0 offen {WT}",
      f"buffer_store_dwordx4 {vr(PK+8,4)}, v{VV}, s[36:39], s55 offen {WT}",
      f"buffer_store_dwordx4 {vr(PK+12,4)}, v{VV}, s[36:39], s55 offen offset:512 {WT}"]
    a("s_nop 2")
    a(pack2(PK, acc(0, 2)), pack2(PK + 2, acc(1, 2)), pack2(PK + 4, acc(0, 3)), pack2(PK + 6, acc(1, 3)))
    a(swaps(PK), f"ds_write_b128 v{VK}, {vr(PK,4)}")
    if "stearly" in OPT: a(GST[0])
    a(pack2(PK + 8, acc(0, 4)), pack2(PK + 10, acc(0, 5)))
    a(swaps(PK + 4), f"ds_write_b128 v{VK}, {vr(PK+4,4)} offset:8192")
    if "stearly" in OPT: a(GST[1])
    a(pack2(PK + 12, acc(1, 4)), pack2(PK + 14, acc(1, 5)))
    a(swaps(PK + 8), f"ds_write_b128 v{VV}, {vr(PK+8,4)}")
    if "stearly" in OPT: a(GST[2])
    for r in range(4): a(f"v_pk_mul_f32 {vr(acc(0,1)+2*r,2)}, {vr(acc(0,1)+2*r,2)}, s[56:57]")
    a(swaps(PK + 12), f"ds_write_b128 v{VV}, {vr(PK+12,4)} offset:512")
    if "stearly" in OPT: a(GST[3])
    a(pack2(PK + 16, acc(0, 1)), pack2(PK + 18, acc(1, 1)))
    for r in range(4): a(f"v_pk_mul_f32 {vr(acc(0,0)+2*r,2)}, {vr(acc(0,0)+2*r,2)}, s[56:57]")
    a(swaps(PK + 16), f"ds_write_b128 v{QA}, {vr(PK+16,4)}")
    a(pack2(Q, acc(0, 0)), pack2(Q + 2, acc(1, 0)), "s_nop 1", swaps(Q))
    gst = [f"buffer_store_dwordx4 {vr(PK,4)}, v{VK}, s[36:39], s55 offen {WT}",
      f"buffer_store_dwordx4 {vr(PK+4,4)}, v{VK}, s[36:39], s0 offen {WT}",
      f"buffer_store_dwordx4 {vr(PK+8,4)}, v{VV}, s[36:39], s55 offen {WT}",
      f"buffer_store_dwordx4 {vr(PK+12,4)}, v{VV}, s[36:39], s55 offen offset:512 {WT}"]
    a("s_cmp_ge_u32 s25, 4", "s_cbranch_scc1 L_nost", gst, "L_nost:")
    a("s_waitcnt lgkmcnt(0)")
    stamp(a, 5)
    a("s_barrier")
    stamp(a, 6)
    a("s_branch L_haveq")

    MARK2 = len(a.l)
    a("L_loader:")
    if "lprio" in OPT: a("s_setprio 3")
    a("s_sub_u32 s52, s25, 8")
    a("s_and_b32 s53, s52, 1", "s_lshl_b32 s53, s53, 2",
      "v_lshrrev_b32 v2, 4, v0", "v_add_u32 v2, s53, v2", "v_and_b32 v3, 7, v0", "v_xor_b32 v2, v2, v3", "v_lshlrev_b32 v2, 4, v2",
      "v_lshrrev_b32 v4, 3, v0", "v_lshl_add_u32 v2, v4, 10, v2")
    a("v_lshrrev_b32 v4, 2, v0", "v_mul_u32_u24 v4, 3072, v4", "v_and_b32 v3, 3, v0",
      "v_lshrrev_b32 v5, 5, v0", "v_lshlrev_b32 v5, 1, v5", "v_xor_b32 v3, v3, v5", "v_lshl_add_u32 v3, v3, 4, v4",
      "s_lshl_b32 s53, s23, 6", "v_add_u32 v3, s53, v3")
    a("s_lshl_b32 s4, s52, 13", "s_add_u32 s5, s4, 65536", "s_add_u32 s6, s4, 131072", "s_add_u32 s7, s4, 196608",
      "s_lshl_b32 s0, s52, 10")
    a("s_and_b32 s53, s52, 3", "s_mul_i32 s1, s53, 49152", "s_lshr_b32 s53, s52, 2", "s_lshl_b32 s53, s53, 10", "s_add_u32 s1, s1, s53")
    a("s_and_b32 s3, s24, 6")
    if "rotb" in OPT:
        a.c("k-chunk order: the XCD's two token blocks take turns at being first to ask for a W chunk")
        a("s_bitcmp1_b32 s24, 0", "s_mov_b32 s27, 0x47653210", "s_cselect_b32 s27, 0x76504321, s27")
    ROT = "rot" in OPT
    def issueW(c, variantA):
        slot = c % NWS
        if ROT: pre = ([f"s_bfe_u32 s53, s27, {(4 << 16) | (4*c):#x}", "s_add_u32 s53, s53, s3"] if "rotb" in OPT else
                       [f"s_add_u32 s53, s24, {c}" if "rotj" in OPT else f"s_add_u32 s53, s3, {c}"]) + ["s_and_b32 s53, s53, 7", "s_lshl_b32 s57, s53, 7", "s_mul_i32 s53, s53, 196608", "s_add_u32 s53, s53, s1",
                       f"s_add_u32 m0, s0, {WRING + slot*12288}", "s_nop 0"]
        else: pre = [f"s_add_u32 m0, s0, {WRING + slot*12288}", f"s_add_u32 s53, s1, {c*196608}"]
        out = pre + [
               "buffer_load_dwordx4 v3, s[32:35], s53 offen" + WNT + " lds"]
        if variantA:
            out += [f"s_add_u32 m0, s0, {WRING + slot*12288 + 8192 - 2048}", "s_nop 0",
                    "buffer_load_dwordx4 v3, s[32:35], s53 offen offset:2048" + WNT + " lds"]
        return out
    def issueX(c):
        slot = c % 3
        out = []
        for aa in range(4):
            out += [f"s_add_u32 m0, s0, {XRING + slot*32768 + aa*8192}", (f"s_add_u32 s53, s{4+aa}, s57" if ROT else f"s_add_u32 s53, s{4+aa}, {c*128}"),
                    "buffer_load_dwordx4 v2, s[28:31], s53 offen" + XNT + " lds"]
        return out
    for variantA in (True, False):
        ops = []
        def W(c):
            a(issueW(c, variantA)); ops.extend([c]*(2 if variantA else 1))
        def X(c):
            a(issueX(c)); ops.extend([c]*4)
        if variantA:
            stamp(a, 1)
            for c0 in range(2):
                wa = issueW(c0, True)
                a(wa[:-3], "s_cmp_ge_u32 s52, 4", f"s_cbranch_scc1 L_w1_{c0}", wa[-3:], f"L_w1_{c0}:", issueX(c0))
                if c0 == 0: a("s_barrier")
            a("s_cmp_ge_u32 s52, 4", "s_cbranch_scc1 L_loaderB")
        else: a("L_loaderB:")
        for c0 in range(2): ops.extend([c0]*((2 if variantA else 1) + 4))
        SX = [o for o in OPT if o.startswith("sx=")]
        sx = [[int(y) for y in x] for x in SX[0][3:].split(",")] if SX else [[]]*6
        def spf(chunks):
            for c_ in chunks:
                for off in (0, 64, 1024, 1088): a(f"s_load_dword s63, s[16:17], {c_*128 + off}")
        if SX:
            a("s_lshl_b32 s53, s23, 3", "s_add_u32 s53, s53, s52", "s_lshl_b32 s53, s53, 11")
        W0 = issueW(0, variantA)
        if SX: a("s_add_u32 s96, s28, s53" if TS else "s_add_u32 s64, s28, s53", "s_addc_u32 s97, s29, 0" if TS else "s_addc_u32 s65, s29, 0")
        SXB = "s[96:97]" if TS else "s[64:65]"
        SWB = 98 if TS else 66
        SW = [o for o in OPT if o.startswith("sw=")]
        if SW:
            a("s_lshl_b32 s53, s24, 4", "s_add_u32 s53, s53, s23", "s_mul_i32 s53, s53, 6", "s_min_u32 s56, s52, 5", "s_add_u32 s53, s53, s56",
              "s_lshl_b32 s53, s53, 8", f"s_add_u32 s53, s53, {4*196608}", f"s_add_u32 s{SWB}, s32, s53", f"s_addc_u32 s{SWB+1}, s33, 0")
        def spf(chunks):
            for c_ in chunks:
                if SW:
                    for off in ((0, 128) if SW[0] == "sw=1" else (0, 64, 128, 192)): a(f"s_load_dword s3, s[{SWB}:{SWB+1}], {(c_-4)*196608 + off}")
                for off in (0, 64, 1024, 1088): a(f"s_load_dword s3, {SXB}, {c_*128 + off}")

        if not variantA:
            a.c("workgroup 0 publishes the launch tag (low 4 bits: 8 | room for an XCC id)")
            a("s_cmp_lg_u32 s2, 0", "s_cbranch_scc1 L_notag", "s_cmp_lg_u32 s52, 7", "s_cbranch_scc1 L_notag")
            a("s_lshl_b64 s[48:49], s[48:49], 4", "s_or_b32 s48, s48, 8",
              "v_mov_b32 v8, 0", "v_mov_b32 v4, s48", "v_mov_b32 v5, s49", "s_mov_b64 exec, 1",
              f"global_store_dwordx2 v8, v[4:5], s[18:19] {WT}", "s_mov_b64 exec, -1")
            a("L_notag:")
        ROLL = "roll" in OPT and not variantA
        def TOUCH(c):
            a("s_mov_b64 exec, s[16:17]", "buffer_load_dword v10, v9, s[44:47], s3 offen", "s_mov_b64 exec, -1", "s_add_u32 s3, s3, s27")
            ops.append(99)
        if ROLL:
            a("s_mov_b32 s3, s52")
        common_init(a)
        if ROLL:
            R0 = int([o for o in OPT if o.startswith("r0=")][0][3:]) if any(o.startswith("r0=") for o in OPT) else 2
            a.c("rolling L2 warm-up of later W chunks, spread over the XCD's workgroups")
            a("s_mov_b32 s44, s32", "s_mov_b32 s45, s33", "s_mov_b32 s46, s34", "s_mov_b32 s17, 0", "s_mov_b32 s27, 196608",
              "s_and_b32 s52, s24, 1", "s_lshl_b32 s52, s52, 4", "s_add_u32 s52, s52, s23", "s_and_b32 s3, s3, 3")
            if "roll3" in OPT:
                a("s_mov_b32 s16, 3", "v_lshlrev_b32 v9, 10, v0", "s_min_u32 s3, s3, 2", "s_lshl_b32 s3, s3, 11", "s_mul_i32 s52, s52, 6144",
                  "s_add_u32 s3, s3, s52", f"s_add_u32 s3, s3, {R0*196608 + 384}")
            else:
                a("s_mov_b32 s16, 0xfff", "v_lshlrev_b32 v9, 7, v0", "s_mul_i32 s3, s3, 1536", "s_mul_i32 s52, s52, 6144",
                  "s_add_u32 s3, s3, s52", f"s_add_u32 s3, s3, {R0*196608}")
            nextT = R0
            RD = int([o for o in OPT if o.startswith("rd=")][0][3:]) if any(o.startswith("rd=") for o in OPT) else 4
            while nextT < RD: TOUCH(nextT); nextT += 1
        nextW = 2
        for c in range(8):
            last = max(i for i, x in enumerate(ops) if x <= c)
            wait = len(ops) - 1 - last
            if not variantA and c == 7:
                a.c("launch tag -> LDS")
                spin(a, "tag", ["v_cmp_ne_u64 vcc, 0, v[6:7]", "s_nop 1", "s_cmp_eq_u64 vcc, -1"],
                     ["global_load_dwordx2 v[6:7], v8, s[18:19] sc1"])
                a(f"ds_write_b64 v{T}, v[6:7]")
            else:
                a(f"s_waitcnt vmcnt({wait})")
            a("s_barrier")
            if variantA and c == 0 and not SX: stamp(a, 3)
            if variantA and c == 7: stamp(a, 4)
            if "b0f" in OPT and c == 0: W(1); X(1)
            if nextW == c + 2 and nextW <= 7: W(nextW); nextW += 1
            if c + 2 <= 7: X(c + 2)
            while nextW <= min(7, c - 1 + NWS): W(nextW); nextW += 1
            if "spc" in OPT and c == 3:
                v_ = "A" if variantA else "B"
                a.c("pull the attention / output-projection code into this XCD's L2 through the scalar path (128 bytes per loader wave)")
                a("s_getpc_b64 s[56:57]", f"L_spc{v_}:", "s_and_b32 s53, s24, 1", "s_lshl_b32 s53, s53, 4", "s_add_u32 s53, s53, s23", "s_lshl_b32 s53, s53, 10",
                  "s_lshr_b32 s52, s0, 3", "s_add_u32 s53, s53, s52", f"s_add_u32 s53, s53, L_p2_start-L_spc{v_}", f"s_min_u32 s53, s53, L_code_end-L_spc{v_}-68",
                  "s_add_u32 s56, s56, s53", "s_addc_u32 s57, s57, 0",
                  f"s_load_dword s{100 if TS else 66}, s[56:57], 0", f"s_load_dword s{100 if TS else 66}, s[56:57], 64")
            if c + 2 < len(sx): spf(sx[c + 2])
            if ROLL and nextT <= 7: TOUCH(nextT); nextT += 1
            if not variantA and c == 5:
                a("v_mov_b32 v8, 0", "global_load_dwordx2 v[6:7], v8, s[18:19] sc1"); ops.append(99)
        a("s_branch L_p2_start")
    MARK3 = len(a.l)
    a.l[MARK1:MARK3] = a.l[MARK2:MARK3] + a.l[MARK1:MARK2]

    a("L_p2_start:")
    a(f"v_mov_b32 v{VK}, 0", f"v_mov_b32 v{VV}, 0")
    for r in range(16): a(f"v_mov_b32 v{O+r}, 0")
    a(f"s_add_u32 s53, s62, {QX - 8192}", f"v_add_u32 v{T+1}, s53, v{LO}")
    a("s_waitcnt lgkmcnt(0)")
    stamp(a, 5)
    a("s_barrier")
    stamp(a, 6)
    a(f"ds_read_b128 {vr(Q,4)}, v{T+1}")
    a("L_haveq:")
    cstamp(a, 0)
    def loc(u):
        n, i = divmod(u, 4); sl = n % 10
        return sl // 4, (sl % 4)*16384 + i*2048
    def kread(u):
        b, o = loc(u)
        return [f"ds_read_b128 {vr(KB[u%2],4)}, v{KA[b]} offset:{o}"]
    def vread(u):
        b, o = loc(u)
        return ["s_mov_b64 exec, s[50:51]",
                f"ds_read_b128 {vr(VB[u%2],4)}, v{VA[b]} offset:{o}",
                f"ds_read_b128 {vr(VB[u%2]+4,4)}, v{VA[b]} offset:{o+512}",
                "s_mov_b64 exec, -1"]
    def ex(base, lo, hi): return [f"v_exp_f32 v{base+i}, v{base+i}" for i in range(lo, hi)]
    def opt(name, default): return [int(x) for x in ([o for o in OPT if o.startswith(name + "=")] or [name + "=" + default])[0][len(name)+1:].split(",")]
    HB = [(0, 0), (0, 1)] + [(x, 0) for x in range(1, 8)] + [(x, 1) for x in range(1, 8)]
    poll = [f"buffer_load_dwordx2 {vr(T,2)}, v{T+4}, s[36:39], s57 offen sc1"]
    def fetch_poll(ns, tag, lg, w0):
        per = 16 >> lg
        a(f"s_sub_u32 s52, s25, {w0}", f"s_cmp_ge_u32 s52, {len(ns) << lg}", f"s_cbranch_scc1 L_{tag}_p")
        code = 0; slots = 0
        for k_, n in enumerate(ns):
            code |= (HB[n][0]*2 + HB[n][1]) << (4*k_); slots |= (n % 10) << (4*k_)
        a(f"s_lshr_b32 s63, s52, {lg}", "s_lshl_b32 s63, s63, 2", f"s_lshr_b32 s53, {code:#x}, s63", "s_and_b32 s53, s53, 15",
          "s_lshl_b32 s57, s24, 1", "s_xor_b32 s53, s53, s57",
          "s_lshl_b32 s57, s53, 7", "s_add_u32 s57, s57, s60",
          "s_mov_b64 exec, 15", poll, "s_mov_b64 exec, -1")
        a("s_lshl_b32 s53, s53, 14", "s_add_u32 s56, s53, s54",
          f"s_and_b32 s52, s52, {(1 << lg) - 1}", f"s_mul_i32 s52, s52, {per*1024}", "s_add_u32 s56, s56, s52",
          f"s_lshr_b32 s53, {slots:#x}, s63", "s_and_b32 s53, s53, 15", "s_lshl_b32 s53, s53, 14", "s_add_u32 s52, s52, s53", f"L_{tag}_p:")
    def fetch_load(ns, tag, lg, w0):
        per = 16 >> lg
        a(f"s_sub_u32 s53, s25, {w0}", f"s_cmp_ge_u32 s53, {len(ns) << lg}", f"s_cbranch_scc1 L_{tag}_done", "s_mov_b64 exec, 15")
        spin(a, tag, [f"v_cmp_eq_u64 vcc, s[48:49], {vr(T,2)}", "s_nop 1", "s_cmp_eq_u64 vcc, 15"], poll, SLP)
        a("s_mov_b64 exec, -1")
        for i in range(per):
            if i % 4 == 0: a(f"s_add_u32 m0, s52, {i*1024}", f"s_add_u32 s53, s56, {i*1024}")
            a(f"buffer_load_dwordx4 v{LO}, s[36:39], s53 offen offset:{(i%4)*1024} sc1 lds")
        a(f"L_{tag}_done:")
    SLP = opt("slp", "4")[0]
    a("s_setprio 3", "s_cmp_lt_u32 s25, 4", "s_cselect_b32 s3, 1, 0")
    a(kread(0), kread(1), vread(0), f"ds_read_b64 {vr(T+2,2)}, v{T}", "s_waitcnt lgkmcnt(4)")
    a(mfma(S[0], KB[0], Q, "0"))
    a.c("later-needed lane constants, computed in the shadow of the first MFMA")
    a(f"v_lshrrev_b32 v{WOA}, 4, v{LO}", f"v_bfe_u32 v{CK}, v{WOA}, 4, 1", f"v_lshlrev_b32 v{CK}, 1, v{CK}", f"v_and_b32 v{CK+1}, 7, v{WOA}",
      f"v_xor_b32 v{CK}, v{CK}, v{CK+1}", f"v_lshlrev_b32 v{CK}, 4, v{CK}", f"v_lshrrev_b32 v{WOA}, 3, v{WOA}",
      f"v_lshl_add_u32 v{WOA}, v{WOA}, 10, v{CK}", f"v_and_b32 v{T+5}, 0x78, v{T+4}",
      f"v_mov_b32 v{CK}, 1.0", f"v_mov_b32 v{CK+1}, 0x57800000", f"v_mov_b32 v60, 0")
    a("s_waitcnt lgkmcnt(0)")
    a(f"v_readfirstlane_b32 s48, v{T+2}", f"v_readfirstlane_b32 s49, v{T+3}")
    a("s_nop 0")
    NT = 64
    WO = 98304
    B1L = "b1late" in OPT
    LATE = (7, 11) if B1L else (7,)
    BAR = (18, 34, 54) if B1L else (10, 18, 34, 54)
    prio_at = {4: 2, 6: 1, 7: 0, 10: 2 if B1L else 1, 11: 1 if B1L else 3, 14: 2, 17: 1, 18: 0, 27: 2, 32: 1, 34: 0, 45: 2, 52: 1, 54: 0, 60: 2, 62: 1, 63: 0}
    for o in OPT:
        if o.startswith("pr="): prio_at.update({int(x.split(":")[0]): int(x.split(":")[1]) for x in o[3:].split(",")})
    SB = opt("sb", "3")[0]
    F1, F2, F3 = opt("ff", "4,8,12")
    P1_, Q1_, P2_, Q2_, P3_, Q3_ = opt("fu", "3,4,6,7,11,12")
    FETCH = [([2], "f1", 1, 8, P1_, Q1_), ([3, 4], "f2", 1, 10, P2_, Q2_), ([5, 6, 7, 8], "f3", 1, 8, P3_, Q3_),
             ([9, 10, 11, 12, 13], "f4", 0, 8, 19, 20), ([14, 15], "f5", 2, 8, 35, 36)]
    PF_ = opt("pf", "16")[0]
    WOU = {37: 0, 38: 1, 56: 2, 57: 3}; XU, XC = 46, 55
    if "plan4" in OPT:
        BAR = (10, 26, 46)
        prio_at = {4: 2, 6: 1, 7: 0, 10: 1, 11: 3, 18: 2, 24: 1, 26: 0, 37: 2, 44: 1, 46: 0, 56: 2, 61: 1, 63: 0}
        FETCH = [([2], "f1", 1, 8, P1_, Q1_), ([3, 4, 5, 6], "f2", 1, 8, 6, 7), ([7, 8, 9, 10, 11], "f3", 0, 8, 14, 15), ([12, 13, 14, 15], "f4", 1, 8, 27, 28)]
        PF_ = 12; WOU = {48: 0, 49: 1, 50: 2, 51: 3}; XU, XC = 38, 47
    def publish(u, force):
        a("s_cmp_eq_u32 s3, 0", f"s_cbranch_scc1 L_pub{u}")
        if force == "A": a("s_cmp_lt_u32 s25, 4", f"s_cbranch_scc1 L_pubf{u}")
        if force != "all": a("s_getreg_b32 s53, hwreg(HW_REG_IB_STS)", "s_and_b32 s53, s53, 0xc0000f", f"s_cbranch_scc1 L_pub{u}")
        a(f"L_pubf{u}:", f"v_mov_b32 v{T}, s48", f"v_mov_b32 v{T+1}, s49", "s_waitcnt vmcnt(0)")
        stamp(a, 7)
        a("s_mov_b64 exec, 1", f"buffer_store_dwordx2 {vr(T,2)}, v60, s[36:39], s61 offen {WT}", "s_mov_b64 exec, -1", "s_mov_b32 s3, 0", f"L_pub{u}:")
    def barrier(u):
        if u < 20: a("s_cmp_lt_u32 s25, 8", f"s_cbranch_scc1 L_b{u}", "s_waitcnt vmcnt(0)", f"L_b{u}:")
        else: a("s_waitcnt vmcnt(0)")
        a("s_barrier", "s_setprio 3")
        IDL = opt("idle", "99,0")
        if u == IDL[0]: a(f"s_sleep {IDL[1]}")
    for u in range(NT):
        s = S[u % 2]
        if u in prio_at: a(f"s_setprio {prio_at[u]}")
        late = u in LATE
        a("s_waitcnt lgkmcnt(0)")
        a(ex(s, 0, 2))
        if u > 0: a(smf(O, VB[(u-1) % 2] + 4, S[(u-1) % 2] + 8, IDX))
        if u + 1 < NT and not late: a(vread(u + 1))
        a(ex(s, 2, 5))
        if u + 1 < NT and not late:
            a(mfma(S[(u+1) % 2], KB[(u+1) % 2], Q, "0"))
            if u in BAR:
                barrier(u)
                if u == 34: stamp(a, 10)
                if u == 18 and "b12" in OPT: stamp(a, 2)
                if u == 10 and "b12" in OPT: stamp(a, 1)
                cstamp(a, {10: 2, 18: 3, 34: 4, 54: 6}.get(u, 7))
            if u + 2 < NT and u + 1 not in LATE: a(kread(u + 2))
        a(ex(s, 5, 10))
        a(smf(O, VB[u % 2], s, IDX))
        a(ex(s, 10, 16))
        if u <= PF_:
            if u == 0: a.c("publish this wave's K/V tile as soon as its stores have been acknowledged")
            publish(u, "A" if u == 7 else "all" if u == PF_ else "")
        if late:
            if u == 7: stamp(a, 8)
            barrier(u)
            if u == 7: stamp(a, 9)
            if u == 11 and "b12" in OPT: stamp(a, 1)
            cstamp(a, {7: 1, 11: 2}[u])
            a(kread(u + 1), kread(u + 2), vread(u + 1), "s_waitcnt lgkmcnt(3)", mfma(S[(u+1) % 2], KB[(u+1) % 2], Q, "0"), "s_nop 10")
        if u == SB:
            a.c("second-half tiles go out after the first-half ones, which are needed sooner")
            a("s_sub_u32 s53, s25, 4", "s_cmp_ge_u32 s53, 4", "s_cbranch_scc1 L_nost2", gst, "s_mov_b32 s3, 1", "L_nost2:")
        if u == 19:
            a.c("wave 0 publishes the workgroup's XCC id")
            a("s_cmp_lg_u32 s25, 0", "s_cbranch_scc1 L_xid", f"v_mov_b32 v{T}, s48", f"v_mov_b32 v{T+1}, s49",
              f"v_or_b32 v{T}, s26, v{T}", "s_lshl_b32 s53, s23, 3", "s_add_u32 s53, s53, s10",
              "s_mov_b64 exec, 1", f"buffer_store_dwordx2 {vr(T,2)}, v60, s[36:39], s53 offen {WT}", "s_mov_b64 exec, -1", "L_xid:")
        for (ns, tag, lg, w0, up, ul) in FETCH:
            if u == up: fetch_poll(ns, tag, lg, w0)
            if u == ul: fetch_load(ns, tag, lg, w0)
        if u in WOU:
            aa = WOU[u]
            if aa == 0: a.c("Wo tile -> LDS (half-slots 6..9)")
            a("s_lshl_b32 s63, s25, 13", f"s_add_u32 m0, s62, {WO + aa*16384}", f"s_add_u32 s53, s63, {aa*131072}", f"buffer_load_dwordx4 v{WOA}, s[40:43], s53 offen lds")
        if u == XU:
            a.c("XCC ids of the row block's workgroups; bring the O and O-flag lines this wave will write into L2")
            a(f"buffer_load_dwordx2 {vr(T+2,2)}, v{T+5}, s[36:39], s10 offen sc1",
              f"buffer_load_dword v{T+1}, v60, s[36:39], s59 offen",
              f"buffer_load_dword v{T}, v{LO}, s[36:39], s58 offen")
        if u == XC:
            a.c("local hand-off only when all 16 workgroups of this row block run on this XCC")
            a("s_or_b32 s52, s48, s26", "s_mov_b32 s53, s49", f"v_cmp_eq_u64 vcc, s[52:53], {vr(T+2,2)}", "s_nop 1",
              "s_cmp_eq_u64 vcc, -1", "s_cselect_b32 s27, 1, 0")
            if "noloc" in OPT: a("s_mov_b32 s27, 0")
    a("s_nop 1", smf(O, VB[(NT-1) % 2] + 4, S[(NT-1) % 2] + 8, IDX), "s_setprio 3",
      f"v_mov_b32 v{T}, s48", f"v_mov_b32 v{T+1}, s49", f"v_mov_b32 v{T+3}, 0x7f800000", "s_nop 7")
    a.c("safety check of the zero stand-in: 1 <= l <= 2^48 and finite O, else redo with the true row max")
    a(f"v_cmp_le_f32 s[52:53], v{CK}, v{O+8}", f"v_cmp_ge_f32 s[56:57], v{CK+1}, v{O+8}",
      f"v_maximum3_f32 v{CK}, abs(v{O}), abs(v{O+1}), abs(v{O+2})", f"v_maximum3_f32 v{CK}, abs(v{O+3}), abs(v{O+4}), v{CK}",
      f"v_maximum3_f32 v{CK}, abs(v{O+5}), abs(v{O+6}), v{CK}", f"v_maximum3_f32 v{CK}, abs(v{O+7}), v{CK}, v{CK}",
      "s_and_b64 s[52:53], s[52:53], s[56:57]",
      f"v_cmp_gt_f32 vcc, v{T+3}, v{CK}", f"v_rcp_f32 v{T+2}, v{O+8}", "s_and_b64 s[52:53], s[52:53], vcc",
      "s_cmp_eq_u64 s[52:53], -1", "s_cbranch_scc0 L_fallback")
    a("L_finish:")
    stamp(a, 11)
    cstamp(a, 5)
    if "cyc2" in OPT: a("s_memtime s[96:97]", "s_waitcnt lgkmcnt(0)", "s_sub_u32 s96, s96, s98", "s_add_u32 s66, s82, s96", "s_addc_u32 s67, s83, 0")
    for r in range(4): a(f"v_pk_mul_f32 {vr(O+2*r,2)}, {vr(O+2*r,2)}, {vr(T+2,2)} op_sel_hi:[1,0]")
    for r in range(4): a(f"v_cvt_pk_bf16_f32 v{O+12+r}, v{O+2*r}, v{O+2*r+1}")
    a("s_cmp_eq_u32 s27, 1", "s_cbranch_scc1 L_ostore_local")
    a(f"buffer_store_dwordx4 {vr(O+12,4)}, v{LO}, s[36:39], s58 offen {WT}", "s_waitcnt vmcnt(0)",
      "s_mov_b64 exec, 1", f"buffer_store_dwordx2 {vr(T,2)}, v60, s[36:39], s59 offen {WT}", "s_mov_b64 exec, -1", "s_branch L_ostored")
    a("L_ostore_local:")
    a(f"buffer_store_dwordx4 {vr(O+12,4)}, v{LO}, s[36:39], s58 offen", "s_waitcnt vmcnt(0)",
      "s_mov_b64 exec, 1", f"buffer_store_dwordx2 {vr(T,2)}, v60, s[36:39], s59 offen", "s_mov_b64 exec, -1")
    a("L_ostored:")
    stamp(a, 12)
    a("s_barrier")
    if TS:
        a("s_cmp_lt_u32 s25, 8", "s_cbranch_scc1 L_ts_p3", ["s_barrier"]*(5 if "g4" in OPT else 3))
        if "allw" in OPT:
            for w in range(8, 16): ts_flush(a, w, w, f"w{w}")
        else:
            ts_flush(a, 1, 8, "w8")
            ts_flush(a, 2, 15, "w15")
        a("s_endpgm", "L_ts_p3:")
    else:
        a("s_cmp_ge_u32 s25, 8", "s_cbranch_scc1 L_done")

    ACC3 = [0, 16]; OFR = 32; WB = [96, 104, 112]; A3 = [120, 122]; VO = 116; PA = 123; L = 118; PF = 124
    opoll = [f"buffer_load_dwordx4 {vr(PF,4)}, v{LO}, s[36:39], s11 offen sc1"]
    ocond = [f"v_cmp_eq_u64 vcc, s[48:49], {vr(PF,2)}", f"v_cmp_eq_u64 s[52:53], s[48:49], {vr(PF+2,2)}", "s_nop 1",
             "s_and_b64 vcc, vcc, s[52:53]", "s_cmp_eq_u64 vcc, -1"]
    a("s_cmp_lt_u32 s25, 4", "s_cbranch_scc1 L_p3c")
    a("s_and_b32 s56, s25, 3", "s_lshl_b32 s56, s56, 14")
    a("s_barrier")
    for i in range(16):
        a(f"s_add_u32 m0, s56, {i*1024}", f"s_add_u32 s53, s12, {(16+i)*1024}", f"buffer_load_dwordx4 v{LO}, s[36:39], s53 offen sc1 lds")
    G3 = 4 if "g4" in OPT else 8
    for x in range(16 - G3, -1, -G3): a(f"s_waitcnt vmcnt({x})", "s_barrier")
    if "wb2" in OPT:
        a("s_cmp_lg_u32 s25, 4", "s_cbranch_scc1 L_nowb", "buffer_wbl2 sc1", "L_nowb:")
    if "allw" in OPT:
        for w in range(4, 8): ts_flush(a, w, w, f"w{w}")
    a("s_endpgm")
    a("L_p3c:")
    a(opoll)
    a(f"v_lshrrev_b32 v6, 4, v{LO}")
    a(f"v_lshrrev_b32 v4, 5, v6", f"v_bfe_u32 v5, v6, 2, 2", "v_lshl_add_u32 v4, v4, 2, v5", "v_lshlrev_b32 v4, 7, v4",
      f"v_and_b32 v5, 1, v6", "v_lshl_add_u32 v4, v5, 6, v4", f"v_bfe_u32 v5, v6, 4, 1", "v_lshl_add_u32 v4, v5, 4, v4",
      f"v_bfe_u32 v5, v6, 3, 1", "v_lshl_add_u32 v4, v5, 5, v4", f"v_bfe_u32 v5, v6, 1, 1", f"v_lshl_add_u32 v4, v5, 3, v4",
      f"v_add_u32 v{A3[0]}, {WO}, v4", f"v_xor_b32 v{A3[1]}, 32, v{A3[0]}")
    a("s_lshl_b32 s56, s25, 14", f"v_add_u32 v{PA}, s56, v{LO}")
    def reads3(hd, buf):
        out = []
        for cb in range(2):
            for j in range(2):
                out.append(f"ds_read_b64_tr_b16 {vr(buf + cb*4 + j*2, 2)}, v{A3[cb]} offset:{hd*2048 + j*1024}")
        return out
    a(reads3(0, WB[0]), reads3(1, WB[1]))
    spin(a, "o", ocond, opoll)
    stamp(a, 13)
    for i in range(16):
        if i % 4 == 0: a(f"s_add_u32 s53, s12, {i*1024}")
        a(f"buffer_load_dwordx4 {vr(OFR + i*4, 4)}, v{LO}, s[36:39], s53 offen offset:{(i%4)*1024} sc1")
    a("s_barrier")
    lq = ["W0"]*4 + ["W1"]*4
    def lwait(need):
        nonlocal lq
        idx = [i for i, x in enumerate(lq) if x in need]
        if not idx: return None
        keep = len(lq) - 1 - max(idx)
        lq = lq[len(lq) - keep:]
        return keep
    def oread(n):
        lq.append(f"O{n}")
        return f"ds_read_b128 {vr(OFR + (n-16)*4, 4)}, v{PA} offset:{(n-16)*1024}"
    for n in range(32):
        cur = WB[n % 3]
        if n >= 16 and n % G3 == 0:
            if "p3ts" in OPT and n == 16: stamp(a, 2); lq = []
            a("s_barrier")
            if "p3ts" in OPT and n == 32 - G3: stamp(a, 3); lq = []
            for i in range(2): a(oread(n + i))
        kw = lwait({f"W{n}", f"O{n}"})
        w = []
        if n < 16: w.append(f"vmcnt({15 - n})")
        if kw is not None: w.append(f"lgkmcnt({kw})")
        if w: a("s_waitcnt " + " ".join(w))
        if "p3ts" in OPT and n in (0, 31): stamp(a, {0: 1, 31: 4}[n]); lq = []
        rd = reads3(n + 2, WB[(n+2) % 3]) if n + 2 < 32 else []
        for cb in range(2):
            a(mfma(ACC3[cb], cur + cb*4, OFR + (n%16)*4, "0" if n == 0 else ACC3[cb]))
            if rd: a(rd[2*cb:2*cb+2]); lq.extend([f"W{n+2}"]*2)
            if cb == 0 and n >= 16 and (n % G3) + 2 < G3: a(oread(n + 2))
        assert len(lq) <= 15, lq
    a(f"v_lshrrev_b32 v{L}, 4, v{LO}")
    PA = 117
    a.c("transpose through LDS (slot 1 is free) so that every store writes whole 128-byte lines")
    TA_ = 119; TB_ = 120
    a(f"v_and_b32 v{TA_}, 31, v{L}", f"v_lshrrev_b32 v{PA}, 5, v{L}", f"v_lshlrev_b32 v{PA}, 2, v{PA}", f"v_and_b32 v{TB_}, 7, v{L}",
      f"v_xor_b32 v{PA}, v{PA}, v{TB_}", f"v_lshlrev_b32 v{PA}, 4, v{PA}", f"v_lshl_add_u32 v{TA_}, v{TA_}, 7, v{PA}",
      "s_mov_b32 s52, s56", f"v_add_u32 v{TA_}, s52, v{TA_}",
      f"v_lshrrev_b32 v{PA}, 3, v{L}", f"v_xor_b32 v{VO}, v{PA}, v{TB_}", f"v_lshlrev_b32 v{VO}, 4, v{VO}", f"v_lshl_add_u32 v{VO}, v{PA}, 7, v{VO}",
      f"v_add_u32 v{VO}, s52, v{VO}",
      f"v_lshlrev_b32 v{TB_}, 4, v{TB_}", f"v_lshl_add_u32 v{TB_}, v{PA}, 11, v{TB_}")
    for cb in range(2):
        for q in range(2):
            c = cb*2 + q
            t = 32 + c*4
            for r in range(4): a(f"v_cvt_pk_bf16_f32 v{t+r}, v{ACC3[cb]+q*8+2*r}, v{ACC3[cb]+q*8+2*r+1}")
            if c: a(f"v_xor_b32 v{PA}, {c*16}, v{TA_}")
            a(f"ds_write_b128 v{PA if c else TA_}, {vr(t,4)}")
    a("s_waitcnt lgkmcnt(0)")
    for i in range(4): a(f"ds_read_b128 {vr(48 + i*4, 4)}, v{VO} offset:{i*1024}")
    for i in range(4):
        a(f"s_add_u32 s53, s13, {i*16384}", f"s_waitcnt lgkmcnt({3-i})", f"buffer_store_dwordx4 {vr(48 + i*4, 4)}, v{TB_}, s[44:47], s53 offen" + (" sc1" if "osc1" in OPT else " nt" if "ont" in OPT else " sc0 sc1" if "osys" in OPT else ""))
    if TS:
        if "p3ts" in OPT: stamp(a, 5)
        a("s_waitcnt vmcnt(0)")
        stamp(a, 14)
        ts_flush(a, 0, 0, "w0")
        if "allw" in OPT:
            for w in range(1, 4): ts_flush(a, w, w, f"w{w}")
    a("L_done:", "s_endpgm")

    a("L_fallback:")
    M = T + 2
    a("s_lshr_b32 s52, s25, 3", "s_lshl_b32 s52, s52, 13", "s_add_u32 s52, s52, s54",
      f"v_mov_b32 v{M}, 0xff800000", "s_mov_b32 s63, 0",
      f"v_sub_u32 v{T+3}, v{VA[0]}, v{KA[0]}", f"v_add_u32 v{T+3}, v{T+3}, v{LO}")
    def fb_addr():
        return ["s_lshr_b32 s53, s63, 2", "s_lshl_b32 s53, s53, 14", "s_and_b32 s56, s63, 3", "s_lshl_b32 s56, s56, 11",
                "s_add_u32 s53, s53, s56", "s_add_u32 s53, s53, s52"]
    a("L_fb1:", fb_addr(),
      f"buffer_load_dwordx4 {vr(KB[0],4)}, v{LO}, s[36:39], s53 offen sc1", "s_waitcnt vmcnt(0)",
      mfma(S[0], KB[0], Q, "0"), "s_nop 15")
    for r in range(8): a(f"v_max3_f32 v{M}, v{S[0]+2*r}, v{S[0]+2*r+1}, v{M}")
    a("s_add_u32 s63, s63, 1", "s_cmp_lg_u32 s63, 64", "s_cbranch_scc1 L_fb1")
    a(f"v_mov_b32 v{T}, v{M}", "s_nop 1", f"v_permlane32_swap_b32 v{M}, v{T}", "s_nop 1", f"v_max_f32 v{M}, v{M}, v{T}", f"v_sub_f32 v{M}, 0, v{M}")
    for r in range(16): a(f"v_mov_b32 v{CM+r}, v{M}")
    for r in range(16): a(f"v_mov_b32 v{O+r}, 0")
    a("s_mov_b32 s63, 0")
    a("L_fb2:", fb_addr(),
      f"buffer_load_dwordx4 {vr(KB[0],4)}, v{LO}, s[36:39], s53 offen sc1", "s_mov_b64 exec, s[50:51]",
      f"buffer_load_dwordx4 {vr(VB[0],4)}, v{T+3}, s[36:39], s53 offen sc1",
      f"buffer_load_dwordx4 {vr(VB[0]+4,4)}, v{T+3}, s[36:39], s53 offen offset:512 sc1", "s_mov_b64 exec, -1",
      "s_waitcnt vmcnt(0)", mfma(S[0], KB[0], Q, CM), "s_nop 15")
    a(ex(S[0], 0, 16), "s_nop 1", smf(O, VB[0], S[0], IDX), smf(O, VB[0] + 4, S[0] + 8, IDX))
    a("s_add_u32 s63, s63, 1", "s_cmp_lg_u32 s63, 64", "s_cbranch_scc1 L_fb2")
    a("s_nop 15", f"v_rcp_f32 v{T+2}, v{O+8}", f"v_mov_b32 v{T}, s48", f"v_mov_b32 v{T+1}, s49", "s_branch L_finish", "L_code_end:")
    a.l.append(f""".section .rodata,"a"
.p2align 6
.amdhsa_kernel {k}
  .amdhsa_next_free_vgpr 128
  .amdhsa_next_free_sgpr {102 if TS else 68}
  .amdhsa_accum_offset 128
  .amdhsa_group_segment_fixed_size 0
  .amdhsa_kernarg_size 72
  .amdhsa_user_sgpr_count 2
  .amdhsa_user_sgpr_kernarg_segment_ptr 1
  .amdhsa_system_sgpr_workgroup_id_x 1
.end_amdhsa_kernel""")

a = Asm()
a.l += """; Two multi-head attention blocks (S=2048, D=512, H=32, Dh=16) in one launch, 256 workgroups x 16 waves.
; @launch grid=(256,1,1) block=(1024,1,1) lds=163840
; Workgroup = (problem p, head pair hp, block j of 256 tokens); ids are laid out so that a token block's 16 workgroups
; share an XCD (speed only - every hand-off below is valid under any placement).
;  P1  q,k,v projection of the 256 tokens x 2 heads: waves 8-15 stream x / wqkv k-chunks into LDS (LDS-DMA ring),
;      waves 0-7 run 16x16x32 MFMAs and leave Q, K and V^T as ready MFMA fragments (Q scaled by log2(e)/4).
;      K/V go to LDS (own tiles) and, write-through, to d_ws for the other seven token blocks.
;  P2  wave = (32 queries, head). S^T = K Q^T (32x32x16 MFMA), p = exp2(S^T) in place, O^T += V^T p with the 2:4
;      sparse MFMA reading the fp32 p registers as bf16 pairs (index 0xdddd keeps the high halves = truncated bf16);
;      a ones row in V^T accumulates the row sum. No max is subtracted; afterwards the wave checks that the row sums
;      lie in [1, 2^48] and O is finite, otherwise it redoes its rows with the true row max (L_fallback).
;      Remote K/V arrive in 16 KB half-blocks through a ten-slot LDS ring, each after its producer's flags.
;  P3  output projection of a 128 x 64 tile after the row block's O fragments are flagged.
; Flags carry a per-launch tag (clock value published through d_debug by workgroup 0); every wait is bounded.
.amdgcn_target "amdgcn-amd-amdhsa--gfx950"
.text""".split("\n")
gen(a)
print(a.text())
```

```python
import sys, math, struct

NAME = "concat_heads__mha_block__mha_block__prompt"
OPT = set(sys.argv[1:]) | {"pub0", "stmid", "tx67", "b0late"}
if "noc3" in OPT: pass
elif not any(o.startswith("stg=") for o in OPT): OPT |= {"c3=3"}
else: OPT |= {"nopf"}
if not OPT & {"tx", "a3", "nopf"}: OPT |= {"tx", "tw", "early", "rot", "rotb", "c3r"}
NWS = 5 if "w5" in OPT else (4 if "w4" in OPT else 3)
TS = "ts" in OPT
WT = "sc0 sc1" if "sys" in OPT else "sc1 nt" if "wtnt" in OPT else "sc1"
XNT = " nt" if "xnt" in OPT else ""
WNT = " nt" if "wnt" in OPT else ""
KV_OFF = 0
OF_OFF = 8 << 20
FKV_OFF = 12 << 20
FO_OFF = (12 << 20) + 65536
XID_OFF = (12 << 20) + 131072
WS_USED = 13 << 20
QSCALE = 0.25 * math.log2(math.e)
SPIN_MAX = 1 << 18
def f32bits(x): return struct.unpack("<I", struct.pack("<f", x))[0]

class Asm:
    def __init__(self): self.l = []
    def __call__(self, *lines):
        for x in lines:
            if isinstance(x, (list, tuple)): self(*x)
            else: self.l.append("    " + x if not x.endswith(":") else x)
    def c(self, s): self.l.append("    ; " + s)
    def text(self): return "\n".join(self.l)

def vr(b, n): return f"v[{b}:{b+n-1}]"
def mfma(d, a, b, c):
    cs = vr(c, 16) if isinstance(c, int) else c
    return f"v_mfma_f32_32x32x16_bf16 {vr(d,16)}, {vr(a,4)}, {vr(b,4)}, {cs}"
def smf(d, a, b, idx): return f"v_smfmac_f32_32x32x32_bf16 {vr(d,16)}, {vr(a,4)}, {vr(b,8)}, v{idx}"

P1TS_DONE = False
def stamp(a, j):
    if "p1ts" in OPT and P1TS_DONE and j >= 7: return
    if "cyc3" in OPT: return
    if TS: a(f"s_memrealtime s[{64+2*j}:{65+2*j}]", "s_waitcnt lgkmcnt(0)")
def cstamp(a, j):
    if "cyc3" in OPT and not ("ends" in OPT and j not in (0, 5)):
        if j == 0: a("s_memtime s[98:99]", "s_waitcnt lgkmcnt(0)")
        else: a("s_memtime s[96:97]", "s_waitcnt lgkmcnt(0)", "s_sub_u32 s96, s96, s98", f"s_add_u32 s{64+2*j}, s64, s96", f"s_addc_u32 s{65+2*j}, s65, 0")
def ts_init(a):
    if TS:
        for j in range(15): a(f"s_mov_b64 s[{64+2*j}:{65+2*j}], 0")
        a("s_mov_b32 s94, 0x5151", "s_mov_b32 s95, 0")
def ts_flush(a, kidx, wave, tag):
    if not TS: return
    a(f"s_cmp_lg_u32 s25, {wave}", f"s_cbranch_scc1 TS_skip_{tag}")
    a("s_sleep 127", "s_sleep 127", "s_sleep 127")
    a("s_mov_b64 exec, 1", f"s_lshl_b32 s96, s2, 7", f"s_add_u32 s96, s96, {(32<<20) + kidx*256*128}", "v_mov_b32 v1, s96")
    for j in range(16):
        a(f"v_mov_b32 v2, s{64+2*j}", f"v_mov_b32 v3, s{65+2*j}", f"global_store_dwordx2 v1, v[2:3], s[20:21] offset:{j*8}", "s_nop 1")
    a("s_waitcnt vmcnt(0)", "s_mov_b64 exec, -1", f"TS_skip_{tag}:")

XRING = 0
WRING = 98304
QX = 65536
TAGL = 163832
EREG = 131072

def spin(a, name, cond_lines, reload_lines, slp=1):
    a(f"s_mov_b32 s63, {SPIN_MAX}", f"L_{name}_chk:", "s_waitcnt vmcnt(0)", cond_lines, f"s_cbranch_scc1 L_{name}_ok", f"s_sleep {slp}",
      reload_lines, "s_sub_u32 s63, s63, 1", "s_cmp_lg_u32 s63, 0", f"s_cbranch_scc1 L_{name}_chk", "s_waitcnt vmcnt(0)", f"L_{name}_ok:")

def gen(a):
    k = NAME + "_kernel"
    a.l += [f".globl {k}", ".p2align 8", f".type {k},@function", f"{k}:"]
    a("s_cmp_ge_u32 s2, 256", "s_cbranch_scc1 L_done")
    a("s_load_dwordx16 s[4:19], s[0:1], 0", "s_load_dwordx2 s[20:21], s[0:1], 64")
    ts_init(a)
    if TS: a("s_memrealtime s[64:65]")
    a("s_memrealtime s[48:49]")
    a("s_and_b32 s52, s2, 7", "s_lshr_b32 s53, s2, 3",
      "s_lshr_b32 s22, s52, 2",
      "s_and_b32 s23, s53, 15",
      "s_and_b32 s24, s52, 3", "s_lshl_b32 s24, s24, 1", "s_lshr_b32 s53, s53, 4", "s_add_u32 s24, s24, s53")
    a("v_lshrrev_b32 v1, 6, v0", "v_and_b32 v0, 63, v0", "s_getreg_b32 s26, hwreg(HW_REG_XCC_ID)", "v_readfirstlane_b32 s25, v1")
    a("s_and_b32 s26, s26, 7", "s_lshl_b32 s62, s25, 10")
    a.c("loader lane offsets (independent of the pointers: done while the kernel arguments are in flight)")
    a("s_and_b32 s53, s25, 1", "s_lshl_b32 s53, s53, 2",
      "v_lshrrev_b32 v2, 4, v0", "v_add_u32 v2, s53, v2", "v_and_b32 v3, 7, v0", "v_xor_b32 v2, v2, v3", "v_lshlrev_b32 v2, 4, v2",
      "v_lshrrev_b32 v4, 3, v0", "v_lshl_add_u32 v2, v4, 10, v2")
    a("v_lshrrev_b32 v4, 2, v0", "v_mul_u32_u24 v4, 3072, v4", "v_and_b32 v3, 3, v0",
      "v_lshrrev_b32 v5, 5, v0", "v_lshlrev_b32 v5, 1, v5", "v_xor_b32 v3, v3, v5", "v_lshl_add_u32 v3, v3, 4, v4",
      "s_lshl_b32 s53, s23, 6", "v_add_u32 v3, s53, v3")
    a("s_and_b32 s3, s24, 6")
    a.c("k-chunk order: the XCD's two token blocks take turns at being first to ask for a W chunk")
    a("s_bitcmp1_b32 s24, 0", "s_mov_b32 s27, 0x47653210", "s_cselect_b32 s27, 0x76504321, s27")
    a("v_lshlrev_b32 v13, 7, v0")
    a("s_waitcnt lgkmcnt(0)")
    WSB = int(([o for o in OPT if o.startswith("wsb=")] or ["wsb=0"])[0][4:]) << 20
    if WSB: a(f"s_add_u32 s20, s20, {WSB}", "s_addc_u32 s21, s21, 0")
    a("s_cmp_eq_u32 s22, 0",
      "s_cselect_b32 s4, s4, s10", "s_cselect_b32 s5, s5, s11", "s_cselect_b32 s6, s6, s12", "s_cselect_b32 s7, s7, s13",
      "s_cselect_b32 s8, s8, s14", "s_cselect_b32 s9, s9, s15")
    a("s_lshl_b32 s52, s24, 18", "s_add_u32 s28, s4, s52", "s_addc_u32 s29, s5, 0", "s_and_b32 s29, s29, 0xffff",
      "s_mov_b32 s30, 262144", "s_mov_b32 s31, 0x20000")
    a("s_mov_b32 s32, s6", "s_and_b32 s33, s7, 0xffff", f"s_mov_b32 s34, {512*3072}", "s_mov_b32 s35, 0x20000")
    a("s_cmp_ge_u32 s25, 8", "s_cbranch_scc1 L_loader")
    MARK0 = len(a.l)

    O = 0; Q = 16; S = [20, 36]; KB = [52, 56]; VB = [100, 108]; IDX = 116; KA = [117, 118, 98]; VA = [119, 120, 99]; LO = 121; T = 122
    CM = 80
    WOA = 61; CK = 62

    def common_init(a):
        a("s_mov_b32 s36, s20", "s_and_b32 s37, s21, 0xffff", f"s_mov_b32 s38, {WS_USED}", "s_mov_b32 s39, 0x20000")
        a("s_and_b32 s52, s23, 7", "s_lshl_b32 s52, s52, 7", "s_add_u32 s40, s8, s52", "s_addc_u32 s41, s9, 0", "s_and_b32 s41, s41, 0xffff",
          f"s_sub_u32 s42, {512*1024}, s52", "s_mov_b32 s43, 0x20000")
        a("s_mov_b32 s44, s16", "s_and_b32 s45, s17, 0xffff", f"s_mov_b32 s46, {2048*2048}", "s_mov_b32 s47, 0x20000")
        a("s_mov_b32 s50, 0xffff", "s_mov_b32 s51, 0xffff")
        a("s_lshl_b32 s54, s22, 4", "s_add_u32 s54, s54, s23", "s_lshl_b32 s54, s54, 18", "s_lshl_b32 s55, s24, 15", "s_add_u32 s55, s55, s54")
        a(f"v_lshlrev_b32 v{LO}, 4, v0",
          "s_lshr_b32 s56, s25, 3", "s_lshl_b32 s53, s56, 13",
          f"v_add_u32 v{KA[0]}, s53, v{LO}", f"v_add_u32 v{KA[1]}, 0x10000, v{KA[0]}", f"v_add_u32 v{KA[2]}, 0x20000, v{KA[0]}",
          "v_and_b32 v13, 15, v0", "v_lshlrev_b32 v13, 4, v13", "v_lshrrev_b32 v14, 5, v0", "v_lshl_add_u32 v13, v14, 8, v13",
          "s_add_u32 s53, s53, 1024", f"v_add_u32 v{VA[0]}, s53, v13", f"v_add_u32 v{VA[1]}, 0x10000, v{VA[0]}", f"v_add_u32 v{VA[2]}, 0x20000, v{VA[0]}",
          f"v_mov_b32 v{IDX}, 0xdddddddd")
        a("v_and_b32 v13, 27, v0", "v_cmp_eq_u32 vcc, 16, v13", "v_mov_b32 v14, 0x3f803f80",
          f"v_mov_b32 v{T}, {TAGL}", f"v_lshlrev_b32 v{T+4}, 3, v0", "v_cndmask_b32 v13, 0, v14, vcc")
        for r in range(16): a(f"v_mov_b32 v{VB[0]+r}, v13")
        a("s_and_b32 s53, s25, 7", "s_lshl_b32 s58, s24, 3", "s_add_u32 s58, s58, s53", "s_lshl_b32 s57, s22, 6", "s_add_u32 s58, s58, s57",
          "s_lshl_b32 s58, s58, 5", "s_lshl_b32 s53, s23, 1", "s_add_u32 s53, s53, s56", "s_add_u32 s58, s58, s53",
          "s_lshl_b32 s59, s58, 3", f"s_add_u32 s59, s59, {FO_OFF}", "s_lshl_b32 s58, s58, 10", f"s_add_u32 s58, s58, {OF_OFF}")
        a("s_lshr_b32 s60, s54, 7", f"s_add_u32 s60, s60, {FKV_OFF}", "s_lshl_b32 s61, s24, 8", "s_add_u32 s61, s61, s60",
          "s_bfe_u32 s53, s25, 0x10002", "s_lshl_b32 s53, s53, 7", "s_add_u32 s61, s61, s53",
          "s_and_b32 s53, s25, 3", "s_lshl_b32 s53, s53, 3", "s_add_u32 s61, s61, s53")
        a("s_lshl_b32 s10, s22, 3", "s_add_u32 s10, s10, s24", "s_lshl_b32 s10, s10, 7", f"s_add_u32 s10, s10, {XID_OFF}")
        a("s_lshl_b32 s52, s24, 3", "s_lshr_b32 s53, s23, 3", "s_lshl_b32 s53, s53, 2", "s_add_u32 s52, s52, s53",
          "s_add_u32 s53, s57, s52", "s_lshl_b32 s11, s53, 8", f"s_add_u32 s11, s11, {FO_OFF}",
          "s_and_b32 s12, s25, 3", "s_add_u32 s52, s52, s12", "s_add_u32 s53, s53, s12", "s_lshl_b32 s12, s53, 15", f"s_add_u32 s12, s12, {OF_OFF}",
          "s_lshl_b32 s13, s22, 10", "s_and_b32 s53, s23, 7", "s_lshl_b32 s53, s53, 7", "s_add_u32 s13, s13, s53",
          "s_lshl_b32 s53, s52, 16", "s_add_u32 s13, s13, s53")

    XA = [1, 2]; XB = [3, 4]; WA = [5, 6]; VK = 96; VV = 97; QA = 123
    ACC = 16
    FXR = [64, 68]; FW = 72
    def touches():
        if "tx" in OPT:
            a.c("HBM/L2 warm-up: waves 0,1 touch 8 KB each of this workgroup's share of the X block")
            if "tx67" in OPT:
                a("s_and_b32 s53, s25, 6", "s_mov_b32 s52, s23", "s_cmp_eq_u32 s53, 0", "s_cbranch_scc1 L_tx_own",
                  "s_cmp_lg_u32 s53, 6", "s_cbranch_scc1 L_tx_done", "s_sub_u32 s52, s23, 2", "s_lshr_b32 s53, s52, 1", "s_cmp_lg_u32 s53, 3", "s_cbranch_scc1 L_tx_done",
                  "s_branch L_tx_go", "L_tx_own:", "s_lshr_b32 s53, s52, 1", "s_cmp_eq_u32 s53, 3", "s_cbranch_scc1 L_tx_done", "L_tx_go:",
                  "s_lshl_b32 s52, s52, 14", "s_and_b32 s53, s25, 1", "s_lshl_b32 s53, s53, 13", "s_add_u32 s52, s52, s53",
                  "v_lshlrev_b32 v13, 7, v0", "buffer_load_dword v125, v13, s[28:31], s52 offen" + XNT, "L_tx_done:")
            else:
                a("s_cmp_ge_u32 s25, 2", "s_cbranch_scc1 L_tx_done",
                  "s_lshl_b32 s52, s23, 14", "s_lshl_b32 s53, s25, 13", "s_add_u32 s52, s52, s53",
                  "v_lshlrev_b32 v13, 7, v0", "buffer_load_dword v125, v13, s[28:31], s52 offen" + XNT, "L_tx_done:")
        if "tw" in OPT:
            a.c("waves 2,3 touch 6 KB each of W (1/128 of the matrix per workgroup)")
            a("s_sub_u32 s52, s25, 2", "s_cmp_ge_u32 s52, 2", "s_cbranch_scc1 L_tw_done",
              "s_lshl_b32 s53, s24, 4", "s_add_u32 s53, s53, s23", "s_lshl_b32 s53, s53, 1", "s_add_u32 s52, s52, s53",
              "s_mul_i32 s52, s52, 6144", "v_cmp_gt_u32 vcc, 48, v0", "v_lshlrev_b32 v13, 7, v0", "s_and_saveexec_b64 s[56:57], vcc",
              "buffer_load_dword v125, v13, s[32:35], s52 offen", "s_mov_b64 exec, -1", "L_tw_done:")
        if "twf" in OPT:
            a.c("waves 2..7 touch 8 KB each of W (1/32 of the matrix per workgroup)")
            a("s_sub_u32 s52, s25, 2", "s_cmp_ge_u32 s52, 6", "s_cbranch_scc1 L_twf_done",
              "s_and_b32 s53, s24, 1", "s_lshl_b32 s53, s53, 4", "s_add_u32 s53, s53, s23", "s_mul_i32 s53, s53, 6", "s_add_u32 s52, s52, s53",
              "s_lshl_b32 s52, s52, 13", "v_lshlrev_b32 v13, 7, v0",
              "buffer_load_dword v125, v13, s[32:35], s52 offen", "L_twf_done:")
    def touchX(c0, nc, wave, tag):
        a(f"s_cmp_lg_u32 s25, {wave}", f"s_cbranch_scc1 L_{tag}_done")
        if nc == 2: a("v_lshrrev_b32 v13, 1, v0", "v_and_b32 v14, 1, v0")
        elif nc == 4: a("v_lshrrev_b32 v13, 2, v0", "v_and_b32 v14, 3, v0")
        else: a("v_mul_u32_u24 v13, 43, v0", "v_lshrrev_b32 v13, 7, v13", "v_mul_u32_u24 v14, 3, v13", "v_sub_u32 v14, v0, v14")
        a("v_lshlrev_b32 v13, 10, v13", "v_lshl_add_u32 v13, v14, 7, v13", "s_lshl_b32 s52, s23, 14", f"s_add_u32 s52, s52, {c0*128}",
          f"v_cmp_gt_u32 vcc, {16*nc}, v0", "s_nop 1", "s_and_saveexec_b64 s[56:57], vcc",
          "buffer_load_dword v125, v13, s[28:31], s52 offen" + XNT, "s_mov_b64 exec, -1", f"L_{tag}_done:")
    def touchW(c0, nc, wave, tag):
        a(f"s_cmp_lg_u32 s25, {wave}", f"s_cbranch_scc1 L_{tag}_done",
          "s_lshl_b32 s52, s24, 4", "s_add_u32 s52, s52, s23", f"s_mul_i32 s52, s52, {nc*1536}", f"s_add_u32 s52, s52, {c0*196608}",
          f"v_cmp_gt_u32 vcc, {12*nc}, v0", "v_lshlrev_b32 v13, 7, v0", "s_nop 0", "s_and_saveexec_b64 s[56:57], vcc",
          "buffer_load_dword v125, v13, s[32:35], s52 offen" + WNT, "s_mov_b64 exec, -1", f"L_{tag}_done:")
    if "tlb" in OPT:
        a.c("translation warm-up: wave 0 of workgroup i touches one of the pages the kernel will need")
        a("s_cmp_lg_u32 s25, 0", "s_cbranch_scc1 L_tlb_done",
          "s_and_b32 s52, s23, 7", "v_mov_b32 v13, 0",
          "s_cmp_eq_u32 s52, 0", "s_cbranch_scc1 L_tlb0", "s_cmp_eq_u32 s52, 1", "s_cbranch_scc1 L_tlb1",
          "s_cmp_eq_u32 s52, 2", "s_cbranch_scc1 L_tlb2", "s_cmp_eq_u32 s52, 3", "s_cbranch_scc1 L_tlb3",
          "s_cmp_eq_u32 s52, 4", "s_cbranch_scc1 L_tlb4")
        a("s_lshl_b32 s53, s22, 22", "s_lshr_b32 s56, s23, 3", "s_lshl_b32 s56, s56, 21", "s_add_u32 s53, s53, s56",
          "s_lshl_b32 s56, s22, 21", f"s_add_u32 s56, s56, {OF_OFF}",
          "s_cmp_eq_u32 s52, 6", "s_cselect_b32 s53, s56, s53", "s_cmp_eq_u32 s52, 7", f"s_cselect_b32 s53, {FKV_OFF}, s53",
          "v_mov_b32 v13, s53", "global_load_dword v125, v13, s[20:21]", "s_branch L_tlb_done")
        a("L_tlb0:", "buffer_load_dword v125, v13, s[28:31], 0 offen", "s_branch L_tlb_done")
        a("L_tlb1:", "buffer_load_dword v125, v13, s[32:35], 0 offen", "s_branch L_tlb_done")
        a("L_tlb2:", "global_load_dword v125, v13, s[8:9]", "s_branch L_tlb_done")
        a("L_tlb3:", "s_lshr_b32 s53, s24, 2", "s_lshl_b32 s53, s53, 21", "v_mov_b32 v13, s53", "global_load_dword v125, v13, s[16:17]", "s_branch L_tlb_done")
        a("L_tlb4:", "global_load_dword v125, v13, s[18:19] sc1", "L_tlb_done:")
    if "cpf" in OPT:
        a.c("pull the kernel's code into L2 (waves 4..7, 64 lines each)")
        a("s_sub_u32 s52, s25, 4", "s_cmp_ge_u32 s52, 4", "s_cbranch_scc1 L_cpf_done",
          "s_getpc_b64 s[56:57]", "L_cpf_pc:", "s_lshl_b32 s52, s52, 13", "v_lshlrev_b32 v13, 7, v0", "v_add_u32 v13, s52, v13",
          "v_cmp_gt_u32 vcc, L_code_end-L_cpf_pc, v13", "s_nop 1", "s_and_saveexec_b64 s[52:53], vcc", "s_cbranch_execz L_cpf_skip",
          "global_load_dword v125, v13, s[56:57]", "L_cpf_skip:", "s_mov_b64 exec, -1", "L_cpf_done:")
    STG = [o for o in OPT if o.startswith("stg=")]
    stg = [[int(y) for y in x] for x in STG[0][4:].split(",")] if STG else [[], [], [], [], []]
    def stouch(chunks, tag):
        if not chunks: return
        lo, hi = min(chunks), max(chunks)
        a(f"s_sub_u32 s52, s25, {lo}", f"s_cmp_gt_u32 s52, {hi-lo}", f"s_cbranch_scc1 L_{tag}",
          "s_lshl_b32 s52, s23, 14", "s_lshl_b32 s53, s25, 7", "s_add_u32 s52, s52, s53", "v_lshlrev_b32 v8, 10, v0", "s_mov_b64 exec, 0xffff",
          "buffer_load_dword v125, v8, s[28:31], s52 offen",
          "s_and_b32 s52, s24, 1", "s_lshl_b32 s52, s52, 4", "s_add_u32 s52, s52, s23", "s_mul_i32 s52, s52, 6144", "s_mul_i32 s53, s25, 196608",
          "s_add_u32 s52, s52, s53", "s_mov_b64 exec, -1", "v_lshlrev_b32 v8, 7, v0", "s_mov_b32 exec_hi, 0xffff",
          "buffer_load_dword v125, v8, s[32:35], s52 offen", "s_mov_b64 exec, -1", f"L_{tag}:")
    stouch(stg[0], "stg0")
    if "early" in OPT: touches()
    a("s_branch L_compute")
    MARK1 = len(a.l)
    a("L_compute:")
    a("s_barrier")
    if "early" not in OPT and "late" not in OPT: touches()
    if "a3" in OPT:
        touchX(2, 3, 0, "xa3"); touchW(2, 3, 1, "wa3")
    if "wa3" in OPT: touchW(2, 3, 2, "wa3")
    if "wa2" in OPT: touchW(2, 2, 2, "wa2")
    if "wa13" in OPT: touchW(1, 3, 2, "wa13")
    common_init(a)
    a("v_and_b32 v13, 15, v0", "v_lshrrev_b32 v14, 4, v0",
      "v_bfe_u32 v15, v0, 1, 3", "v_xor_b32 v15, v15, v14", "v_lshlrev_b32 v15, 4, v15", "v_lshl_add_u32 v15, v13, 7, v15",
      "s_lshl_b32 s52, s25, 12",
      f"v_add_u32 v{XA[0]}, s52, v15", f"v_xor_b32 v{XA[1]}, 64, v{XA[0]}",
      f"v_add_u32 v{XB[0]}, 0x10000, v{XA[0]}", f"v_add_u32 v{XB[1]}, 0x10000, v{XA[1]}")
    a("v_bfe_u32 v15, v0, 2, 2", "v_lshl_add_u32 v13, v14, 3, v15", "v_lshlrev_b32 v13, 6, v13",
      "v_bfe_u32 v15, v0, 4, 1", "v_lshl_add_u32 v13, v15, 5, v13", "v_and_b32 v15, 3, v0", "v_lshl_add_u32 v13, v15, 3, v13",
      f"v_add_u32 v{WA[0]}, {WRING}, v13", f"v_xor_b32 v{WA[1]}, 32, v{WA[0]}")
    a("s_and_b32 s52, s25, 3", "s_lshl_b32 s52, s52, 11", "s_lshr_b32 s53, s25, 2", "s_lshl_b32 s53, s53, 14", "s_add_u32 s52, s52, s53",
      f"v_add_u32 v{VK}, s52, v{LO}",
      "v_and_b32 v13, 15, v0", "v_lshlrev_b32 v13, 4, v13", "v_lshrrev_b32 v14, 5, v0", "v_lshl_add_u32 v13, v14, 8, v13",
      "v_bfe_u32 v15, v0, 4, 1", "v_lshl_add_u32 v13, v15, 13, v13", "s_add_u32 s52, s52, 1024", f"v_add_u32 v{VV}, s52, v13")
    a(f"s_add_u32 s52, s62, {QX}", f"v_add_u32 v{QA}, s52, v{LO}", "s_add_u32 s0, s55, 8192")
    a("v_lshlrev_b32 v7, 7, v0")
    lq1 = []
    def xread(n, th):
        c, s2 = divmod(n, 2); slot = c % 3
        lq1.append(f"X{th}")
        if slot < 2: return f"ds_read_b128 {vr(FXR[th],4)}, v{XA[s2]} offset:{slot*32768 + th*2048}"
        return f"ds_read_b128 {vr(FXR[th],4)}, v{XB[s2]} offset:{th*2048}"
    def wread(n, b):
        c, s2 = divmod(n, 2); seg, hd = divmod(b, 2)
        lq1.extend([f"W{b}"]*2)
        return [f"ds_read_b64_tr_b16 {vr(FW + b*4 + j*2, 2)}, v{WA[hd]} offset:{(c % NWS)*12288 + seg*4096 + s2*2048 + j*256}" for j in range(2)]
    def lw1(need):
        idx = [i for i, x in enumerate(lq1) if x in need]
        if not idx: return []
        keep = len(lq1) - 1 - max(idx)
        del lq1[:len(lq1) - keep]
        return [f"s_waitcnt lgkmcnt({keep})"]
    def m16(th, b, first):
        d = ACC + (b*2 + th)*4
        cs = "0" if first else vr(d, 4)
        x = vr(FXR[th], 4); w = vr(FW + b*4, 4)
        return f"v_mfma_f32_16x16x32_bf16 {vr(d,4)}, " + (f"{w}, {x}" if b < 4 else f"{x}, {w}") + f", {cs}"
    def kvpre():
        a.c("an early poll of a line that is still only in HBM is slow: fetch the group's K/V flag lines ahead of time")
        a("s_cmp_lg_u32 s25, 5", "s_cbranch_scc1 L_kvpre_done", "s_mov_b64 exec, 0xffff", "buffer_load_dword v125, v7, s[36:39], s60 offen sc1", "s_mov_b64 exec, -1", "L_kvpre_done:")
    KVAT = int(([o for o in OPT if o.startswith("kvat=")] or ["kvat=-1"])[0][5:])
    if KVAT < 0: kvpre()
    if "tkv" in OPT:
        a.c("first touch of the K/V block's pages ahead of the stores")
        a("s_cmp_lg_u32 s25, 7", "s_cbranch_scc1 L_tkv_done", "v_lshlrev_b32 v13, 12, v0", "s_mov_b64 exec, 0xff",
          "buffer_load_dword v125, v13, s[36:39], s55 offen", "s_mov_b64 exec, -1", "L_tkv_done:")
    if "kvpt" in OPT:
        a.c("fetch every line of the K/V block ahead of the stores (waves 4..7)")
        a("s_sub_u32 s52, s25, 4", "s_cmp_ge_u32 s52, 4", "s_cbranch_scc1 L_kvpt_done", "v_lshlrev_b32 v13, 7, v0", "s_lshl_b32 s52, s52, 13", "s_add_u32 s52, s52, s55",
          "buffer_load_dword v125, v13, s[36:39], s52 offen", "L_kvpt_done:")
    C3 = [o for o in OPT if o.startswith("c3=")]
    if C3:
        cls = int(C3[0][3:])
        if "c3r" in OPT:
            a("s_cmp_lg_u32 s25, 6", "s_cbranch_scc1 L_c3_done",
              "s_and_b32 s52, s24, 1", "s_lshl_b32 s52, s52, 4", "s_add_u32 s52, s52, s23", "s_mul_i32 s52, s52, 36",
              "s_and_b32 s53, s24, 6", "s_add_u32 s53, s53, 2", "s_mul_i32 s53, s53, 192", "s_add_u32 s52, s52, s53",
              "v_add_u32 v13, s52, v0", "v_subrev_u32 v14, 1536, v13", "v_min_u32 v13, v13, v14", "v_lshlrev_b32 v13, 10, v13",
              "v_cmp_gt_u32 vcc, 36, v0", f"s_mov_b32 s52, {cls*128}", "s_nop 0",
              "s_and_saveexec_b64 s[56:57], vcc", "buffer_load_dword v125, v13, s[32:35], s52 offen", "s_mov_b64 exec, -1", "L_c3_done:")
        else:
            a("s_cmp_lg_u32 s25, 6", "s_cbranch_scc1 L_c3_done",
              "s_and_b32 s52, s24, 1", "s_lshl_b32 s52, s52, 4", "s_add_u32 s52, s52, s23", "s_mul_i32 s52, s52, 36864",
              f"s_add_u32 s52, s52, {384*1024 + cls*128}", "v_cmp_gt_u32 vcc, 36, v0", "v_lshlrev_b32 v13, 10, v0", "s_nop 0",
              "s_and_saveexec_b64 s[56:57], vcc", "buffer_load_dword v125, v13, s[32:35], s52 offen", "s_mov_b64 exec, -1", "L_c3_done:")
    stouch(stg[1], "stg1")
    if "late" in OPT: touches()
    if "xa" in OPT: touchX(3, 2, 0, "xa")
    if "wa" in OPT: touchW(3, 2, 1, "wa")
    if "wa5" in OPT: touchW(3, 5, 1, "wa5")
    if "xa4" in OPT: touchX(4, 4, 0, "xa4")
    a(f"s_mov_b32 s56, {f32bits(QSCALE):#x}", f"s_mov_b32 s57, {f32bits(QSCALE):#x}")
    stamp(a, 1)
    a("s_barrier")
    stamp(a, 2)
    if "xb" in OPT or "wb" in OPT or "wb4" in OPT:
        if "xb" in OPT: touchX(5, 3, 2, "xb")
        if "wb" in OPT: touchW(5, 3, 3, "wb")
        if "wb4" in OPT: touchW(4, 4, 3, "wb4")
        a(f"s_mov_b32 s56, {f32bits(QSCALE):#x}", f"s_mov_b32 s57, {f32bits(QSCALE):#x}")
    if "cyc" in OPT: a("s_memtime s[98:99]", "s_waitcnt lgkmcnt(0)")
    stouch(stg[2], "stg2")
    BO = [2, 3, 4, 5, 0, 1]
    a(xread(0, 0))
    for b in BO: a(wread(0, b))
    a(xread(0, 1))
    for n in range(16):
        c, s2 = divmod(n, 2)
        for b in BO:
            a(lw1({"X0", f"W{b}"}), m16(0, b, n == 0))
        if n < 15:
            if s2 == 1:
                a("s_waitcnt lgkmcnt(0)", "s_barrier"); lq1.clear()
                if c == 3 and "p1ts" not in OPT: stamp(a, 3)
                if "p1ts" in OPT: stamp(a, 7 + c)
                if c == 5: a("s_waitcnt vmcnt(0)")
                if c == KVAT: kvpre()
                if c < 2: stouch(stg[3 + c], f"stg{3+c}")
                KVL = [o for o in OPT if o.startswith("kvl=")]
                if KVL:
                    c0, span = [int(x) for x in KVL[0][4:].split(",")]
                    if c0 <= c < c0 + span:
                        per = 4 // span
                        w0 = 4 + (c - c0)*per
                        a.c("a write-through store to a line the memory-side cache does not hold is slow: fetch the K/V block's lines first")
                        a(f"s_sub_u32 s52, s25, {w0}", f"s_cmp_ge_u32 s52, {per}", f"s_cbranch_scc1 L_kvl{c}", "s_sub_u32 s52, s25, 4",
                          "s_lshl_b32 s52, s52, 13", "s_add_u32 s52, s52, s55", "buffer_load_dword v125, v7, s[36:39], s52 offen", f"L_kvl{c}:")
            a(xread(n + 1, 0))
        for i, b in enumerate(BO):
            a(lw1({"X1"}), m16(1, b, n == 0))
            if n < 15: a(wread(n + 1, b))
            elif i < 4:
                for r in range(4): a(f"v_mov_b32 v{O + i*4 + r}, 0")
        if n < 15: a(xread(n + 1, 1))
        assert len(lq1) <= 15
    stamp(a, 4)
    global P1TS_DONE
    P1TS_DONE = True
    a.c("P1 epilogue: K, V -> LDS stage slot 0 (and, after the barrier, global) ; Q -> regs / LDS")
    PK = 64
    def pack2(dst, src): return [f"v_cvt_pk_bf16_f32 v{dst+r}, v{src+2*r}, v{src+2*r+1}" for r in range(2)]
    def acc(th, b): return ACC + (b*2 + th)*4
    def swaps(t): return [f"v_permlane16_swap_b32 v{t}, v{t+2}", f"v_permlane16_swap_b32 v{t+1}, v{t+3}"]
    GST = [f"buffer_store_dwordx4 {vr(PK,4)}, v{VK}, s[36:39], s55 offen {WT}",
      f"buffer_store_dwordx4 {vr(PK+4,4)}, v{VK}, s[36:39], s0 offen {WT}",
      f"buffer_store_dwordx4 {vr(PK+8,4)}, v{VV}, s[36:39], s55 offen {WT}",
      f"buffer_store_dwordx4 {vr(PK+12,4)}, v{VV}, s[36:39], s55 offen offset:512 {WT}"]
    a("s_nop 2")
    a(pack2(PK, acc(0, 2)), pack2(PK + 2, acc(1, 2)), pack2(PK + 4, acc(0, 3)), pack2(PK + 6, acc(1, 3)))
    a(swaps(PK), f"ds_write_b128 v{VK}, {vr(PK,4)}")
    if "stearly" in OPT: a(GST[0])
    a(pack2(PK + 8, acc(0, 4)), pack2(PK + 10, acc(0, 5)))
    a(swaps(PK + 4), f"ds_write_b128 v{VK}, {vr(PK+4,4)} offset:8192")
    if "stearly" in OPT: a(GST[1])
    a(pack2(PK + 12, acc(1, 4)), pack2(PK + 14, acc(1, 5)))
    a(swaps(PK + 8), f"ds_write_b128 v{VV}, {vr(PK+8,4)}")
    if "stearly" in OPT: a(GST[2])
    for r in range(4): a(f"v_pk_mul_f32 {vr(acc(0,1)+2*r,2)}, {vr(acc(0,1)+2*r,2)}, s[56:57]")
    a(swaps(PK + 12), f"ds_write_b128 v{VV}, {vr(PK+12,4)} offset:512")
    if "stearly" in OPT: a(GST[3])
    a(pack2(PK + 16, acc(0, 1)), pack2(PK + 18, acc(1, 1)))
    for r in range(4): a(f"v_pk_mul_f32 {vr(acc(0,0)+2*r,2)}, {vr(acc(0,0)+2*r,2)}, s[56:57]")
    a(swaps(PK + 16), f"ds_write_b128 v{QA}, {vr(PK+16,4)}")
    a(pack2(Q, acc(0, 0)), pack2(Q + 2, acc(1, 0)), "s_nop 1", swaps(Q))
    gst = [f"buffer_store_dwordx4 {vr(PK,4)}, v{VK}, s[36:39], s55 offen {WT}",
      f"buffer_store_dwordx4 {vr(PK+4,4)}, v{VK}, s[36:39], s0 offen {WT}",
      f"buffer_store_dwordx4 {vr(PK+8,4)}, v{VV}, s[36:39], s55 offen {WT}",
      f"buffer_store_dwordx4 {vr(PK+12,4)}, v{VV}, s[36:39], s55 offen offset:512 {WT}"]
    a("s_cmp_ge_u32 s25, 4", "s_cbranch_scc1 L_nost", gst, "L_nost:")
    a("s_waitcnt lgkmcnt(0)")
    stamp(a, 5)
    a("s_barrier")
    stamp(a, 6)
    a("s_branch L_haveq")

    MARK2 = len(a.l)
    a("L_loader:")
    if "lprio" in OPT: a("s_setprio 3")
    a("s_sub_u32 s52, s25, 8")
    a("s_lshl_b32 s4, s52, 13", "s_add_u32 s5, s4, 65536", "s_add_u32 s6, s4, 131072", "s_add_u32 s7, s4, 196608",
      "s_lshl_b32 s0, s52, 10")
    a("s_and_b32 s53, s52, 3", "s_mul_i32 s1, s53, 49152", "s_lshr_b32 s53, s52, 2", "s_lshl_b32 s53, s53, 10", "s_add_u32 s1, s1, s53")
    ROT = "rot" in OPT
    def issueW(c, variantA):
        slot = c % NWS
        if ROT: pre = ([f"s_bfe_u32 s53, s27, {(4 << 16) | (4*c):#x}", "s_add_u32 s53, s53, s3"] if "rotb" in OPT else
                       [f"s_add_u32 s53, s24, {c}" if "rotj" in OPT else f"s_add_u32 s53, s3, {c}"]) + ["s_and_b32 s53, s53, 7", "s_lshl_b32 s57, s53, 7", "s_mul_i32 s53, s53, 196608", "s_add_u32 s53, s53, s1",
                       f"s_add_u32 m0, s0, {WRING + slot*12288}", "s_nop 0"]
        else: pre = [f"s_add_u32 m0, s0, {WRING + slot*12288}", f"s_add_u32 s53, s1, {c*196608}"]
        out = pre + [
               "buffer_load_dwordx4 v3, s[32:35], s53 offen" + WNT + " lds"]
        if variantA:
            out += [f"s_add_u32 m0, s0, {WRING + slot*12288 + 8192 - 2048}", "s_nop 0",
                    "buffer_load_dwordx4 v3, s[32:35], s53 offen offset:2048" + WNT + " lds"]
        return out
    def issueX(c):
        slot = c % 3
        out = []
        for aa in range(4):
            out += [f"s_add_u32 m0, s0, {XRING + slot*32768 + aa*8192}", (f"s_add_u32 s53, s{4+aa}, s57" if ROT else f"s_add_u32 s53, s{4+aa}, {c*128}"),
                    "buffer_load_dwordx4 v2, s[28:31], s53 offen" + XNT + " lds"]
        return out
    for variantA in (True, False):
        ops = []
        def W(c):
            a(issueW(c, variantA)); ops.extend([c]*(2 if variantA else 1))
        def X(c):
            a(issueX(c)); ops.extend([c]*4)
        if variantA:
            stamp(a, 1)
            for c0 in range(2):
                wa = issueW(c0, True)
                a(wa[:-3], "s_cmp_ge_u32 s52, 4", f"s_cbranch_scc1 L_w1_{c0}", wa[-3:], f"L_w1_{c0}:", issueX(c0))
                if c0 == 0: a("s_barrier")
            a("s_cmp_ge_u32 s52, 4", "s_cbranch_scc1 L_loaderB")
        else: a("L_loaderB:")
        for c0 in range(2): ops.extend([c0]*((2 if variantA else 1) + 4))
        SX = [o for o in OPT if o.startswith("sx=")]
        sx = [[int(y) for y in x] for x in SX[0][3:].split(",")] if SX else [[]]*6
        def spf(chunks):
            for c_ in chunks:
                for off in (0, 64, 1024, 1088): a(f"s_load_dword s63, s[16:17], {c_*128 + off}")
        if SX:
            a("s_lshl_b32 s53, s23, 3", "s_add_u32 s53, s53, s52", "s_lshl_b32 s53, s53, 11")
        W0 = issueW(0, variantA)
        if SX: a("s_add_u32 s96, s28, s53" if TS else "s_add_u32 s64, s28, s53", "s_addc_u32 s97, s29, 0" if TS else "s_addc_u32 s65, s29, 0")
        SXB = "s[96:97]" if TS else "s[64:65]"
        SWB = 98 if TS else 66
        SW = [o for o in OPT if o.startswith("sw=")]
        if SW:
            a("s_lshl_b32 s53, s24, 4", "s_add_u32 s53, s53, s23", "s_mul_i32 s53, s53, 6", "s_min_u32 s56, s52, 5", "s_add_u32 s53, s53, s56",
              "s_lshl_b32 s53, s53, 8", f"s_add_u32 s53, s53, {4*196608}", f"s_add_u32 s{SWB}, s32, s53", f"s_addc_u32 s{SWB+1}, s33, 0")
        def spf(chunks):
            for c_ in chunks:
                if SW:
                    for off in ((0, 128) if SW[0] == "sw=1" else (0, 64, 128, 192)): a(f"s_load_dword s3, s[{SWB}:{SWB+1}], {(c_-4)*196608 + off}")
                for off in (0, 64, 1024, 1088): a(f"s_load_dword s3, {SXB}, {c_*128 + off}")

        if not variantA:
            a.c("workgroup 0 publishes the launch tag (low 4 bits: 8 | room for an XCC id)")
            a("s_cmp_lg_u32 s2, 0", "s_cbranch_scc1 L_notag", "s_cmp_lg_u32 s52, 7", "s_cbranch_scc1 L_notag")
            a("s_lshl_b64 s[48:49], s[48:49], 4", "s_or_b32 s48, s48, 8",
              "v_mov_b32 v8, 0", "v_mov_b32 v4, s48", "v_mov_b32 v5, s49", "s_mov_b64 exec, 1",
              f"global_store_dwordx2 v8, v[4:5], s[18:19] {WT}", "s_mov_b64 exec, -1")
            a("L_notag:")
        ROLL = "roll" in OPT and not variantA
        def TOUCH(c):
            a("s_mov_b64 exec, s[16:17]", "buffer_load_dword v10, v9, s[44:47], s3 offen", "s_mov_b64 exec, -1", "s_add_u32 s3, s3, s27")
            ops.append(99)
        if ROLL:
            a("s_mov_b32 s3, s52")
        common_init(a)
        if ROLL:
            R0 = int([o for o in OPT if o.startswith("r0=")][0][3:]) if any(o.startswith("r0=") for o in OPT) else 2
            a.c("rolling L2 warm-up of later W chunks, spread over the XCD's workgroups")
            a("s_mov_b32 s44, s32", "s_mov_b32 s45, s33", "s_mov_b32 s46, s34", "s_mov_b32 s17, 0", "s_mov_b32 s27, 196608",
              "s_and_b32 s52, s24, 1", "s_lshl_b32 s52, s52, 4", "s_add_u32 s52, s52, s23", "s_and_b32 s3, s3, 3")
            if "roll3" in OPT:
                a("s_mov_b32 s16, 3", "v_lshlrev_b32 v9, 10, v0", "s_min_u32 s3, s3, 2", "s_lshl_b32 s3, s3, 11", "s_mul_i32 s52, s52, 6144",
                  "s_add_u32 s3, s3, s52", f"s_add_u32 s3, s3, {R0*196608 + 384}")
            else:
                a("s_mov_b32 s16, 0xfff", "v_lshlrev_b32 v9, 7, v0", "s_mul_i32 s3, s3, 1536", "s_mul_i32 s52, s52, 6144",
                  "s_add_u32 s3, s3, s52", f"s_add_u32 s3, s3, {R0*196608}")
            nextT = R0
            RD = int([o for o in OPT if o.startswith("rd=")][0][3:]) if any(o.startswith("rd=") for o in OPT) else 4
            while nextT < RD: TOUCH(nextT); nextT += 1
        nextW = 2
        for c in range(8):
            last = max(i for i, x in enumerate(ops) if x <= c)
            wait = len(ops) - 1 - last
            if not variantA and c == 7:
                a.c("launch tag -> LDS")
                spin(a, "tag", ["v_cmp_ne_u64 vcc, 0, v[6:7]", "s_nop 1", "s_cmp_eq_u64 vcc, -1"],
                     ["global_load_dwordx2 v[6:7], v8, s[18:19] sc1"])
                a(f"ds_write_b64 v{T}, v[6:7]")
            else:
                a(f"s_waitcnt vmcnt({wait})")
            a("s_barrier")
            if variantA and c == 0 and not SX: stamp(a, 3)
            if variantA and c == 7: stamp(a, 4)
            if "b0f" in OPT and c == 0: W(1); X(1)
            if nextW == c + 2 and nextW <= 7: W(nextW); nextW += 1
            if c + 2 <= 7: X(c + 2)
            while nextW <= min(7, c - 1 + NWS): W(nextW); nextW += 1
            if "spc" in OPT and c == 3:
                v_ = "A" if variantA else "B"
                a.c("pull the attention / output-projection code into this XCD's L2 through the scalar path (128 bytes per loader wave)")
                a("s_getpc_b64 s[56:57]", f"L_spc{v_}:", "s_and_b32 s53, s24, 1", "s_lshl_b32 s53, s53, 4", "s_add_u32 s53, s53, s23", "s_lshl_b32 s53, s53, 10",
                  "s_lshr_b32 s52, s0, 3", "s_add_u32 s53, s53, s52", f"s_add_u32 s53, s53, L_p2_start-L_spc{v_}", f"s_min_u32 s53, s53, L_code_end-L_spc{v_}-68",
                  "s_add_u32 s56, s56, s53", "s_addc_u32 s57, s57, 0",
                  f"s_load_dword s{100 if TS else 66}, s[56:57], 0", f"s_load_dword s{100 if TS else 66}, s[56:57], 64")
            if c + 2 < len(sx): spf(sx[c + 2])
            if ROLL and nextT <= 7: TOUCH(nextT); nextT += 1
            if not variantA and c == 5:
                a("v_mov_b32 v8, 0", "global_load_dwordx2 v[6:7], v8, s[18:19] sc1"); ops.append(99)
        a("s_branch L_p2_start")
    MARK3 = len(a.l)
    a.l[MARK1:MARK3] = a.l[MARK2:MARK3] + a.l[MARK1:MARK2]

    a("L_p2_start:")
    a(f"v_mov_b32 v{VK}, 0", f"v_mov_b32 v{VV}, 0")
    for r in range(16): a(f"v_mov_b32 v{O+r}, 0")
    a(f"s_add_u32 s53, s62, {QX - 8192}", f"v_add_u32 v{T+1}, s53, v{LO}")
    a("s_waitcnt lgkmcnt(0)")
    stamp(a, 5)
    a("s_barrier")
    stamp(a, 6)
    a(f"ds_read_b128 {vr(Q,4)}, v{T+1}")
    a("L_haveq:")
    cstamp(a, 0)
    def loc(u):
        n, i = divmod(u, 4); sl = n % 10
        return sl // 4, (sl % 4)*16384 + i*2048
    def kread(u):
        b, o = loc(u)
        return [f"ds_read_b128 {vr(KB[u%2],4)}, v{KA[b]} offset:{o}"]
    def vread(u):
        b, o = loc(u)
        return ["s_mov_b64 exec, s[50:51]",
                f"ds_read_b128 {vr(VB[u%2],4)}, v{VA[b]} offset:{o}",
                f"ds_read_b128 {vr(VB[u%2]+4,4)}, v{VA[b]} offset:{o+512}",
                "s_mov_b64 exec, -1"]
    def ex(base, lo, hi): return [f"v_exp_f32 v{base+i}, v{base+i}" for i in range(lo, hi)]
    def opt(name, default): return [int(x) for x in ([o for o in OPT if o.startswith(name + "=")] or [name + "=" + default])[0][len(name)+1:].split(",")]
    HB = [(0, 0), (0, 1)] + [(x, 0) for x in range(1, 8)] + [(x, 1) for x in range(1, 8)]
    poll = [f"buffer_load_dwordx2 {vr(T,2)}, v{T+4}, s[36:39], s57 offen sc1"]
    def fetch_poll(ns, tag, lg, w0):
        per = 16 >> lg
        a(f"s_sub_u32 s52, s25, {w0}", f"s_cmp_ge_u32 s52, {len(ns) << lg}", f"s_cbranch_scc1 L_{tag}_p")
        code = 0; slots = 0
        for k_, n in enumerate(ns):
            code |= (HB[n][0]*2 + HB[n][1]) << (4*k_); slots |= (n % 10) << (4*k_)
        a(f"s_lshr_b32 s63, s52, {lg}", "s_lshl_b32 s63, s63, 2", f"s_lshr_b32 s53, {code:#x}, s63", "s_and_b32 s53, s53, 15",
          "s_lshl_b32 s57, s24, 1", "s_xor_b32 s53, s53, s57",
          "s_lshl_b32 s57, s53, 7", "s_add_u32 s57, s57, s60",
          "s_mov_b64 exec, 15", poll, "s_mov_b64 exec, -1")
        a("s_lshl_b32 s53, s53, 14", "s_add_u32 s56, s53, s54",
          f"s_and_b32 s52, s52, {(1 << lg) - 1}", f"s_mul_i32 s52, s52, {per*1024}", "s_add_u32 s56, s56, s52",
          f"s_lshr_b32 s53, {slots:#x}, s63", "s_and_b32 s53, s53, 15", "s_lshl_b32 s53, s53, 14", "s_add_u32 s52, s52, s53", f"L_{tag}_p:")
    def fetch_load(ns, tag, lg, w0):
        per = 16 >> lg
        a(f"s_sub_u32 s53, s25, {w0}", f"s_cmp_ge_u32 s53, {len(ns) << lg}", f"s_cbranch_scc1 L_{tag}_done", "s_mov_b64 exec, 15")
        spin(a, tag, [f"v_cmp_eq_u64 vcc, s[48:49], {vr(T,2)}", "s_nop 1", "s_cmp_eq_u64 vcc, 15"], poll, SLP)
        a("s_mov_b64 exec, -1")
        for i in range(per):
            if i % 4 == 0: a(f"s_add_u32 m0, s52, {i*1024}", f"s_add_u32 s53, s56, {i*1024}")
            a(f"buffer_load_dwordx4 v{LO}, s[36:39], s53 offen offset:{(i%4)*1024} sc1 lds")
        a(f"L_{tag}_done:")
    SLP = opt("slp", "4")[0]
    a("s_setprio 3", "s_cmp_lt_u32 s25, 4", "s_cselect_b32 s3, 1, 0")
    a(kread(0), kread(1), vread(0), f"ds_read_b64 {vr(T+2,2)}, v{T}", "s_waitcnt lgkmcnt(4)")
    a(mfma(S[0], KB[0], Q, "0"))
    a.c("later-needed lane constants, computed in the shadow of the first MFMA")
    a(f"v_lshrrev_b32 v{WOA}, 4, v{LO}", f"v_bfe_u32 v{CK}, v{WOA}, 4, 1", f"v_lshlrev_b32 v{CK}, 1, v{CK}", f"v_and_b32 v{CK+1}, 7, v{WOA}",
      f"v_xor_b32 v{CK}, v{CK}, v{CK+1}", f"v_lshlrev_b32 v{CK}, 4, v{CK}", f"v_lshrrev_b32 v{WOA}, 3, v{WOA}",
      f"v_lshl_add_u32 v{WOA}, v{WOA}, 10, v{CK}", f"v_and_b32 v{T+5}, 0x78, v{T+4}",
      f"v_mov_b32 v{CK}, 1.0", f"v_mov_b32 v{CK+1}, 0x57800000", f"v_mov_b32 v60, 0")
    a("s_waitcnt lgkmcnt(0)")
    a(f"v_readfirstlane_b32 s48, v{T+2}", f"v_readfirstlane_b32 s49, v{T+3}")
    a("s_nop 0")
    NT = 64
    WO = 98304
    B1L = "b1late" in OPT
    LATE = (7, 11) if B1L else (7,)
    BAR = (18, 34, 54) if B1L else (10, 18, 34, 54)
    prio_at = {4: 2, 6: 1, 7: 0, 10: 2 if B1L else 1, 11: 1 if B1L else 3, 14: 2, 17: 1, 18: 0, 27: 2, 32: 1, 34: 0, 45: 2, 52: 1, 54: 0, 60: 2, 62: 1, 63: 0}
    for o in OPT:
        if o.startswith("pr="): prio_at.update({int(x.split(":")[0]): int(x.split(":")[1]) for x in o[3:].split(",")})
    SB = opt("sb", "3")[0]
    F1, F2, F3 = opt("ff", "4,8,12")
    P1_, Q1_, P2_, Q2_, P3_, Q3_ = opt("fu", "3,4,6,7,11,12")
    FETCH = [([2], "f1", 1, 8, P1_, Q1_), ([3, 4], "f2", 1, 10, P2_, Q2_), ([5, 6, 7, 8], "f3", 1, 8, P3_, Q3_),
             ([9, 10, 11, 12, 13], "f4", 0, 8, 19, 20), ([14, 15], "f5", 2, 8, 35, 36)]
    PF_ = opt("pf", "16")[0]
    WOU = {37: 0, 38: 1, 56: 2, 57: 3}; XU, XC = 46, 55
    if "plan4" in OPT:
        BAR = (10, 26, 46)
        prio_at = {4: 2, 6: 1, 7: 0, 10: 1, 11: 3, 18: 2, 24: 1, 26: 0, 37: 2, 44: 1, 46: 0, 56: 2, 61: 1, 63: 0}
        FETCH = [([2], "f1", 1, 8, P1_, Q1_), ([3, 4, 5, 6], "f2", 1, 8, 6, 7), ([7, 8, 9, 10, 11], "f3", 0, 8, 14, 15), ([12, 13, 14, 15], "f4", 1, 8, 27, 28)]
        PF_ = 12; WOU = {48: 0, 49: 1, 50: 2, 51: 3}; XU, XC = 38, 47
    def publish(u, force):
        a("s_cmp_eq_u32 s3, 0", f"s_cbranch_scc1 L_pub{u}")
        if force == "A": a("s_cmp_lt_u32 s25, 4", f"s_cbranch_scc1 L_pubf{u}")
        if force != "all": a("s_getreg_b32 s53, hwreg(HW_REG_IB_STS)", "s_and_b32 s53, s53, 0xc0000f", f"s_cbranch_scc1 L_pub{u}")
        a(f"L_pubf{u}:", f"v_mov_b32 v{T}, s48", f"v_mov_b32 v{T+1}, s49", "s_waitcnt vmcnt(0)")
        stamp(a, 7)
        a("s_mov_b64 exec, 1", f"buffer_store_dwordx2 {vr(T,2)}, v60, s[36:39], s61 offen {WT}", "s_mov_b64 exec, -1", "s_mov_b32 s3, 0", f"L_pub{u}:")
    def barrier(u):
        if u < 20: a("s_cmp_lt_u32 s25, 8", f"s_cbranch_scc1 L_b{u}", "s_waitcnt vmcnt(0)", f"L_b{u}:")
        else: a("s_waitcnt vmcnt(0)")
        a("s_barrier", "s_setprio 3")
        IDL = opt("idle", "99,0")
        if u == IDL[0]: a(f"s_sleep {IDL[1]}")
    for u in range(NT):
        s = S[u % 2]
        if u in prio_at: a(f"s_setprio {prio_at[u]}")
        late = u in LATE
        a("s_waitcnt lgkmcnt(0)")
        a(ex(s, 0, 2))
        if u > 0: a(smf(O, VB[(u-1) % 2] + 4, S[(u-1) % 2] + 8, IDX))
        if u + 1 < NT and not late: a(vread(u + 1))
        a(ex(s, 2, 5))
        if u + 1 < NT and not late:
            a(mfma(S[(u+1) % 2], KB[(u+1) % 2], Q, "0"))
            if u in BAR:
                barrier(u)
                if u == 34: stamp(a, 10)
                if u == 18 and "b12" in OPT: stamp(a, 2)
                if u == 10 and "b12" in OPT: stamp(a, 1)
                cstamp(a, {10: 2, 18: 3, 34: 4, 54: 6}.get(u, 7))
            if u + 2 < NT and u + 1 not in LATE: a(kread(u + 2))
        a(ex(s, 5, 10))
        a(smf(O, VB[u % 2], s, IDX))
        a(ex(s, 10, 16))
        if u <= PF_:
            if u == 0: a.c("publish this wave's K/V tile as soon as its stores have been acknowledged")
            publish(u, "A" if u == 7 else "all" if u == PF_ else "")
        if late:
            if u == 7: stamp(a, 8)
            barrier(u)
            if u == 7: stamp(a, 9)
            if u == 11 and "b12" in OPT: stamp(a, 1)
            cstamp(a, {7: 1, 11: 2}[u])
            a(kread(u + 1), kread(u + 2), vread(u + 1), "s_waitcnt lgkmcnt(3)", mfma(S[(u+1) % 2], KB[(u+1) % 2], Q, "0"), "s_nop 10")
        if u == SB:
            a.c("second-half tiles go out after the first-half ones, which are needed sooner")
            a("s_sub_u32 s53, s25, 4", "s_cmp_ge_u32 s53, 4", "s_cbranch_scc1 L_nost2", gst, "s_mov_b32 s3, 1", "L_nost2:")
        if u == 19:
            a.c("wave 0 publishes the workgroup's XCC id")
            a("s_cmp_lg_u32 s25, 0", "s_cbranch_scc1 L_xid", f"v_mov_b32 v{T}, s48", f"v_mov_b32 v{T+1}, s49",
              f"v_or_b32 v{T}, s26, v{T}", "s_lshl_b32 s53, s23, 3", "s_add_u32 s53, s53, s10",
              "s_mov_b64 exec, 1", f"buffer_store_dwordx2 {vr(T,2)}, v60, s[36:39], s53 offen {WT}", "s_mov_b64 exec, -1", "L_xid:")
        for (ns, tag, lg, w0, up, ul) in FETCH:
            if u == up: fetch_poll(ns, tag, lg, w0)
            if u == ul: fetch_load(ns, tag, lg, w0)
        if u in WOU:
            aa = WOU[u]
            if aa == 0: a.c("Wo tile -> LDS (half-slots 6..9)")
            a("s_lshl_b32 s63, s25, 13", f"s_add_u32 m0, s62, {WO + aa*16384}", f"s_add_u32 s53, s63, {aa*131072}", f"buffer_load_dwordx4 v{WOA}, s[40:43], s53 offen lds")
        if u == XU:
            a.c("XCC ids of the row block's workgroups; bring the O and O-flag lines this wave will write into L2")
            a(f"buffer_load_dwordx2 {vr(T+2,2)}, v{T+5}, s[36:39], s10 offen sc1",
              f"buffer_load_dword v{T+1}, v60, s[36:39], s59 offen",
              f"buffer_load_dword v{T}, v{LO}, s[36:39], s58 offen")
        if u == XC:
            a.c("local hand-off only when all 16 workgroups of this row block run on this XCC")
            a("s_or_b32 s52, s48, s26", "s_mov_b32 s53, s49", f"v_cmp_eq_u64 vcc, s[52:53], {vr(T+2,2)}", "s_nop 1",
              "s_cmp_eq_u64 vcc, -1", "s_cselect_b32 s27, 1, 0")
            if "noloc" in OPT: a("s_mov_b32 s27, 0")
    a("s_nop 1", smf(O, VB[(NT-1) % 2] + 4, S[(NT-1) % 2] + 8, IDX), "s_setprio 3",
      f"v_mov_b32 v{T}, s48", f"v_mov_b32 v{T+1}, s49", f"v_mov_b32 v{T+3}, 0x7f800000", "s_nop 7")
    a.c("safety check of the zero stand-in: 1 <= l <= 2^48 and finite O, else redo with the true row max")
    a(f"v_cmp_le_f32 s[52:53], v{CK}, v{O+8}", f"v_cmp_ge_f32 s[56:57], v{CK+1}, v{O+8}",
      f"v_maximum3_f32 v{CK}, abs(v{O}), abs(v{O+1}), abs(v{O+2})", f"v_maximum3_f32 v{CK}, abs(v{O+3}), abs(v{O+4}), v{CK}",
      f"v_maximum3_f32 v{CK}, abs(v{O+5}), abs(v{O+6}), v{CK}", f"v_maximum3_f32 v{CK}, abs(v{O+7}), v{CK}, v{CK}",
      "s_and_b64 s[52:53], s[52:53], s[56:57]",
      f"v_cmp_gt_f32 vcc, v{T+3}, v{CK}", f"v_rcp_f32 v{T+2}, v{O+8}", "s_and_b64 s[52:53], s[52:53], vcc",
      "s_cmp_eq_u64 s[52:53], -1", "s_cbranch_scc0 L_fallback")
    a("L_finish:")
    stamp(a, 11)
    cstamp(a, 5)
    if "cyc2" in OPT: a("s_memtime s[96:97]", "s_waitcnt lgkmcnt(0)", "s_sub_u32 s96, s96, s98", "s_add_u32 s66, s82, s96", "s_addc_u32 s67, s83, 0")
    for r in range(4): a(f"v_pk_mul_f32 {vr(O+2*r,2)}, {vr(O+2*r,2)}, {vr(T+2,2)} op_sel_hi:[1,0]")
    for r in range(4): a(f"v_cvt_pk_bf16_f32 v{O+12+r}, v{O+2*r}, v{O+2*r+1}")
    a("s_cmp_eq_u32 s27, 1", "s_cbranch_scc1 L_ostore_local")
    a(f"buffer_store_dwordx4 {vr(O+12,4)}, v{LO}, s[36:39], s58 offen {WT}", "s_waitcnt vmcnt(0)",
      "s_mov_b64 exec, 1", f"buffer_store_dwordx2 {vr(T,2)}, v60, s[36:39], s59 offen {WT}", "s_mov_b64 exec, -1", "s_branch L_ostored")
    a("L_ostore_local:")
    a(f"buffer_store_dwordx4 {vr(O+12,4)}, v{LO}, s[36:39], s58 offen", "s_waitcnt vmcnt(0)",
      "s_mov_b64 exec, 1", f"buffer_store_dwordx2 {vr(T,2)}, v60, s[36:39], s59 offen", "s_mov_b64 exec, -1")
    a("L_ostored:")
    stamp(a, 12)
    a("s_barrier")
    if TS:
        a("s_cmp_lt_u32 s25, 8", "s_cbranch_scc1 L_ts_p3", ["s_barrier"]*(5 if "g4" in OPT else 3))
        if "allw" in OPT:
            for w in range(8, 16): ts_flush(a, w, w, f"w{w}")
        else:
            ts_flush(a, 1, 8, "w8")
            ts_flush(a, 2, 15, "w15")
        a("s_endpgm", "L_ts_p3:")
    else:
        a("s_cmp_ge_u32 s25, 8", "s_cbranch_scc1 L_done")

    ACC3 = [0, 16]; OFR = 32; WB = [96, 104, 112]; A3 = [120, 122]; VO = 116; PA = 123; L = 118; PF = 124
    opoll = [f"buffer_load_dwordx4 {vr(PF,4)}, v{LO}, s[36:39], s11 offen sc1"]
    ocond = [f"v_cmp_eq_u64 vcc, s[48:49], {vr(PF,2)}", f"v_cmp_eq_u64 s[52:53], s[48:49], {vr(PF+2,2)}", "s_nop 1",
             "s_and_b64 vcc, vcc, s[52:53]", "s_cmp_eq_u64 vcc, -1"]
    a("s_cmp_lt_u32 s25, 4", "s_cbranch_scc1 L_p3c")
    a("s_and_b32 s56, s25, 3", "s_lshl_b32 s56, s56, 14")
    a("s_barrier")
    for i in range(16):
        a(f"s_add_u32 m0, s56, {i*1024}", f"s_add_u32 s53, s12, {(16+i)*1024}", f"buffer_load_dwordx4 v{LO}, s[36:39], s53 offen sc1 lds")
    G3 = 4 if "g4" in OPT else 8
    for x in range(16 - G3, -1, -G3): a(f"s_waitcnt vmcnt({x})", "s_barrier")
    if "wb2" in OPT:
        a("s_cmp_lg_u32 s25, 4", "s_cbranch_scc1 L_nowb", "buffer_wbl2 sc1", "L_nowb:")
    if "allw" in OPT:
        for w in range(4, 8): ts_flush(a, w, w, f"w{w}")
    a("s_endpgm")
    a("L_p3c:")
    a(opoll)
    a(f"v_lshrrev_b32 v6, 4, v{LO}")
    a(f"v_lshrrev_b32 v4, 5, v6", f"v_bfe_u32 v5, v6, 2, 2", "v_lshl_add_u32 v4, v4, 2, v5", "v_lshlrev_b32 v4, 7, v4",
      f"v_and_b32 v5, 1, v6", "v_lshl_add_u32 v4, v5, 6, v4", f"v_bfe_u32 v5, v6, 4, 1", "v_lshl_add_u32 v4, v5, 4, v4",
      f"v_bfe_u32 v5, v6, 3, 1", "v_lshl_add_u32 v4, v5, 5, v4", f"v_bfe_u32 v5, v6, 1, 1", f"v_lshl_add_u32 v4, v5, 3, v4",
      f"v_add_u32 v{A3[0]}, {WO}, v4", f"v_xor_b32 v{A3[1]}, 32, v{A3[0]}")
    a("s_lshl_b32 s56, s25, 14", f"v_add_u32 v{PA}, s56, v{LO}")
    def reads3(hd, buf):
        out = []
        for cb in range(2):
            for j in range(2):
                out.append(f"ds_read_b64_tr_b16 {vr(buf + cb*4 + j*2, 2)}, v{A3[cb]} offset:{hd*2048 + j*1024}")
        return out
    a(reads3(0, WB[0]), reads3(1, WB[1]))
    spin(a, "o", ocond, opoll)
    stamp(a, 13)
    for i in range(16):
        if i % 4 == 0: a(f"s_add_u32 s53, s12, {i*1024}")
        a(f"buffer_load_dwordx4 {vr(OFR + i*4, 4)}, v{LO}, s[36:39], s53 offen offset:{(i%4)*1024} sc1")
    a("s_barrier")
    lq = ["W0"]*4 + ["W1"]*4
    def lwait(need):
        nonlocal lq
        idx = [i for i, x in enumerate(lq) if x in need]
        if not idx: return None
        keep = len(lq) - 1 - max(idx)
        lq = lq[len(lq) - keep:]
        return keep
    def oread(n):
        lq.append(f"O{n}")
        return f"ds_read_b128 {vr(OFR + (n-16)*4, 4)}, v{PA} offset:{(n-16)*1024}"
    for n in range(32):
        cur = WB[n % 3]
        if n >= 16 and n % G3 == 0:
            if "p3ts" in OPT and n == 16: stamp(a, 2); lq = []
            a("s_barrier")
            if "p3ts" in OPT and n == 32 - G3: stamp(a, 3); lq = []
            for i in range(2): a(oread(n + i))
        kw = lwait({f"W{n}", f"O{n}"})
        w = []
        if n < 16: w.append(f"vmcnt({15 - n})")
        if kw is not None: w.append(f"lgkmcnt({kw})")
        if w: a("s_waitcnt " + " ".join(w))
        if "p3ts" in OPT and n in (0, 31): stamp(a, {0: 1, 31: 4}[n]); lq = []
        rd = reads3(n + 2, WB[(n+2) % 3]) if n + 2 < 32 else []
        for cb in range(2):
            a(mfma(ACC3[cb], cur + cb*4, OFR + (n%16)*4, "0" if n == 0 else ACC3[cb]))
            if rd: a(rd[2*cb:2*cb+2]); lq.extend([f"W{n+2}"]*2)
            if cb == 0 and n >= 16 and (n % G3) + 2 < G3: a(oread(n + 2))
        assert len(lq) <= 15, lq
    a(f"v_lshrrev_b32 v{L}, 4, v{LO}")
    PA = 117
    a.c("transpose through LDS (slot 1 is free) so that every store writes whole 128-byte lines")
    TA_ = 119; TB_ = 120
    a(f"v_and_b32 v{TA_}, 31, v{L}", f"v_lshrrev_b32 v{PA}, 5, v{L}", f"v_lshlrev_b32 v{PA}, 2, v{PA}", f"v_and_b32 v{TB_}, 7, v{L}",
      f"v_xor_b32 v{PA}, v{PA}, v{TB_}", f"v_lshlrev_b32 v{PA}, 4, v{PA}", f"v_lshl_add_u32 v{TA_}, v{TA_}, 7, v{PA}",
      "s_mov_b32 s52, s56", f"v_add_u32 v{TA_}, s52, v{TA_}",
      f"v_lshrrev_b32 v{PA}, 3, v{L}", f"v_xor_b32 v{VO}, v{PA}, v{TB_}", f"v_lshlrev_b32 v{VO}, 4, v{VO}", f"v_lshl_add_u32 v{VO}, v{PA}, 7, v{VO}",
      f"v_add_u32 v{VO}, s52, v{VO}",
      f"v_lshlrev_b32 v{TB_}, 4, v{TB_}", f"v_lshl_add_u32 v{TB_}, v{PA}, 11, v{TB_}")
    for cb in range(2):
        for q in range(2):
            c = cb*2 + q
            t = 32 + c*4
            for r in range(4): a(f"v_cvt_pk_bf16_f32 v{t+r}, v{ACC3[cb]+q*8+2*r}, v{ACC3[cb]+q*8+2*r+1}")
            if c: a(f"v_xor_b32 v{PA}, {c*16}, v{TA_}")
            a(f"ds_write_b128 v{PA if c else TA_}, {vr(t,4)}")
    a("s_waitcnt lgkmcnt(0)")
    for i in range(4): a(f"ds_read_b128 {vr(48 + i*4, 4)}, v{VO} offset:{i*1024}")
    for i in range(4):
        a(f"s_add_u32 s53, s13, {i*16384}", f"s_waitcnt lgkmcnt({3-i})", f"buffer_store_dwordx4 {vr(48 + i*4, 4)}, v{TB_}, s[44:47], s53 offen" + (" sc1" if "osc1" in OPT else " nt" if "ont" in OPT else " sc0 sc1" if "osys" in OPT else ""))
    if TS:
        if "p3ts" in OPT: stamp(a, 5)
        a("s_waitcnt vmcnt(0)")
        stamp(a, 14)
        ts_flush(a, 0, 0, "w0")
        if "allw" in OPT:
            for w in range(1, 4): ts_flush(a, w, w, f"w{w}")
    a("L_done:", "s_endpgm")

    a("L_fallback:")
    M = T + 2
    a("s_lshr_b32 s52, s25, 3", "s_lshl_b32 s52, s52, 13", "s_add_u32 s52, s52, s54",
      f"v_mov_b32 v{M}, 0xff800000", "s_mov_b32 s63, 0",
      f"v_sub_u32 v{T+3}, v{VA[0]}, v{KA[0]}", f"v_add_u32 v{T+3}, v{T+3}, v{LO}")
    def fb_addr():
        return ["s_lshr_b32 s53, s63, 2", "s_lshl_b32 s53, s53, 14", "s_and_b32 s56, s63, 3", "s_lshl_b32 s56, s56, 11",
                "s_add_u32 s53, s53, s56", "s_add_u32 s53, s53, s52"]
    a("L_fb1:", fb_addr(),
      f"buffer_load_dwordx4 {vr(KB[0],4)}, v{LO}, s[36:39], s53 offen sc1", "s_waitcnt vmcnt(0)",
      mfma(S[0], KB[0], Q, "0"), "s_nop 15")
    for r in range(8): a(f"v_max3_f32 v{M}, v{S[0]+2*r}, v{S[0]+2*r+1}, v{M}")
    a("s_add_u32 s63, s63, 1", "s_cmp_lg_u32 s63, 64", "s_cbranch_scc1 L_fb1")
    a(f"v_mov_b32 v{T}, v{M}", "s_nop 1", f"v_permlane32_swap_b32 v{M}, v{T}", "s_nop 1", f"v_max_f32 v{M}, v{M}, v{T}", f"v_sub_f32 v{M}, 0, v{M}")
    for r in range(16): a(f"v_mov_b32 v{CM+r}, v{M}")
    for r in range(16): a(f"v_mov_b32 v{O+r}, 0")
    a("s_mov_b32 s63, 0")
    a("L_fb2:", fb_addr(),
      f"buffer_load_dwordx4 {vr(KB[0],4)}, v{LO}, s[36:39], s53 offen sc1", "s_mov_b64 exec, s[50:51]",
      f"buffer_load_dwordx4 {vr(VB[0],4)}, v{T+3}, s[36:39], s53 offen sc1",
      f"buffer_load_dwordx4 {vr(VB[0]+4,4)}, v{T+3}, s[36:39], s53 offen offset:512 sc1", "s_mov_b64 exec, -1",
      "s_waitcnt vmcnt(0)", mfma(S[0], KB[0], Q, CM), "s_nop 15")
    a(ex(S[0], 0, 16), "s_nop 1", smf(O, VB[0], S[0], IDX), smf(O, VB[0] + 4, S[0] + 8, IDX))
    a("s_add_u32 s63, s63, 1", "s_cmp_lg_u32 s63, 64", "s_cbranch_scc1 L_fb2")
    a("s_nop 15", f"v_rcp_f32 v{T+2}, v{O+8}", f"v_mov_b32 v{T}, s48", f"v_mov_b32 v{T+1}, s49", "s_branch L_finish", "L_code_end:")
    a.l.append(f""".section .rodata,"a"
.p2align 6
.amdhsa_kernel {k}
  .amdhsa_next_free_vgpr 128
  .amdhsa_next_free_sgpr {102 if TS else 68}
  .amdhsa_accum_offset 128
  .amdhsa_group_segment_fixed_size 0
  .amdhsa_kernarg_size 72
  .amdhsa_user_sgpr_count 2
  .amdhsa_user_sgpr_kernarg_segment_ptr 1
  .amdhsa_system_sgpr_workgroup_id_x 1
.end_amdhsa_kernel""")

a = Asm()
a.l += """; Two multi-head attention blocks (S=2048, D=512, H=32, Dh=16) in one launch, 256 workgroups x 16 waves.
; @launch grid=(256,1,1) block=(1024,1,1) lds=163840
; Workgroup = (problem p, head pair hp, block j of 256 tokens); ids are laid out so that a token block's 16 workgroups
; share an XCD (speed only - every hand-off below is valid under any placement).
;  P1  q,k,v projection of the 256 tokens x 2 heads: waves 8-15 stream x / wqkv k-chunks into LDS (LDS-DMA ring),
;      waves 0-7 run 16x16x32 MFMAs and leave Q, K and V^T as ready MFMA fragments (Q scaled by log2(e)/4).
;      K/V go to LDS (own tiles) and, write-through, to d_ws for the other seven token blocks.
;  P2  wave = (32 queries, head). S^T = K Q^T (32x32x16 MFMA), p = exp2(S^T) in place, O^T += V^T p with the 2:4
;      sparse MFMA reading the fp32 p registers as bf16 pairs (index 0xdddd keeps the high halves = truncated bf16);
;      a ones row in V^T accumulates the row sum. No max is subtracted; afterwards the wave checks that the row sums
;      lie in [1, 2^48] and O is finite, otherwise it redoes its rows with the true row max (L_fallback).
;      Remote K/V arrive in 16 KB half-blocks through a ten-slot LDS ring, each after its producer's flags.
;  P3  output projection of a 128 x 64 tile after the row block's O fragments are flagged.
; Flags carry a per-launch tag (clock value published through d_debug by workgroup 0); every wait is bounded.
.amdgcn_target "amdgcn-amd-amdhsa--gfx950"
.text""".split("\n")
gen(a)
print(a.text())
```
